```python
import torch

def _softmax(x, axis=-1):
    return torch.softmax(x, dim=axis)
def _gelu(x):
    return torch.nn.functional.gelu(x, approximate="tanh")
def _silu(x):
    return torch.nn.functional.silu(x)
def _sigmoid(x):
    return torch.sigmoid(x)
def _layernorm(x, axis=-1, eps=1e-5):
    m = x.mean(dim=axis, keepdim=True)
    v = x.var(dim=axis, keepdim=True, unbiased=False)
    return (x - m) / torch.sqrt(v + eps)
def _scatter_add(tgt, idx, src, axis=0):
    return tgt.clone().index_add_(axis, idx, src)
def _segment_sum(src, seg, n):
    out = torch.zeros((n,) + src.shape[1:], dtype=src.dtype)
    return out.index_add_(0, seg, src)
def _pad(x, pw):
    flat = tuple(v for pair in reversed(pw) for v in pair)
    return torch.nn.functional.pad(x, flat)

kernel_name = 'recurrent_scan__gqa_block_cached__geglu_ffn__decode'

def setup_inputs():

    _w = (lambda a: (lambda t: t.to(torch.bfloat16) if t.is_floating_point() else t)(torch.as_tensor(a)))
    def _A_setup():
        B, Sq, D = 2, 1, 576
        Hq, Hkv, Sk, Dh = 32, 16, 32768, 128
        assert Hq % Hkv == 0, (Hq, Hkv)
        return {
            "x": _w((lambda *s: torch.randn(*s, dtype=torch.bfloat16) * 0.05)(B, Sq, D)),
            "k_cache": _w((lambda *s: torch.randn(*s, dtype=torch.bfloat16) * 1.6)(B, Hkv, Sk, Dh)),
            "v_cache": _w((lambda *s: torch.randn(*s, dtype=torch.bfloat16) * 0.2)(B, Hkv, Sk, Dh)),
            "wq": _w((lambda *s: torch.randn(*s, dtype=torch.bfloat16) * 1.6)(D, Hq * Dh) * (D ** -0.5)),
            "wo": _w((lambda *s: torch.randn(*s, dtype=torch.bfloat16) * 0.2)(Hq * Dh, D) * ((Hq * Dh) ** -0.5)),
        }
    _A_in = _A_setup()

    def _B_setup():
        B, S, D, F = 2, 1, 576, 4608
        return {
            "x": _w((lambda *s: torch.randn(*s, dtype=torch.bfloat16) * 0.05)(B, S, D)),
            "w_gate": _w((lambda *s: torch.randn(*s, dtype=torch.bfloat16) * 0.1)(D, F)),
            "w_up": _w((lambda *s: torch.randn(*s, dtype=torch.bfloat16) * 0.1)(D, F)),
            "w_down": _w((lambda *s: torch.randn(*s, dtype=torch.bfloat16) * 0.1)(F, D)),
        }
    _B_in = _B_setup()

    return {
        "A_x": _A_in["x"],
        "A_k_cache": _A_in["k_cache"],
        "A_v_cache": _A_in["v_cache"],
        "A_wq": _A_in["wq"],
        "A_wo": _A_in["wo"],
        "B_x": _B_in["x"],
        "B_w_gate": _B_in["w_gate"],
        "B_w_up": _B_in["w_up"],
        "B_w_down": _B_in["w_down"],
    }

def reference(A_x, A_k_cache, A_v_cache, A_wq, A_wo, B_x, B_w_gate, B_w_up, B_w_down):
    def _A_ref(x, k_cache, v_cache, wq, wo):
        B, Sq, D = x.shape
        Hq, Dh = 32, 128
        Hkv = k_cache.shape[1]
        rep = Hq // Hkv
        q = (lambda x, *d: x.permute(*d))((x @ wq).reshape(B, Sq, Hq, Dh), 0, 2, 1, 3)
        k = (lambda x, n, axis: torch.repeat_interleave(x, n, dim=axis))(k_cache, rep, axis=1)
        v = (lambda x, n, axis: torch.repeat_interleave(x, n, dim=axis))(v_cache, rep, axis=1)
        scores = torch.einsum("bhqd,bhkd->bhqk", q, k) * (Dh ** -0.5)
        p = _softmax(scores, axis=-1)
        o = torch.einsum("bhqk,bhkd->bhqd", p, v)
        return (lambda x, *d: x.permute(*d))(o, 0, 2, 1, 3).reshape(B, Sq, Hq * Dh) @ wo

    def _B_ref(x, w_gate, w_up, w_down):
        return (_gelu(x @ w_gate) * (x @ w_up)) @ w_down

    x = A_x
    xn = _layernorm(x, axis=-1)
    s = _A_ref(xn, A_k_cache, A_v_cache, A_wq, A_wo)
    g = _silu(_B_ref(xn, B_w_gate, B_w_up, B_w_down))
    return x + s * g
```

```python
import re

TRANS = ("v_exp_f32", "v_log_f32", "v_rcp_f32", "v_rsq_f32", "v_sqrt_f32", "v_sin_f32", "v_cos_f32", "v_rcp_iflag_f32")
REG_RE = re.compile(r"^(-|abs\()?\s*([vas])(?:\[(\d+):(\d+)\]|(\d+))\)?$")

def regs_of(tok):
    tok = tok.strip()
    if tok.startswith("-"): tok = tok[1:]
    m = re.match(r"^abs\((.*)\)$", tok)
    if m: tok = m.group(1)
    if tok == "vcc": return [("s", "vcc")]
    if tok in ("exec", "exec_lo", "exec_hi"): return [("s", "exec")]
    if tok == "m0": return [("s", "m0")]
    m = re.match(r"^([vas])\[(\d+):(\d+)\]$", tok)
    if m: return [(m.group(1), k) for k in range(int(m.group(2)), int(m.group(3)) + 1)]
    m = re.match(r"^([vas])(\d+)$", tok)
    if m: return [(m.group(1), int(m.group(2)))]
    return []

class Ins:
    __slots__ = ("text", "op", "ops", "kind", "w", "r", "label", "target", "mods", "nopn", "cregs", "abregs")
    def __init__(self, text):
        self.text = text
        self.label = None; self.target = None; self.nopn = 0
        t = text.split(";")[0].strip()
        self.w = []; self.r = []; self.cregs = []; self.abregs = []
        self.kind = "other"; self.op = ""; self.mods = ""
        if not t or t.startswith("."):
            self.kind = "none"; return
        if t.endswith(":"):
            self.kind = "label"; self.label = t[:-1]; return
        parts = t.split(None, 1)
        op = parts[0]; self.op = op
        rest = parts[1] if len(parts) > 1 else ""
        toks = [x.strip() for x in rest.split(",")] if rest else []
        if toks:
            last = toks[-1].split()
            if len(last) > 1:
                toks[-1] = last[0]; self.mods = " ".join(last[1:])
        self.ops = toks
        R = lambda k: regs_of(toks[k]) if k < len(toks) else []
        if op == "s_nop":
            self.kind = "nop"; self.nopn = int(toks[0], 0) + 1
        elif op in ("s_branch",) or op.startswith("s_cbranch"):
            self.kind = "branch"; self.target = toks[0]
            if "vcc" in op: self.r = [("s", "vcc")]
        elif op == "s_endpgm":
            self.kind = "end"
        elif op.startswith("v_mfma"):
            self.kind = "mfma"; self.w = R(0); self.abregs = R(1) + R(2); self.cregs = R(3); self.r = self.abregs + self.cregs
        elif op.startswith("v_cmp"):
            self.kind = "valu"; self.w = R(0); self.r = sum((R(k) for k in range(1, len(toks))), [])
        elif op.startswith("v_readfirstlane") or op.startswith("v_readlane"):
            self.kind = "valu"; self.w = R(0); self.r = sum((R(k) for k in range(1, len(toks))), [])
        elif op.startswith("v_permlane"):
            self.kind = "valu"; self.w = R(0) + R(1); self.r = R(0) + R(1)
        elif op.startswith("v_"):
            self.kind = "valu"; self.w = R(0)
            srcs = sum((R(k) for k in range(1, len(toks))), [])
            if op.startswith(("v_add_co", "v_addc_co", "v_sub_co", "v_subb_co")):
                self.w = R(0) + R(1); srcs = sum((R(k) for k in range(2, len(toks))), [])
            if op.startswith(("v_fmac", "v_writelane", "v_dot2c")): srcs += R(0)
            if op.startswith("v_cndmask") and len(toks) == 3: srcs += [("s", "vcc")]
            self.r = srcs
        elif op.startswith("buffer_") or op.startswith("global_"):
            self.kind = "vmem"
            lds = " lds" in (" " + self.mods)
            if op.startswith("buffer_load"):
                if lds: self.r = sum((R(k) for k in range(0, len(toks))), []) + [("s", "m0")]
                else: self.w = R(0); self.r = sum((R(k) for k in range(1, len(toks))), [])
            elif op.startswith("buffer_store"):
                self.r = sum((R(k) for k in range(0, len(toks))), [])
            elif op.startswith("buffer_atomic"):
                self.r = sum((R(k) for k in range(0, len(toks))), []); self.w = R(0) if "sc0" in self.mods else []
            else:
                raise ValueError("unhandled vmem " + text)
        elif op.startswith("ds_"):
            self.kind = "ds"
            if op.startswith("ds_read") or op.startswith("ds_bpermute") or op.startswith("ds_swizzle") or "_rtn" in op:
                self.w = R(0); self.r = sum((R(k) for k in range(1, len(toks))), [])
            else:
                self.r = sum((R(k) for k in range(0, len(toks))), [])
        elif op.startswith("s_"):
            self.kind = "salu"
            if op.startswith(("s_cmp", "s_waitcnt", "s_barrier", "s_sleep", "s_setprio", "s_bitcmp")):
                self.r = sum((R(k) for k in range(0, len(toks))), [])
            else:
                self.w = R(0); self.r = sum((R(k) for k in range(1, len(toks))), [])
                if "saveexec" in op: self.w += [("s", "exec")]
        else:
            raise ValueError("unknown instr " + text)

def is_dpp(i): return i.kind == "valu" and ("row_" in i.mods or "quad_perm" in i.mods or "_dpp" in i.op)

CAP = 10
def need(i, st):
    n = 0
    def req(tag, regs, dist):
        nonlocal n
        for r in regs:
            a = st.get((tag, r))
            if a is not None and a < dist: n = max(n, dist - a)
    vr = [r for r in i.r if r[0] in "va"]; vw = [r for r in i.w if r[0] in "va"]
    sr = [r for r in i.r if r[0] == "s"]
    if i.kind == "mfma":
        req("valuw", i.abregs + [r for r in i.cregs if r[0] in "va"], 2)
        req("mfmaw", i.abregs, 8)
        for r in i.cregs:
            a = st.get(("mfmaw", r))
            if a is not None:
                same = st.get(("mfmaD", r))
                if same != tuple(i.cregs) and a < 6: n = max(n, 6 - a)
    elif i.kind == "valu":
        req("mfmaw", i.r + i.w, 8)
        req("mfmac", vw, 3)
        if i.op.startswith("v_permlane"): req("valuw", vr, 2)
        if is_dpp(i): req("valuw", vr, 2)
        if i.op.startswith(("v_readfirstlane", "v_readlane")): req("valuw", vr, 1)
        if not i.op.startswith(TRANS): req("trans", vr, 1)
        req("valus", sr, 2)
        if i.op.startswith(("v_readlane", "v_writelane")): req("valus", sr, 4)
        req("stdata", vw, 2)
    elif i.kind == "vmem":
        req("mfmaw", i.r + i.w, 8)
        req("valus", sr, 5)
        if any(r == ("s", "m0") for r in i.r): req("saluw", [("s", "m0")], 1)
        req("stdata", vw, 1)
    elif i.kind == "ds":
        req("mfmaw", i.r + i.w, 8)
    return n

def step(i, st, extra=0):
    inc = extra + (i.nopn if i.kind == "nop" else (0 if i.kind in ("none", "label") else 1))
    ns = {}
    for k, a in st.items():
        if k[0] == "mfmaD": continue
        b = a + inc
        if b < CAP: ns[k] = b
    for k, a in st.items():
        if k[0] == "mfmaD" and ("mfmaw", k[1]) in ns: ns[k] = a
    if i.kind == "valu":
        for r in i.w:
            if r[0] in "va":
                ns[("valuw", r)] = 0
                ns.pop(("mfmaw", r), None); ns.pop(("mfmaD", r), None)
                if i.op.startswith(TRANS): ns[("trans", r)] = 0
                else: ns.pop(("trans", r), None)
            else: ns[("valus", r)] = 0
    elif i.kind == "mfma":
        for r in i.w:
            ns[("mfmaw", r)] = 0; ns[("mfmaD", r)] = tuple(i.w)
        for r in i.cregs:
            if r[0] in "va": ns[("mfmac", r)] = 0
    elif i.kind == "salu":
        for r in i.w:
            ns[("saluw", r)] = 0
            ns.pop(("valus", r), None)
    elif i.kind == "vmem":
        if i.op.startswith("buffer_store") and ("x3" in i.op or "x4" in i.op):
            for r in regs_of(i.ops[0]): ns[("stdata", r)] = 0
    return ns

def merge(a, b):
    if a is None: return dict(b), True
    ch = False
    for k, v in b.items():
        if k[0] == "mfmaD":
            if k in a:
                if a[k] != v: a[k] = (); ch = True
            else: a[k] = v; ch = True
        elif k not in a or v < a[k]:
            a[k] = v; ch = True
    return a, ch

def fix_hazards(lines, verbose=False):
    ins = [Ins(t) for t in lines]
    labels = {x.label: k for k, x in enumerate(ins) if x.kind == "label"}
    pad = [0] * len(ins)
    for it in range(50):
        states = [None] * (len(ins) + 1)
        work = []
        states[0] = {}; work.append(0)
        for k, x in enumerate(ins):
            if x.kind == "label" and x.label.endswith("_kernel"):
                if states[k] is None: states[k] = {}; work.append(k)
        changed_pad = False
        while work:
            k = work.pop()
            if k >= len(ins): continue
            x = ins[k]; st = states[k]
            n = need(x, step(Ins("s_nop 0"), st, pad[k] - 1) if pad[k] else st) if x.kind not in ("none", "label", "nop") else 0
            if n > 0:
                pad[k] += n; changed_pad = True
            out = step(x, st, pad[k])
            succ = []
            if x.kind == "end": succ = []
            elif x.kind == "branch":
                if x.target in labels: succ.append(labels[x.target])
                if x.op != "s_branch": succ.append(k + 1)
            else: succ = [k + 1]
            for s_ in succ:
                if s_ >= len(ins): continue
                states[s_], ch = merge(states[s_], out)
                if ch: work.append(s_)
        if not changed_pad: break
    outl = []
    tot = 0
    for k, x in enumerate(ins):
        p = pad[k]
        if p:
            tot += p
            while p > 0:
                q = min(p, 16); outl.append(f"  s_nop {q-1}"); p -= q
        outl.append(x.text)
    if verbose: print(f"; hazard pass inserted {tot} wait states")
    return outl

class Asm:
    def __init__(self): self.L = []; self.n = 0
    def __call__(self, s):
        for t in s.split("\n"):
            self.L.append(t if (t.strip().endswith(":") or t.startswith(".") or t.startswith(";")) else "  " + t.strip())
    def lab(self, name): self.L.append(name + ":")
    def uniq(self, p):
        self.n += 1; return f"{p}_{self.n}"

def vr(b, n=1): return f"v{b}" if n == 1 else f"v[{b}:{b+n-1}]"
def ar(b, n=1): return f"a{b}" if n == 1 else f"a[{b}:{b+n-1}]"
def sr(b, n=1): return f"s{b}" if n == 1 else f"s[{b}:{b+n-1}]"
```

```python
import struct, sys, math
from asmlib import Asm, fix_hazards, vr, ar, sr

NAME = "recurrent_scan__gqa_block_cached__geglu_ffn__decode_kernel"

def f2u(x): return struct.unpack("<I", struct.pack("<f", x))[0]

WS_EPOCH = 0
WS_QP   = 0x001000
WS_H1O  = 0x050000
WS_H1ML = 0x090000
WS_GU   = 0x0A0000
WS_YP   = 0x100000
WS_SP   = 0x1B0000
WS_DBG  = 0x200000
WS_SIZE = 0x400000

X_LN, XROW = 0, 1184
Q_LDS = 2432
X2, X2ROW = 3072, 576
X3, X3ROW = 4352, 192
MERGE = 4864
T_WQ = 6400
T_WO = T_WQ + 20480
T_FFN = T_WO + 32768
LDS_BYTES = T_FFN + 73728

LOG2E = 1.4426950408889634
SCALE = 128 ** -0.5
POLL_LIMIT = 400000

S_WAVE = 3
S_X, S_K, S_V, S_WQ, S_WO, S_BX, S_WG, S_WU = 4, 6, 8, 10, 12, 14, 16, 18
S_WD, S_OUT, S_DBG, S_WS = 20, 22, 24, 26
S_KV0, S_NSB, S_FT, S_FCB, S_WCB, S_FIN = 28, 29, 30, 31, 32, 33
S_HKV, S_B, S_M, S_REC = 36, 37, 38, 39
S_EPO, S_TAG, S_EPN = 40, 41, 42
SRD_K, SRD_V, SRD_WS, SRD_T, SRD_U = 44, 48, 52, 56, 60
SG1, SG2, SG3 = 80, 82, 84
S_CNT = 91
S_T0 = 92

def make_table(wside=0.8, c_ffn=72.0, c_wo=32.0, c_fin=45.0, adj=None):
    tab = []
    info = {}
    for w in range(256):
        x = w & 7; r = w >> 3
        info[w] = dict(x=x, r=r, g=r >> 3, j=r & 7, ft=0, fcb=0, wcb=255, fin=255)
    for x in range(8):
        e = 0
        for r in range(32):
            g, j = r >> 3, r & 7
            free = (j == 7) or (g == 3 and j == 6)
            w = x + 8 * r
            if not free:
                info[w]["ft"] = 1 + e % 3
                info[w]["fcb"] = 9 * x + e // 3
                e += 1
        assert e == 27
        for cq in range(2):
            ga, gb = 2 * cq, 2 * cq + 1
            five, four = (ga, gb) if cq == 0 else (gb, ga)
            lst = [(five, j) for j in (7, 6, 5, 4, 3)] + [(four, j) for j in (7, 6, 5, 4)]
            for cb, (g, j) in enumerate(lst):
                info[x + 8 * (8 * g + j)]["wcb"] = cb
        slots = [(3, 7), (3, 6), (2, 7)]
        for idx, (g, j) in enumerate(slots):
            f = x + 8 * idx
            if f < 18: info[x + 8 * (8 * g + j)]["fin"] = f
    for x in range(8):
        for g in range(4):
            ws_ = [x + 8 * (8 * g + j) for j in range(8)]
            side = []
            for w in ws_:
                i = info[w]
                s = (c_ffn if i["ft"] else 0) + (c_wo if i["wcb"] != 255 else 0) + (c_fin if i["fin"] != 255 else 0)
                if adj: s += adj(w, i)
                side.append(s * wside)
            tot = 1024 * 16 + sum(side)
            ideal = [(tot / 8 - s) / 16 for s in side]
            n = [int(math.floor(v)) for v in ideal]
            rem = 1024 - sum(n)
            order = sorted(range(8), key=lambda k: -(ideal[k] - n[k]))
            for k in order[:rem]: n[k] += 1
            assert sum(n) == 1024
            st = 0
            for k, w in enumerate(ws_):
                info[w]["kv0"] = st; info[w]["nsb"] = n[k]; st += n[k]
    for w in range(256):
        i = info[w]
        tab.append([i["kv0"], i["nsb"], i["ft"], i["fcb"], i["wcb"], i["fin"], 0, 0])
    return tab, info

def gemv(A, nsteps, cts, a_read, tr_read, acc, abuf, bbuf, nbuf):
    reads = []
    last = {}
    for n in range(nsteps):
        reads.append((n, a_read(n, abuf(n % nbuf))))
        for ct in cts:
            for u in range(2):
                reads.append((n, tr_read(n, ct, u, bbuf(n % nbuf, ct) + 2 * u)))
            last[(n, ct)] = len(reads) - 1
    issued = 0; done = 0
    for n in range(nsteps):
        for ci, ct in enumerate(cts):
            while issued < len(reads) and (issued - done) < 15 and reads[issued][0] < n + nbuf - (0 if ci == 0 or True else 0):
                if reads[issued][0] - nbuf >= n: break
                A(reads[issued][1]); issued += 1
            need = last[(n, ct)]
            assert issued > need, (issued, need, n, ct)
            if done <= need:
                k = issued - 1 - need
                A(f"s_waitcnt lgkmcnt({k})")
                done = need + 1
            c = "0" if n == 0 else vr(acc(ct), 4)
            A(f"v_mfma_f32_16x16x32_bf16 {vr(acc(ct),4)}, {vr(abuf(n % nbuf),4)}, {vr(bbuf(n % nbuf, ct),4)}, {c}")

def poll_begin(A, name):
    A(f"s_mov_b32 s{S_CNT}, {POLL_LIMIT}")
    A.lab(name)

def poll_end(A, name, sleep):
    ok = name + "_ok"
    A(f"s_cbranch_vccz {ok}")
    A(f"s_sub_u32 s{S_CNT}, s{S_CNT}, 1")
    A(f"s_cmp_eq_u32 s{S_CNT}, 0")
    A(f"s_cbranch_scc1 {ok}")
    if sleep: A(f"s_sleep {sleep}")
    A(f"s_branch {name}")
    A.lab(ok)

def reduce16(A, v, op="v_add_f32"):
    for k in (8, 4, 2, 1):
        A(f"{op}_dpp {vr(v)}, {vr(v)}, {vr(v)} row_ror:{k} row_mask:0xf bank_mask:0xf")

def swap16(A, v, t, op):
    A(f"v_mov_b32 {vr(t)}, {vr(v)}")
    A(f"v_permlane16_swap_b32 {vr(v)}, {vr(t)}")
    A(f"{op} {vr(v)}, {vr(v)}, {vr(t)}")

def swap32(A, v, t, op):
    A(f"v_mov_b32 {vr(t)}, {vr(v)}")
    A(f"v_permlane32_swap_b32 {vr(v)}, {vr(t)}")
    A(f"{op} {vr(v)}, {vr(v)}, {vr(t)}")

def round_bf16(A, dst, src):
    A(f"v_cvt_pk_bf16_f32 {vr(dst)}, {vr(src)}, {vr(src)}")
    A(f"v_and_b32 {vr(dst)}, 0xffff0000, {vr(dst)}")

def srd(A, base, ptr, nrec, off=None):
    if off is None:
        A(f"s_mov_b32 s{base}, s{ptr}")
        A(f"s_mov_b32 s{base+1}, s{ptr+1}")
    else:
        lo, hi = off
        A(f"s_add_u32 s{base}, s{ptr}, s{lo}")
        A(f"s_addc_u32 s{base+1}, s{ptr+1}, {hi}")
    A(f"s_mov_b32 s{base+2}, {nrec}")
    A(f"s_mov_b32 s{base+3}, 0x20000")

def stamp(A, P, idx):
    if not P.get("stamps"): return
    A("s_memrealtime s[92:93]")
    A("s_waitcnt lgkmcnt(0)")
    A(f"s_lshl_b32 s94, s2, 2")
    A(f"s_add_u32 s94, s94, s{S_WAVE}")
    A(f"s_lshl_b32 s94, s94, 6")
    A(f"s_add_u32 s94, s94, {WS_DBG + 4 * idx}")
    A("s_mov_b64 s[96:97], exec")
    A("s_mov_b64 exec, 1")
    A("v_mov_b32 v255, s92")
    A("v_mov_b32 v254, 0")
    A(f"buffer_store_dword v255, v254, s[{SRD_WS}:{SRD_WS+3}], s94 offen")
    A("s_mov_b64 exec, s[96:97]")

def dma_voff(A, vE, vO, stride, vL, t0, t1):
    A(f"v_lshrrev_b32 {vr(t0)}, 3, {vr(vL)}")
    A(f"s_mov_b32 s64, {stride}")
    A(f"v_mul_lo_u32 {vr(vE)}, {vr(t0)}, s64")
    A(f"v_bfe_u32 {vr(t0)}, {vr(vL)}, 4, 1")
    A(f"v_lshlrev_b32 {vr(t0)}, 1, {vr(t0)}")
    A(f"v_and_b32 {vr(t1)}, 7, {vr(vL)}")
    A(f"v_xor_b32 {vr(t0)}, {vr(t0)}, {vr(t1)}")
    A(f"v_lshl_add_u32 {vr(vE)}, {vr(t0)}, 4, {vr(vE)}")
    A(f"v_xor_b32 {vr(vO)}, 64, {vr(vE)}")

def tr_addr(A, vT, vL, t0, t1):
    A(f"v_lshrrev_b32 {vr(t0)}, 4, {vr(vL)}")
    A(f"v_bfe_u32 {vr(t1)}, {vr(vL)}, 2, 2")
    A(f"v_lshl_add_u32 {vr(vT)}, {vr(t0)}, 3, {vr(t1)}")
    A(f"v_lshlrev_b32 {vr(vT)}, 7, {vr(vT)}")
    A(f"v_and_b32 {vr(t0)}, 1, {vr(t0)}")
    A(f"v_lshlrev_b32 {vr(t0)}, 1, {vr(t0)}")
    A(f"v_lshrrev_b32 {vr(t1)}, 1, {vr(t1)}")
    A(f"v_or_b32 {vr(t0)}, {vr(t0)}, {vr(t1)}")
    A(f"v_lshlrev_b32 {vr(t0)}, 1, {vr(t0)}")
    A(f"v_bfe_u32 {vr(t1)}, {vr(vL)}, 1, 1")
    A(f"v_xor_b32 {vr(t0)}, {vr(t0)}, {vr(t1)}")
    A(f"v_lshl_add_u32 {vr(vT)}, {vr(t0)}, 4, {vr(vT)}")
    A(f"v_and_b32 {vr(t0)}, 1, {vr(vL)}")
    A(f"v_lshl_add_u32 {vr(vT)}, {vr(t0)}, 3, {vr(vT)}")
    for ct in range(1, 4):
        A(f"v_xor_b32 {vr(vT+ct)}, {32*ct}, {vr(vT)}")

def sel_by_group(A, dst, regs):
    A(f"v_cndmask_b32 {vr(dst)}, {vr(regs[0])}, {vr(regs[1])}, s[{SG1}:{SG1+1}]")
    A(f"v_cndmask_b32 {vr(dst)}, {vr(dst)}, {vr(regs[2])}, s[{SG2}:{SG2+1}]")
    A(f"v_cndmask_b32 {vr(dst)}, {vr(dst)}, {vr(regs[3])}, s[{SG3}:{SG3+1}]")

def gen(P=None):
    P = P or {}
    D = P.get("D", 4)
    FL = P.get("kvflags", "nt")
    WFL = P.get("wflags", "nt")
    tab, info = make_table(**P.get("table", {}))
    A = Asm()
    A.L += open(P.get("header", "recurrent_scan__gqa_block_cached__geglu_ffn__decode.s.ref")).read().split("; Override launch")[0].rstrip("\n").split("\n")
    A.L.append(f"; @launch grid=(256,1,1) block=(256,1,1) lds={LDS_BYTES}")
    A('.amdgcn_target "amdgcn-amd-amdhsa--gfx950"')
    A(".text")
    A(f".globl {NAME}")
    A(".p2align 8")
    A(f".type {NAME},@function")
    body_start = len(A.L)
    A.lab(NAME)
    A("s_cmp_ge_u32 s2, 256")
    A("s_cbranch_scc1 L_end")
    A("s_load_dwordx16 s[4:19], s[0:1], 0")
    A("s_load_dwordx8 s[20:27], s[0:1], 64")
    A("s_getpc_b64 s[64:65]")
    A.lab("L_pc")
    A("s_add_u32 s64, s64, L_table-L_pc")
    A("s_addc_u32 s65, s65, 0")
    A("s_lshl_b32 s66, s2, 5")
    A("s_add_u32 s64, s64, s66")
    A("s_addc_u32 s65, s65, 0")
    A("s_load_dwordx8 s[28:35], s[64:65], 0")
    A("v_lshrrev_b32 v1, 6, v0")
    A("v_and_b32 v0, 63, v0")
    A(f"v_readfirstlane_b32 s{S_WAVE}, v1")
    A("s_and_b32 s66, s2, 7")
    A("s_lshr_b32 s67, s2, 3")
    A(f"s_and_b32 s{S_M}, s67, 15")
    A("s_lshr_b32 s67, s67, 4")
    A("s_lshl_b32 s66, s66, 1")
    A(f"s_add_u32 s{S_HKV}, s66, s67")
    A(f"s_lshr_b32 s{S_B}, s{S_M}, 3")
    A(f"s_lshl_b32 s{S_REC}, s{S_HKV}, 4")
    A(f"s_add_u32 s{S_REC}, s{S_REC}, s{S_M}")
    A(f"s_mov_b32 s{SG1}, 0xffff0000")
    A(f"s_mov_b32 s{SG1+1}, 0")
    A(f"s_mov_b32 s{SG2}, 0")
    A(f"s_mov_b32 s{SG2+1}, 0xffff")
    A(f"s_mov_b32 s{SG3}, 0")
    A(f"s_mov_b32 s{SG3+1}, 0xffff0000")
    A("s_waitcnt lgkmcnt(0)")
    A(f"s_load_dword s{S_EPO}, s[{S_WS}:{S_WS+1}], {WS_EPOCH}")
    srd(A, SRD_WS, S_WS, WS_SIZE)
    A(f"s_cmp_ge_u32 s{S_WAVE}, 2")
    A("s_cbranch_scc1 L_att")
    A(f"s_cmp_eq_u32 s{S_WAVE}, 1")
    A("s_cbranch_scc1 L_s1")

    vL = 0
    A("v_lshlrev_b32 v1, 4, v0")
    for k in range(4): A(f"v_mov_b32 v{4+k}, -1")
    A(f"s_lshl_b32 s64, s{S_REC}, 10")
    A(f"s_add_u32 s64, s64, {WS_H1O}")
    A(f"buffer_store_dwordx4 v[4:7], v1, s[{SRD_WS}:{SRD_WS+3}], s64 offen sc1")
    A(f"s_lshl_b32 s65, s{S_REC}, 7")
    A(f"s_add_u32 s65, s65, {WS_H1ML}")
    A("s_mov_b64 exec, 1")
    A(f"buffer_store_dwordx4 v[4:7], v1, s[{SRD_WS}:{SRD_WS+3}], s65 offen sc1")
    A("s_mov_b64 exec, -1")
    srd(A, SRD_U, S_X, 2304)
    A("v_lshrrev_b32 v2, 5, v0")
    A("v_mul_u32_u24 v2, 1152, v2")
    A("v_and_b32 v3, 31, v0")
    A("v_lshl_add_u32 v2, v3, 2, v2")
    for n in range(9):
        A(f"buffer_load_dword v{8+n}, v2, s[{SRD_U}:{SRD_U+3}], 0 offen offset:{128*n}")
    srd(A, SRD_T, S_WQ, 576 * 8192)
    dma_voff(A, 18, 19, 8192, vL, 20, 21)
    A(f"s_lshr_b32 s66, s{S_M}, 2")
    A(f"s_mul_i32 s67, s66, {144*8192}")
    A(f"s_and_b32 s68, s{S_M}, 3")
    A(f"s_lshl_b32 s68, s68, 7")
    A("s_add_u32 s67, s67, s68")
    A(f"s_lshl_b32 s68, s{S_HKV}, 9")
    A("s_add_u32 s67, s67, s68")
    A(f"s_mov_b32 s68, {T_WQ}")
    A("s_mov_b32 s69, 9")
    A.lab("L_wqdma")
    for par in range(2):
        A("s_mov_b32 m0, s68")
        A("s_add_u32 s68, s68, 1024")
        A(f"buffer_load_dwordx4 v{18+par}, s[{SRD_T}:{SRD_T+3}], s67 offen {WFL} lds")
        A("s_add_u32 s67, s67, 65536")
    A("s_sub_u32 s69, s69, 1")
    A("s_cmp_lg_u32 s69, 0")
    A("s_cbranch_scc1 L_wqdma")
    A("s_barrier")
    stamp(A, P, 0)
    for k in range(4): A(f"v_mov_b32 v{20+k}, 0")
    A(f"ds_write_b128 v1, v[20:23] offset:{T_WQ + 18432}")
    A(f"ds_write_b128 v1, v[20:23] offset:{T_WQ + 19456}")
    A("v_lshrrev_b32 v24, 3, v0")
    A(f"v_mul_u32_u24 v24, {XROW}, v24")
    A("v_and_b32 v25, 7, v0")
    A("v_lshl_add_u32 v24, v25, 2, v24")
    A("s_mov_b64 exec, 0xffff")
    A(f"ds_write_b32 v24, v20 offset:{X_LN + 1152}")
    A("s_mov_b64 exec, -1")
    tr_addr(A, 100, vL, 24, 25)
    A("v_and_b32 v104, 1, v0")
    A(f"v_mul_u32_u24 v104, {XROW}, v104")
    A("v_lshrrev_b32 v24, 4, v0")
    A("v_lshl_add_u32 v104, v24, 4, v104")
    A(f"s_mul_i32 s64, s66, 288")
    A("v_add_u32 v105, s64, v104")
    A("s_waitcnt vmcnt(18)")
    lo = lambda n: 24 + 2 * n
    hi = lambda n: 25 + 2 * n
    for n in range(9):
        A(f"v_lshlrev_b32 v{lo(n)}, 16, v{8+n}")
        A(f"v_and_b32 v{hi(n)}, 0xffff0000, v{8+n}")
    A(f"v_add_f32 v42, v{lo(0)}, v{hi(0)}")
    A(f"v_add_f32 v43, v{lo(1)}, v{hi(1)}")
    for n in range(2, 9):
        A(f"v_add_f32 v42, v42, v{lo(n)}")
        A(f"v_add_f32 v43, v43, v{hi(n)}")
    A("v_add_f32 v42, v42, v43")
    reduce16(A, 42); swap16(A, 42, 43, "v_add_f32")
    A(f"v_mul_f32 v42, {hex(f2u(1/576))}, v42")
    A("v_mov_b32 v44, 0")
    for n in range(9):
        A(f"v_sub_f32 v45, v{lo(n)}, v42")
        A(f"v_sub_f32 v46, v{hi(n)}, v42")
        A("v_fmac_f32 v44, v45, v45")
        A("v_fmac_f32 v44, v46, v46")
    reduce16(A, 44); swap16(A, 44, 43, "v_add_f32")
    A(f"v_mul_f32 v44, {hex(f2u(1/576))}, v44")
    round_bf16(A, 44, 44)
    A(f"v_add_f32 v44, {hex(f2u(1e-5))}, v44")
    round_bf16(A, 44, 44)
    A("v_sqrt_f32 v44, v44")
    round_bf16(A, 44, 44)
    A("v_rcp_f32 v44, v44")
    round_bf16(A, 42, 42)
    A("v_lshrrev_b32 v47, 5, v0")
    A(f"v_mul_u32_u24 v47, {XROW}, v47")
    A("v_and_b32 v48, 31, v0")
    A("v_lshl_add_u32 v47, v48, 2, v47")
    for n in range(9):
        A(f"v_sub_f32 v45, v{lo(n)}, v42")
        A(f"v_sub_f32 v46, v{hi(n)}, v42")
        A("v_cvt_pk_bf16_f32 v45, v45, v46")
        A("v_and_b32 v46, 0xffff0000, v45")
        A("v_lshlrev_b32 v45, 16, v45")
        A("v_mul_f32 v45, v45, v44")
        A("v_mul_f32 v46, v46, v44")
        A(f"v_cvt_pk_bf16_f32 v{50+n}, v45, v46")
        A(f"ds_write_b32 v47, v{50+n} offset:{X_LN + 128*n}")
    stamp(A, P, 1)
    A("s_waitcnt vmcnt(0) lgkmcnt(0)")
    A(f"s_add_u32 s{S_EPN}, s{S_EPO}, 1")
    A(f"s_mul_i32 s{S_TAG}, s{S_EPN}, 0x9E3779B1")
    A(f"s_xor_b32 s{S_TAG}, s{S_TAG}, 0x5bd1e995")
    stamp(A, P, 2)
    ACC = lambda ct: 110 + 4 * ct
    gemv(A, 5, [0, 1, 2, 3],
         lambda n, d: f"ds_read_b128 {vr(d,4)}, v105 offset:{X_LN + 64*n}",
         lambda n, ct, u, d: f"ds_read_b64_tr_b16 {vr(d,2)}, v{100+ct} offset:{T_WQ + 4096*n + 512*u}",
         ACC, lambda k: 128 + 20 * k, lambda k, ct: 132 + 20 * k + 4 * ct, 2)
    def publish_pair(soff):
        sel_by_group(A, 8, [ACC(ct) for ct in range(4)])
        sel_by_group(A, 10, [ACC(ct) + 1 for ct in range(4)])
        return
    publish_pair(None)
    A(f"v_mov_b32 v9, s{S_TAG}")
    A(f"v_mov_b32 v11, s{S_TAG}")
    A(f"s_lshl_b32 s64, s{S_REC}, 10")
    A(f"s_add_u32 s64, s64, {WS_QP}")
    A(f"buffer_store_dwordx4 v[8:11], v1, s[{SRD_WS}:{SRD_WS+3}], s64 offen sc1")
    stamp(A, P, 3)
    A(f"s_lshl_b32 s64, s{S_B}, 3")
    A("v_add_u32 v2, s64, v1")
    A(f"s_lshl_b32 s64, s{S_HKV}, 14")
    A(f"s_add_u32 s64, s64, {WS_QP}")
    for k in range(1, 4): A(f"s_add_u32 s{64+k}, s64, {4096*k}")
    poll_begin(A, "L_qpoll")
    for m in range(16):
        A(f"buffer_load_dwordx2 v[{24+2*m}:{25+2*m}], v2, s[{SRD_WS}:{SRD_WS+3}], s{64+(m>>2)} offen offset:{1024*(m&3)} sc1")
    A("s_waitcnt vmcnt(0)")
    A("v_max3_u32 v60, v25, v27, v29")
    A("v_min3_u32 v61, v25, v27, v29")
    for m in range(3, 16, 2):
        a, b_ = 25 + 2 * m, 25 + 2 * min(m + 1, 15)
        A(f"v_max3_u32 v60, v60, v{a}, v{b_}")
        A(f"v_min3_u32 v61, v61, v{a}, v{b_}")
    A("v_xor_b32 v60, v60, v61")
    A(f"v_xor_b32 v61, s{S_TAG}, v61")
    A("v_or_b32 v60, v60, v61")
    A("v_cmp_ne_u32 vcc, 0, v60")
    poll_end(A, "L_qpoll", 1)
    A("v_lshlrev_b32 v3, 1, v0")
    for cbp in range(4):
        m = lambda kr: 24 + 2 * (kr * 4 + cbp)
        A(f"v_add_f32 v60, v{m(0)}, v{m(1)}")
        A(f"v_add_f32 v60, v60, v{m(2)}")
        A(f"v_add_f32 v60, v60, v{m(3)}")
        A(f"v_cvt_pk_bf16_f32 v{62+cbp}, v60, v60")
        A(f"ds_write_b16 v3, v{62+cbp} offset:{Q_LDS + 128*cbp}")
    A("s_waitcnt lgkmcnt(0)")
    A("s_barrier")
    stamp(A, P, 4)
    A(f"s_cmp_eq_u32 s{S_FT}, 0")
    A("s_cbranch_scc1 L_s0_ffn_done")
    A(f"s_cmp_eq_u32 s{S_FT}, 3")
    A("s_cbranch_scc1 L_down")
    A(f"s_cmp_eq_u32 s{S_FT}, 1")
    A(f"s_cselect_b32 s{SRD_T}, s{S_WG}, s{S_WU}")
    A(f"s_cselect_b32 s{SRD_T+1}, s{S_WG+1}, s{S_WU+1}")
    A(f"s_mov_b32 s{SRD_T+2}, {576*9216}")
    A(f"s_mov_b32 s{SRD_T+3}, 0x20000")
    dma_voff(A, 18, 19, 9216, vL, 20, 21)
    A(f"s_lshl_b32 s67, s{S_FCB}, 7")
    A(f"s_mov_b32 s68, {T_FFN}")
    A("s_mov_b32 s69, 36")
    A.lab("L_gudma")
    for par in range(2):
        A("s_mov_b32 m0, s68")
        A("s_add_u32 s68, s68, 1024")
        A(f"buffer_load_dwordx4 v{18+par}, s[{SRD_T}:{SRD_T+3}], s67 offen {WFL} lds")
        A(f"s_add_u32 s67, s67, {8*9216}")
    A("s_waitcnt vmcnt(10)")
    A("s_sub_u32 s69, s69, 1")
    A("s_cmp_lg_u32 s69, 0")
    A("s_cbranch_scc1 L_gudma")
    for ct in range(4):
        A(f"v_add_u32 v{106+ct}, {T_FFN}, v{100+ct}")
        A(f"v_add_u32 v{170+ct}, {T_FFN + 9*4096}, v{100+ct}")
    A("s_waitcnt vmcnt(0)")
    gemv(A, 18, [0, 1, 2, 3],
         lambda n, d: f"ds_read_b128 {vr(d,4)}, v104 offset:{X_LN + 64*n}",
         lambda n, ct, u, d: f"ds_read_b64_tr_b16 {vr(d,2)}, v{(106 if n < 9 else 170)+ct} offset:{4096*(n % 9) + 512*u}",
         ACC, lambda k: 128 + 20 * k, lambda k, ct: 132 + 20 * k + 4 * ct, 2)
    publish_pair(None)
    round_bf16(A, 8, 8); round_bf16(A, 10, 10)
    A(f"v_mov_b32 v9, s{S_TAG}")
    A(f"v_mov_b32 v11, s{S_TAG}")
    A(f"s_lshl_b32 s64, s{S_FCB}, 1")
    A(f"s_add_u32 s64, s64, s{S_FT}")
    A("s_sub_u32 s64, s64, 1")
    A("s_lshl_b32 s64, s64, 10")
    A(f"s_add_u32 s64, s64, {WS_GU}")
    A(f"buffer_store_dwordx4 v[8:11], v1, s[{SRD_WS}:{SRD_WS+3}], s64 offen sc1")
    A("s_branch L_s0_ffn_done")
    A.lab("L_down")
    srd(A, SRD_T, S_WD, 4608 * 1152)
    dma_voff(A, 18, 19, 1152, vL, 20, 21)
    A(f"s_mul_i32 s67, s{S_FCB}, {64*1152}")
    A(f"s_mov_b32 s68, {T_FFN}")
    A("s_mov_b32 s69, 9")
    A.lab("L_dndma")
    for n in range(8):
        A("s_mov_b32 m0, s68")
        A("s_add_u32 s68, s68, 1024")
        A(f"buffer_load_dwordx4 v{18+(n&1)}, s[{SRD_T}:{SRD_T+3}], s67 offen {WFL} lds")
        A(f"s_add_u32 s67, s67, {9216}")
        if n == 3: A("s_waitcnt vmcnt(8)")
    A(f"s_sub_u32 s67, s67, {8*9216 - 128}")
    A("s_waitcnt vmcnt(8)")
    A("s_sub_u32 s69, s69, 1")
    A("s_cmp_lg_u32 s69, 0")
    A("s_cbranch_scc1 L_dndma")
    A(f"s_lshl_b32 s64, s{S_FCB}, 11")
    A(f"s_add_u32 s64, s64, {WS_GU}")
    poll_begin(A, "L_gupoll")
    A(f"buffer_load_dwordx4 v[24:27], v1, s[{SRD_WS}:{SRD_WS+3}], s64 offen sc1")
    A(f"buffer_load_dwordx4 v[28:31], v1, s[{SRD_WS}:{SRD_WS+3}], s64 offen offset:1024 sc1")
    A("s_waitcnt vmcnt(0)")
    A("v_max3_u32 v60, v25, v27, v29")
    A("v_min3_u32 v61, v25, v27, v29")
    A("v_max_u32 v60, v60, v31")
    A("v_min_u32 v61, v61, v31")
    A("v_xor_b32 v60, v60, v61")
    A(f"v_xor_b32 v61, s{S_TAG}, v61")
    A("v_or_b32 v60, v60, v61")
    A("v_cmp_ne_u32 vcc, 0, v60")
    poll_end(A, "L_gupoll", 16)
    A("v_lshlrev_b32 v3, 1, v0")
    for bb in range(2):
        gt, up = 24 + 2 * bb, 28 + 2 * bb
        A(f"v_mul_f32 v32, v{gt}, v{gt}")
        A(f"v_mul_f32 v32, v32, v{gt}")
        A(f"v_mov_b32 v33, {hex(f2u(0.044715))}")
        A(f"v_fma_f32 v32, v32, v33, v{gt}")
        A(f"v_mul_f32 v32, {hex(f2u(-2.0 * math.sqrt(2.0 / math.pi) * LOG2E))}, v32")
        A("v_exp_f32 v32, v32")
        A("v_add_f32 v32, 1.0, v32")
        A("v_rcp_f32 v32, v32")
        A(f"v_mul_f32 v32, v{gt}, v32")
        round_bf16(A, 32, 32)
        A(f"v_mul_f32 v32, v32, v{up}")
        A(f"v_cvt_pk_bf16_f32 v{34+bb}, v32, v32")
        A(f"ds_write_b16 v3, v{34+bb} offset:{X3 + X3ROW*bb}")
    A("v_and_b32 v105, 1, v0")
    A(f"v_mul_u32_u24 v105, {X3ROW}, v105")
    A("v_lshrrev_b32 v24, 4, v0")
    A("v_lshl_add_u32 v105, v24, 4, v105")
    A("s_waitcnt lgkmcnt(0)")
    A(f"ds_read_b128 v[180:183], v105 offset:{X3}")
    A(f"ds_read_b128 v[184:187], v105 offset:{X3 + 64}")
    for ct in range(4):
        A(f"v_add_u32 v{106+ct}, {T_FFN}, v{100+ct}")
    A("v_and_b32 v2, 63, v0")
    A("v_lshlrev_b32 v2, 3, v2")
    A(f"s_lshl_b32 s66, s{S_FCB}, 9")
    A(f"s_add_u32 s66, s66, {WS_YP}")
    A(f"s_add_u32 s67, s66, {9*72*512}")
    A(f"v_mov_b32 v9, s{S_TAG}")
    A(f"v_mov_b32 v11, s{S_TAG}")
    A("s_mov_b32 s69, 9")
    A("s_waitcnt lgkmcnt(0)")
    A.lab("L_dngemv")
    for n in range(2):
        for ct in range(4):
            for u in range(2):
                A(f"ds_read_b64_tr_b16 v[{132+16*n+4*ct+2*u}:{133+16*n+4*ct+2*u}], v{106+ct} offset:{4096*n + 512*u}")
        A(f"s_waitcnt lgkmcnt(0)")
        for ct in range(4):
            c = "0" if n == 0 else vr(ACC(ct), 4)
            A(f"v_mfma_f32_16x16x32_bf16 {vr(ACC(ct),4)}, v[{180+4*n}:{183+4*n}], v[{132+16*n+4*ct}:{135+16*n+4*ct}], {c}")
    for ct in range(4):
        A(f"v_add_u32 v{106+ct}, 8192, v{106+ct}")
    sel_by_group(A, 8, [ACC(ct) for ct in range(4)])
    sel_by_group(A, 10, [ACC(ct) + 1 for ct in range(4)])
    A(f"buffer_store_dwordx2 v[8:9], v2, s[{SRD_WS}:{SRD_WS+3}], s66 offen sc1")
    A(f"buffer_store_dwordx2 v[10:11], v2, s[{SRD_WS}:{SRD_WS+3}], s67 offen sc1")
    A(f"s_add_u32 s66, s66, {72*512}")
    A(f"s_add_u32 s67, s67, {72*512}")
    A("s_sub_u32 s69, s69, 1")
    A("s_cmp_lg_u32 s69, 0")
    A("s_cbranch_scc1 L_dngemv")
    A.lab("L_s0_ffn_done")
    stamp(A, P, 5)
    A("s_branch L_side_tail")

    A.lab("L_s1")
    A("v_lshlrev_b32 v1, 4, v0")
    A("s_barrier")
    A("s_waitcnt lgkmcnt(0)")
    A(f"s_add_u32 s{S_EPN}, s{S_EPO}, 1")
    A(f"s_mul_i32 s{S_TAG}, s{S_EPN}, 0x9E3779B1")
    A(f"s_xor_b32 s{S_TAG}, s{S_TAG}, 0x5bd1e995")
    A("s_barrier")
    A(f"s_cmp_eq_u32 s{S_WCB}, 255")
    A("s_cbranch_scc1 L_s1_nowo")
    srd(A, SRD_T, S_WO, 4096 * 1152)
    dma_voff(A, 18, 19, 1152, vL, 20, 21)
    A(f"s_mul_i32 s67, s{S_HKV}, {256*1152}")
    A(f"s_lshl_b32 s68, s{S_WCB}, 7")
    A("s_add_u32 s67, s67, s68")
    A(f"s_mov_b32 s68, {T_WO}")
    A("s_mov_b32 s69, 16")
    A.lab("L_wodma")
    for par in range(2):
        A("s_mov_b32 m0, s68")
        A("s_add_u32 s68, s68, 1024")
        A(f"buffer_load_dwordx4 v{18+par}, s[{SRD_T}:{SRD_T+3}], s67 offen {WFL} lds")
        A(f"s_add_u32 s67, s67, 9216")
    A("s_waitcnt vmcnt(8)")
    A("s_sub_u32 s69, s69, 1")
    A("s_cmp_lg_u32 s69, 0")
    A("s_cbranch_scc1 L_wodma")
    A("s_waitcnt vmcnt(0)")
    A.lab("L_s1_nowo")
    A(f"s_cmp_eq_u32 s{S_FIN}, 255")
    A("s_cbranch_scc1 L_s1_noy")
    A(f"s_mul_i32 s64, s{S_FIN}, {72*512}")
    A(f"s_add_u32 s64, s64, {WS_YP}")
    A("v_mov_b32 v200, 0")
    A("v_mov_b32 v201, 0")
    A("s_mov_b32 s69, 3")
    A.lab("L_ybatch")
    for k in range(1, 3): A(f"s_add_u32 s{64+k}, s64, {4096*k}")
    poll_begin(A, "L_ypoll")
    for n in range(12):
        A(f"buffer_load_dwordx4 v[{24+4*n}:{27+4*n}], v1, s[{SRD_WS}:{SRD_WS+3}], s{64+(n>>2)} offen offset:{1024*(n&3)} sc1")
    A("s_waitcnt vmcnt(0)")
    A("v_max3_u32 v80, v25, v27, v29")
    A("v_min3_u32 v81, v25, v27, v29")
    tags = [25 + 4 * n + 2 * k for n in range(12) for k in range(2)][3:]
    for k in range(0, len(tags), 2):
        a = tags[k]; b_ = tags[min(k + 1, len(tags) - 1)]
        A(f"v_max3_u32 v80, v80, v{a}, v{b_}")
        A(f"v_min3_u32 v81, v81, v{a}, v{b_}")
    A("v_xor_b32 v80, v80, v81")
    A(f"v_xor_b32 v81, s{S_TAG}, v81")
    A("v_or_b32 v80, v80, v81")
    A("v_cmp_ne_u32 vcc, 0, v80")
    poll_end(A, "L_ypoll", 32)
    for n in range(12):
        A(f"v_add_f32 v200, v200, v{24+4*n}")
        A(f"v_add_f32 v201, v201, v{26+4*n}")
    A(f"s_add_u32 s64, s64, {12*1024}")
    A("s_sub_u32 s69, s69, 1")
    A("s_cmp_lg_u32 s69, 0")
    A("s_cbranch_scc1 L_ybatch")
    swap32(A, 200, 80, "v_add_f32")
    swap32(A, 201, 80, "v_add_f32")
    for k in range(2):
        y = 200 + k
        round_bf16(A, y, y)
        A(f"v_mul_f32 v80, {hex(f2u(-LOG2E))}, v{y}")
        A("v_exp_f32 v80, v80")
        A("v_add_f32 v80, 1.0, v80")
        A("v_rcp_f32 v80, v80")
        A(f"v_mul_f32 v{y}, v{y}, v80")
        round_bf16(A, y, y)
    srd(A, SRD_U, S_X, 2304)
    A(f"s_cmp_ge_u32 s{S_FIN}, 9")
    A("s_cselect_b32 s64, 9, 0")
    A(f"s_sub_u32 s65, s{S_FIN}, s64")
    A("s_lshl_b32 s65, s65, 7")
    A("s_mul_i32 s64, s64, 128")
    A("s_add_u32 s70, s64, s65")
    A("v_and_b32 v203, 31, v0")
    A("v_lshlrev_b32 v203, 2, v203")
    A(f"buffer_load_dword v202, v203, s[{SRD_U}:{SRD_U+3}], s70 offen")
    A("s_waitcnt vmcnt(0)")
    A.lab("L_s1_noy")
    stamp(A, P, 5)

    A.lab("L_side_tail")
    A("s_barrier")
    stamp(A, P, 6)
    A(f"s_cmp_eq_u32 s{S_WCB}, 255")
    A("s_cbranch_scc1 L_final")
    A("v_lshlrev_b32 v1, 4, v0")
    A("v_bfe_u32 v2, v0, 3, 1")
    A("v_lshlrev_b32 v2, 3, v2")
    A(f"s_lshl_b32 s64, s{S_HKV}, 4")
    A(f"s_lshl_b32 s65, s{S_WAVE}, 3")
    A("s_add_u32 s64, s64, s65")
    A("s_lshl_b32 s66, s64, 7")
    A(f"s_add_u32 s66, s66, {WS_H1ML}")
    A("s_lshl_b32 s64, s64, 10")
    A(f"s_add_u32 s64, s64, {WS_H1O}")
    A("s_add_u32 s65, s64, 4096")
    poll_begin(A, "L_h1poll")
    for p in range(8):
        A(f"buffer_load_dwordx4 v[{24+4*p}:{27+4*p}], v1, s[{SRD_WS}:{SRD_WS+3}], s{64+(p>>2)} offen offset:{1024*(p&3)} sc1")
        A(f"buffer_load_dwordx2 v[{56+2*p}:{57+2*p}], v2, s[{SRD_WS}:{SRD_WS+3}], s66 offen offset:{128*p} sc1")
    A("s_waitcnt vmcnt(0)")
    A("v_max3_u32 v80, v24, v25, v26")
    for k in range(27, 72, 2):
        A(f"v_max3_u32 v80, v80, v{k}, v{min(k+1, 71)}")
    A("v_cmp_eq_u32 vcc, -1, v80")
    poll_end(A, "L_h1poll", 1)
    stamp(A, P, 7)
    MC = lambda p: 56 + 2 * p
    LL = lambda p: 57 + 2 * p
    A(f"v_max3_f32 v80, v{MC(0)}, v{MC(1)}, v{MC(2)}")
    A(f"v_max3_f32 v80, v80, v{MC(3)}, v{MC(4)}")
    A(f"v_max3_f32 v80, v80, v{MC(5)}, v{MC(6)}")
    A(f"v_max_f32 v80, v80, v{MC(7)}")
    for p in range(8): A(f"v_sub_f32 v{MC(p)}, v{MC(p)}, v80")
    for p in range(8): A(f"v_exp_f32 v{MC(p)}, v{MC(p)}")
    A(f"v_mul_f32 v81, v{MC(0)}, v{LL(0)}")
    for p in range(1, 8): A(f"v_fmac_f32 v81, v{MC(p)}, v{LL(p)}")
    A("v_rcp_f32 v81, v81")
    for rr in range(4):
        A(f"v_mul_f32 v{84+rr}, v{MC(0)}, v{24+rr}")
        for p in range(1, 8): A(f"v_fmac_f32 v{84+rr}, v{MC(p)}, v{24+4*p+rr}")
    A("v_bfe_u32 v82, v0, 3, 1")
    A("v_lshlrev_b32 v82, 8, v82")
    A("v_lshrrev_b32 v83, 4, v0")
    A("v_lshl_add_u32 v82, v83, 6, v82")
    A("v_and_b32 v83, 7, v0")
    A("v_lshl_add_u32 v82, v83, 1, v82")
    A(f"s_mul_i32 s64, s{S_WAVE}, {X2ROW}")
    A("v_add_u32 v82, s64, v82")
    for rr in range(4):
        A(f"v_mul_f32 v{84+rr}, v{84+rr}, v81")
        A(f"v_cvt_pk_bf16_f32 v{88+rr}, v{84+rr}, v{84+rr}")
        A(f"ds_write_b16 v82, v{88+rr} offset:{X2 + 16*rr}")
    A("s_waitcnt lgkmcnt(0)")
    A.lab("L_wogemv")
    A("s_barrier")
    stamp(A, P, 8)
    tr_addr(A, 100, vL, 24, 25)
    A(f"s_lshl_b32 s64, s{S_WAVE}, 5")
    A("v_xor_b32 v100, s64, v100")
    A("v_and_b32 v104, 1, v0")
    A(f"v_mul_u32_u24 v104, {X2ROW}, v104")
    A("v_lshrrev_b32 v24, 4, v0")
    A("v_lshl_add_u32 v104, v24, 4, v104")
    gemv(A, 8, [0],
         lambda n, d: f"ds_read_b128 {vr(d,4)}, v104 offset:{X2 + 64*n}",
         lambda n, ct, u, d: f"ds_read_b64_tr_b16 {vr(d,2)}, v100 offset:{T_WO + 4096*n + 512*u}",
         lambda ct: 110, lambda k: 128 + 8 * k, lambda k, ct: 132 + 8 * k, 8)
    A(f"v_cndmask_b32 v8, v110, v111, s[{SG1}:{SG1+1}]")
    A(f"v_mov_b32 v9, s{S_TAG}")
    A("v_lshrrev_b32 v2, 4, v0")
    A(f"v_mul_u32_u24 v2, {9*16*512}, v2")
    A("v_and_b32 v3, 15, v0")
    A("v_lshl_add_u32 v2, v3, 3, v2")
    A(f"s_lshl_b32 s64, s{S_WCB}, 13")
    A(f"s_lshl_b32 s65, s{S_HKV}, 9")
    A("s_add_u32 s64, s64, s65")
    A(f"s_lshl_b32 s65, s{S_WAVE}, 7")
    A("s_add_u32 s64, s64, s65")
    A(f"s_add_u32 s64, s64, {WS_SP}")
    A("s_mov_b64 exec, 0xffffffff")
    A(f"buffer_store_dwordx2 v[8:9], v2, s[{SRD_WS}:{SRD_WS+3}], s64 offen sc1")
    A("s_mov_b64 exec, -1")
    stamp(A, P, 9)
    A.lab("L_final")
    A(f"s_cmp_lg_u32 s{S_WAVE}, 1")
    A("s_cbranch_scc1 L_end")
    A(f"s_cmp_eq_u32 s{S_FIN}, 255")
    A("s_cbranch_scc1 L_end")
    A("v_lshlrev_b32 v1, 4, v0")
    A(f"s_lshl_b32 s64, s{S_FIN}, 13")
    A(f"s_add_u32 s64, s64, {WS_SP}")
    A("s_add_u32 s65, s64, 4096")
    poll_begin(A, "L_h2poll")
    for n in range(8):
        A(f"buffer_load_dwordx4 v[{24+4*n}:{27+4*n}], v1, s[{SRD_WS}:{SRD_WS+3}], s{64+(n>>2)} offen offset:{1024*(n&3)} sc1")
    A("s_waitcnt vmcnt(0)")
    A("v_max3_u32 v80, v25, v27, v29")
    A("v_min3_u32 v81, v25, v27, v29")
    tags = [25 + 4 * n + 2 * k for n in range(8) for k in range(2)][3:]
    for k in range(0, len(tags), 2):
        a = tags[k]; b_ = tags[min(k + 1, len(tags) - 1)]
        A(f"v_max3_u32 v80, v80, v{a}, v{b_}")
        A(f"v_min3_u32 v81, v81, v{a}, v{b_}")
    A("v_xor_b32 v80, v80, v81")
    A(f"v_xor_b32 v81, s{S_TAG}, v81")
    A("v_or_b32 v80, v80, v81")
    A("v_cmp_ne_u32 vcc, 0, v80")
    poll_end(A, "L_h2poll", 1)
    A("v_add_f32 v80, v24, v28")
    A("v_add_f32 v81, v26, v30")
    for n in range(2, 8):
        A(f"v_add_f32 v80, v80, v{24+4*n}")
        A(f"v_add_f32 v81, v81, v{26+4*n}")
    swap32(A, 80, 82, "v_add_f32")
    swap32(A, 81, 82, "v_add_f32")
    A("v_cvt_pk_bf16_f32 v80, v80, v81")
    A("v_and_b32 v81, 0xffff0000, v80")
    A("v_lshlrev_b32 v80, 16, v80")
    A("v_mul_f32 v80, v80, v200")
    A("v_mul_f32 v81, v81, v201")
    A("v_cvt_pk_bf16_f32 v80, v80, v81")
    A("v_and_b32 v81, 0xffff0000, v80")
    A("v_lshlrev_b32 v80, 16, v80")
    A("v_lshlrev_b32 v82, 16, v202")
    A("v_and_b32 v83, 0xffff0000, v202")
    A("v_add_f32 v80, v80, v82")
    A("v_add_f32 v81, v81, v83")
    A("v_cvt_pk_bf16_f32 v80, v80, v81")
    srd(A, SRD_U, S_OUT, 2304)
    A("v_and_b32 v203, 31, v0")
    A("v_lshlrev_b32 v203, 2, v203")
    A("s_mov_b64 exec, 0xffffffff")
    A(f"buffer_store_dword v80, v203, s[{SRD_U}:{SRD_U+3}], s70 offen")
    A("s_mov_b64 exec, -1")
    stamp(A, P, 10)
    A(f"s_cmp_lg_u32 s{S_FIN}, 0")
    A("s_cbranch_scc1 L_end")
    A(f"v_mov_b32 v80, s{S_EPN}")
    A("v_mov_b32 v81, 0")
    A("s_mov_b64 exec, 1")
    A(f"buffer_store_dword v80, v81, s[{SRD_WS}:{SRD_WS+3}], 0 offen offset:{WS_EPOCH}")
    A("s_branch L_end")

    A.lab("L_att")
    A(f"s_sub_u32 s66, s{S_WAVE}, 2")
    A(f"s_lshl_b32 s64, s{S_B}, 4")
    A(f"s_add_u32 s64, s64, s{S_HKV}")
    A("s_lshr_b32 s65, s64, 9")
    A("s_lshl_b32 s64, s64, 23")
    A(f"s_add_u32 s{SRD_K}, s{S_K}, s64")
    A(f"s_addc_u32 s{SRD_K+1}, s{S_K+1}, s65")
    A(f"s_mov_b32 s{SRD_K+2}, 0x800000")
    A(f"s_mov_b32 s{SRD_K+3}, 0x20000")
    A(f"s_add_u32 s{SRD_V}, s{S_V}, s64")
    A(f"s_addc_u32 s{SRD_V+1}, s{S_V+1}, s65")
    A(f"s_mov_b32 s{SRD_V+2}, 0x800000")
    A(f"s_mov_b32 s{SRD_V+3}, 0x20000")
    S_OFF, S_LEFT = 70, 71
    A(f"s_add_u32 s{S_OFF}, s{S_KV0}, s66")
    A(f"s_lshl_b32 s{S_OFF}, s{S_OFF}, 13")
    A(f"s_add_u32 s{S_LEFT}, s{S_NSB}, 1")
    A(f"s_sub_u32 s{S_LEFT}, s{S_LEFT}, s66")
    A(f"s_lshr_b32 s{S_LEFT}, s{S_LEFT}, 1")
    VK0, VK1, VV0, VV1 = 2, 3, 4, 5
    A("v_and_b32 v6, 3, v0")
    A("v_bfe_u32 v7, v0, 2, 2")
    A("v_lshl_add_u32 v6, v6, 2, v7")
    A("v_lshlrev_b32 v6, 8, v6")
    A("v_lshrrev_b32 v7, 4, v0")
    A(f"v_lshl_add_u32 v{VK0}, v7, 4, v6")
    A(f"v_add_u32 v{VK1}, 4096, v{VK0}")
    A(f"v_lshlrev_b32 v{VV0}, 4, v0")
    A(f"v_add_u32 v{VV1}, 4096, v{VV0}")
    KA = lambda s, be, t: 64 * s + 16 * be + 4 * t
    VA = lambda s, be, r: 64 * s + 32 + 16 * be + 4 * r
    def issueK(s):
        for be in range(2):
            for t in range(4):
                A(f"buffer_load_dwordx4 {ar(KA(s,be,t),4)}, v{VK0+be}, s[{SRD_K}:{SRD_K+3}], s{S_OFF} offen offset:{64*t} {FL}")
    def issueV(s):
        for be in range(2):
            for r in range(4):
                A(f"buffer_load_dwordx4 {ar(VA(s,be,r),4)}, v{VV0+be}, s[{SRD_V}:{SRD_V+3}], s{S_OFF} offen offset:{1024*r} {FL}")
        A(f"s_add_u32 s{S_OFF}, s{S_OFF}, 16384")
    A("s_barrier")
    stamp(A, P, 0)
    groups = []
    for s in range(D): groups += [("K", s), ("V", s)]
    lead = P.get("lead", 3)
    for k, (kind, s) in enumerate(groups):
        if k >= lead: A(f"s_waitcnt vmcnt({8*(lead-1)})")
        (issueK if kind == "K" else issueV)(s)
    stamp(A, P, 1)
    VQ = 8
    VM = 24
    VACC = 28
    VMC, VL_ = 32, 33
    VS = 36
    VP = 44
    VB = 52
    VT = 64
    A("v_and_b32 v6, 7, v0")
    A("v_and_b32 v7, 1, v6")
    A("v_mov_b32 v64, 0xffff")
    A("v_lshlrev_b32 v7, 4, v7")
    A("v_lshlrev_b32 v64, v7, v64")
    A("v_lshrrev_b32 v6, 1, v6")
    for q in range(4):
        A(f"v_cmp_eq_u32 vcc, {q}, v6")
        A(f"v_cndmask_b32 v{VM+q}, 0, v64, vcc")
    for k in range(4): A(f"v_mov_b32 v{VACC+k}, 0")
    A(f"v_mov_b32 v{VMC}, 0xff800000")
    A(f"v_mov_b32 v{VL_}, 0")
    A("v_bfe_u32 v6, v0, 3, 1")
    A("v_lshlrev_b32 v6, 8, v6")
    A("v_lshrrev_b32 v7, 4, v0")
    A("v_lshl_add_u32 v6, v7, 4, v6")
    A(f"s_mov_b32 s72, {hex(f2u(SCALE))}")
    A(f"s_mov_b32 s73, {hex(f2u(LOG2E))}")
    A("s_waitcnt lgkmcnt(0)")
    A(f"s_add_u32 s{S_EPN}, s{S_EPO}, 1")
    A(f"s_mul_i32 s{S_TAG}, s{S_EPN}, 0x9E3779B1")
    A(f"s_xor_b32 s{S_TAG}, s{S_TAG}, 0x5bd1e995")
    A("s_barrier")
    for t in range(4):
        A(f"ds_read_b128 v[{VQ+4*t}:{VQ+4*t+3}], v6 offset:{Q_LDS + 64*t}")
    A("s_waitcnt lgkmcnt(0)")
    stamp(A, P, 2)
    A.lab("L_loop")
    for s in range(D):
        A(f"s_cmp_gt_u32 s{S_LEFT}, {D}")
        A(f"s_cselect_b32 s{SRD_K+2}, 0x800000, 0")
        A(f"s_cselect_b32 s{SRD_V+2}, 0x800000, 0")
        A(f"s_waitcnt vmcnt({16*D-8})")
        for t in range(4):
            for be in range(2):
                c = "0" if t == 0 else vr(VS + 4 * be, 4)
                A(f"v_mfma_f32_16x16x32_bf16 {vr(VS+4*be,4)}, {ar(KA(s,be,t),4)}, {vr(VQ+4*t,4)}, {c}")
        issueK(s)
        for k in range(0, 8, 2):
            A(f"v_cvt_pk_bf16_f32 v{VT}, v{VS+k}, v{VS+k+1}")
            A(f"v_lshlrev_b32 v{VS+k}, 16, v{VT}")
            A(f"v_and_b32 v{VS+k+1}, 0xffff0000, v{VT}")
            A(f"v_mul_f32 v{VS+k}, s72, v{VS+k}")
            A(f"v_mul_f32 v{VS+k+1}, s72, v{VS+k+1}")
            A(f"v_cvt_pk_bf16_f32 v{VT+1}, v{VS+k}, v{VS+k+1}")
            A(f"v_lshlrev_b32 v{VS+k}, 16, v{VT+1}")
            A(f"v_and_b32 v{VS+k+1}, 0xffff0000, v{VT+1}")
        A(f"v_max3_f32 v{VT}, v{VS}, v{VS+1}, v{VS+2}")
        A(f"v_max3_f32 v{VT}, v{VT}, v{VS+3}, v{VS+4}")
        A(f"v_max3_f32 v{VT}, v{VT}, v{VS+5}, v{VS+6}")
        A(f"v_max_f32 v{VT}, v{VT}, v{VS+7}")
        A(f"v_mul_f32 v{VT}, s73, v{VT}")
        A(f"v_cmp_gt_f32 vcc, v{VT}, v{VMC}")
        skip = A.uniq("L_nomax")
        A(f"s_cbranch_vccz {skip}")
        swap16(A, VT, VT + 1, "v_max_f32")
        swap32(A, VT, VT + 1, "v_max_f32")
        A(f"v_max_f32 v{VT}, v{VT}, v{VMC}")
        A(f"v_sub_f32 v{VT+1}, v{VMC}, v{VT}")
        A(f"v_exp_f32 v{VT+1}, v{VT+1}")
        A(f"v_mov_b32 v{VMC}, v{VT}")
        for k in range(4): A(f"v_mul_f32 v{VACC+k}, v{VACC+k}, v{VT+1}")
        A(f"v_mul_f32 v{VL_}, v{VL_}, v{VT+1}")
        A.lab(skip)
        for k in range(8): A(f"v_fma_f32 v{VP+k}, v{VS+k}, s73, -v{VMC}")
        for k in range(8): A(f"v_exp_f32 v{VP+k}, v{VP+k}")
        def prep(k):
            bb = VB + 4 * (k % 3)
            A(f"v_cvt_pk_bf16_f32 v{VT+2}, v{VP+k}, v{VP+k}")
            for q in range(4): A(f"v_and_b32 v{bb+q}, v{VT+2}, v{VM+q}")
        prep(0); prep(1)
        A(f"v_add_f32 v{VT}, v{VP}, v{VP+1}")
        A(f"v_add_f32 v{VT+1}, v{VP+2}, v{VP+3}")
        A(f"s_waitcnt vmcnt({16*D-8})")
        for k in range(8):
            be, r = k >> 2, k & 3
            bb = VB + 4 * (k % 3)
            A(f"v_mfma_f32_16x16x32_bf16 {vr(VACC,4)}, {ar(VA(s,be,r),4)}, {vr(bb,4)}, {vr(VACC,4)}")
            if k + 2 < 8: prep(k + 2)
            if k == 1: A(f"v_add_f32 v{VT}, v{VT}, v{VP+4}"); A(f"v_add_f32 v{VT+1}, v{VT+1}, v{VP+5}")
            if k == 2: A(f"v_add_f32 v{VT}, v{VT}, v{VP+6}"); A(f"v_add_f32 v{VT+1}, v{VT+1}, v{VP+7}")
            if k == 3: A(f"v_add_f32 v{VT}, v{VT}, v{VT+1}"); A(f"v_add_f32 v{VL_}, v{VL_}, v{VT}")
        issueV(s)
        A(f"s_sub_u32 s{S_LEFT}, s{S_LEFT}, 1")
        A(f"s_cmp_eq_u32 s{S_LEFT}, 0")
        if s < D - 1: A("s_cbranch_scc1 L_att_done")
        else: A("s_cbranch_scc0 L_loop")
    A.lab("L_att_done")
    stamp(A, P, 3)
    swap16(A, VL_, VT, "v_add_f32")
    swap32(A, VL_, VT, "v_add_f32")
    A(f"v_lshlrev_b32 v1, 4, v0")
    A(f"v_lshlrev_b32 v6, 3, v0")
    A(f"s_cmp_eq_u32 s{S_WAVE}, 2")
    A("s_cbranch_scc1 L_att0")
    A(f"ds_write_b128 v1, v[{VACC}:{VACC+3}] offset:{MERGE}")
    A(f"ds_write_b64 v6, v[{VMC}:{VMC+1}] offset:{MERGE + 1024}")
    A("s_waitcnt lgkmcnt(0)")
    A("s_barrier")
    A("s_branch L_att_join")
    A.lab("L_att0")
    A("s_barrier")
    A(f"ds_read_b128 v[68:71], v1 offset:{MERGE}")
    A(f"ds_read_b64 v[72:73], v6 offset:{MERGE + 1024}")
    A("s_waitcnt lgkmcnt(0)")
    A(f"v_max_f32 v74, v{VMC}, v72")
    A(f"v_sub_f32 v75, v{VMC}, v74")
    A("v_sub_f32 v76, v72, v74")
    A("v_exp_f32 v75, v75")
    A("v_exp_f32 v76, v76")
    for k in range(4):
        A(f"v_mul_f32 v{VACC+k}, v{VACC+k}, v75")
        A(f"v_fmac_f32 v{VACC+k}, v{68+k}, v76")
    A(f"v_mul_f32 v{VL_}, v{VL_}, v75")
    A(f"v_fmac_f32 v{VL_}, v73, v76")
    A(f"v_mov_b32 v{VMC}, v74")
    A(f"s_lshl_b32 s64, s{S_REC}, 10")
    A(f"s_add_u32 s64, s64, {WS_H1O}")
    A(f"buffer_store_dwordx4 v[{VACC}:{VACC+3}], v1, s[{SRD_WS}:{SRD_WS+3}], s64 offen sc1")
    A("v_bfe_u32 v6, v0, 3, 1")
    A("v_lshlrev_b32 v6, 3, v6")
    A(f"s_lshl_b32 s65, s{S_REC}, 7")
    A(f"s_add_u32 s65, s65, {WS_H1ML}")
    A("s_mov_b64 exec, 0x101")
    A(f"buffer_store_dwordx2 v[{VMC}:{VMC+1}], v6, s[{SRD_WS}:{SRD_WS+3}], s65 offen sc1")
    A("s_mov_b64 exec, -1")
    stamp(A, P, 4)
    A.lab("L_att_join")
    A(f"s_cmp_lg_u32 s{S_WCB}, 255")
    A("s_cbranch_scc1 L_wogemv")
    A.lab("L_end")
    A("s_endpgm")
    body = fix_hazards(A.L[body_start:], verbose=P.get("verbose", False))
    out = A.L[:body_start] + body
    out.append(".p2align 6")
    out.append(".type L_table,@object")
    out.append("L_table:")
    for row in tab: out.append("  .long " + ", ".join(str(v) for v in row))
    out.append(".size L_table, 8192")
    out += ['.section .rodata,"a"', ".p2align 6", f".amdhsa_kernel {NAME}",
            "  .amdhsa_next_free_vgpr 512", "  .amdhsa_next_free_sgpr 102", "  .amdhsa_accum_offset 256",
            "  .amdhsa_group_segment_fixed_size 0", "  .amdhsa_kernarg_size 96", "  .amdhsa_user_sgpr_count 2",
            "  .amdhsa_user_sgpr_kernarg_segment_ptr 1", "  .amdhsa_system_sgpr_workgroup_id_x 1",
            "  .amdhsa_float_denorm_mode_32 3",
            ".end_amdhsa_kernel"]
    return "\n".join(out) + "\n"

if __name__ == "__main__":
    P = eval(sys.argv[2]) if len(sys.argv) > 2 else {}
    P.setdefault("verbose", True)
    s = gen(P)
    open(sys.argv[1] if len(sys.argv) > 1 else "k.s", "w").write(s)
```

```python
import struct, sys, math
from asmlib import Asm, fix_hazards, vr, ar, sr

NAME = "recurrent_scan__gqa_block_cached__geglu_ffn__decode_kernel"

def f2u(x): return struct.unpack("<I", struct.pack("<f", x))[0]

WS_EPOCH = 0
WS_QP   = 0x001000
WS_H1O  = 0x050000
WS_H1ML = 0x090000
WS_GU   = 0x0A0000
WS_YP   = 0x100000
WS_SP   = 0x1B0000
WS_CNT  = 0x1E0000
WS_DBG  = 0x200000
WS_SIZE = 0x400000

X_LN, XROW = 0, 1184
Q_LDS = 2432
X2, X2ROW = 3072, 576
X3, X3ROW = 4352, 192
MERGE = 4864
PROG = 2368
T_WQ = 6400
T_WO = T_WQ + 20480
T_FFN = T_WO + 32768
LDS_BYTES = T_FFN + 73728

LOG2E = 1.4426950408889634
SCALE = 128 ** -0.5
POLL_LIMIT = 400000

S_WAVE = 3
S_X, S_K, S_V, S_WQ, S_WO, S_BX, S_WG, S_WU = 4, 6, 8, 10, 12, 14, 16, 18
S_WD, S_OUT, S_DBG, S_WS = 20, 22, 24, 26
S_KV0, S_NSB, S_FT, S_FCB, S_WCB, S_FIN = 28, 29, 30, 31, 32, 33
S_HKV, S_B, S_M, S_REC = 36, 37, 38, 39
S_EPO, S_TAG, S_EPN = 40, 41, 42
SRD_K, SRD_V, SRD_WS, SRD_T, SRD_U = 44, 48, 52, 56, 60
SG1, SG2, SG3 = 80, 82, 84
S_CNT = 91
S_T0 = 92

def make_table(wside=0.8, c_ffn=72.0, c_wo=32.0, c_fin=88.0, pool=128, adj=None):
    info = {w: dict(x=w & 7, g=w >> 3, j=w & 7, ft=0, fcb=0, wcb=255, fin=255) for w in range(256)}
    free = lambda w: ((w & 7) == (w >> 3) % 8) or ((w >> 3) < 8 and (w & 7) == ((w >> 3) + 4) % 8)
    e = 0
    for w in range(256):
        if not free(w):
            info[w]["ft"] = 1 + e % 3; info[w]["fcb"] = e // 3; e += 1
    assert e == 216
    xcnt = [0] * 8
    for c in range(16):
        chosen = []
        quota = {2 * c: 5 if c % 2 == 0 else 4, 2 * c + 1: 4 if c % 2 == 0 else 5}
        mem = list(range(16 * c, 16 * c + 16))
        for w in mem:
            if free(w): chosen.append(w); quota[w >> 3] -= 1; xcnt[w & 7] += 1
        while len(chosen) < 9:
            cand = [w for w in mem if w not in chosen and quota[w >> 3] > 0]
            w = min(cand, key=lambda v: (xcnt[v & 7], v))
            chosen.append(w); quota[w >> 3] -= 1; xcnt[w & 7] += 1
        for cb, w in enumerate(chosen): info[w]["wcb"] = cb
    frees = [w for w in range(64) if free(w)]
    more = [w for w in range(64, 256) if free(w)]
    fins = [frees[0], frees[3], frees[4], frees[7], frees[8], frees[11], frees[12], frees[15], more[5]]
    assert len(fins) == 9
    for f, w in enumerate(fins): info[w]["fin"] = f
    static_total = 1024 - pool
    for g in range(32):
        ws_ = list(range(8 * g, 8 * g + 8))
        side = []
        for w in ws_:
            i = info[w]
            sd = (c_ffn if i["ft"] else 0) + (c_wo if i["wcb"] != 255 else 0) + (c_fin if i["fin"] != 255 else 0)
            if adj: sd += adj(w, i)
            side.append(sd * wside)
        tot = static_total * 16 + sum(side)
        ideal = [(tot / 8 - sd) / 16 for sd in side]
        n = [int(math.floor(v)) for v in ideal]
        rem = static_total - sum(n)
        order = sorted(range(8), key=lambda k: -(ideal[k] - n[k]))
        for k in order[:rem]: n[k] += 1
        assert sum(n) == static_total and min(n) >= 16
        st = 0
        for k, w in enumerate(ws_):
            info[w]["kv0"] = st; info[w]["nsb"] = n[k]; st += n[k]
        info[ws_[0]]["side_total"] = sum(side)
    tab = [[info[w]["kv0"], info[w]["nsb"], info[w]["ft"], info[w]["fcb"], info[w]["wcb"], info[w]["fin"], 0, 0] for w in range(256)]
    return tab, info

def gemv(A, nsteps, cts, a_read, tr_read, acc, abuf, bbuf, nbuf):
    reads = []
    last = {}
    for n in range(nsteps):
        reads.append((n, a_read(n, abuf(n % nbuf))))
        for ct in cts:
            for u in range(2):
                reads.append((n, tr_read(n, ct, u, bbuf(n % nbuf, ct) + 2 * u)))
            last[(n, ct)] = len(reads) - 1
    issued = 0; done = 0
    for n in range(nsteps):
        for ci, ct in enumerate(cts):
            while issued < len(reads) and (issued - done) < 15 and reads[issued][0] < n + nbuf - (0 if ci == 0 or True else 0):
                if reads[issued][0] - nbuf >= n: break
                A(reads[issued][1]); issued += 1
            need = last[(n, ct)]
            assert issued > need, (issued, need, n, ct)
            if done <= need:
                k = issued - 1 - need
                A(f"s_waitcnt lgkmcnt({k})")
                done = need + 1
            c = "0" if n == 0 else vr(acc(ct), 4)
            A(f"v_mfma_f32_16x16x32_bf16 {vr(acc(ct),4)}, {vr(abuf(n % nbuf),4)}, {vr(bbuf(n % nbuf, ct),4)}, {c}")

def poll_begin(A, name):
    A(f"s_mov_b32 s{S_CNT}, {POLL_LIMIT}")
    A.lab(name)

def poll_end(A, name, sleep):
    ok = name + "_ok"
    A(f"s_cbranch_vccz {ok}")
    A(f"s_sub_u32 s{S_CNT}, s{S_CNT}, 1")
    A(f"s_cmp_eq_u32 s{S_CNT}, 0")
    A(f"s_cbranch_scc1 {ok}")
    if sleep: A(f"s_sleep {sleep}")
    A(f"s_branch {name}")
    A.lab(ok)

def wait_progress(A, name, thr):
    A(f"s_mov_b32 s{S_CNT}, {POLL_LIMIT}")
    A("v_mov_b32 v250, 0")
    A.lab(name)
    A(f"ds_read_b32 v251, v250 offset:{PROG}")
    A("s_waitcnt lgkmcnt(0)")
    A("v_readfirstlane_b32 s79, v251")
    A(f"s_cmp_ge_u32 s79, {thr}")
    A(f"s_cbranch_scc1 {name}_ok")
    A(f"s_sub_u32 s{S_CNT}, s{S_CNT}, 1")
    A(f"s_cmp_eq_u32 s{S_CNT}, 0")
    A(f"s_cbranch_scc1 {name}_ok")
    A("s_sleep 8")
    A(f"s_branch {name}")
    A.lab(name + "_ok")

def reduce16(A, v, op="v_add_f32"):
    for k in (8, 4, 2, 1):
        A(f"{op}_dpp {vr(v)}, {vr(v)}, {vr(v)} row_ror:{k} row_mask:0xf bank_mask:0xf")

def swap16(A, v, t, op):
    A(f"v_mov_b32 {vr(t)}, {vr(v)}")
    A(f"v_permlane16_swap_b32 {vr(v)}, {vr(t)}")
    A(f"{op} {vr(v)}, {vr(v)}, {vr(t)}")

def swap32(A, v, t, op):
    A(f"v_mov_b32 {vr(t)}, {vr(v)}")
    A(f"v_permlane32_swap_b32 {vr(v)}, {vr(t)}")
    A(f"{op} {vr(v)}, {vr(v)}, {vr(t)}")

def round_bf16(A, dst, src):
    A(f"v_cvt_pk_bf16_f32 {vr(dst)}, {vr(src)}, {vr(src)}")
    A(f"v_and_b32 {vr(dst)}, 0xffff0000, {vr(dst)}")

def srd(A, base, ptr, nrec, off=None):
    if off is None:
        A(f"s_mov_b32 s{base}, s{ptr}")
        A(f"s_mov_b32 s{base+1}, s{ptr+1}")
    else:
        lo, hi = off
        A(f"s_add_u32 s{base}, s{ptr}, s{lo}")
        A(f"s_addc_u32 s{base+1}, s{ptr+1}, {hi}")
    A(f"s_mov_b32 s{base+2}, {nrec}")
    A(f"s_mov_b32 s{base+3}, 0x20000")

def stamp(A, P, idx):
    if not P.get("stamps"): return
    A("s_memrealtime s[92:93]")
    A("s_waitcnt lgkmcnt(0)")
    A(f"v_writelane_b32 v253, s92, {idx}")

def stamp_flush(A, P):
    if not P.get("stamps"): return
    A(f"s_lshl_b32 s94, s2, 2")
    A(f"s_add_u32 s94, s94, s{S_WAVE}")
    A(f"s_lshl_b32 s94, s94, 6")
    A(f"s_add_u32 s94, s94, {WS_DBG}")
    A("v_lshlrev_b32 v254, 2, v0")
    A("s_mov_b64 exec, 0xffff")
    A(f"buffer_store_dword v253, v254, s[{SRD_WS}:{SRD_WS+3}], s94 offen")

def dma_voff(A, vE, vO, stride, vL, t0, t1):
    A(f"v_lshrrev_b32 {vr(t0)}, 3, {vr(vL)}")
    A(f"s_mov_b32 s64, {stride}")
    A(f"v_mul_lo_u32 {vr(vE)}, {vr(t0)}, s64")
    A(f"v_bfe_u32 {vr(t0)}, {vr(vL)}, 4, 1")
    A(f"v_lshlrev_b32 {vr(t0)}, 1, {vr(t0)}")
    A(f"v_and_b32 {vr(t1)}, 7, {vr(vL)}")
    A(f"v_xor_b32 {vr(t0)}, {vr(t0)}, {vr(t1)}")
    A(f"v_lshl_add_u32 {vr(vE)}, {vr(t0)}, 4, {vr(vE)}")
    A(f"v_xor_b32 {vr(vO)}, 64, {vr(vE)}")

def tr_addr(A, vT, vL, t0, t1):
    A(f"v_lshrrev_b32 {vr(t0)}, 4, {vr(vL)}")
    A(f"v_bfe_u32 {vr(t1)}, {vr(vL)}, 2, 2")
    A(f"v_lshl_add_u32 {vr(vT)}, {vr(t0)}, 3, {vr(t1)}")
    A(f"v_lshlrev_b32 {vr(vT)}, 7, {vr(vT)}")
    A(f"v_and_b32 {vr(t0)}, 1, {vr(t0)}")
    A(f"v_lshlrev_b32 {vr(t0)}, 1, {vr(t0)}")
    A(f"v_lshrrev_b32 {vr(t1)}, 1, {vr(t1)}")
    A(f"v_or_b32 {vr(t0)}, {vr(t0)}, {vr(t1)}")
    A(f"v_lshlrev_b32 {vr(t0)}, 1, {vr(t0)}")
    A(f"v_bfe_u32 {vr(t1)}, {vr(vL)}, 1, 1")
    A(f"v_xor_b32 {vr(t0)}, {vr(t0)}, {vr(t1)}")
    A(f"v_lshl_add_u32 {vr(vT)}, {vr(t0)}, 4, {vr(vT)}")
    A(f"v_and_b32 {vr(t0)}, 1, {vr(vL)}")
    A(f"v_lshl_add_u32 {vr(vT)}, {vr(t0)}, 3, {vr(vT)}")
    for ct in range(1, 4):
        A(f"v_xor_b32 {vr(vT+ct)}, {32*ct}, {vr(vT)}")

def sel_by_group(A, dst, regs):
    A(f"v_cndmask_b32 {vr(dst)}, {vr(regs[0])}, {vr(regs[1])}, s[{SG1}:{SG1+1}]")
    A(f"v_cndmask_b32 {vr(dst)}, {vr(dst)}, {vr(regs[2])}, s[{SG2}:{SG2+1}]")
    A(f"v_cndmask_b32 {vr(dst)}, {vr(dst)}, {vr(regs[3])}, s[{SG3}:{SG3+1}]")

def gen(P=None):
    P = P or {}
    D = P.get("D", 4)
    FL = P.get("kvflags", "nt")
    WFL = P.get("wflags", "nt")
    tab, info = make_table(**P.get("table", {}))
    if P.get("no_ffn"):
        for row in tab: row[2] = 0; row[5] = 255
    if P.get("only_gu"):
        for row in tab:
            if row[2] == 3: row[2] = 0
            row[5] = 255
    if P.get("only_dn"):
        for row in tab:
            if row[2] in (1, 2): row[2] = 0
            row[5] = 255
    if P.get("no_y"):
        for row in tab: row[5] = 255
    if P.get("no_wo"):
        for row in tab: row[4] = 255; row[5] = 255
    A = Asm()
    A.L += open(P.get("header", "recurrent_scan__gqa_block_cached__geglu_ffn__decode.s.ref")).read().split("; Override launch")[0].rstrip("\n").split("\n")
    A.L.append(f"; @launch grid=(256,1,1) block=(256,1,1) lds={LDS_BYTES}")
    A('.amdgcn_target "amdgcn-amd-amdhsa--gfx950"')
    A(".text")
    A(f".globl {NAME}")
    A(".p2align 8")
    A(f".type {NAME},@function")
    body_start = len(A.L)
    A.lab(NAME)
    A("s_cmp_ge_u32 s2, 256")
    A("s_cbranch_scc1 L_exit")
    A("s_load_dwordx16 s[4:19], s[0:1], 0")
    A("s_load_dwordx8 s[20:27], s[0:1], 64")
    A("s_getpc_b64 s[64:65]")
    A.lab("L_pc")
    A("s_add_u32 s64, s64, L_table-L_pc")
    A("s_addc_u32 s65, s65, 0")
    A("s_lshl_b32 s66, s2, 5")
    A("s_add_u32 s64, s64, s66")
    A("s_addc_u32 s65, s65, 0")
    A("s_load_dwordx8 s[28:35], s[64:65], 0")
    A("v_lshrrev_b32 v1, 6, v0")
    A("v_and_b32 v0, 63, v0")
    A(f"v_readfirstlane_b32 s{S_WAVE}, v1")
    if P.get("stamps"):
        A("v_mov_b32 v253, 0")
        stamp(A, P, 15)
    A(f"s_lshr_b32 s{S_HKV}, s2, 4")
    A(f"s_and_b32 s{S_M}, s2, 15")
    A(f"s_lshr_b32 s{S_B}, s{S_M}, 3")
    A(f"s_mov_b32 s{S_REC}, s2")
    A(f"s_mov_b32 s{SG1}, 0xffff0000")
    A(f"s_mov_b32 s{SG1+1}, 0")
    A(f"s_mov_b32 s{SG2}, 0")
    A(f"s_mov_b32 s{SG2+1}, 0xffff")
    A(f"s_mov_b32 s{SG3}, 0")
    A(f"s_mov_b32 s{SG3+1}, 0xffff0000")
    A("s_waitcnt lgkmcnt(0)")
    A(f"s_load_dword s{S_EPO}, s[{S_WS}:{S_WS+1}], {WS_EPOCH}")
    srd(A, SRD_WS, S_WS, WS_SIZE)
    A(f"s_cmp_ge_u32 s{S_WAVE}, 2")
    A("s_cbranch_scc1 L_att")
    A(f"s_cmp_eq_u32 s{S_WAVE}, 1")
    A("s_cbranch_scc1 L_s1")

    vL = 0
    A("v_lshlrev_b32 v1, 4, v0")
    for k in range(4): A(f"v_mov_b32 v{4+k}, -1")
    A(f"s_lshl_b32 s64, s{S_REC}, 10")
    A(f"s_add_u32 s64, s64, {WS_H1O}")
    A(f"buffer_store_dwordx4 v[4:7], v1, s[{SRD_WS}:{SRD_WS+3}], s64 offen sc1")
    A(f"s_lshl_b32 s65, s{S_REC}, 7")
    A(f"s_add_u32 s65, s65, {WS_H1ML}")
    A("s_mov_b64 exec, 0xff")
    A(f"buffer_store_dwordx4 v[4:7], v1, s[{SRD_WS}:{SRD_WS+3}], s65 offen sc1")
    A("s_mov_b64 exec, -1")
    A("s_and_b32 s64, s2, 7")
    A("s_cmp_lg_u32 s64, 0")
    A("s_cbranch_scc1 L_nocnt")
    A("s_lshr_b32 s64, s2, 3")
    A("s_lshl_b32 s64, s64, 8")
    A(f"s_add_u32 s64, s64, {WS_CNT}")
    A("v_mov_b32 v8, 0")
    A("s_mov_b64 exec, 1")
    A(f"buffer_store_dword v8, v1, s[{SRD_WS}:{SRD_WS+3}], s64 offen sc1")
    A("s_mov_b64 exec, -1")
    A.lab("L_nocnt")
    srd(A, SRD_U, S_X, 2304)
    A("v_lshrrev_b32 v2, 5, v0")
    A("v_mul_u32_u24 v2, 1152, v2")
    A("v_and_b32 v3, 31, v0")
    A("v_lshl_add_u32 v2, v3, 2, v2")
    for n in range(9):
        A(f"buffer_load_dword v{8+n}, v2, s[{SRD_U}:{SRD_U+3}], 0 offen offset:{128*n}")
    srd(A, SRD_T, S_WQ, 576 * 8192)
    dma_voff(A, 18, 19, 8192, vL, 20, 21)
    A(f"s_lshr_b32 s66, s{S_M}, 2")
    A(f"s_mul_i32 s67, s66, {144*8192}")
    A(f"s_and_b32 s68, s{S_M}, 3")
    A(f"s_lshl_b32 s68, s68, 7")
    A("s_add_u32 s67, s67, s68")
    A(f"s_lshl_b32 s68, s{S_HKV}, 9")
    A("s_add_u32 s67, s67, s68")
    A(f"s_mov_b32 s68, {T_WQ}")
    A("s_mov_b32 s69, 9")
    A.lab("L_wqdma")
    for par in range(2):
        A("s_mov_b32 m0, s68")
        A("s_add_u32 s68, s68, 1024")
        A(f"buffer_load_dwordx4 v{18+par}, s[{SRD_T}:{SRD_T+3}], s67 offen {WFL} lds")
        A("s_add_u32 s67, s67, 65536")
    A("s_sub_u32 s69, s69, 1")
    A("s_cmp_lg_u32 s69, 0")
    A("s_cbranch_scc1 L_wqdma")
    A("s_barrier")
    stamp(A, P, 0)
    for k in range(4): A(f"v_mov_b32 v{20+k}, 0")
    A(f"ds_write_b128 v1, v[20:23] offset:{T_WQ + 18432}")
    A(f"ds_write_b128 v1, v[20:23] offset:{T_WQ + 19456}")
    A("v_lshrrev_b32 v24, 3, v0")
    A(f"v_mul_u32_u24 v24, {XROW}, v24")
    A("v_and_b32 v25, 7, v0")
    A("v_lshl_add_u32 v24, v25, 2, v24")
    A("s_mov_b64 exec, 0xffff")
    A(f"ds_write_b32 v24, v20 offset:{X_LN + 1152}")
    A("s_mov_b64 exec, -1")
    tr_addr(A, 100, vL, 24, 25)
    A("v_and_b32 v104, 1, v0")
    A(f"v_mul_u32_u24 v104, {XROW}, v104")
    A("v_lshrrev_b32 v24, 4, v0")
    A("v_lshl_add_u32 v104, v24, 4, v104")
    A(f"s_mul_i32 s64, s66, 288")
    A("v_add_u32 v105, s64, v104")
    A("s_waitcnt vmcnt(18)")
    lo = lambda n: 24 + 2 * n
    hi = lambda n: 25 + 2 * n
    for n in range(9):
        A(f"v_lshlrev_b32 v{lo(n)}, 16, v{8+n}")
        A(f"v_and_b32 v{hi(n)}, 0xffff0000, v{8+n}")
    A(f"v_add_f32 v42, v{lo(0)}, v{hi(0)}")
    A(f"v_add_f32 v43, v{lo(1)}, v{hi(1)}")
    for n in range(2, 9):
        A(f"v_add_f32 v42, v42, v{lo(n)}")
        A(f"v_add_f32 v43, v43, v{hi(n)}")
    A("v_add_f32 v42, v42, v43")
    reduce16(A, 42); swap16(A, 42, 43, "v_add_f32")
    A(f"v_mul_f32 v42, {hex(f2u(1/576))}, v42")
    A("v_mov_b32 v44, 0")
    for n in range(9):
        A(f"v_sub_f32 v45, v{lo(n)}, v42")
        A(f"v_sub_f32 v46, v{hi(n)}, v42")
        A("v_fmac_f32 v44, v45, v45")
        A("v_fmac_f32 v44, v46, v46")
    reduce16(A, 44); swap16(A, 44, 43, "v_add_f32")
    A(f"v_mul_f32 v44, {hex(f2u(1/576))}, v44")
    round_bf16(A, 44, 44)
    A(f"v_add_f32 v44, {hex(f2u(1e-5))}, v44")
    round_bf16(A, 44, 44)
    A("v_sqrt_f32 v44, v44")
    round_bf16(A, 44, 44)
    A("v_rcp_f32 v44, v44")
    round_bf16(A, 42, 42)
    A("v_lshrrev_b32 v47, 5, v0")
    A(f"v_mul_u32_u24 v47, {XROW}, v47")
    A("v_and_b32 v48, 31, v0")
    A("v_lshl_add_u32 v47, v48, 2, v47")
    for n in range(9):
        A(f"v_sub_f32 v45, v{lo(n)}, v42")
        A(f"v_sub_f32 v46, v{hi(n)}, v42")
        A("v_cvt_pk_bf16_f32 v45, v45, v46")
        A("v_and_b32 v46, 0xffff0000, v45")
        A("v_lshlrev_b32 v45, 16, v45")
        A("v_mul_f32 v45, v45, v44")
        A("v_mul_f32 v46, v46, v44")
        A(f"v_cvt_pk_bf16_f32 v{50+n}, v45, v46")
        A(f"ds_write_b32 v47, v{50+n} offset:{X_LN + 128*n}")
    stamp(A, P, 1)
    A("s_waitcnt vmcnt(0) lgkmcnt(0)")
    A(f"s_add_u32 s{S_EPN}, s{S_EPO}, 1")
    A(f"s_mul_i32 s{S_TAG}, s{S_EPN}, 0x9E3779B1")
    A(f"s_xor_b32 s{S_TAG}, s{S_TAG}, 0x5bd1e995")
    stamp(A, P, 2)
    ACC = lambda ct: 110 + 4 * ct
    gemv(A, 5, [0, 1, 2, 3],
         lambda n, d: f"ds_read_b128 {vr(d,4)}, v105 offset:{X_LN + 64*n}",
         lambda n, ct, u, d: f"ds_read_b64_tr_b16 {vr(d,2)}, v{100+ct} offset:{T_WQ + 4096*n + 512*u}",
         ACC, lambda k: 128 + 20 * k, lambda k, ct: 132 + 20 * k + 4 * ct, 2)
    def publish_pair(soff):
        sel_by_group(A, 8, [ACC(ct) for ct in range(4)])
        sel_by_group(A, 10, [ACC(ct) + 1 for ct in range(4)])
        return
    publish_pair(None)
    A(f"v_mov_b32 v9, s{S_TAG}")
    A(f"v_mov_b32 v11, s{S_TAG}")
    A(f"s_lshl_b32 s64, s{S_REC}, 10")
    A(f"s_add_u32 s64, s64, {WS_QP}")
    A(f"buffer_store_dwordx4 v[8:11], v1, s[{SRD_WS}:{SRD_WS+3}], s64 offen sc1")
    stamp(A, P, 3)
    A(f"s_lshl_b32 s64, s{S_B}, 3")
    A("v_add_u32 v2, s64, v1")
    A(f"s_lshl_b32 s64, s{S_HKV}, 14")
    A(f"s_add_u32 s64, s64, {WS_QP}")
    for k in range(1, 4): A(f"s_add_u32 s{64+k}, s64, {4096*k}")
    poll_begin(A, "L_qpoll")
    for m in range(16):
        A(f"buffer_load_dwordx2 v[{24+2*m}:{25+2*m}], v2, s[{SRD_WS}:{SRD_WS+3}], s{64+(m>>2)} offen offset:{1024*(m&3)} sc1")
    A("s_waitcnt vmcnt(0)")
    A("v_max3_u32 v60, v25, v27, v29")
    A("v_min3_u32 v61, v25, v27, v29")
    for m in range(3, 16, 2):
        a, b_ = 25 + 2 * m, 25 + 2 * min(m + 1, 15)
        A(f"v_max3_u32 v60, v60, v{a}, v{b_}")
        A(f"v_min3_u32 v61, v61, v{a}, v{b_}")
    A("v_xor_b32 v60, v60, v61")
    A(f"v_xor_b32 v61, s{S_TAG}, v61")
    A("v_or_b32 v60, v60, v61")
    A("v_cmp_ne_u32 vcc, 0, v60")
    if P.get("stamps"):
        A(f"s_cmp_eq_u32 s{S_CNT}, {POLL_LIMIT}")
        A("s_cbranch_scc0 L_qp_nostamp")
        A("s_memrealtime s[92:93]")
        A("s_waitcnt lgkmcnt(0)")
        A("v_writelane_b32 v253, s92, 11")
        A.lab("L_qp_nostamp")
    poll_end(A, "L_qpoll", 1)
    if P.get("stamps"):
        A(f"s_sub_u32 s92, {POLL_LIMIT+1}, s{S_CNT}")
        A("v_writelane_b32 v253, s92, 12")
    A("v_lshlrev_b32 v3, 1, v0")
    for cbp in range(4):
        m = lambda kr: 24 + 2 * (kr * 4 + cbp)
        A(f"v_add_f32 v60, v{m(0)}, v{m(1)}")
        A(f"v_add_f32 v60, v60, v{m(2)}")
        A(f"v_add_f32 v60, v60, v{m(3)}")
        A(f"v_cvt_pk_bf16_f32 v{62+cbp}, v60, v60")
        A(f"ds_write_b16 v3, v{62+cbp} offset:{Q_LDS + 128*cbp}")
    A("s_waitcnt lgkmcnt(0)")
    A("s_barrier")
    stamp(A, P, 4)
    A(f"s_cmp_eq_u32 s{S_FT}, 0")
    A("s_cbranch_scc1 L_s0_ffn_done")
    A(f"s_cmp_eq_u32 s{S_FT}, 3")
    A("s_cbranch_scc1 L_down")
    A(f"s_cmp_eq_u32 s{S_FT}, 1")
    A(f"s_cselect_b32 s{SRD_T}, s{S_WG}, s{S_WU}")
    A(f"s_cselect_b32 s{SRD_T+1}, s{S_WG+1}, s{S_WU+1}")
    A(f"s_mov_b32 s{SRD_T+2}, {576*9216}")
    A(f"s_mov_b32 s{SRD_T+3}, 0x20000")
    dma_voff(A, 18, 19, 9216, vL, 20, 21)
    A(f"s_lshl_b32 s67, s{S_FCB}, 7")
    A(f"s_mov_b32 s68, {T_FFN}")
    A("s_mov_b32 s69, 36")
    A.lab("L_gudma")
    for par in range(2):
        A("s_mov_b32 m0, s68")
        A("s_add_u32 s68, s68, 1024")
        A(f"buffer_load_dwordx4 v{18+par}, s[{SRD_T}:{SRD_T+3}], s67 offen {WFL} lds")
        A(f"s_add_u32 s67, s67, {8*9216}")
    A(f"s_waitcnt vmcnt({P.get('dma_lead', 20)})")
    A("s_sub_u32 s69, s69, 1")
    A("s_cmp_lg_u32 s69, 0")
    A("s_cbranch_scc1 L_gudma")
    for ct in range(4):
        A(f"v_add_u32 v{106+ct}, {T_FFN}, v{100+ct}")
        A(f"v_add_u32 v{170+ct}, {T_FFN + 9*4096}, v{100+ct}")
    A("s_waitcnt vmcnt(0)")
    gemv(A, 18, [0, 1, 2, 3],
         lambda n, d: f"ds_read_b128 {vr(d,4)}, v104 offset:{X_LN + 64*n}",
         lambda n, ct, u, d: f"ds_read_b64_tr_b16 {vr(d,2)}, v{(106 if n < 9 else 170)+ct} offset:{4096*(n % 9) + 512*u}",
         ACC, lambda k: 128 + 20 * k, lambda k, ct: 132 + 20 * k + 4 * ct, 2)
    publish_pair(None)
    round_bf16(A, 8, 8); round_bf16(A, 10, 10)
    A(f"v_mov_b32 v9, s{S_TAG}")
    A(f"v_mov_b32 v11, s{S_TAG}")
    A(f"s_lshl_b32 s64, s{S_FCB}, 1")
    A(f"s_add_u32 s64, s64, s{S_FT}")
    A("s_sub_u32 s64, s64, 1")
    A("s_lshl_b32 s64, s64, 10")
    A(f"s_add_u32 s64, s64, {WS_GU}")
    A(f"buffer_store_dwordx4 v[8:11], v1, s[{SRD_WS}:{SRD_WS+3}], s64 offen sc1")
    A("s_branch L_s0_ffn_done")
    A.lab("L_down")
    srd(A, SRD_T, S_WD, 4608 * 1152)
    dma_voff(A, 18, 19, 1152, vL, 20, 21)
    A(f"s_mul_i32 s67, s{S_FCB}, {64*1152}")
    A(f"s_mov_b32 s68, {T_FFN}")
    A("s_mov_b32 s69, 9")
    A.lab("L_dndma")
    for n in range(8):
        A("s_mov_b32 m0, s68")
        A("s_add_u32 s68, s68, 1024")
        A(f"buffer_load_dwordx4 v{18+(n&1)}, s[{SRD_T}:{SRD_T+3}], s67 offen {WFL} lds")
        A(f"s_add_u32 s67, s67, {9216}")
        if n == 3: A(f"s_waitcnt vmcnt({P.get('dma_lead', 20)})")
    A(f"s_sub_u32 s67, s67, {8*9216 - 128}")
    A(f"s_waitcnt vmcnt({P.get('dma_lead', 20)})")
    A("s_sub_u32 s69, s69, 1")
    A("s_cmp_lg_u32 s69, 0")
    A("s_cbranch_scc1 L_dndma")
    if P.get("only_dn"): A("s_branch L_s0_ffn_done")
    wait_progress(A, "L_dnwait", P.get("t_dn", 26))
    A(f"s_lshl_b32 s64, s{S_FCB}, 11")
    A(f"s_add_u32 s64, s64, {WS_GU}")
    poll_begin(A, "L_gupoll")
    A(f"buffer_load_dwordx4 v[24:27], v1, s[{SRD_WS}:{SRD_WS+3}], s64 offen sc1")
    A(f"buffer_load_dwordx4 v[28:31], v1, s[{SRD_WS}:{SRD_WS+3}], s64 offen offset:1024 sc1")
    A("s_waitcnt vmcnt(0)")
    A("v_max3_u32 v60, v25, v27, v29")
    A("v_min3_u32 v61, v25, v27, v29")
    A("v_max_u32 v60, v60, v31")
    A("v_min_u32 v61, v61, v31")
    A("v_xor_b32 v60, v60, v61")
    A(f"v_xor_b32 v61, s{S_TAG}, v61")
    A("v_or_b32 v60, v60, v61")
    A("v_cmp_ne_u32 vcc, 0, v60")
    poll_end(A, "L_gupoll", 16)
    A("v_lshlrev_b32 v3, 1, v0")
    for bb in range(2):
        gt, up = 24 + 2 * bb, 28 + 2 * bb
        A(f"v_mul_f32 v32, v{gt}, v{gt}")
        A(f"v_mul_f32 v32, v32, v{gt}")
        A(f"v_mov_b32 v33, {hex(f2u(0.044715))}")
        A(f"v_fma_f32 v32, v32, v33, v{gt}")
        A(f"v_mul_f32 v32, {hex(f2u(-2.0 * math.sqrt(2.0 / math.pi) * LOG2E))}, v32")
        A("v_exp_f32 v32, v32")
        A("v_add_f32 v32, 1.0, v32")
        A("v_rcp_f32 v32, v32")
        A(f"v_mul_f32 v32, v{gt}, v32")
        round_bf16(A, 32, 32)
        A(f"v_mul_f32 v32, v32, v{up}")
        A(f"v_cvt_pk_bf16_f32 v{34+bb}, v32, v32")
        A(f"ds_write_b16 v3, v{34+bb} offset:{X3 + X3ROW*bb}")
    A("v_and_b32 v105, 1, v0")
    A(f"v_mul_u32_u24 v105, {X3ROW}, v105")
    A("v_lshrrev_b32 v24, 4, v0")
    A("v_lshl_add_u32 v105, v24, 4, v105")
    A("s_waitcnt lgkmcnt(0)")
    A(f"ds_read_b128 v[180:183], v105 offset:{X3}")
    A(f"ds_read_b128 v[184:187], v105 offset:{X3 + 64}")
    for ct in range(4):
        A(f"v_add_u32 v{106+ct}, {T_FFN}, v{100+ct}")
    A(f"s_lshl_b32 s66, s{S_FCB}, 10")
    A(f"s_add_u32 s66, s66, {WS_YP}")
    A(f"v_mov_b32 v9, s{S_TAG}")
    A(f"v_mov_b32 v11, s{S_TAG}")
    A("s_mov_b32 s69, 9")
    A("s_waitcnt lgkmcnt(0)")
    A.lab("L_dngemv")
    for n in range(2):
        for ct in range(4):
            for u in range(2):
                A(f"ds_read_b64_tr_b16 v[{132+16*n+4*ct+2*u}:{133+16*n+4*ct+2*u}], v{106+ct} offset:{4096*n + 512*u}")
        A(f"s_waitcnt lgkmcnt(0)")
        for ct in range(4):
            c = "0" if n == 0 else vr(ACC(ct), 4)
            A(f"v_mfma_f32_16x16x32_bf16 {vr(ACC(ct),4)}, v[{180+4*n}:{183+4*n}], v[{132+16*n+4*ct}:{135+16*n+4*ct}], {c}")
    for ct in range(4):
        A(f"v_add_u32 v{106+ct}, 8192, v{106+ct}")
    sel_by_group(A, 8, [ACC(ct) for ct in range(4)])
    sel_by_group(A, 10, [ACC(ct) + 1 for ct in range(4)])
    A(f"buffer_store_dwordx4 v[8:11], v1, s[{SRD_WS}:{SRD_WS+3}], s66 offen sc1")
    A(f"s_add_u32 s66, s66, {72*1024}")
    A("s_sub_u32 s69, s69, 1")
    A("s_cmp_lg_u32 s69, 0")
    A("s_cbranch_scc1 L_dngemv")
    A.lab("L_s0_ffn_done")
    stamp(A, P, 5)
    A("s_branch L_side_tail")

    A.lab("L_s1")
    A("v_lshlrev_b32 v1, 4, v0")
    A("s_barrier")
    A("s_waitcnt lgkmcnt(0)")
    A(f"s_add_u32 s{S_EPN}, s{S_EPO}, 1")
    A(f"s_mul_i32 s{S_TAG}, s{S_EPN}, 0x9E3779B1")
    A(f"s_xor_b32 s{S_TAG}, s{S_TAG}, 0x5bd1e995")
    A("s_barrier")
    A(f"s_cmp_eq_u32 s{S_WCB}, 255")
    A("s_cbranch_scc1 L_s1_nowo")
    srd(A, SRD_T, S_WO, 4096 * 1152)
    dma_voff(A, 18, 19, 1152, vL, 20, 21)
    A(f"s_mul_i32 s67, s{S_HKV}, {256*1152}")
    A(f"s_lshl_b32 s68, s{S_WCB}, 7")
    A("s_add_u32 s67, s67, s68")
    A(f"s_mov_b32 s68, {T_WO}")
    A("s_mov_b32 s69, 16")
    A.lab("L_wodma")
    for par in range(2):
        A("s_mov_b32 m0, s68")
        A("s_add_u32 s68, s68, 1024")
        A(f"buffer_load_dwordx4 v{18+par}, s[{SRD_T}:{SRD_T+3}], s67 offen {WFL} lds")
        A(f"s_add_u32 s67, s67, 9216")
    A(f"s_waitcnt vmcnt({P.get('dma_lead', 20)})")
    A("s_sub_u32 s69, s69, 1")
    A("s_cmp_lg_u32 s69, 0")
    A("s_cbranch_scc1 L_wodma")
    A("s_waitcnt vmcnt(0)")
    A.lab("L_s1_nowo")
    A(f"s_cmp_eq_u32 s{S_FIN}, 255")
    A("s_cbranch_scc1 L_s1_noy")
    wait_progress(A, "L_ywait", P.get("t_y", 40))
    A(f"s_mul_i32 s64, s{S_FIN}, {72*1024}")
    A(f"s_add_u32 s64, s64, {WS_YP}")
    A("v_mov_b32 v200, 0")
    A("v_mov_b32 v201, 0")
    A("s_mov_b32 s69, 6")
    A.lab("L_ybatch")
    for k in range(1, 3): A(f"s_add_u32 s{64+k}, s64, {4096*k}")
    poll_begin(A, "L_ypoll")
    for n in range(12):
        A(f"buffer_load_dwordx4 v[{24+4*n}:{27+4*n}], v1, s[{SRD_WS}:{SRD_WS+3}], s{64+(n>>2)} offen offset:{1024*(n&3)} sc1")
    A("s_waitcnt vmcnt(0)")
    A("v_max3_u32 v80, v25, v27, v29")
    A("v_min3_u32 v81, v25, v27, v29")
    tags = [25 + 4 * n + 2 * k for n in range(12) for k in range(2)][3:]
    for k in range(0, len(tags), 2):
        a = tags[k]; b_ = tags[min(k + 1, len(tags) - 1)]
        A(f"v_max3_u32 v80, v80, v{a}, v{b_}")
        A(f"v_min3_u32 v81, v81, v{a}, v{b_}")
    A("v_xor_b32 v80, v80, v81")
    A(f"v_xor_b32 v81, s{S_TAG}, v81")
    A("v_or_b32 v80, v80, v81")
    A("v_cmp_ne_u32 vcc, 0, v80")
    poll_end(A, "L_ypoll", 32)
    for n in range(12):
        A(f"v_add_f32 v200, v200, v{24+4*n}")
        A(f"v_add_f32 v201, v201, v{26+4*n}")
    A(f"s_add_u32 s64, s64, {12*1024}")
    A("s_sub_u32 s69, s69, 1")
    A("s_cmp_lg_u32 s69, 0")
    A("s_cbranch_scc1 L_ybatch")
    for k in range(2):
        y = 200 + k
        round_bf16(A, y, y)
        A(f"v_mul_f32 v80, {hex(f2u(-LOG2E))}, v{y}")
        A("v_exp_f32 v80, v80")
        A("v_add_f32 v80, 1.0, v80")
        A("v_rcp_f32 v80, v80")
        A(f"v_mul_f32 v{y}, v{y}, v80")
        round_bf16(A, y, y)
    srd(A, SRD_U, S_X, 2304)
    A(f"s_lshl_b32 s70, s{S_FIN}, 7")
    A("v_lshlrev_b32 v204, 1, v0")
    A(f"buffer_load_ushort v202, v204, s[{SRD_U}:{SRD_U+3}], s70 offen")
    A(f"buffer_load_ushort v203, v204, s[{SRD_U}:{SRD_U+3}], s70 offen offset:1152")
    A("s_waitcnt vmcnt(0)")
    A.lab("L_s1_noy")
    stamp(A, P, 5)

    A.lab("L_side_tail")
    A("s_barrier")
    stamp(A, P, 6)
    A(f"s_cmp_eq_u32 s{S_WCB}, 255")
    A("s_cbranch_scc1 L_final")
    A("v_lshlrev_b32 v1, 4, v0")
    A("v_bfe_u32 v2, v0, 3, 1")
    A("v_lshlrev_b32 v2, 3, v2")
    A(f"s_lshl_b32 s64, s{S_HKV}, 4")
    A(f"s_lshl_b32 s65, s{S_WAVE}, 3")
    A("s_add_u32 s64, s64, s65")
    A("s_lshl_b32 s66, s64, 7")
    A(f"s_add_u32 s66, s66, {WS_H1ML}")
    A("s_lshl_b32 s64, s64, 10")
    A(f"s_add_u32 s64, s64, {WS_H1O}")
    A("s_add_u32 s65, s64, 4096")
    poll_begin(A, "L_h1poll")
    for p in range(8):
        A(f"buffer_load_dwordx4 v[{24+4*p}:{27+4*p}], v1, s[{SRD_WS}:{SRD_WS+3}], s{64+(p>>2)} offen offset:{1024*(p&3)} sc1")
        A(f"buffer_load_dwordx2 v[{56+2*p}:{57+2*p}], v2, s[{SRD_WS}:{SRD_WS+3}], s66 offen offset:{128*p} sc1")
    A("s_waitcnt vmcnt(0)")
    A("v_max3_u32 v80, v24, v25, v26")
    for k in range(27, 72, 2):
        A(f"v_max3_u32 v80, v80, v{k}, v{min(k+1, 71)}")
    A("v_cmp_eq_u32 vcc, -1, v80")
    poll_end(A, "L_h1poll", 1)
    stamp(A, P, 7)
    MC = lambda p: 56 + 2 * p
    LL = lambda p: 57 + 2 * p
    A(f"v_max3_f32 v80, v{MC(0)}, v{MC(1)}, v{MC(2)}")
    A(f"v_max3_f32 v80, v80, v{MC(3)}, v{MC(4)}")
    A(f"v_max3_f32 v80, v80, v{MC(5)}, v{MC(6)}")
    A(f"v_max_f32 v80, v80, v{MC(7)}")
    for p in range(8): A(f"v_sub_f32 v{MC(p)}, v{MC(p)}, v80")
    for p in range(8): A(f"v_exp_f32 v{MC(p)}, v{MC(p)}")
    A(f"v_mul_f32 v81, v{MC(0)}, v{LL(0)}")
    for p in range(1, 8): A(f"v_fmac_f32 v81, v{MC(p)}, v{LL(p)}")
    A("v_rcp_f32 v81, v81")
    for rr in range(4):
        A(f"v_mul_f32 v{84+rr}, v{MC(0)}, v{24+rr}")
        for p in range(1, 8): A(f"v_fmac_f32 v{84+rr}, v{MC(p)}, v{24+4*p+rr}")
    A("v_bfe_u32 v82, v0, 3, 1")
    A("v_lshlrev_b32 v82, 8, v82")
    A("v_lshrrev_b32 v83, 4, v0")
    A("v_lshl_add_u32 v82, v83, 6, v82")
    A("v_and_b32 v83, 7, v0")
    A("v_lshl_add_u32 v82, v83, 1, v82")
    A(f"s_mul_i32 s64, s{S_WAVE}, {X2ROW}")
    A("v_add_u32 v82, s64, v82")
    for rr in range(4):
        A(f"v_mul_f32 v{84+rr}, v{84+rr}, v81")
        A(f"v_cvt_pk_bf16_f32 v{88+rr}, v{84+rr}, v{84+rr}")
        A(f"ds_write_b16 v82, v{88+rr} offset:{X2 + 16*rr}")
    A("s_waitcnt lgkmcnt(0)")
    A.lab("L_wogemv")
    A("s_barrier")
    stamp(A, P, 8)
    tr_addr(A, 100, vL, 24, 25)
    A(f"s_lshl_b32 s64, s{S_WAVE}, 5")
    A("v_xor_b32 v100, s64, v100")
    A("v_and_b32 v104, 1, v0")
    A(f"v_mul_u32_u24 v104, {X2ROW}, v104")
    A("v_lshrrev_b32 v24, 4, v0")
    A("v_lshl_add_u32 v104, v24, 4, v104")
    gemv(A, 8, [0],
         lambda n, d: f"ds_read_b128 {vr(d,4)}, v104 offset:{X2 + 64*n}",
         lambda n, ct, u, d: f"ds_read_b64_tr_b16 {vr(d,2)}, v100 offset:{T_WO + 4096*n + 512*u}",
         lambda ct: 110, lambda k: 128 + 8 * k, lambda k, ct: 132 + 8 * k, 8)
    A("v_mov_b32 v8, v110")
    A(f"v_mov_b32 v9, s{S_TAG}")
    A("v_mov_b32 v10, v111")
    A(f"v_mov_b32 v11, s{S_TAG}")
    A("v_lshlrev_b32 v2, 4, v0")
    A(f"s_lshl_b32 s64, s{S_WCB}, 14")
    A(f"s_lshl_b32 s65, s{S_HKV}, 10")
    A("s_add_u32 s64, s64, s65")
    A(f"s_lshl_b32 s65, s{S_WAVE}, 8")
    A("s_add_u32 s64, s64, s65")
    A(f"s_add_u32 s64, s64, {WS_SP}")
    A("s_mov_b64 exec, 0xffff")
    A(f"buffer_store_dwordx4 v[8:11], v2, s[{SRD_WS}:{SRD_WS+3}], s64 offen sc1")
    A("s_mov_b64 exec, -1")
    stamp(A, P, 9)
    A.lab("L_final")
    A(f"s_cmp_lg_u32 s{S_WAVE}, 1")
    A("s_cbranch_scc1 L_end")
    A(f"s_cmp_eq_u32 s{S_FIN}, 255")
    A("s_cbranch_scc1 L_end")
    A("v_lshlrev_b32 v1, 4, v0")
    A(f"s_lshl_b32 s64, s{S_FIN}, 14")
    A(f"s_add_u32 s64, s64, {WS_SP}")
    for k in range(1, 4): A(f"s_add_u32 s{64+k}, s64, {4096*k}")
    poll_begin(A, "L_h2poll")
    for n in range(16):
        A(f"buffer_load_dwordx4 v[{24+4*n}:{27+4*n}], v1, s[{SRD_WS}:{SRD_WS+3}], s{64+(n>>2)} offen offset:{1024*(n&3)} sc1")
    A("s_waitcnt vmcnt(0)")
    A("v_max3_u32 v96, v25, v27, v29")
    A("v_min3_u32 v97, v25, v27, v29")
    tags = [25 + 4 * n + 2 * k for n in range(16) for k in range(2)][3:]
    for k in range(0, len(tags), 2):
        a = tags[k]; b_ = tags[min(k + 1, len(tags) - 1)]
        A(f"v_max3_u32 v96, v96, v{a}, v{b_}")
        A(f"v_min3_u32 v97, v97, v{a}, v{b_}")
    A("v_xor_b32 v96, v96, v97")
    A(f"v_xor_b32 v97, s{S_TAG}, v97")
    A("v_or_b32 v96, v96, v97")
    A("v_cmp_ne_u32 vcc, 0, v96")
    poll_end(A, "L_h2poll", 1)
    for bb in range(2):
        a0, a1 = 96 + 2 * bb, 97 + 2 * bb
        A(f"v_add_f32 v{a0}, v{24+2*bb}, v{28+2*bb}")
        A(f"v_add_f32 v{a1}, v{32+2*bb}, v{36+2*bb}")
        for n in range(4, 16, 2):
            A(f"v_add_f32 v{a0}, v{a0}, v{24+4*n+2*bb}")
            A(f"v_add_f32 v{a1}, v{a1}, v{28+4*n+2*bb}")
        A(f"v_add_f32 v{a0}, v{a0}, v{a1}")
    A("v_cvt_pk_bf16_f32 v96, v96, v98")
    A("v_and_b32 v97, 0xffff0000, v96")
    A("v_lshlrev_b32 v96, 16, v96")
    A("v_mul_f32 v96, v96, v200")
    A("v_mul_f32 v97, v97, v201")
    A("v_cvt_pk_bf16_f32 v96, v96, v97")
    A("v_and_b32 v97, 0xffff0000, v96")
    A("v_lshlrev_b32 v96, 16, v96")
    A("v_lshlrev_b32 v98, 16, v202")
    A("v_lshlrev_b32 v99, 16, v203")
    A("v_add_f32 v96, v96, v98")
    A("v_add_f32 v97, v97, v99")
    A("v_cvt_pk_bf16_f32 v96, v96, v97")
    A("v_lshrrev_b32 v97, 16, v96")
    srd(A, SRD_U, S_OUT, 2304)
    A("v_lshlrev_b32 v204, 1, v0")
    A(f"s_lshl_b32 s70, s{S_FIN}, 7")
    A(f"buffer_store_short v96, v204, s[{SRD_U}:{SRD_U+3}], s70 offen")
    A(f"buffer_store_short v97, v204, s[{SRD_U}:{SRD_U+3}], s70 offen offset:1152")
    stamp(A, P, 10)
    A(f"s_cmp_lg_u32 s{S_FIN}, 0")
    A("s_cbranch_scc1 L_end")
    A(f"v_mov_b32 v80, s{S_EPN}")
    A("v_mov_b32 v81, 0")
    A("s_mov_b64 exec, 1")
    A(f"buffer_store_dword v80, v81, s[{SRD_WS}:{SRD_WS+3}], 0 offen offset:{WS_EPOCH}")
    A("s_mov_b64 exec, -1")
    A("s_branch L_end")

    A.lab("L_att")
    A(f"s_sub_u32 s66, s{S_WAVE}, 2")
    A(f"s_lshl_b32 s64, s{S_B}, 4")
    A(f"s_add_u32 s64, s64, s{S_HKV}")
    A("s_lshr_b32 s65, s64, 9")
    A("s_lshl_b32 s64, s64, 23")
    A(f"s_add_u32 s{SRD_K}, s{S_K}, s64")
    A(f"s_addc_u32 s{SRD_K+1}, s{S_K+1}, s65")
    A(f"s_mov_b32 s{SRD_K+2}, 0x800000")
    A(f"s_mov_b32 s{SRD_K+3}, 0x20000")
    A(f"s_add_u32 s{SRD_V}, s{S_V}, s64")
    A(f"s_addc_u32 s{SRD_V+1}, s{S_V+1}, s65")
    A(f"s_mov_b32 s{SRD_V+2}, 0x800000")
    A(f"s_mov_b32 s{SRD_V+3}, 0x20000")
    S_OFF, S_STAT, S_NST, S_INF, S_CLM, S_IT, S_POOL = 70, 71, 74, 75, 76, 77, 78
    POOL = P.get("table", {}).get("pool", 128)
    A(f"s_add_u32 s{S_OFF}, s{S_KV0}, s66")
    A(f"s_lshl_b32 s{S_OFF}, s{S_OFF}, 13")
    A(f"s_add_u32 s{S_NST}, s{S_NSB}, 1")
    A(f"s_sub_u32 s{S_NST}, s{S_NST}, s66")
    A(f"s_lshr_b32 s{S_NST}, s{S_NST}, 1")
    A(f"s_sub_u32 s{S_NST}, s{S_NST}, {D}")
    A(f"s_mov_b32 s{S_INF}, {D}")
    A(f"s_mov_b32 s{S_IT}, 0")
    A("s_lshr_b32 s64, s2, 3")
    A("s_lshl_b32 s64, s64, 8")
    A(f"s_add_u32 s64, s64, {WS_CNT}")
    A(f"s_add_u32 s{S_POOL}, s{S_WS}, s64")
    A(f"s_addc_u32 s{S_POOL+1}, s{S_WS+1}, 0")
    VK0, VK1, VV0, VV1 = 2, 3, 4, 5
    A("v_and_b32 v6, 3, v0")
    A("v_bfe_u32 v7, v0, 2, 2")
    A("v_lshl_add_u32 v6, v6, 2, v7")
    A("v_lshlrev_b32 v6, 8, v6")
    A("v_lshrrev_b32 v7, 4, v0")
    A(f"v_lshl_add_u32 v{VK0}, v7, 4, v6")
    A(f"v_add_u32 v{VK1}, 4096, v{VK0}")
    A(f"v_lshlrev_b32 v{VV0}, 4, v0")
    A(f"v_add_u32 v{VV1}, 4096, v{VV0}")
    KA = lambda s, be, t: 64 * s + 16 * be + 4 * t
    VA = lambda s, be, r: 64 * s + 32 + 16 * be + 4 * r
    def issueK(s):
        for be in range(2):
            for t in range(4):
                A(f"buffer_load_dwordx4 {ar(KA(s,be,t),4)}, v{VK0+be}, s[{SRD_K}:{SRD_K+3}], s{S_OFF} offen offset:{64*t} {FL}")
    def issueV(s):
        for be in range(2):
            for r in range(4):
                A(f"buffer_load_dwordx4 {ar(VA(s,be,r),4)}, v{VV0+be}, s[{SRD_V}:{SRD_V+3}], s{S_OFF} offen offset:{1024*r} {FL}")
    A("s_barrier")
    stamp(A, P, 0)
    groups = []
    for s in range(D): groups += [("K", s), ("V", s)]
    lead = P.get("lead", 3)
    for k, (kind, s) in enumerate(groups):
        if k >= lead: A(f"s_waitcnt vmcnt({8*(lead-1)})")
        (issueK if kind == "K" else issueV)(s)
        if kind == "V": A(f"s_add_u32 s{S_OFF}, s{S_OFF}, 16384")
    A(f"s_mov_b32 s{S_STAT}, s{S_OFF}")
    stamp(A, P, 1)
    VQ = 8
    VM = 24
    VACC = 28
    VMC, VL_ = 32, 33
    VS = 36
    VP = 44
    VB = 52
    VT = 64
    A("v_and_b32 v6, 7, v0")
    A("v_and_b32 v7, 1, v6")
    A("v_mov_b32 v64, 0xffff")
    A("v_lshlrev_b32 v7, 4, v7")
    A("v_lshlrev_b32 v64, v7, v64")
    A("v_lshrrev_b32 v6, 1, v6")
    for q in range(4):
        A(f"v_cmp_eq_u32 vcc, {q}, v6")
        A(f"v_cndmask_b32 v{VM+q}, 0, v64, vcc")
    for k in range(4): A(f"v_mov_b32 v{VACC+k}, 0")
    A(f"v_mov_b32 v{VMC}, 0xff800000")
    A(f"v_mov_b32 v{VL_}, 0")
    A("v_bfe_u32 v6, v0, 3, 1")
    A("v_lshlrev_b32 v6, 8, v6")
    A("v_lshrrev_b32 v7, 4, v0")
    A("v_lshl_add_u32 v6, v7, 4, v6")
    A(f"s_mov_b32 s72, {hex(f2u(SCALE))}")
    A(f"s_mov_b32 s73, {hex(f2u(LOG2E))}")
    A("v_mov_b32 v34, 0")
    A(f"ds_write_b32 v34, v34 offset:{PROG}")
    A("s_waitcnt lgkmcnt(0)")
    A(f"s_add_u32 s{S_EPN}, s{S_EPO}, 1")
    A(f"s_mul_i32 s{S_TAG}, s{S_EPN}, 0x9E3779B1")
    A(f"s_xor_b32 s{S_TAG}, s{S_TAG}, 0x5bd1e995")
    A("s_barrier")
    for t in range(4):
        A(f"ds_read_b128 v[{VQ+4*t}:{VQ+4*t+3}], v6 offset:{Q_LDS + 64*t}")
    A("s_waitcnt lgkmcnt(0)")
    stamp(A, P, 2)
    A.lab("L_loop")
    for s in range(D):
        ldyn, ldead, lgo = A.uniq("L_dyn"), A.uniq("L_dead"), A.uniq("L_go")
        A(f"s_cmp_eq_u32 s{S_NST}, 0")
        A(f"s_cbranch_scc1 {ldyn}")
        A(f"s_mov_b32 s{S_OFF}, s{S_STAT}")
        A(f"s_add_u32 s{S_STAT}, s{S_STAT}, 16384")
        A(f"s_sub_u32 s{S_NST}, s{S_NST}, 1")
        A(f"s_cmp_eq_u32 s{S_NST}, 0")
        A(f"s_cbranch_scc0 {lgo}")
        A(f"s_mov_b32 s{S_CLM}, 1")
        A(f"s_atomic_add s{S_CLM}, s[{S_POOL}:{S_POOL+1}], 0 glc")
        A(f"s_branch {lgo}")
        A.lab(ldyn)
        A("s_waitcnt lgkmcnt(0)")
        A(f"s_cmp_lt_u32 s{S_CLM}, {POOL}")
        A(f"s_cbranch_scc0 {ldead}")
        A(f"s_add_u32 s{S_OFF}, s{S_CLM}, {1024 - POOL}")
        A(f"s_lshl_b32 s{S_OFF}, s{S_OFF}, 13")
        A(f"s_mov_b32 s{S_CLM}, 1")
        A(f"s_atomic_add s{S_CLM}, s[{S_POOL}:{S_POOL+1}], 0 glc")
        A(f"s_branch {lgo}")
        A.lab(ldead)
        A(f"s_mov_b32 s{SRD_K+2}, 0")
        A(f"s_mov_b32 s{SRD_V+2}, 0")
        A(f"s_sub_u32 s{S_INF}, s{S_INF}, 1")
        A.lab(lgo)
        A(f"s_waitcnt vmcnt({16*D-8})")
        for t in range(4):
            for be in range(2):
                c = "0" if t == 0 else vr(VS + 4 * be, 4)
                A(f"v_mfma_f32_16x16x32_bf16 {vr(VS+4*be,4)}, {ar(KA(s,be,t),4)}, {vr(VQ+4*t,4)}, {c}")
        issueK(s)
        for k in range(0, 8, 2):
            A(f"v_cvt_pk_bf16_f32 v{VT}, v{VS+k}, v{VS+k+1}")
            A(f"v_lshlrev_b32 v{VS+k}, 16, v{VT}")
            A(f"v_and_b32 v{VS+k+1}, 0xffff0000, v{VT}")
            A(f"v_mul_f32 v{VS+k}, s72, v{VS+k}")
            A(f"v_mul_f32 v{VS+k+1}, s72, v{VS+k+1}")
            A(f"v_cvt_pk_bf16_f32 v{VT+1}, v{VS+k}, v{VS+k+1}")
            A(f"v_lshlrev_b32 v{VS+k}, 16, v{VT+1}")
            A(f"v_and_b32 v{VS+k+1}, 0xffff0000, v{VT+1}")
        A(f"v_max3_f32 v{VT}, v{VS}, v{VS+1}, v{VS+2}")
        A(f"v_max3_f32 v{VT}, v{VT}, v{VS+3}, v{VS+4}")
        A(f"v_max3_f32 v{VT}, v{VT}, v{VS+5}, v{VS+6}")
        A(f"v_max_f32 v{VT}, v{VT}, v{VS+7}")
        A(f"v_mul_f32 v{VT}, s73, v{VT}")
        A(f"v_cmp_gt_f32 vcc, v{VT}, v{VMC}")
        skip = A.uniq("L_nomax")
        A(f"s_cbranch_vccz {skip}")
        swap16(A, VT, VT + 1, "v_max_f32")
        swap32(A, VT, VT + 1, "v_max_f32")
        A(f"v_max_f32 v{VT}, v{VT}, v{VMC}")
        A(f"v_sub_f32 v{VT+1}, v{VMC}, v{VT}")
        A(f"v_exp_f32 v{VT+1}, v{VT+1}")
        A(f"v_mov_b32 v{VMC}, v{VT}")
        for k in range(4): A(f"v_mul_f32 v{VACC+k}, v{VACC+k}, v{VT+1}")
        A(f"v_mul_f32 v{VL_}, v{VL_}, v{VT+1}")
        A.lab(skip)
        for k in range(8): A(f"v_fma_f32 v{VP+k}, v{VS+k}, s73, -v{VMC}")
        for k in range(8): A(f"v_exp_f32 v{VP+k}, v{VP+k}")
        def prep(k):
            bb = VB + 4 * (k % 3)
            A(f"v_cvt_pk_bf16_f32 v{VT+2}, v{VP+k}, v{VP+k}")
            for q in range(4): A(f"v_and_b32 v{bb+q}, v{VT+2}, v{VM+q}")
        prep(0); prep(1)
        A(f"v_add_f32 v{VT}, v{VP}, v{VP+1}")
        A(f"v_add_f32 v{VT+1}, v{VP+2}, v{VP+3}")
        A(f"s_waitcnt vmcnt({16*D-8})")
        for k in range(8):
            be, r = k >> 2, k & 3
            bb = VB + 4 * (k % 3)
            A(f"v_mfma_f32_16x16x32_bf16 {vr(VACC,4)}, {ar(VA(s,be,r),4)}, {vr(bb,4)}, {vr(VACC,4)}")
            if k + 2 < 8: prep(k + 2)
            if k == 1: A(f"v_add_f32 v{VT}, v{VT}, v{VP+4}"); A(f"v_add_f32 v{VT+1}, v{VT+1}, v{VP+5}")
            if k == 2: A(f"v_add_f32 v{VT}, v{VT}, v{VP+6}"); A(f"v_add_f32 v{VT+1}, v{VT+1}, v{VP+7}")
            if k == 3: A(f"v_add_f32 v{VT}, v{VT}, v{VT+1}"); A(f"v_add_f32 v{VL_}, v{VL_}, v{VT}")
        issueV(s)
        A(f"s_add_u32 s{S_IT}, s{S_IT}, 1")
        A(f"v_mov_b32 v35, s{S_IT}")
        A(f"ds_write_b32 v34, v35 offset:{PROG}")
        A(f"s_cmp_eq_u32 s{S_INF}, 0")
        if s < D - 1: A("s_cbranch_scc1 L_att_done")
        else: A("s_cbranch_scc0 L_loop")
    A.lab("L_att_done")
    A("v_mov_b32 v35, 0xffff")
    A(f"ds_write_b32 v34, v35 offset:{PROG}")
    stamp(A, P, 3)
    swap16(A, VL_, VT, "v_add_f32")
    swap32(A, VL_, VT, "v_add_f32")
    A(f"v_lshlrev_b32 v1, 4, v0")
    A(f"v_lshlrev_b32 v6, 3, v0")
    A(f"s_cmp_eq_u32 s{S_WAVE}, 2")
    A("s_cbranch_scc1 L_att0")
    A(f"ds_write_b128 v1, v[{VACC}:{VACC+3}] offset:{MERGE}")
    A(f"ds_write_b64 v6, v[{VMC}:{VMC+1}] offset:{MERGE + 1024}")
    A("s_waitcnt lgkmcnt(0)")
    A("s_barrier")
    A("s_branch L_att_join")
    A.lab("L_att0")
    A("s_barrier")
    A(f"ds_read_b128 v[68:71], v1 offset:{MERGE}")
    A(f"ds_read_b64 v[72:73], v6 offset:{MERGE + 1024}")
    A("s_waitcnt lgkmcnt(0)")
    A(f"v_max_f32 v74, v{VMC}, v72")
    A(f"v_sub_f32 v75, v{VMC}, v74")
    A("v_sub_f32 v76, v72, v74")
    A("v_exp_f32 v75, v75")
    A("v_exp_f32 v76, v76")
    for k in range(4):
        A(f"v_mul_f32 v{VACC+k}, v{VACC+k}, v75")
        A(f"v_fmac_f32 v{VACC+k}, v{68+k}, v76")
    A(f"v_mul_f32 v{VL_}, v{VL_}, v75")
    A(f"v_fmac_f32 v{VL_}, v73, v76")
    A(f"v_mov_b32 v{VMC}, v74")
    A(f"s_lshl_b32 s64, s{S_REC}, 10")
    A(f"s_add_u32 s64, s64, {WS_H1O}")
    A(f"buffer_store_dwordx4 v[{VACC}:{VACC+3}], v1, s[{SRD_WS}:{SRD_WS+3}], s64 offen sc1")
    A(f"v_mov_b32 v68, v{VMC}")
    A(f"v_mov_b32 v69, v{VL_}")
    A(f"v_mov_b32_dpp v70, v{VMC} row_ror:8 row_mask:0xf bank_mask:0xf")
    A(f"v_mov_b32_dpp v71, v{VL_} row_ror:8 row_mask:0xf bank_mask:0xf")
    A(f"s_lshl_b32 s65, s{S_REC}, 7")
    A(f"s_add_u32 s65, s65, {WS_H1ML}")
    A("s_mov_b64 exec, 0xff")
    A(f"buffer_store_dwordx4 v[68:71], v1, s[{SRD_WS}:{SRD_WS+3}], s65 offen sc1")
    A("s_mov_b64 exec, -1")
    stamp(A, P, 4)
    A.lab("L_att_join")
    A(f"s_cmp_lg_u32 s{S_WCB}, 255")
    A("s_cbranch_scc1 L_wogemv")
    A.lab("L_end")
    stamp_flush(A, P)
    A.lab("L_exit")
    A("s_endpgm")
    body = fix_hazards(A.L[body_start:], verbose=P.get("verbose", False))
    out = A.L[:body_start] + body
    out.append(".p2align 6")
    out.append(".type L_table,@object")
    out.append("L_table:")
    for row in tab: out.append("  .long " + ", ".join(str(v) for v in row))
    out.append(".size L_table, 8192")
    out += ['.section .rodata,"a"', ".p2align 6", f".amdhsa_kernel {NAME}",
            "  .amdhsa_next_free_vgpr 512", "  .amdhsa_next_free_sgpr 102", "  .amdhsa_accum_offset 256",
            "  .amdhsa_group_segment_fixed_size 0", "  .amdhsa_kernarg_size 96", "  .amdhsa_user_sgpr_count 2",
            "  .amdhsa_user_sgpr_kernarg_segment_ptr 1", "  .amdhsa_system_sgpr_workgroup_id_x 1",
            "  .amdhsa_float_denorm_mode_32 3",
            ".end_amdhsa_kernel"]
    return "\n".join(out) + "\n"

if __name__ == "__main__":
    P = eval(sys.argv[2]) if len(sys.argv) > 2 else {}
    P.setdefault("verbose", True)
    s = gen(P)
    open(sys.argv[1] if len(sys.argv) > 1 else "k.s", "w").write(s)
```

```python
import struct, sys, math
from asmlib import Asm, fix_hazards, vr, ar, sr

NAME = "recurrent_scan__gqa_block_cached__geglu_ffn__decode_kernel"

def f2u(x): return struct.unpack("<I", struct.pack("<f", x))[0]

WS_EPOCH = 0
WS_QP   = 0x001000
WS_H1O  = 0x050000
WS_H1ML = 0x090000
WS_GU   = 0x0A0000
WS_YP   = 0x100000
WS_SP   = 0x1B0000
WS_CNT  = 0x1E0000
WS_DBG  = 0x200000
WS_SIZE = 0x400000

X_LN, XROW = 0, 1184
Q_LDS = 2432
X2, X2ROW = 3072, 576
X3, X3ROW = 4352, 192
MERGE = 4864
PROG = 2368
T_WQ = 6400
T_WO = T_WQ + 20480
T_FFN = T_WO + 32768
LDS_BYTES = T_FFN + 73728

LOG2E = 1.4426950408889634
SCALE = 128 ** -0.5
POLL_LIMIT = 400000

S_WAVE = 3
S_X, S_K, S_V, S_WQ, S_WO, S_BX, S_WG, S_WU = 4, 6, 8, 10, 12, 14, 16, 18
S_WD, S_OUT, S_DBG, S_WS = 20, 22, 24, 26
S_KV0, S_NSB, S_FT, S_FCB, S_WCB, S_FIN = 28, 29, 30, 31, 32, 33
S_HKV, S_B, S_M, S_REC = 36, 37, 38, 39
S_EPO, S_TAG, S_EPN = 40, 41, 42
SRD_K, SRD_V, SRD_WS, SRD_T, SRD_U = 44, 48, 52, 56, 60
SG1, SG2, SG3 = 80, 82, 84
S_CNT = 91
S_T0 = 92

def make_table(wside=0.8, c_ffn=72.0, c_wo=32.0, c_fin=88.0, pool=128, adj=None):
    info = {w: dict(x=w & 7, g=w >> 3, j=w & 7, ft=0, fcb=0, wcb=255, fin=255) for w in range(256)}
    free = lambda w: ((w & 7) == (w >> 3) % 8) or ((w >> 3) < 8 and (w & 7) == ((w >> 3) + 4) % 8)
    e = 0
    for w in range(256):
        if not free(w):
            info[w]["ft"] = 1 + e % 3; info[w]["fcb"] = e // 3; e += 1
    assert e == 216
    xcnt = [0] * 8
    for c in range(16):
        chosen = []
        quota = {2 * c: 5 if c % 2 == 0 else 4, 2 * c + 1: 4 if c % 2 == 0 else 5}
        mem = list(range(16 * c, 16 * c + 16))
        for w in mem:
            if free(w): chosen.append(w); quota[w >> 3] -= 1; xcnt[w & 7] += 1
        while len(chosen) < 9:
            cand = [w for w in mem if w not in chosen and quota[w >> 3] > 0]
            w = min(cand, key=lambda v: (xcnt[v & 7], v))
            chosen.append(w); quota[w >> 3] -= 1; xcnt[w & 7] += 1
        for cb, w in enumerate(chosen): info[w]["wcb"] = cb
    frees = [w for w in range(64) if free(w)]
    more = [w for w in range(64, 256) if free(w)]
    fins = [frees[0], frees[3], frees[4], frees[7], frees[8], frees[11], frees[12], frees[15], more[5]]
    assert len(fins) == 9
    for f, w in enumerate(fins): info[w]["fin"] = f
    static_total = 1024 - pool
    for g in range(32):
        ws_ = list(range(8 * g, 8 * g + 8))
        side = []
        for w in ws_:
            i = info[w]
            sd = (c_ffn if i["ft"] else 0) + (c_wo if i["wcb"] != 255 else 0) + (c_fin if i["fin"] != 255 else 0)
            if adj: sd += adj(w, i)
            side.append(sd * wside)
        tot = static_total * 16 + sum(side)
        ideal = [(tot / 8 - sd) / 16 for sd in side]
        n = [int(math.floor(v)) for v in ideal]
        rem = static_total - sum(n)
        order = sorted(range(8), key=lambda k: -(ideal[k] - n[k]))
        for k in order[:rem]: n[k] += 1
        assert sum(n) == static_total and min(n) >= 16
        st = 0
        for k, w in enumerate(ws_):
            info[w]["kv0"] = st; info[w]["nsb"] = n[k]; st += n[k]
        info[ws_[0]]["side_total"] = sum(side)
    tab = [[info[w]["kv0"], info[w]["nsb"], info[w]["ft"], info[w]["fcb"], info[w]["wcb"], info[w]["fin"], 0, 0] for w in range(256)]
    return tab, info

def gemv(A, nsteps, cts, a_read, tr_read, acc, abuf, bbuf, nbuf):
    reads = []
    last = {}
    for n in range(nsteps):
        reads.append((n, a_read(n, abuf(n % nbuf))))
        for ct in cts:
            for u in range(2):
                reads.append((n, tr_read(n, ct, u, bbuf(n % nbuf, ct) + 2 * u)))
            last[(n, ct)] = len(reads) - 1
    issued = 0; done = 0
    for n in range(nsteps):
        for ci, ct in enumerate(cts):
            while issued < len(reads) and (issued - done) < 15 and reads[issued][0] < n + nbuf - (0 if ci == 0 or True else 0):
                if reads[issued][0] - nbuf >= n: break
                A(reads[issued][1]); issued += 1
            need = last[(n, ct)]
            assert issued > need, (issued, need, n, ct)
            if done <= need:
                k = issued - 1 - need
                A(f"s_waitcnt lgkmcnt({k})")
                done = need + 1
            c = "0" if n == 0 else vr(acc(ct), 4)
            A(f"v_mfma_f32_16x16x32_bf16 {vr(acc(ct),4)}, {vr(abuf(n % nbuf),4)}, {vr(bbuf(n % nbuf, ct),4)}, {c}")

def poll_begin(A, name):
    A(f"s_mov_b32 s{S_CNT}, {POLL_LIMIT}")
    A.lab(name)

def poll_end(A, name, sleep):
    ok = name + "_ok"
    A(f"s_cbranch_vccz {ok}")
    A(f"s_sub_u32 s{S_CNT}, s{S_CNT}, 1")
    A(f"s_cmp_eq_u32 s{S_CNT}, 0")
    A(f"s_cbranch_scc1 {ok}")
    if sleep: A(f"s_sleep {sleep}")
    A(f"s_branch {name}")
    A.lab(ok)

def wait_progress(A, name, thr):
    A(f"s_mov_b32 s{S_CNT}, {POLL_LIMIT}")
    A("v_mov_b32 v250, 0")
    A.lab(name)
    A(f"ds_read_b32 v251, v250 offset:{PROG}")
    A("s_waitcnt lgkmcnt(0)")
    A("v_readfirstlane_b32 s79, v251")
    A(f"s_cmp_ge_u32 s79, {thr}")
    A(f"s_cbranch_scc1 {name}_ok")
    A(f"s_sub_u32 s{S_CNT}, s{S_CNT}, 1")
    A(f"s_cmp_eq_u32 s{S_CNT}, 0")
    A(f"s_cbranch_scc1 {name}_ok")
    A("s_sleep 8")
    A(f"s_branch {name}")
    A.lab(name + "_ok")

def reduce16(A, v, op="v_add_f32"):
    for k in (8, 4, 2, 1):
        A(f"{op}_dpp {vr(v)}, {vr(v)}, {vr(v)} row_ror:{k} row_mask:0xf bank_mask:0xf")

def swap16(A, v, t, op):
    A(f"v_mov_b32 {vr(t)}, {vr(v)}")
    A(f"v_permlane16_swap_b32 {vr(v)}, {vr(t)}")
    A(f"{op} {vr(v)}, {vr(v)}, {vr(t)}")

def swap32(A, v, t, op):
    A(f"v_mov_b32 {vr(t)}, {vr(v)}")
    A(f"v_permlane32_swap_b32 {vr(v)}, {vr(t)}")
    A(f"{op} {vr(v)}, {vr(v)}, {vr(t)}")

def round_bf16(A, dst, src):
    A(f"v_cvt_pk_bf16_f32 {vr(dst)}, {vr(src)}, {vr(src)}")
    A(f"v_and_b32 {vr(dst)}, 0xffff0000, {vr(dst)}")

def srd(A, base, ptr, nrec, off=None):
    if off is None:
        A(f"s_mov_b32 s{base}, s{ptr}")
        A(f"s_mov_b32 s{base+1}, s{ptr+1}")
    else:
        lo, hi = off
        A(f"s_add_u32 s{base}, s{ptr}, s{lo}")
        A(f"s_addc_u32 s{base+1}, s{ptr+1}, {hi}")
    A(f"s_mov_b32 s{base+2}, {nrec}")
    A(f"s_mov_b32 s{base+3}, 0x20000")

def stamp(A, P, idx):
    if not P.get("stamps"): return
    A("s_memrealtime s[92:93]")
    A("s_waitcnt lgkmcnt(0)")
    A(f"v_writelane_b32 v253, s92, {idx}")

def stamp_flush(A, P):
    if not P.get("stamps"): return
    A(f"s_lshl_b32 s94, s2, 2")
    A(f"s_add_u32 s94, s94, s{S_WAVE}")
    A(f"s_lshl_b32 s94, s94, 6")
    A(f"s_add_u32 s94, s94, {WS_DBG}")
    A("v_lshlrev_b32 v254, 2, v0")
    A("s_mov_b64 exec, 0xffff")
    A(f"buffer_store_dword v253, v254, s[{SRD_WS}:{SRD_WS+3}], s94 offen")

def dma_voff(A, vE, vO, stride, vL, t0, t1):
    A(f"v_lshrrev_b32 {vr(t0)}, 3, {vr(vL)}")
    A(f"s_mov_b32 s64, {stride}")
    A(f"v_mul_lo_u32 {vr(vE)}, {vr(t0)}, s64")
    A(f"v_bfe_u32 {vr(t0)}, {vr(vL)}, 4, 1")
    A(f"v_lshlrev_b32 {vr(t0)}, 1, {vr(t0)}")
    A(f"v_and_b32 {vr(t1)}, 7, {vr(vL)}")
    A(f"v_xor_b32 {vr(t0)}, {vr(t0)}, {vr(t1)}")
    A(f"v_lshl_add_u32 {vr(vE)}, {vr(t0)}, 4, {vr(vE)}")
    A(f"v_xor_b32 {vr(vO)}, 64, {vr(vE)}")

def tr_addr(A, vT, vL, t0, t1):
    A(f"v_lshrrev_b32 {vr(t0)}, 4, {vr(vL)}")
    A(f"v_bfe_u32 {vr(t1)}, {vr(vL)}, 2, 2")
    A(f"v_lshl_add_u32 {vr(vT)}, {vr(t0)}, 3, {vr(t1)}")
    A(f"v_lshlrev_b32 {vr(vT)}, 7, {vr(vT)}")
    A(f"v_and_b32 {vr(t0)}, 1, {vr(t0)}")
    A(f"v_lshlrev_b32 {vr(t0)}, 1, {vr(t0)}")
    A(f"v_lshrrev_b32 {vr(t1)}, 1, {vr(t1)}")
    A(f"v_or_b32 {vr(t0)}, {vr(t0)}, {vr(t1)}")
    A(f"v_lshlrev_b32 {vr(t0)}, 1, {vr(t0)}")
    A(f"v_bfe_u32 {vr(t1)}, {vr(vL)}, 1, 1")
    A(f"v_xor_b32 {vr(t0)}, {vr(t0)}, {vr(t1)}")
    A(f"v_lshl_add_u32 {vr(vT)}, {vr(t0)}, 4, {vr(vT)}")
    A(f"v_and_b32 {vr(t0)}, 1, {vr(vL)}")
    A(f"v_lshl_add_u32 {vr(vT)}, {vr(t0)}, 3, {vr(vT)}")
    for ct in range(1, 4):
        A(f"v_xor_b32 {vr(vT+ct)}, {32*ct}, {vr(vT)}")

def sel_by_group(A, dst, regs):
    A(f"v_cndmask_b32 {vr(dst)}, {vr(regs[0])}, {vr(regs[1])}, s[{SG1}:{SG1+1}]")
    A(f"v_cndmask_b32 {vr(dst)}, {vr(dst)}, {vr(regs[2])}, s[{SG2}:{SG2+1}]")
    A(f"v_cndmask_b32 {vr(dst)}, {vr(dst)}, {vr(regs[3])}, s[{SG3}:{SG3+1}]")

def gen(P=None):
    P = P or {}
    D = P.get("D", 4)
    FL = P.get("kvflags", "nt")
    WFL = P.get("wflags", "nt")
    tab, info = make_table(**P.get("table", {}))
    if P.get("no_ffn"):
        for row in tab: row[2] = 0; row[5] = 255
    if P.get("only_gu"):
        for row in tab:
            if row[2] == 3: row[2] = 0
            row[5] = 255
    if P.get("only_dn"):
        for row in tab:
            if row[2] in (1, 2): row[2] = 0
            row[5] = 255
    if P.get("no_y"):
        for row in tab: row[5] = 255
    if P.get("no_wo"):
        for row in tab: row[4] = 255; row[5] = 255
    A = Asm()
    A.L += open(P.get("header", "recurrent_scan__gqa_block_cached__geglu_ffn__decode.s.ref")).read().split("; Override launch")[0].rstrip("\n").split("\n")
    A.L.append(f"; @launch grid=(256,1,1) block=(256,1,1) lds={LDS_BYTES}")
    A('.amdgcn_target "amdgcn-amd-amdhsa--gfx950"')
    A(".text")
    A(f".globl {NAME}")
    A(".p2align 8")
    A(f".type {NAME},@function")
    body_start = len(A.L)
    A.lab(NAME)
    A("s_cmp_ge_u32 s2, 256")
    A("s_cbranch_scc1 L_exit")
    A("s_load_dwordx16 s[4:19], s[0:1], 0")
    A("s_load_dwordx8 s[20:27], s[0:1], 64")
    A("s_getpc_b64 s[64:65]")
    A.lab("L_pc")
    A("s_add_u32 s64, s64, L_table-L_pc")
    A("s_addc_u32 s65, s65, 0")
    A("s_lshl_b32 s66, s2, 5")
    A("s_add_u32 s64, s64, s66")
    A("s_addc_u32 s65, s65, 0")
    A("s_load_dwordx8 s[28:35], s[64:65], 0")
    A("v_lshrrev_b32 v1, 6, v0")
    A("v_and_b32 v0, 63, v0")
    A(f"v_readfirstlane_b32 s{S_WAVE}, v1")
    if P.get("stamps"):
        A("v_mov_b32 v253, 0")
        stamp(A, P, 15)
    A(f"s_lshr_b32 s{S_HKV}, s2, 4")
    A(f"s_and_b32 s{S_M}, s2, 15")
    A(f"s_lshr_b32 s{S_B}, s{S_M}, 3")
    A(f"s_mov_b32 s{S_REC}, s2")
    A(f"s_mov_b32 s{SG1}, 0xffff0000")
    A(f"s_mov_b32 s{SG1+1}, 0")
    A(f"s_mov_b32 s{SG2}, 0")
    A(f"s_mov_b32 s{SG2+1}, 0xffff")
    A(f"s_mov_b32 s{SG3}, 0")
    A(f"s_mov_b32 s{SG3+1}, 0xffff0000")
    A("s_waitcnt lgkmcnt(0)")
    if P.get("dbgdur"): A("s_memrealtime s[98:99]")
    A(f"s_load_dword s{S_EPO}, s[{S_WS}:{S_WS+1}], {WS_EPOCH}")
    srd(A, SRD_WS, S_WS, WS_SIZE)
    A(f"s_cmp_ge_u32 s{S_WAVE}, 2")
    A("s_cbranch_scc1 L_att")
    A(f"s_cmp_eq_u32 s{S_WAVE}, 1")
    A("s_cbranch_scc1 L_s1")

    vL = 0
    A("v_lshlrev_b32 v1, 4, v0")
    for k in range(4): A(f"v_mov_b32 v{4+k}, -1")
    A(f"s_lshl_b32 s64, s{S_REC}, 10")
    A(f"s_add_u32 s64, s64, {WS_H1O}")
    A(f"buffer_store_dwordx4 v[4:7], v1, s[{SRD_WS}:{SRD_WS+3}], s64 offen sc1")
    A(f"s_lshl_b32 s65, s{S_REC}, 7")
    A(f"s_add_u32 s65, s65, {WS_H1ML}")
    A("s_mov_b64 exec, 0xff")
    A(f"buffer_store_dwordx4 v[4:7], v1, s[{SRD_WS}:{SRD_WS+3}], s65 offen sc1")
    A("s_mov_b64 exec, -1")
    A("s_and_b32 s64, s2, 7")
    A("s_cmp_lg_u32 s64, 0")
    A("s_cbranch_scc1 L_nocnt")
    A("s_lshr_b32 s64, s2, 3")
    A("s_lshl_b32 s64, s64, 8")
    A(f"s_add_u32 s64, s64, {WS_CNT}")
    A("v_mov_b32 v8, 0")
    A("s_mov_b64 exec, 1")
    A(f"buffer_store_dword v8, v1, s[{SRD_WS}:{SRD_WS+3}], s64 offen sc1")
    A("s_mov_b64 exec, -1")
    A.lab("L_nocnt")
    srd(A, SRD_U, S_X, 2304)
    A("v_lshrrev_b32 v2, 5, v0")
    A("v_mul_u32_u24 v2, 1152, v2")
    A("v_and_b32 v3, 31, v0")
    A("v_lshl_add_u32 v2, v3, 2, v2")
    for n in range(9):
        A(f"buffer_load_dword v{8+n}, v2, s[{SRD_U}:{SRD_U+3}], 0 offen offset:{128*n}")
    srd(A, SRD_T, S_WQ, 576 * 8192)
    dma_voff(A, 18, 19, 8192, vL, 20, 21)
    A(f"s_lshr_b32 s66, s{S_M}, 2")
    A(f"s_mul_i32 s67, s66, {144*8192}")
    A(f"s_and_b32 s68, s{S_M}, 3")
    A(f"s_lshl_b32 s68, s68, 7")
    A("s_add_u32 s67, s67, s68")
    A(f"s_lshl_b32 s68, s{S_HKV}, 9")
    A("s_add_u32 s67, s67, s68")
    A(f"s_mov_b32 s68, {T_WQ}")
    A("s_mov_b32 s69, 9")
    A.lab("L_wqdma")
    for par in range(2):
        A("s_mov_b32 m0, s68")
        A("s_add_u32 s68, s68, 1024")
        A(f"buffer_load_dwordx4 v{18+par}, s[{SRD_T}:{SRD_T+3}], s67 offen {WFL} lds")
        A("s_add_u32 s67, s67, 65536")
    A("s_sub_u32 s69, s69, 1")
    A("s_cmp_lg_u32 s69, 0")
    A("s_cbranch_scc1 L_wqdma")
    A("s_barrier")
    stamp(A, P, 0)
    for k in range(4): A(f"v_mov_b32 v{20+k}, 0")
    A(f"ds_write_b128 v1, v[20:23] offset:{T_WQ + 18432}")
    A(f"ds_write_b128 v1, v[20:23] offset:{T_WQ + 19456}")
    A("v_lshrrev_b32 v24, 3, v0")
    A(f"v_mul_u32_u24 v24, {XROW}, v24")
    A("v_and_b32 v25, 7, v0")
    A("v_lshl_add_u32 v24, v25, 2, v24")
    A("s_mov_b64 exec, 0xffff")
    A(f"ds_write_b32 v24, v20 offset:{X_LN + 1152}")
    A("s_mov_b64 exec, -1")
    tr_addr(A, 100, vL, 24, 25)
    A("v_and_b32 v104, 1, v0")
    A(f"v_mul_u32_u24 v104, {XROW}, v104")
    A("v_lshrrev_b32 v24, 4, v0")
    A("v_lshl_add_u32 v104, v24, 4, v104")
    A(f"s_mul_i32 s64, s66, 288")
    A("v_add_u32 v105, s64, v104")
    A("s_waitcnt vmcnt(18)")
    lo = lambda n: 24 + 2 * n
    hi = lambda n: 25 + 2 * n
    for n in range(9):
        A(f"v_lshlrev_b32 v{lo(n)}, 16, v{8+n}")
        A(f"v_and_b32 v{hi(n)}, 0xffff0000, v{8+n}")
    A(f"v_add_f32 v42, v{lo(0)}, v{hi(0)}")
    A(f"v_add_f32 v43, v{lo(1)}, v{hi(1)}")
    for n in range(2, 9):
        A(f"v_add_f32 v42, v42, v{lo(n)}")
        A(f"v_add_f32 v43, v43, v{hi(n)}")
    A("v_add_f32 v42, v42, v43")
    reduce16(A, 42); swap16(A, 42, 43, "v_add_f32")
    A(f"v_mul_f32 v42, {hex(f2u(1/576))}, v42")
    A("v_mov_b32 v44, 0")
    for n in range(9):
        A(f"v_sub_f32 v45, v{lo(n)}, v42")
        A(f"v_sub_f32 v46, v{hi(n)}, v42")
        A("v_fmac_f32 v44, v45, v45")
        A("v_fmac_f32 v44, v46, v46")
    reduce16(A, 44); swap16(A, 44, 43, "v_add_f32")
    A(f"v_mul_f32 v44, {hex(f2u(1/576))}, v44")
    round_bf16(A, 44, 44)
    A(f"v_add_f32 v44, {hex(f2u(1e-5))}, v44")
    round_bf16(A, 44, 44)
    A("v_sqrt_f32 v44, v44")
    round_bf16(A, 44, 44)
    A("v_rcp_f32 v44, v44")
    round_bf16(A, 42, 42)
    A("v_lshrrev_b32 v47, 5, v0")
    A(f"v_mul_u32_u24 v47, {XROW}, v47")
    A("v_and_b32 v48, 31, v0")
    A("v_lshl_add_u32 v47, v48, 2, v47")
    for n in range(9):
        A(f"v_sub_f32 v45, v{lo(n)}, v42")
        A(f"v_sub_f32 v46, v{hi(n)}, v42")
        A("v_cvt_pk_bf16_f32 v45, v45, v46")
        A("v_and_b32 v46, 0xffff0000, v45")
        A("v_lshlrev_b32 v45, 16, v45")
        A("v_mul_f32 v45, v45, v44")
        A("v_mul_f32 v46, v46, v44")
        A(f"v_cvt_pk_bf16_f32 v{50+n}, v45, v46")
        A(f"ds_write_b32 v47, v{50+n} offset:{X_LN + 128*n}")
    stamp(A, P, 1)
    A("s_waitcnt vmcnt(0) lgkmcnt(0)")
    A(f"s_add_u32 s{S_EPN}, s{S_EPO}, 1")
    A(f"s_mul_i32 s{S_TAG}, s{S_EPN}, 0x9E3779B1")
    A(f"s_xor_b32 s{S_TAG}, s{S_TAG}, 0x5bd1e995")
    stamp(A, P, 2)
    ACC = lambda ct: 110 + 4 * ct
    gemv(A, 5, [0, 1, 2, 3],
         lambda n, d: f"ds_read_b128 {vr(d,4)}, v105 offset:{X_LN + 64*n}",
         lambda n, ct, u, d: f"ds_read_b64_tr_b16 {vr(d,2)}, v{100+ct} offset:{T_WQ + 4096*n + 512*u}",
         ACC, lambda k: 128 + 20 * k, lambda k, ct: 132 + 20 * k + 4 * ct, 2)
    def publish_pair(soff):
        sel_by_group(A, 8, [ACC(ct) for ct in range(4)])
        sel_by_group(A, 10, [ACC(ct) + 1 for ct in range(4)])
        return
    publish_pair(None)
    A(f"v_mov_b32 v9, s{S_TAG}")
    A(f"v_mov_b32 v11, s{S_TAG}")
    A(f"s_lshl_b32 s64, s{S_REC}, 10")
    A(f"s_add_u32 s64, s64, {WS_QP}")
    A(f"buffer_store_dwordx4 v[8:11], v1, s[{SRD_WS}:{SRD_WS+3}], s64 offen sc1")
    stamp(A, P, 3)
    A(f"s_lshl_b32 s64, s{S_B}, 3")
    A("v_add_u32 v2, s64, v1")
    A(f"s_lshl_b32 s64, s{S_HKV}, 14")
    A(f"s_add_u32 s64, s64, {WS_QP}")
    for k in range(1, 4): A(f"s_add_u32 s{64+k}, s64, {4096*k}")
    poll_begin(A, "L_qpoll")
    for m in range(16):
        A(f"buffer_load_dwordx2 v[{24+2*m}:{25+2*m}], v2, s[{SRD_WS}:{SRD_WS+3}], s{64+(m>>2)} offen offset:{1024*(m&3)} sc1")
    A("s_waitcnt vmcnt(0)")
    A("v_max3_u32 v60, v25, v27, v29")
    A("v_min3_u32 v61, v25, v27, v29")
    for m in range(3, 16, 2):
        a, b_ = 25 + 2 * m, 25 + 2 * min(m + 1, 15)
        A(f"v_max3_u32 v60, v60, v{a}, v{b_}")
        A(f"v_min3_u32 v61, v61, v{a}, v{b_}")
    A("v_xor_b32 v60, v60, v61")
    A(f"v_xor_b32 v61, s{S_TAG}, v61")
    A("v_or_b32 v60, v60, v61")
    A("v_cmp_ne_u32 vcc, 0, v60")
    if P.get("stamps"):
        A(f"s_cmp_eq_u32 s{S_CNT}, {POLL_LIMIT}")
        A("s_cbranch_scc0 L_qp_nostamp")
        A("s_memrealtime s[92:93]")
        A("s_waitcnt lgkmcnt(0)")
        A("v_writelane_b32 v253, s92, 11")
        A.lab("L_qp_nostamp")
    poll_end(A, "L_qpoll", 1)
    if P.get("stamps"):
        A(f"s_sub_u32 s92, {POLL_LIMIT+1}, s{S_CNT}")
        A("v_writelane_b32 v253, s92, 12")
    A("v_lshlrev_b32 v3, 1, v0")
    for cbp in range(4):
        m = lambda kr: 24 + 2 * (kr * 4 + cbp)
        A(f"v_add_f32 v60, v{m(0)}, v{m(1)}")
        A(f"v_add_f32 v60, v60, v{m(2)}")
        A(f"v_add_f32 v60, v60, v{m(3)}")
        A(f"v_cvt_pk_bf16_f32 v{62+cbp}, v60, v60")
        A(f"ds_write_b16 v3, v{62+cbp} offset:{Q_LDS + 128*cbp}")
    A("s_waitcnt lgkmcnt(0)")
    A("s_barrier")
    stamp(A, P, 4)
    A(f"s_cmp_eq_u32 s{S_FT}, 0")
    A("s_cbranch_scc1 L_s0_ffn_done")
    A(f"s_cmp_eq_u32 s{S_FT}, 3")
    A("s_cbranch_scc1 L_down")
    A(f"s_cmp_eq_u32 s{S_FT}, 1")
    A(f"s_cselect_b32 s{SRD_T}, s{S_WG}, s{S_WU}")
    A(f"s_cselect_b32 s{SRD_T+1}, s{S_WG+1}, s{S_WU+1}")
    A(f"s_mov_b32 s{SRD_T+2}, {576*9216}")
    A(f"s_mov_b32 s{SRD_T+3}, 0x20000")
    dma_voff(A, 18, 19, 9216, vL, 20, 21)
    A(f"s_lshl_b32 s67, s{S_FCB}, 7")
    A(f"s_mov_b32 s68, {T_FFN}")
    A("s_mov_b32 s69, 36")
    A.lab("L_gudma")
    for par in range(2):
        A("s_mov_b32 m0, s68")
        A("s_add_u32 s68, s68, 1024")
        A(f"buffer_load_dwordx4 v{18+par}, s[{SRD_T}:{SRD_T+3}], s67 offen {WFL} lds")
        A(f"s_add_u32 s67, s67, {8*9216}")
    A(f"s_waitcnt vmcnt({P.get('dma_lead', 20)})")
    A("s_sub_u32 s69, s69, 1")
    A("s_cmp_lg_u32 s69, 0")
    A("s_cbranch_scc1 L_gudma")
    for ct in range(4):
        A(f"v_add_u32 v{106+ct}, {T_FFN}, v{100+ct}")
        A(f"v_add_u32 v{170+ct}, {T_FFN + 9*4096}, v{100+ct}")
    A("s_waitcnt vmcnt(0)")
    gemv(A, 18, [0, 1, 2, 3],
         lambda n, d: f"ds_read_b128 {vr(d,4)}, v104 offset:{X_LN + 64*n}",
         lambda n, ct, u, d: f"ds_read_b64_tr_b16 {vr(d,2)}, v{(106 if n < 9 else 170)+ct} offset:{4096*(n % 9) + 512*u}",
         ACC, lambda k: 128 + 20 * k, lambda k, ct: 132 + 20 * k + 4 * ct, 2)
    publish_pair(None)
    round_bf16(A, 8, 8); round_bf16(A, 10, 10)
    A(f"v_mov_b32 v9, s{S_TAG}")
    A(f"v_mov_b32 v11, s{S_TAG}")
    A(f"s_lshl_b32 s64, s{S_FCB}, 1")
    A(f"s_add_u32 s64, s64, s{S_FT}")
    A("s_sub_u32 s64, s64, 1")
    A("s_lshl_b32 s64, s64, 10")
    A(f"s_add_u32 s64, s64, {WS_GU}")
    A(f"buffer_store_dwordx4 v[8:11], v1, s[{SRD_WS}:{SRD_WS+3}], s64 offen sc1")
    A("s_branch L_s0_ffn_done")
    A.lab("L_down")
    srd(A, SRD_T, S_WD, 4608 * 1152)
    dma_voff(A, 18, 19, 1152, vL, 20, 21)
    A(f"s_mul_i32 s67, s{S_FCB}, {64*1152}")
    A(f"s_mov_b32 s68, {T_FFN}")
    A("s_mov_b32 s69, 9")
    A.lab("L_dndma")
    for n in range(8):
        A("s_mov_b32 m0, s68")
        A("s_add_u32 s68, s68, 1024")
        A(f"buffer_load_dwordx4 v{18+(n&1)}, s[{SRD_T}:{SRD_T+3}], s67 offen {WFL} lds")
        A(f"s_add_u32 s67, s67, {9216}")
        if n == 3: A(f"s_waitcnt vmcnt({P.get('dma_lead', 20)})")
    A(f"s_sub_u32 s67, s67, {8*9216 - 128}")
    A(f"s_waitcnt vmcnt({P.get('dma_lead', 20)})")
    A("s_sub_u32 s69, s69, 1")
    A("s_cmp_lg_u32 s69, 0")
    A("s_cbranch_scc1 L_dndma")
    if P.get("only_dn"): A("s_branch L_s0_ffn_done")
    wait_progress(A, "L_dnwait", P.get("t_dn", 26))
    A(f"s_lshl_b32 s64, s{S_FCB}, 11")
    A(f"s_add_u32 s64, s64, {WS_GU}")
    poll_begin(A, "L_gupoll")
    A(f"buffer_load_dwordx4 v[24:27], v1, s[{SRD_WS}:{SRD_WS+3}], s64 offen sc1")
    A(f"buffer_load_dwordx4 v[28:31], v1, s[{SRD_WS}:{SRD_WS+3}], s64 offen offset:1024 sc1")
    A("s_waitcnt vmcnt(0)")
    A("v_max3_u32 v60, v25, v27, v29")
    A("v_min3_u32 v61, v25, v27, v29")
    A("v_max_u32 v60, v60, v31")
    A("v_min_u32 v61, v61, v31")
    A("v_xor_b32 v60, v60, v61")
    A(f"v_xor_b32 v61, s{S_TAG}, v61")
    A("v_or_b32 v60, v60, v61")
    A("v_cmp_ne_u32 vcc, 0, v60")
    poll_end(A, "L_gupoll", 16)
    A("v_lshlrev_b32 v3, 1, v0")
    for bb in range(2):
        gt, up = 24 + 2 * bb, 28 + 2 * bb
        A(f"v_mul_f32 v32, v{gt}, v{gt}")
        A(f"v_mul_f32 v32, v32, v{gt}")
        A(f"v_mov_b32 v33, {hex(f2u(0.044715))}")
        A(f"v_fma_f32 v32, v32, v33, v{gt}")
        A(f"v_mul_f32 v32, {hex(f2u(-2.0 * math.sqrt(2.0 / math.pi) * LOG2E))}, v32")
        A("v_exp_f32 v32, v32")
        A("v_add_f32 v32, 1.0, v32")
        A("v_rcp_f32 v32, v32")
        A(f"v_mul_f32 v32, v{gt}, v32")
        round_bf16(A, 32, 32)
        A(f"v_mul_f32 v32, v32, v{up}")
        A(f"v_cvt_pk_bf16_f32 v{34+bb}, v32, v32")
        A(f"ds_write_b16 v3, v{34+bb} offset:{X3 + X3ROW*bb}")
    A("v_and_b32 v105, 1, v0")
    A(f"v_mul_u32_u24 v105, {X3ROW}, v105")
    A("v_lshrrev_b32 v24, 4, v0")
    A("v_lshl_add_u32 v105, v24, 4, v105")
    A("s_waitcnt lgkmcnt(0)")
    A(f"ds_read_b128 v[180:183], v105 offset:{X3}")
    A(f"ds_read_b128 v[184:187], v105 offset:{X3 + 64}")
    for ct in range(4):
        A(f"v_add_u32 v{106+ct}, {T_FFN}, v{100+ct}")
    A(f"s_lshl_b32 s66, s{S_FCB}, 10")
    A(f"s_add_u32 s66, s66, {WS_YP}")
    A(f"v_mov_b32 v9, s{S_TAG}")
    A(f"v_mov_b32 v11, s{S_TAG}")
    A("s_mov_b32 s69, 9")
    A("s_waitcnt lgkmcnt(0)")
    A.lab("L_dngemv")
    for n in range(2):
        for ct in range(4):
            for u in range(2):
                A(f"ds_read_b64_tr_b16 v[{132+16*n+4*ct+2*u}:{133+16*n+4*ct+2*u}], v{106+ct} offset:{4096*n + 512*u}")
        A(f"s_waitcnt lgkmcnt(0)")
        for ct in range(4):
            c = "0" if n == 0 else vr(ACC(ct), 4)
            A(f"v_mfma_f32_16x16x32_bf16 {vr(ACC(ct),4)}, v[{180+4*n}:{183+4*n}], v[{132+16*n+4*ct}:{135+16*n+4*ct}], {c}")
    for ct in range(4):
        A(f"v_add_u32 v{106+ct}, 8192, v{106+ct}")
    sel_by_group(A, 8, [ACC(ct) for ct in range(4)])
    sel_by_group(A, 10, [ACC(ct) + 1 for ct in range(4)])
    A(f"buffer_store_dwordx4 v[8:11], v1, s[{SRD_WS}:{SRD_WS+3}], s66 offen sc1")
    A(f"s_add_u32 s66, s66, {72*1024}")
    A("s_sub_u32 s69, s69, 1")
    A("s_cmp_lg_u32 s69, 0")
    A("s_cbranch_scc1 L_dngemv")
    A.lab("L_s0_ffn_done")
    stamp(A, P, 5)
    A("s_branch L_side_tail")

    A.lab("L_s1")
    A("v_lshlrev_b32 v1, 4, v0")
    A("s_barrier")
    A("s_waitcnt lgkmcnt(0)")
    A(f"s_add_u32 s{S_EPN}, s{S_EPO}, 1")
    A(f"s_mul_i32 s{S_TAG}, s{S_EPN}, 0x9E3779B1")
    A(f"s_xor_b32 s{S_TAG}, s{S_TAG}, 0x5bd1e995")
    A("s_barrier")
    A(f"s_cmp_eq_u32 s{S_WCB}, 255")
    A("s_cbranch_scc1 L_s1_nowo")
    srd(A, SRD_T, S_WO, 4096 * 1152)
    dma_voff(A, 18, 19, 1152, vL, 20, 21)
    A(f"s_mul_i32 s67, s{S_HKV}, {256*1152}")
    A(f"s_lshl_b32 s68, s{S_WCB}, 7")
    A("s_add_u32 s67, s67, s68")
    A(f"s_mov_b32 s68, {T_WO}")
    A("s_mov_b32 s69, 16")
    A.lab("L_wodma")
    for par in range(2):
        A("s_mov_b32 m0, s68")
        A("s_add_u32 s68, s68, 1024")
        A(f"buffer_load_dwordx4 v{18+par}, s[{SRD_T}:{SRD_T+3}], s67 offen {WFL} lds")
        A(f"s_add_u32 s67, s67, 9216")
    A(f"s_waitcnt vmcnt({P.get('dma_lead', 20)})")
    A("s_sub_u32 s69, s69, 1")
    A("s_cmp_lg_u32 s69, 0")
    A("s_cbranch_scc1 L_wodma")
    A("s_waitcnt vmcnt(0)")
    A.lab("L_s1_nowo")
    A(f"s_cmp_eq_u32 s{S_FIN}, 255")
    A("s_cbranch_scc1 L_s1_noy")
    wait_progress(A, "L_ywait", P.get("t_y", 40))
    A(f"s_mul_i32 s64, s{S_FIN}, {72*1024}")
    A(f"s_add_u32 s64, s64, {WS_YP}")
    A("v_mov_b32 v200, 0")
    A("v_mov_b32 v201, 0")
    A("s_mov_b32 s69, 6")
    A.lab("L_ybatch")
    for k in range(1, 3): A(f"s_add_u32 s{64+k}, s64, {4096*k}")
    poll_begin(A, "L_ypoll")
    for n in range(12):
        A(f"buffer_load_dwordx4 v[{24+4*n}:{27+4*n}], v1, s[{SRD_WS}:{SRD_WS+3}], s{64+(n>>2)} offen offset:{1024*(n&3)} sc1")
    A("s_waitcnt vmcnt(0)")
    A("v_max3_u32 v80, v25, v27, v29")
    A("v_min3_u32 v81, v25, v27, v29")
    tags = [25 + 4 * n + 2 * k for n in range(12) for k in range(2)][3:]
    for k in range(0, len(tags), 2):
        a = tags[k]; b_ = tags[min(k + 1, len(tags) - 1)]
        A(f"v_max3_u32 v80, v80, v{a}, v{b_}")
        A(f"v_min3_u32 v81, v81, v{a}, v{b_}")
    A("v_xor_b32 v80, v80, v81")
    A(f"v_xor_b32 v81, s{S_TAG}, v81")
    A("v_or_b32 v80, v80, v81")
    A("v_cmp_ne_u32 vcc, 0, v80")
    poll_end(A, "L_ypoll", 32)
    for n in range(12):
        A(f"v_add_f32 v200, v200, v{24+4*n}")
        A(f"v_add_f32 v201, v201, v{26+4*n}")
    A(f"s_add_u32 s64, s64, {12*1024}")
    A("s_sub_u32 s69, s69, 1")
    A("s_cmp_lg_u32 s69, 0")
    A("s_cbranch_scc1 L_ybatch")
    for k in range(2):
        y = 200 + k
        round_bf16(A, y, y)
        A(f"v_mul_f32 v80, {hex(f2u(-LOG2E))}, v{y}")
        A("v_exp_f32 v80, v80")
        A("v_add_f32 v80, 1.0, v80")
        A("v_rcp_f32 v80, v80")
        A(f"v_mul_f32 v{y}, v{y}, v80")
        round_bf16(A, y, y)
    srd(A, SRD_U, S_X, 2304)
    A(f"s_lshl_b32 s70, s{S_FIN}, 7")
    A("v_lshlrev_b32 v204, 1, v0")
    A(f"buffer_load_ushort v202, v204, s[{SRD_U}:{SRD_U+3}], s70 offen")
    A(f"buffer_load_ushort v203, v204, s[{SRD_U}:{SRD_U+3}], s70 offen offset:1152")
    A("s_waitcnt vmcnt(0)")
    A.lab("L_s1_noy")
    stamp(A, P, 5)

    A.lab("L_side_tail")
    A("s_barrier")
    stamp(A, P, 6)
    A(f"s_cmp_eq_u32 s{S_WCB}, 255")
    A("s_cbranch_scc1 L_final")
    A("v_lshlrev_b32 v1, 4, v0")
    A("v_bfe_u32 v2, v0, 3, 1")
    A("v_lshlrev_b32 v2, 3, v2")
    A(f"s_lshl_b32 s64, s{S_HKV}, 4")
    A(f"s_lshl_b32 s65, s{S_WAVE}, 3")
    A("s_add_u32 s64, s64, s65")
    A("s_lshl_b32 s66, s64, 7")
    A(f"s_add_u32 s66, s66, {WS_H1ML}")
    A("s_lshl_b32 s64, s64, 10")
    A(f"s_add_u32 s64, s64, {WS_H1O}")
    A("s_add_u32 s65, s64, 4096")
    poll_begin(A, "L_h1poll")
    for p in range(8):
        A(f"buffer_load_dwordx4 v[{24+4*p}:{27+4*p}], v1, s[{SRD_WS}:{SRD_WS+3}], s{64+(p>>2)} offen offset:{1024*(p&3)} sc1")
        A(f"buffer_load_dwordx2 v[{56+2*p}:{57+2*p}], v2, s[{SRD_WS}:{SRD_WS+3}], s66 offen offset:{128*p} sc1")
    A("s_waitcnt vmcnt(0)")
    A("v_max3_u32 v80, v24, v25, v26")
    for k in range(27, 72, 2):
        A(f"v_max3_u32 v80, v80, v{k}, v{min(k+1, 71)}")
    A("v_cmp_eq_u32 vcc, -1, v80")
    poll_end(A, "L_h1poll", 1)
    stamp(A, P, 7)
    MC = lambda p: 56 + 2 * p
    LL = lambda p: 57 + 2 * p
    A(f"v_max3_f32 v80, v{MC(0)}, v{MC(1)}, v{MC(2)}")
    A(f"v_max3_f32 v80, v80, v{MC(3)}, v{MC(4)}")
    A(f"v_max3_f32 v80, v80, v{MC(5)}, v{MC(6)}")
    A(f"v_max_f32 v80, v80, v{MC(7)}")
    for p in range(8): A(f"v_sub_f32 v{MC(p)}, v{MC(p)}, v80")
    for p in range(8): A(f"v_exp_f32 v{MC(p)}, v{MC(p)}")
    A(f"v_mul_f32 v81, v{MC(0)}, v{LL(0)}")
    for p in range(1, 8): A(f"v_fmac_f32 v81, v{MC(p)}, v{LL(p)}")
    A("v_rcp_f32 v81, v81")
    for rr in range(4):
        A(f"v_mul_f32 v{84+rr}, v{MC(0)}, v{24+rr}")
        for p in range(1, 8): A(f"v_fmac_f32 v{84+rr}, v{MC(p)}, v{24+4*p+rr}")
    A("v_bfe_u32 v82, v0, 3, 1")
    A("v_lshlrev_b32 v82, 8, v82")
    A("v_lshrrev_b32 v83, 4, v0")
    A("v_lshl_add_u32 v82, v83, 6, v82")
    A("v_and_b32 v83, 7, v0")
    A("v_lshl_add_u32 v82, v83, 1, v82")
    A(f"s_mul_i32 s64, s{S_WAVE}, {X2ROW}")
    A("v_add_u32 v82, s64, v82")
    for rr in range(4):
        A(f"v_mul_f32 v{84+rr}, v{84+rr}, v81")
        A(f"v_cvt_pk_bf16_f32 v{88+rr}, v{84+rr}, v{84+rr}")
        A(f"ds_write_b16 v82, v{88+rr} offset:{X2 + 16*rr}")
    A("s_waitcnt lgkmcnt(0)")
    A.lab("L_wogemv")
    A("s_barrier")
    stamp(A, P, 8)
    tr_addr(A, 100, vL, 24, 25)
    A(f"s_lshl_b32 s64, s{S_WAVE}, 5")
    A("v_xor_b32 v100, s64, v100")
    A("v_and_b32 v104, 1, v0")
    A(f"v_mul_u32_u24 v104, {X2ROW}, v104")
    A("v_lshrrev_b32 v24, 4, v0")
    A("v_lshl_add_u32 v104, v24, 4, v104")
    gemv(A, 8, [0],
         lambda n, d: f"ds_read_b128 {vr(d,4)}, v104 offset:{X2 + 64*n}",
         lambda n, ct, u, d: f"ds_read_b64_tr_b16 {vr(d,2)}, v100 offset:{T_WO + 4096*n + 512*u}",
         lambda ct: 110, lambda k: 128 + 8 * k, lambda k, ct: 132 + 8 * k, 8)
    A("v_mov_b32 v8, v110")
    A(f"v_mov_b32 v9, s{S_TAG}")
    A("v_mov_b32 v10, v111")
    A(f"v_mov_b32 v11, s{S_TAG}")
    A("v_lshlrev_b32 v2, 4, v0")
    A(f"s_lshl_b32 s64, s{S_WCB}, 14")
    A(f"s_lshl_b32 s65, s{S_HKV}, 10")
    A("s_add_u32 s64, s64, s65")
    A(f"s_lshl_b32 s65, s{S_WAVE}, 8")
    A("s_add_u32 s64, s64, s65")
    A(f"s_add_u32 s64, s64, {WS_SP}")
    A("s_mov_b64 exec, 0xffff")
    A(f"buffer_store_dwordx4 v[8:11], v2, s[{SRD_WS}:{SRD_WS+3}], s64 offen sc1")
    A("s_mov_b64 exec, -1")
    stamp(A, P, 9)
    A.lab("L_final")
    A(f"s_cmp_lg_u32 s{S_WAVE}, 1")
    A("s_cbranch_scc1 L_end")
    A(f"s_cmp_eq_u32 s{S_FIN}, 255")
    A("s_cbranch_scc1 L_end")
    A("v_lshlrev_b32 v1, 4, v0")
    A(f"s_lshl_b32 s64, s{S_FIN}, 14")
    A(f"s_add_u32 s64, s64, {WS_SP}")
    for k in range(1, 4): A(f"s_add_u32 s{64+k}, s64, {4096*k}")
    poll_begin(A, "L_h2poll")
    for n in range(16):
        A(f"buffer_load_dwordx4 v[{24+4*n}:{27+4*n}], v1, s[{SRD_WS}:{SRD_WS+3}], s{64+(n>>2)} offen offset:{1024*(n&3)} sc1")
    A("s_waitcnt vmcnt(0)")
    A("v_max3_u32 v96, v25, v27, v29")
    A("v_min3_u32 v97, v25, v27, v29")
    tags = [25 + 4 * n + 2 * k for n in range(16) for k in range(2)][3:]
    for k in range(0, len(tags), 2):
        a = tags[k]; b_ = tags[min(k + 1, len(tags) - 1)]
        A(f"v_max3_u32 v96, v96, v{a}, v{b_}")
        A(f"v_min3_u32 v97, v97, v{a}, v{b_}")
    A("v_xor_b32 v96, v96, v97")
    A(f"v_xor_b32 v97, s{S_TAG}, v97")
    A("v_or_b32 v96, v96, v97")
    A("v_cmp_ne_u32 vcc, 0, v96")
    poll_end(A, "L_h2poll", 1)
    for bb in range(2):
        a0, a1 = 96 + 2 * bb, 97 + 2 * bb
        A(f"v_add_f32 v{a0}, v{24+2*bb}, v{28+2*bb}")
        A(f"v_add_f32 v{a1}, v{32+2*bb}, v{36+2*bb}")
        for n in range(4, 16, 2):
            A(f"v_add_f32 v{a0}, v{a0}, v{24+4*n+2*bb}")
            A(f"v_add_f32 v{a1}, v{a1}, v{28+4*n+2*bb}")
        A(f"v_add_f32 v{a0}, v{a0}, v{a1}")
    A("v_cvt_pk_bf16_f32 v96, v96, v98")
    A("v_and_b32 v97, 0xffff0000, v96")
    A("v_lshlrev_b32 v96, 16, v96")
    A("v_mul_f32 v96, v96, v200")
    A("v_mul_f32 v97, v97, v201")
    A("v_cvt_pk_bf16_f32 v96, v96, v97")
    A("v_and_b32 v97, 0xffff0000, v96")
    A("v_lshlrev_b32 v96, 16, v96")
    A("v_lshlrev_b32 v98, 16, v202")
    A("v_lshlrev_b32 v99, 16, v203")
    A("v_add_f32 v96, v96, v98")
    A("v_add_f32 v97, v97, v99")
    A("v_cvt_pk_bf16_f32 v96, v96, v97")
    A("v_lshrrev_b32 v97, 16, v96")
    srd(A, SRD_U, S_OUT, 2304)
    A("v_lshlrev_b32 v204, 1, v0")
    A(f"s_lshl_b32 s70, s{S_FIN}, 7")
    A(f"buffer_store_short v96, v204, s[{SRD_U}:{SRD_U+3}], s70 offen")
    A(f"buffer_store_short v97, v204, s[{SRD_U}:{SRD_U+3}], s70 offen offset:1152")
    stamp(A, P, 10)
    if P.get("dbgdur"):
        A("s_memrealtime s[92:93]")
        A("s_waitcnt lgkmcnt(0)")
        A("s_sub_u32 s92, s92, s98")
        srd(A, SRD_U, S_DBG, 256)
        A("v_mov_b32 v96, s92")
        A(f"s_lshl_b32 s64, s{S_FIN}, 2")
        A("v_mov_b32 v97, 0")
        A("s_mov_b64 exec, 1")
        A(f"buffer_store_dword v96, v97, s[{SRD_U}:{SRD_U+3}], s64 offen")
        A("s_mov_b64 exec, -1")
    A(f"s_cmp_lg_u32 s{S_FIN}, 0")
    A("s_cbranch_scc1 L_end")
    A(f"v_mov_b32 v80, s{S_EPN}")
    A("v_mov_b32 v81, 0")
    A("s_mov_b64 exec, 1")
    A(f"buffer_store_dword v80, v81, s[{SRD_WS}:{SRD_WS+3}], 0 offen offset:{WS_EPOCH}")
    A("s_mov_b64 exec, -1")
    A("s_branch L_end")

    A.lab("L_att")
    A(f"s_sub_u32 s66, s{S_WAVE}, 2")
    A(f"s_lshl_b32 s64, s{S_B}, 4")
    A(f"s_add_u32 s64, s64, s{S_HKV}")
    A("s_lshr_b32 s65, s64, 9")
    A("s_lshl_b32 s64, s64, 23")
    A(f"s_add_u32 s{SRD_K}, s{S_K}, s64")
    A(f"s_addc_u32 s{SRD_K+1}, s{S_K+1}, s65")
    A(f"s_mov_b32 s{SRD_K+2}, 0x800000")
    A(f"s_mov_b32 s{SRD_K+3}, 0x20000")
    A(f"s_add_u32 s{SRD_V}, s{S_V}, s64")
    A(f"s_addc_u32 s{SRD_V+1}, s{S_V+1}, s65")
    A(f"s_mov_b32 s{SRD_V+2}, 0x800000")
    A(f"s_mov_b32 s{SRD_V+3}, 0x20000")
    S_OFF, S_STAT, S_NST, S_INF, S_CLM, S_IT, S_POOL = 70, 71, 74, 75, 76, 77, 78
    POOL = P.get("table", {}).get("pool", 128)
    A(f"s_add_u32 s{S_OFF}, s{S_KV0}, s66")
    A(f"s_lshl_b32 s{S_OFF}, s{S_OFF}, 13")
    A(f"s_add_u32 s{S_NST}, s{S_NSB}, 1")
    A(f"s_sub_u32 s{S_NST}, s{S_NST}, s66")
    A(f"s_lshr_b32 s{S_NST}, s{S_NST}, 1")
    A(f"s_sub_u32 s{S_NST}, s{S_NST}, {D}")
    A(f"s_mov_b32 s{S_INF}, {D}")
    A(f"s_mov_b32 s{S_IT}, 0")
    A("s_lshr_b32 s64, s2, 3")
    A("s_lshl_b32 s64, s64, 8")
    A(f"s_add_u32 s64, s64, {WS_CNT}")
    A(f"s_add_u32 s{S_POOL}, s{S_WS}, s64")
    A(f"s_addc_u32 s{S_POOL+1}, s{S_WS+1}, 0")
    VK0, VK1, VV0, VV1 = 2, 3, 4, 5
    A("v_and_b32 v6, 3, v0")
    A("v_bfe_u32 v7, v0, 2, 2")
    A("v_lshl_add_u32 v6, v6, 2, v7")
    A("v_lshlrev_b32 v6, 8, v6")
    A("v_lshrrev_b32 v7, 4, v0")
    A(f"v_lshl_add_u32 v{VK0}, v7, 4, v6")
    A(f"v_add_u32 v{VK1}, 4096, v{VK0}")
    A(f"v_lshlrev_b32 v{VV0}, 4, v0")
    A(f"v_add_u32 v{VV1}, 4096, v{VV0}")
    KA = lambda s, be, t: 64 * s + 16 * be + 4 * t
    VA = lambda s, be, r: 64 * s + 32 + 16 * be + 4 * r
    def issueK(s):
        for be in range(2):
            for t in range(4):
                A(f"buffer_load_dwordx4 {ar(KA(s,be,t),4)}, v{VK0+be}, s[{SRD_K}:{SRD_K+3}], s{S_OFF} offen offset:{64*t} {FL}")
    def issueV(s):
        for be in range(2):
            for r in range(4):
                A(f"buffer_load_dwordx4 {ar(VA(s,be,r),4)}, v{VV0+be}, s[{SRD_V}:{SRD_V+3}], s{S_OFF} offen offset:{1024*r} {FL}")
    A("s_barrier")
    stamp(A, P, 0)
    groups = []
    for s in range(D): groups += [("K", s), ("V", s)]
    lead = P.get("lead", 3)
    for k, (kind, s) in enumerate(groups):
        if k >= lead: A(f"s_waitcnt vmcnt({8*(lead-1)})")
        (issueK if kind == "K" else issueV)(s)
        if kind == "V": A(f"s_add_u32 s{S_OFF}, s{S_OFF}, 16384")
    A(f"s_mov_b32 s{S_STAT}, s{S_OFF}")
    stamp(A, P, 1)
    VQ = 8
    VM = 24
    VACC = 28
    VMC, VL_ = 32, 33
    VS = 36
    VP = 44
    VB = 52
    VT = 64
    A("v_and_b32 v6, 7, v0")
    A("v_and_b32 v7, 1, v6")
    A("v_mov_b32 v64, 0xffff")
    A("v_lshlrev_b32 v7, 4, v7")
    A("v_lshlrev_b32 v64, v7, v64")
    A("v_lshrrev_b32 v6, 1, v6")
    for q in range(4):
        A(f"v_cmp_eq_u32 vcc, {q}, v6")
        A(f"v_cndmask_b32 v{VM+q}, 0, v64, vcc")
    for k in range(4): A(f"v_mov_b32 v{VACC+k}, 0")
    A(f"v_mov_b32 v{VMC}, 0xff800000")
    A(f"v_mov_b32 v{VL_}, 0")
    A("v_bfe_u32 v6, v0, 3, 1")
    A("v_lshlrev_b32 v6, 8, v6")
    A("v_lshrrev_b32 v7, 4, v0")
    A("v_lshl_add_u32 v6, v7, 4, v6")
    A(f"s_mov_b32 s72, {hex(f2u(SCALE))}")
    A(f"s_mov_b32 s73, {hex(f2u(LOG2E))}")
    A("v_mov_b32 v34, 0")
    A(f"ds_write_b32 v34, v34 offset:{PROG}")
    A("s_waitcnt lgkmcnt(0)")
    A(f"s_add_u32 s{S_EPN}, s{S_EPO}, 1")
    A(f"s_mul_i32 s{S_TAG}, s{S_EPN}, 0x9E3779B1")
    A(f"s_xor_b32 s{S_TAG}, s{S_TAG}, 0x5bd1e995")
    A("s_barrier")
    for t in range(4):
        A(f"ds_read_b128 v[{VQ+4*t}:{VQ+4*t+3}], v6 offset:{Q_LDS + 64*t}")
    A("s_waitcnt lgkmcnt(0)")
    stamp(A, P, 2)
    A.lab("L_loop")
    for s in range(D):
        ldyn, ldead, lgo = A.uniq("L_dyn"), A.uniq("L_dead"), A.uniq("L_go")
        A(f"s_cmp_eq_u32 s{S_NST}, 0")
        A(f"s_cbranch_scc1 {ldyn}")
        A(f"s_mov_b32 s{S_OFF}, s{S_STAT}")
        A(f"s_add_u32 s{S_STAT}, s{S_STAT}, 16384")
        A(f"s_sub_u32 s{S_NST}, s{S_NST}, 1")
        A(f"s_cmp_eq_u32 s{S_NST}, 0")
        A(f"s_cbranch_scc0 {lgo}")
        A(f"s_mov_b32 s{S_CLM}, 1")
        A(f"s_atomic_add s{S_CLM}, s[{S_POOL}:{S_POOL+1}], 0 glc")
        A(f"s_branch {lgo}")
        A.lab(ldyn)
        A("s_waitcnt lgkmcnt(0)")
        A(f"s_cmp_lt_u32 s{S_CLM}, {POOL}")
        A(f"s_cbranch_scc0 {ldead}")
        A(f"s_add_u32 s{S_OFF}, s{S_CLM}, {1024 - POOL}")
        A(f"s_lshl_b32 s{S_OFF}, s{S_OFF}, 13")
        A(f"s_mov_b32 s{S_CLM}, 1")
        A(f"s_atomic_add s{S_CLM}, s[{S_POOL}:{S_POOL+1}], 0 glc")
        A(f"s_branch {lgo}")
        A.lab(ldead)
        A(f"s_mov_b32 s{SRD_K+2}, 0")
        A(f"s_mov_b32 s{SRD_V+2}, 0")
        A(f"s_sub_u32 s{S_INF}, s{S_INF}, 1")
        A.lab(lgo)
        A(f"s_waitcnt vmcnt({16*D-8})")
        for t in range(4):
            for be in range(2):
                c = "0" if t == 0 else vr(VS + 4 * be, 4)
                A(f"v_mfma_f32_16x16x32_bf16 {vr(VS+4*be,4)}, {ar(KA(s,be,t),4)}, {vr(VQ+4*t,4)}, {c}")
        issueK(s)
        for k in range(0, 8, 2):
            A(f"v_cvt_pk_bf16_f32 v{VT}, v{VS+k}, v{VS+k+1}")
            A(f"v_lshlrev_b32 v{VS+k}, 16, v{VT}")
            A(f"v_and_b32 v{VS+k+1}, 0xffff0000, v{VT}")
            A(f"v_mul_f32 v{VS+k}, s72, v{VS+k}")
            A(f"v_mul_f32 v{VS+k+1}, s72, v{VS+k+1}")
            A(f"v_cvt_pk_bf16_f32 v{VT+1}, v{VS+k}, v{VS+k+1}")
            A(f"v_lshlrev_b32 v{VS+k}, 16, v{VT+1}")
            A(f"v_and_b32 v{VS+k+1}, 0xffff0000, v{VT+1}")
        A(f"v_max3_f32 v{VT}, v{VS}, v{VS+1}, v{VS+2}")
        A(f"v_max3_f32 v{VT}, v{VT}, v{VS+3}, v{VS+4}")
        A(f"v_max3_f32 v{VT}, v{VT}, v{VS+5}, v{VS+6}")
        A(f"v_max_f32 v{VT}, v{VT}, v{VS+7}")
        A(f"v_mul_f32 v{VT}, s73, v{VT}")
        A(f"v_cmp_gt_f32 vcc, v{VT}, v{VMC}")
        skip = A.uniq("L_nomax")
        A(f"s_cbranch_vccz {skip}")
        swap16(A, VT, VT + 1, "v_max_f32")
        swap32(A, VT, VT + 1, "v_max_f32")
        A(f"v_max_f32 v{VT}, v{VT}, v{VMC}")
        A(f"v_sub_f32 v{VT+1}, v{VMC}, v{VT}")
        A(f"v_exp_f32 v{VT+1}, v{VT+1}")
        A(f"v_mov_b32 v{VMC}, v{VT}")
        for k in range(4): A(f"v_mul_f32 v{VACC+k}, v{VACC+k}, v{VT+1}")
        A(f"v_mul_f32 v{VL_}, v{VL_}, v{VT+1}")
        A.lab(skip)
        for k in range(8): A(f"v_fma_f32 v{VP+k}, v{VS+k}, s73, -v{VMC}")
        for k in range(8): A(f"v_exp_f32 v{VP+k}, v{VP+k}")
        def prep(k):
            bb = VB + 4 * (k % 3)
            A(f"v_cvt_pk_bf16_f32 v{VT+2}, v{VP+k}, v{VP+k}")
            for q in range(4): A(f"v_and_b32 v{bb+q}, v{VT+2}, v{VM+q}")
        prep(0); prep(1)
        A(f"v_add_f32 v{VT}, v{VP}, v{VP+1}")
        A(f"v_add_f32 v{VT+1}, v{VP+2}, v{VP+3}")
        A(f"s_waitcnt vmcnt({16*D-8})")
        for k in range(8):
            be, r = k >> 2, k & 3
            bb = VB + 4 * (k % 3)
            A(f"v_mfma_f32_16x16x32_bf16 {vr(VACC,4)}, {ar(VA(s,be,r),4)}, {vr(bb,4)}, {vr(VACC,4)}")
            if k + 2 < 8: prep(k + 2)
            if k == 1: A(f"v_add_f32 v{VT}, v{VT}, v{VP+4}"); A(f"v_add_f32 v{VT+1}, v{VT+1}, v{VP+5}")
            if k == 2: A(f"v_add_f32 v{VT}, v{VT}, v{VP+6}"); A(f"v_add_f32 v{VT+1}, v{VT+1}, v{VP+7}")
            if k == 3: A(f"v_add_f32 v{VT}, v{VT}, v{VT+1}"); A(f"v_add_f32 v{VL_}, v{VL_}, v{VT}")
        issueV(s)
        A(f"s_add_u32 s{S_IT}, s{S_IT}, 1")
        A(f"v_mov_b32 v35, s{S_IT}")
        A(f"ds_write_b32 v34, v35 offset:{PROG}")
        A(f"s_cmp_eq_u32 s{S_INF}, 0")
        if s < D - 1: A("s_cbranch_scc1 L_att_done")
        else: A("s_cbranch_scc0 L_loop")
    A.lab("L_att_done")
    A("v_mov_b32 v35, 0xffff")
    A(f"ds_write_b32 v34, v35 offset:{PROG}")
    stamp(A, P, 3)
    swap16(A, VL_, VT, "v_add_f32")
    swap32(A, VL_, VT, "v_add_f32")
    A(f"v_lshlrev_b32 v1, 4, v0")
    A(f"v_lshlrev_b32 v6, 3, v0")
    A(f"s_cmp_eq_u32 s{S_WAVE}, 2")
    A("s_cbranch_scc1 L_att0")
    A(f"ds_write_b128 v1, v[{VACC}:{VACC+3}] offset:{MERGE}")
    A(f"ds_write_b64 v6, v[{VMC}:{VMC+1}] offset:{MERGE + 1024}")
    A("s_waitcnt lgkmcnt(0)")
    A("s_barrier")
    A("s_branch L_att_join")
    A.lab("L_att0")
    A("s_barrier")
    A(f"ds_read_b128 v[68:71], v1 offset:{MERGE}")
    A(f"ds_read_b64 v[72:73], v6 offset:{MERGE + 1024}")
    A("s_waitcnt lgkmcnt(0)")
    A(f"v_max_f32 v74, v{VMC}, v72")
    A(f"v_sub_f32 v75, v{VMC}, v74")
    A("v_sub_f32 v76, v72, v74")
    A("v_exp_f32 v75, v75")
    A("v_exp_f32 v76, v76")
    for k in range(4):
        A(f"v_mul_f32 v{VACC+k}, v{VACC+k}, v75")
        A(f"v_fmac_f32 v{VACC+k}, v{68+k}, v76")
    A(f"v_mul_f32 v{VL_}, v{VL_}, v75")
    A(f"v_fmac_f32 v{VL_}, v73, v76")
    A(f"v_mov_b32 v{VMC}, v74")
    A(f"s_lshl_b32 s64, s{S_REC}, 10")
    A(f"s_add_u32 s64, s64, {WS_H1O}")
    A(f"buffer_store_dwordx4 v[{VACC}:{VACC+3}], v1, s[{SRD_WS}:{SRD_WS+3}], s64 offen sc1")
    A(f"v_mov_b32 v68, v{VMC}")
    A(f"v_mov_b32 v69, v{VL_}")
    A(f"v_mov_b32_dpp v70, v{VMC} row_ror:8 row_mask:0xf bank_mask:0xf")
    A(f"v_mov_b32_dpp v71, v{VL_} row_ror:8 row_mask:0xf bank_mask:0xf")
    A(f"s_lshl_b32 s65, s{S_REC}, 7")
    A(f"s_add_u32 s65, s65, {WS_H1ML}")
    A("s_mov_b64 exec, 0xff")
    A(f"buffer_store_dwordx4 v[68:71], v1, s[{SRD_WS}:{SRD_WS+3}], s65 offen sc1")
    A("s_mov_b64 exec, -1")
    stamp(A, P, 4)
    A.lab("L_att_join")
    A(f"s_cmp_lg_u32 s{S_WCB}, 255")
    A("s_cbranch_scc1 L_wogemv")
    A.lab("L_end")
    stamp_flush(A, P)
    A.lab("L_exit")
    A("s_endpgm")
    body = fix_hazards(A.L[body_start:], verbose=P.get("verbose", False))
    out = A.L[:body_start] + body
    out.append(".p2align 6")
    out.append(".type L_table,@object")
    out.append("L_table:")
    for row in tab: out.append("  .long " + ", ".join(str(v) for v in row))
    out.append(".size L_table, 8192")
    out += ['.section .rodata,"a"', ".p2align 6", f".amdhsa_kernel {NAME}",
            "  .amdhsa_next_free_vgpr 512", "  .amdhsa_next_free_sgpr 102", "  .amdhsa_accum_offset 256",
            "  .amdhsa_group_segment_fixed_size 0", "  .amdhsa_kernarg_size 96", "  .amdhsa_user_sgpr_count 2",
            "  .amdhsa_user_sgpr_kernarg_segment_ptr 1", "  .amdhsa_system_sgpr_workgroup_id_x 1",
            "  .amdhsa_float_denorm_mode_32 3",
            ".end_amdhsa_kernel"]
    return "\n".join(out) + "\n"

if __name__ == "__main__":
    P = eval(sys.argv[2]) if len(sys.argv) > 2 else {}
    P.setdefault("verbose", True)
    s = gen(P)
    open(sys.argv[1] if len(sys.argv) > 1 else "k.s", "w").write(s)
```

```python
import struct, sys, math
from asmlib import Asm, fix_hazards, vr, ar, sr

NAME = "recurrent_scan__gqa_block_cached__geglu_ffn__decode_kernel"

def f2u(x): return struct.unpack("<I", struct.pack("<f", x))[0]

WS_EPOCH = 0
WS_QP   = 0x001000
WS_H1O  = 0x050000
WS_H1ML = 0x090000
WS_GU   = 0x0A0000
WS_YP   = 0x100000
WS_SP   = 0x1B0000
WS_CNT  = 0x1E0000
WS_DBG  = 0x200000
WS_SIZE = 0x400000

X_LN, XROW = 0, 1184
Q_LDS = 2432
X2, X2ROW = 3072, 576
X3, X3ROW = 4352, 192
MERGE = 4864
PROG = 2368
QRDY = 2372
QPUB = 2376
T_WQ = 6400
XH = T_WQ
T_WO = T_WQ + 20480
T_FFN = T_WO + 32768
LDS_BYTES = T_FFN + 73728

LOG2E = 1.4426950408889634
SCALE = 128 ** -0.5
POLL_LIMIT = 400000

S_WAVE = 3
S_X, S_K, S_V, S_WQ, S_WO, S_BX, S_WG, S_WU = 4, 6, 8, 10, 12, 14, 16, 18
S_WD, S_OUT, S_DBG, S_WS = 20, 22, 24, 26
S_KV0, S_NSB, S_FT, S_FCB, S_WCB, S_FIN = 28, 29, 30, 31, 32, 33
S_HKV, S_B, S_M, S_REC = 36, 37, 38, 39
S_EPO, S_TAG, S_EPN = 40, 41, 42
SRD_K, SRD_V, SRD_WS, SRD_T, SRD_U = 44, 48, 52, 56, 60
SG1, SG2, SG3 = 80, 82, 84
S_CNT = 91
S_T0 = 92

def make_table(wside=0.8, c_ffn=72.0, c_wo=32.0, c_fin=12.0, pool=128, adj=None):
    info = {w: dict(x=w & 7, g=w >> 3, j=w & 7, ft=0, fcb=0, wcb=255, fin=255) for w in range(256)}
    free = lambda w: ((w & 7) == (w >> 3) % 8) or ((w >> 3) < 8 and (w & 7) == ((w >> 3) + 4) % 8)
    e = 0
    for w in range(256):
        if not free(w):
            info[w]["ft"] = 1 + e % 3; info[w]["fcb"] = e // 3; e += 1
    assert e == 216
    xcnt = [0] * 8
    for c in range(16):
        chosen = []
        quota = {2 * c: 5 if c % 2 == 0 else 4, 2 * c + 1: 4 if c % 2 == 0 else 5}
        mem = list(range(16 * c, 16 * c + 16))
        for w in mem:
            if free(w): chosen.append(w); quota[w >> 3] -= 1; xcnt[w & 7] += 1
        while len(chosen) < 9:
            cand = [w for w in mem if w not in chosen and quota[w >> 3] > 0]
            w = min(cand, key=lambda v: (xcnt[v & 7], v))
            chosen.append(w); quota[w >> 3] -= 1; xcnt[w & 7] += 1
        for cb, w in enumerate(chosen): info[w]["wcb"] = cb
    frees = [w for w in range(64) if free(w)]
    more = [w for w in range(64, 256) if free(w)]
    fins = [frees[0], frees[3], frees[4], frees[7], frees[8], frees[11], frees[12], frees[15], more[5]]
    assert len(fins) == 9
    for f, w in enumerate(fins): info[w]["fin"] = f
    static_total = 1024 - pool
    for g in range(32):
        ws_ = list(range(8 * g, 8 * g + 8))
        side = []
        for w in ws_:
            i = info[w]
            sd = (c_ffn if i["ft"] else 0) + (c_wo if i["wcb"] != 255 else 0) + (c_fin if i["fin"] != 255 else 0)
            if adj: sd += adj(w, i)
            side.append(sd * wside)
        tot = static_total * 16 + sum(side)
        ideal = [(tot / 8 - sd) / 16 for sd in side]
        n = [int(math.floor(v)) for v in ideal]
        rem = static_total - sum(n)
        order = sorted(range(8), key=lambda k: -(ideal[k] - n[k]))
        for k in order[:rem]: n[k] += 1
        assert sum(n) == static_total and min(n) >= 16
        st = 0
        for k, w in enumerate(ws_):
            info[w]["kv0"] = st; info[w]["nsb"] = n[k]; st += n[k]
        info[ws_[0]]["side_total"] = sum(side)
    tab = [[info[w]["kv0"], info[w]["nsb"], info[w]["ft"], info[w]["fcb"], info[w]["wcb"], info[w]["fin"], 0, 0] for w in range(256)]
    return tab, info

def gemv(A, nsteps, cts, a_read, tr_read, acc, abuf, bbuf, nbuf):
    reads = []
    last = {}
    for n in range(nsteps):
        reads.append((n, a_read(n, abuf(n % nbuf))))
        for ct in cts:
            for u in range(2):
                reads.append((n, tr_read(n, ct, u, bbuf(n % nbuf, ct) + 2 * u)))
            last[(n, ct)] = len(reads) - 1
    issued = 0; done = 0
    for n in range(nsteps):
        for ci, ct in enumerate(cts):
            while issued < len(reads) and (issued - done) < 15 and reads[issued][0] < n + nbuf - (0 if ci == 0 or True else 0):
                if reads[issued][0] - nbuf >= n: break
                A(reads[issued][1]); issued += 1
            need = last[(n, ct)]
            assert issued > need, (issued, need, n, ct)
            if done <= need:
                k = issued - 1 - need
                A(f"s_waitcnt lgkmcnt({k})")
                done = need + 1
            c = "0" if n == 0 else vr(acc(ct), 4)
            A(f"v_mfma_f32_16x16x32_bf16 {vr(acc(ct),4)}, {vr(abuf(n % nbuf),4)}, {vr(bbuf(n % nbuf, ct),4)}, {c}")

def poll_begin(A, name):
    A(f"s_mov_b32 s{S_CNT}, {POLL_LIMIT}")
    A.lab(name)

def poll_end(A, name, sleep):
    ok = name + "_ok"
    A(f"s_cbranch_vccz {ok}")
    A(f"s_sub_u32 s{S_CNT}, s{S_CNT}, 1")
    A(f"s_cmp_eq_u32 s{S_CNT}, 0")
    A(f"s_cbranch_scc1 {ok}")
    if sleep: A(f"s_sleep {sleep}")
    A(f"s_branch {name}")
    A.lab(ok)

def wait_progress(A, name, thr):
    A(f"s_mov_b32 s{S_CNT}, {POLL_LIMIT}")
    A("v_mov_b32 v250, 0")
    A.lab(name)
    A(f"ds_read_b32 v251, v250 offset:{PROG}")
    A("s_waitcnt lgkmcnt(0)")
    A("v_readfirstlane_b32 s90, v251")
    A(f"s_cmp_ge_u32 s90, {thr}")
    A(f"s_cbranch_scc1 {name}_ok")
    A(f"s_sub_u32 s{S_CNT}, s{S_CNT}, 1")
    A(f"s_cmp_eq_u32 s{S_CNT}, 0")
    A(f"s_cbranch_scc1 {name}_ok")
    A("s_sleep 8")
    A(f"s_branch {name}")
    A.lab(name + "_ok")

def wait_lds(A, name, off, thr, sleep, tv=250):
    A(f"s_mov_b32 s{S_CNT}, {POLL_LIMIT * 8}")
    A(f"v_mov_b32 v{tv}, 0")
    A.lab(name)
    A(f"ds_read_b32 v{tv+1}, v{tv} offset:{off}")
    A("s_waitcnt lgkmcnt(0)")
    A(f"v_readfirstlane_b32 s90, v{tv+1}")
    A(f"s_cmp_ge_u32 s90, {thr}")
    A(f"s_cbranch_scc1 {name}_ok")
    A(f"s_sub_u32 s{S_CNT}, s{S_CNT}, 1")
    A(f"s_cmp_eq_u32 s{S_CNT}, 0")
    A(f"s_cbranch_scc1 {name}_ok")
    A(f"s_sleep {sleep}")
    A(f"s_branch {name}")
    A.lab(name + "_ok")

def wait_counter(A, name, off, thr, sleep):
    A(f"s_mov_b32 s{S_CNT}, {POLL_LIMIT}")
    A.lab(name)
    A("s_mov_b32 s90, 0")
    A(f"s_atomic_add s90, s[{S_DBG}:{S_DBG+1}], {off} glc")
    A("s_waitcnt lgkmcnt(0)")
    A(f"s_cmp_ge_u32 s90, {thr}")
    A(f"s_cbranch_scc1 {name}_ok")
    A(f"s_sub_u32 s{S_CNT}, s{S_CNT}, 1")
    A(f"s_cmp_eq_u32 s{S_CNT}, 0")
    A(f"s_cbranch_scc1 {name}_ok")
    A(f"s_sleep {sleep}")
    A(f"s_branch {name}")
    A.lab(name + "_ok")

def check_tags(A, tags, t):
    A(f"v_max3_u32 v{t}, v{tags[0]}, v{tags[1]}, v{tags[2]}")
    A(f"v_min3_u32 v{t+1}, v{tags[0]}, v{tags[1]}, v{tags[2]}")
    rest = tags[3:]
    for k in range(0, len(rest), 2):
        a = rest[k]; b_ = rest[min(k + 1, len(rest) - 1)]
        A(f"v_max3_u32 v{t}, v{t}, v{a}, v{b_}")
        A(f"v_min3_u32 v{t+1}, v{t+1}, v{a}, v{b_}")
    A(f"v_xor_b32 v{t}, v{t}, v{t+1}")
    A(f"v_xor_b32 v{t+1}, s{S_TAG}, v{t+1}")
    A(f"v_or_b32 v{t}, v{t}, v{t+1}")
    A(f"v_cmp_ne_u32 vcc, 0, v{t}")

def reduce16(A, v, op="v_add_f32"):
    for k in (8, 4, 2, 1):
        A(f"{op}_dpp {vr(v)}, {vr(v)}, {vr(v)} row_ror:{k} row_mask:0xf bank_mask:0xf")

def swap16(A, v, t, op):
    A(f"v_mov_b32 {vr(t)}, {vr(v)}")
    A(f"v_permlane16_swap_b32 {vr(v)}, {vr(t)}")
    A(f"{op} {vr(v)}, {vr(v)}, {vr(t)}")

def swap32(A, v, t, op):
    A(f"v_mov_b32 {vr(t)}, {vr(v)}")
    A(f"v_permlane32_swap_b32 {vr(v)}, {vr(t)}")
    A(f"{op} {vr(v)}, {vr(v)}, {vr(t)}")

def round_bf16(A, dst, src):
    A(f"v_cvt_pk_bf16_f32 {vr(dst)}, {vr(src)}, {vr(src)}")
    A(f"v_and_b32 {vr(dst)}, 0xffff0000, {vr(dst)}")

def srd(A, base, ptr, nrec, off=None):
    if off is None:
        A(f"s_mov_b32 s{base}, s{ptr}")
        A(f"s_mov_b32 s{base+1}, s{ptr+1}")
    else:
        lo, hi = off
        A(f"s_add_u32 s{base}, s{ptr}, s{lo}")
        A(f"s_addc_u32 s{base+1}, s{ptr+1}, {hi}")
    A(f"s_mov_b32 s{base+2}, {nrec}")
    A(f"s_mov_b32 s{base+3}, 0x20000")

def stamp(A, P, idx):
    if not P.get("stamps"): return
    A("s_memrealtime s[92:93]")
    A("s_waitcnt lgkmcnt(0)")
    A(f"v_writelane_b32 v253, s92, {idx}")

def stamp_flush(A, P):
    if not P.get("stamps"): return
    A(f"s_lshl_b32 s94, s2, 2")
    A(f"s_add_u32 s94, s94, s{S_WAVE}")
    A(f"s_lshl_b32 s94, s94, 6")
    A(f"s_add_u32 s94, s94, {WS_DBG}")
    A("v_lshlrev_b32 v254, 2, v0")
    A("s_mov_b64 exec, 0xffff")
    A(f"buffer_store_dword v253, v254, s[{SRD_WS}:{SRD_WS+3}], s94 offen")

def dma_voff(A, vE, vO, stride, vL, t0, t1):
    A(f"v_lshrrev_b32 {vr(t0)}, 3, {vr(vL)}")
    A(f"s_mov_b32 s64, {stride}")
    A(f"v_mul_lo_u32 {vr(vE)}, {vr(t0)}, s64")
    A(f"v_bfe_u32 {vr(t0)}, {vr(vL)}, 4, 1")
    A(f"v_lshlrev_b32 {vr(t0)}, 1, {vr(t0)}")
    A(f"v_and_b32 {vr(t1)}, 7, {vr(vL)}")
    A(f"v_xor_b32 {vr(t0)}, {vr(t0)}, {vr(t1)}")
    A(f"v_lshl_add_u32 {vr(vE)}, {vr(t0)}, 4, {vr(vE)}")
    A(f"v_xor_b32 {vr(vO)}, 64, {vr(vE)}")

def tr_addr(A, vT, vL, t0, t1):
    A(f"v_lshrrev_b32 {vr(t0)}, 4, {vr(vL)}")
    A(f"v_bfe_u32 {vr(t1)}, {vr(vL)}, 2, 2")
    A(f"v_lshl_add_u32 {vr(vT)}, {vr(t0)}, 3, {vr(t1)}")
    A(f"v_lshlrev_b32 {vr(vT)}, 7, {vr(vT)}")
    A(f"v_and_b32 {vr(t0)}, 1, {vr(t0)}")
    A(f"v_lshlrev_b32 {vr(t0)}, 1, {vr(t0)}")
    A(f"v_lshrrev_b32 {vr(t1)}, 1, {vr(t1)}")
    A(f"v_or_b32 {vr(t0)}, {vr(t0)}, {vr(t1)}")
    A(f"v_lshlrev_b32 {vr(t0)}, 1, {vr(t0)}")
    A(f"v_bfe_u32 {vr(t1)}, {vr(vL)}, 1, 1")
    A(f"v_xor_b32 {vr(t0)}, {vr(t0)}, {vr(t1)}")
    A(f"v_lshl_add_u32 {vr(vT)}, {vr(t0)}, 4, {vr(vT)}")
    A(f"v_and_b32 {vr(t0)}, 1, {vr(vL)}")
    A(f"v_lshl_add_u32 {vr(vT)}, {vr(t0)}, 3, {vr(vT)}")
    for ct in range(1, 4):
        A(f"v_xor_b32 {vr(vT+ct)}, {32*ct}, {vr(vT)}")

def sel_by_group(A, dst, regs):
    A(f"v_cndmask_b32 {vr(dst)}, {vr(regs[0])}, {vr(regs[1])}, s[{SG1}:{SG1+1}]")
    A(f"v_cndmask_b32 {vr(dst)}, {vr(dst)}, {vr(regs[2])}, s[{SG2}:{SG2+1}]")
    A(f"v_cndmask_b32 {vr(dst)}, {vr(dst)}, {vr(regs[3])}, s[{SG3}:{SG3+1}]")

def gen(P=None):
    P = P or {}
    D = P.get("D", 2)
    FL = P.get("kvflags", "nt")
    FLK = P.get("kflags", FL); FLV = P.get("vflags", FL)
    WFL = P.get("wflags", "nt")
    tab, info = make_table(**P.get("table", {}))
    if P.get("no_ffn"):
        for row in tab: row[2] = 0; row[5] = 255
    if P.get("only_gu"):
        for row in tab:
            if row[2] == 3: row[2] = 0
            row[5] = 255
    if P.get("only_dn"):
        for row in tab:
            if row[2] in (1, 2): row[2] = 0
            row[5] = 255
    if P.get("no_y"):
        for row in tab: row[5] = 255
    if P.get("no_wo"):
        for row in tab: row[4] = 255; row[5] = 255
    A = Asm()
    A.L += open(P.get("header", "recurrent_scan__gqa_block_cached__geglu_ffn__decode.s.ref")).read().split("; Override launch")[0].rstrip("\n").split("\n")
    A.L.append(f"; @launch grid=(256,1,1) block=(256,1,1) lds={LDS_BYTES}")
    A('.amdgcn_target "amdgcn-amd-amdhsa--gfx950"')
    A(".text")
    A(f".globl {NAME}")
    A(".p2align 8")
    A(f".type {NAME},@function")
    body_start = len(A.L)
    A.lab(NAME)
    A("s_cmp_ge_u32 s2, 256")
    A("s_cbranch_scc1 L_exit")
    A("s_load_dwordx16 s[4:19], s[0:1], 0")
    A("s_load_dwordx8 s[20:27], s[0:1], 64")
    A("s_getpc_b64 s[64:65]")
    A.lab("L_pc")
    A("s_add_u32 s64, s64, L_table-L_pc")
    A("s_addc_u32 s65, s65, 0")
    A("s_lshl_b32 s66, s2, 5")
    A("s_add_u32 s64, s64, s66")
    A("s_addc_u32 s65, s65, 0")
    A("s_load_dwordx8 s[28:35], s[64:65], 0")
    A("v_lshrrev_b32 v1, 6, v0")
    A("v_and_b32 v0, 63, v0")
    A(f"v_readfirstlane_b32 s{S_WAVE}, v1")
    if P.get("stamps"):
        A("v_mov_b32 v253, 0")
        stamp(A, P, 15)
    A(f"s_lshr_b32 s{S_HKV}, s2, 4")
    A(f"s_and_b32 s{S_M}, s2, 15")
    A(f"s_lshr_b32 s{S_B}, s{S_M}, 3")
    A(f"s_mov_b32 s{S_REC}, s2")
    A(f"s_mov_b32 s{SG1}, 0xffff0000")
    A(f"s_mov_b32 s{SG1+1}, 0")
    A(f"s_mov_b32 s{SG2}, 0")
    A(f"s_mov_b32 s{SG2+1}, 0xffff")
    A(f"s_mov_b32 s{SG3}, 0")
    A(f"s_mov_b32 s{SG3+1}, 0xffff0000")
    A("s_waitcnt lgkmcnt(0)")
    if P.get("dbgdur"): A("s_memrealtime s[98:99]")
    A(f"s_load_dword s{S_EPO}, s[{S_WS}:{S_WS+1}], {WS_EPOCH}")
    srd(A, SRD_WS, S_WS, WS_SIZE)
    A(f"s_cmp_ge_u32 s{S_WAVE}, 2")
    A("s_cbranch_scc1 L_att")
    A(f"s_cmp_eq_u32 s{S_WAVE}, 1")
    A("s_cbranch_scc1 L_s1")

    vL = 0
    A("v_lshlrev_b32 v1, 4, v0")
    for k in range(4): A(f"v_mov_b32 v{4+k}, -1")
    A(f"s_lshl_b32 s64, s{S_REC}, 10")
    A(f"s_add_u32 s64, s64, {WS_H1O}")
    A(f"buffer_store_dwordx4 v[4:7], v1, s[{SRD_WS}:{SRD_WS+3}], s64 offen sc1")
    A(f"s_lshl_b32 s65, s{S_REC}, 7")
    A(f"s_add_u32 s65, s65, {WS_H1ML}")
    A("s_mov_b64 exec, 0xff")
    A(f"buffer_store_dwordx4 v[4:7], v1, s[{SRD_WS}:{SRD_WS+3}], s65 offen sc1")
    A("s_mov_b64 exec, -1")
    A("s_and_b32 s64, s2, 7")
    A("s_cmp_lg_u32 s64, 0")
    A("s_cbranch_scc1 L_nocnt")
    A("s_lshr_b32 s64, s2, 3")
    A("s_lshl_b32 s64, s64, 8")
    A(f"s_add_u32 s64, s64, {WS_CNT}")
    A("v_mov_b32 v8, 0")
    A("s_mov_b64 exec, 1")
    A(f"buffer_store_dword v8, v1, s[{SRD_WS}:{SRD_WS+3}], s64 offen sc1")
    A("s_mov_b64 exec, -1")
    A.lab("L_nocnt")
    srd(A, SRD_U, S_X, 2304)
    A("v_lshrrev_b32 v2, 5, v0")
    A("v_mul_u32_u24 v2, 1152, v2")
    A("v_and_b32 v3, 31, v0")
    A("v_lshl_add_u32 v2, v3, 2, v2")
    for n in range(9):
        A(f"buffer_load_dword v{8+n}, v2, s[{SRD_U}:{SRD_U+3}], 0 offen offset:{128*n}")
    srd(A, SRD_T, S_WQ, 576 * 8192)
    dma_voff(A, 18, 19, 8192, vL, 20, 21)
    A(f"s_lshr_b32 s66, s{S_M}, 2")
    A(f"s_mul_i32 s67, s66, {144*8192}")
    A(f"s_and_b32 s68, s{S_M}, 3")
    A(f"s_lshl_b32 s68, s68, 7")
    A("s_add_u32 s67, s67, s68")
    A(f"s_lshl_b32 s68, s{S_HKV}, 9")
    A("s_add_u32 s67, s67, s68")
    A(f"s_mov_b32 s68, {T_WQ}")
    A("s_mov_b32 s69, 9")
    A.lab("L_wqdma")
    for par in range(2):
        A("s_mov_b32 m0, s68")
        A("s_add_u32 s68, s68, 1024")
        A(f"buffer_load_dwordx4 v{18+par}, s[{SRD_T}:{SRD_T+3}], s67 offen {WFL} lds")
        A("s_add_u32 s67, s67, 65536")
    A("s_sub_u32 s69, s69, 1")
    A("s_cmp_lg_u32 s69, 0")
    A("s_cbranch_scc1 L_wqdma")
    A("v_mov_b32 v20, 0")
    A("v_mov_b32 v21, 0")
    A("v_mov_b32 v22, 0")
    A(f"ds_write_b32 v20, v20 offset:{PROG}")
    A(f"ds_write_b64 v20, v[20:21] offset:{QRDY + 4 - 4 + 0}") if False else None
    A(f"ds_write_b32 v20, v20 offset:{QRDY}")
    A(f"ds_write_b32 v20, v20 offset:{QPUB}")
    A("s_waitcnt lgkmcnt(0)")
    A("s_barrier")
    stamp(A, P, 0)
    for k in range(4): A(f"v_mov_b32 v{20+k}, 0")
    A(f"ds_write_b128 v1, v[20:23] offset:{T_WQ + 18432}")
    A(f"ds_write_b128 v1, v[20:23] offset:{T_WQ + 19456}")
    A("v_lshrrev_b32 v24, 3, v0")
    A(f"v_mul_u32_u24 v24, {XROW}, v24")
    A("v_and_b32 v25, 7, v0")
    A("v_lshl_add_u32 v24, v25, 2, v24")
    A("s_mov_b64 exec, 0xffff")
    A(f"ds_write_b32 v24, v20 offset:{X_LN + 1152}")
    A("s_mov_b64 exec, -1")
    tr_addr(A, 100, vL, 24, 25)
    A("v_and_b32 v104, 1, v0")
    A(f"v_mul_u32_u24 v104, {XROW}, v104")
    A("v_lshrrev_b32 v24, 4, v0")
    A("v_lshl_add_u32 v104, v24, 4, v104")
    A(f"s_mul_i32 s64, s66, 288")
    A("v_add_u32 v105, s64, v104")
    A("s_waitcnt vmcnt(18)")
    lo = lambda n: 24 + 2 * n
    hi = lambda n: 25 + 2 * n
    for n in range(9):
        A(f"v_lshlrev_b32 v{lo(n)}, 16, v{8+n}")
        A(f"v_and_b32 v{hi(n)}, 0xffff0000, v{8+n}")
    A(f"v_add_f32 v42, v{lo(0)}, v{hi(0)}")
    A(f"v_add_f32 v43, v{lo(1)}, v{hi(1)}")
    for n in range(2, 9):
        A(f"v_add_f32 v42, v42, v{lo(n)}")
        A(f"v_add_f32 v43, v43, v{hi(n)}")
    A("v_add_f32 v42, v42, v43")
    reduce16(A, 42); swap16(A, 42, 43, "v_add_f32")
    A(f"v_mul_f32 v42, {hex(f2u(1/576))}, v42")
    A("v_mov_b32 v44, 0")
    for n in range(9):
        A(f"v_sub_f32 v45, v{lo(n)}, v42")
        A(f"v_sub_f32 v46, v{hi(n)}, v42")
        A("v_fmac_f32 v44, v45, v45")
        A("v_fmac_f32 v44, v46, v46")
    reduce16(A, 44); swap16(A, 44, 43, "v_add_f32")
    A(f"v_mul_f32 v44, {hex(f2u(1/576))}, v44")
    round_bf16(A, 44, 44)
    A(f"v_add_f32 v44, {hex(f2u(1e-5))}, v44")
    round_bf16(A, 44, 44)
    A("v_sqrt_f32 v44, v44")
    round_bf16(A, 44, 44)
    A("v_rcp_f32 v44, v44")
    round_bf16(A, 42, 42)
    A("v_lshrrev_b32 v47, 5, v0")
    A(f"v_mul_u32_u24 v47, {XROW}, v47")
    A("v_and_b32 v48, 31, v0")
    A("v_lshl_add_u32 v47, v48, 2, v47")
    for n in range(9):
        A(f"v_sub_f32 v45, v{lo(n)}, v42")
        A(f"v_sub_f32 v46, v{hi(n)}, v42")
        A("v_cvt_pk_bf16_f32 v45, v45, v46")
        A("v_and_b32 v46, 0xffff0000, v45")
        A("v_lshlrev_b32 v45, 16, v45")
        A("v_mul_f32 v45, v45, v44")
        A("v_mul_f32 v46, v46, v44")
        A(f"v_cvt_pk_bf16_f32 v{50+n}, v45, v46")
        A(f"ds_write_b32 v47, v{50+n} offset:{X_LN + 128*n}")
    stamp(A, P, 1)
    A("s_waitcnt vmcnt(0) lgkmcnt(0)")
    A(f"s_add_u32 s{S_EPN}, s{S_EPO}, 1")
    A(f"s_mul_i32 s{S_TAG}, s{S_EPN}, 0x9E3779B1")
    A(f"s_xor_b32 s{S_TAG}, s{S_TAG}, 0x5bd1e995")
    stamp(A, P, 2)
    ACC = lambda ct: 110 + 4 * ct
    gemv(A, 5, [0, 1, 2, 3],
         lambda n, d: f"ds_read_b128 {vr(d,4)}, v105 offset:{X_LN + 64*n}",
         lambda n, ct, u, d: f"ds_read_b64_tr_b16 {vr(d,2)}, v{100+ct} offset:{T_WQ + 4096*n + 512*u}",
         ACC, lambda k: 128 + 20 * k, lambda k, ct: 132 + 20 * k + 4 * ct, 2)
    def publish_pair(soff):
        sel_by_group(A, 8, [ACC(ct) for ct in range(4)])
        sel_by_group(A, 10, [ACC(ct) + 1 for ct in range(4)])
        return
    publish_pair(None)
    A(f"v_mov_b32 v9, s{S_TAG}")
    A(f"v_mov_b32 v11, s{S_TAG}")
    A(f"s_lshl_b32 s64, s{S_REC}, 10")
    A(f"s_add_u32 s64, s64, {WS_QP}")
    A(f"buffer_store_dwordx4 v[8:11], v1, s[{SRD_WS}:{SRD_WS+3}], s64 offen sc1")
    A("v_mov_b32 v12, 0")
    A("v_mov_b32 v13, 1")
    A(f"ds_write_b32 v12, v13 offset:{QPUB}")
    stamp(A, P, 3)
    A(f"s_lshl_b32 s64, s{S_B}, 3")
    A("v_add_u32 v2, s64, v1")
    A(f"s_lshl_b32 s64, s{S_HKV}, 14")
    A(f"s_add_u32 s64, s64, {WS_QP}")
    for k in range(1, 4): A(f"s_add_u32 s{64+k}, s64, {4096*k}")
    poll_begin(A, "L_qpoll")
    for m in range(16):
        A(f"buffer_load_dwordx2 v[{24+2*m}:{25+2*m}], v2, s[{SRD_WS}:{SRD_WS+3}], s{64+(m>>2)} offen offset:{1024*(m&3)} sc1")
    A("s_waitcnt vmcnt(0)")
    A("v_max3_u32 v60, v25, v27, v29")
    A("v_min3_u32 v61, v25, v27, v29")
    for m in range(3, 16, 2):
        a, b_ = 25 + 2 * m, 25 + 2 * min(m + 1, 15)
        A(f"v_max3_u32 v60, v60, v{a}, v{b_}")
        A(f"v_min3_u32 v61, v61, v{a}, v{b_}")
    A("v_xor_b32 v60, v60, v61")
    A(f"v_xor_b32 v61, s{S_TAG}, v61")
    A("v_or_b32 v60, v60, v61")
    A("v_cmp_ne_u32 vcc, 0, v60")
    if P.get("stamps"):
        A(f"s_cmp_eq_u32 s{S_CNT}, {POLL_LIMIT}")
        A("s_cbranch_scc0 L_qp_nostamp")
        A("s_memrealtime s[92:93]")
        A("s_waitcnt lgkmcnt(0)")
        A("v_writelane_b32 v253, s92, 11")
        A.lab("L_qp_nostamp")
    poll_end(A, "L_qpoll", 1)
    if P.get("stamps"):
        A(f"s_sub_u32 s92, {POLL_LIMIT+1}, s{S_CNT}")
        A("v_writelane_b32 v253, s92, 12")
    A("v_lshlrev_b32 v3, 1, v0")
    for cbp in range(4):
        m = lambda kr: 24 + 2 * (kr * 4 + cbp)
        A(f"v_add_f32 v60, v{m(0)}, v{m(1)}")
        A(f"v_add_f32 v60, v60, v{m(2)}")
        A(f"v_add_f32 v60, v60, v{m(3)}")
        A(f"v_cvt_pk_bf16_f32 v{62+cbp}, v60, v60")
        A(f"ds_write_b16 v3, v{62+cbp} offset:{Q_LDS + 128*cbp}")
    A("s_waitcnt lgkmcnt(0)")
    A("v_mov_b32 v12, 0")
    A("v_mov_b32 v13, 1")
    A(f"ds_write_b32 v12, v13 offset:{QRDY}")
    stamp(A, P, 4)
    A(f"s_cmp_eq_u32 s{S_FIN}, 255")
    A("s_cbranch_scc1 L_s0_noy")
    wait_progress(A, "L_ywait", P.get("t_y", 44))
    A(f"s_lshl_b32 s64, s{S_FIN}, 13")
    A(f"s_add_u32 s64, s64, {WS_YP}")
    A("s_add_u32 s65, s64, 4096")
    poll_begin(A, "L_ypoll")
    for n in range(8):
        A(f"buffer_load_dwordx4 v[{24+4*n}:{27+4*n}], v1, s[{SRD_WS}:{SRD_WS+3}], s{64+(n>>2)} offen offset:{1024*(n&3)} sc1")
    A("s_waitcnt vmcnt(0)")
    check_tags(A, [25 + 4 * n + 2 * k for n in range(8) for k in range(2)], 80)
    poll_end(A, "L_ypoll", 32)
    A("v_add_f32 v200, v24, v28")
    A("v_add_f32 v201, v26, v30")
    for n in range(2, 8):
        A(f"v_add_f32 v200, v200, v{24+4*n}")
        A(f"v_add_f32 v201, v201, v{26+4*n}")
    for k in range(2):
        y = 200 + k
        round_bf16(A, y, y)
        A(f"v_mul_f32 v80, {hex(f2u(-LOG2E))}, v{y}")
        A("v_exp_f32 v80, v80")
        A("v_add_f32 v80, 1.0, v80")
        A("v_rcp_f32 v80, v80")
        A(f"v_mul_f32 v{y}, v{y}, v80")
        round_bf16(A, y, y)
    srd(A, SRD_U, S_X, 2304)
    A(f"s_lshl_b32 s70, s{S_FIN}, 7")
    A("v_lshlrev_b32 v204, 1, v0")
    A(f"buffer_load_ushort v202, v204, s[{SRD_U}:{SRD_U+3}], s70 offen")
    A(f"buffer_load_ushort v203, v204, s[{SRD_U}:{SRD_U+3}], s70 offen offset:1152")
    A("s_waitcnt vmcnt(0)")
    A.lab("L_s0_noy")
    stamp(A, P, 5)

    A("s_branch L_side_tail")

    A.lab("L_s1")
    A("v_lshlrev_b32 v1, 4, v0")
    A("s_barrier")
    A("s_waitcnt lgkmcnt(0)")
    A(f"s_add_u32 s{S_EPN}, s{S_EPO}, 1")
    A(f"s_mul_i32 s{S_TAG}, s{S_EPN}, 0x9E3779B1")
    A(f"s_xor_b32 s{S_TAG}, s{S_TAG}, 0x5bd1e995")
    if P.get("s1_start", "qpub") == "qpub": wait_lds(A, "L_qpubwait", QPUB, 1, 1)
    if P.get("s1_start") == "qrdy": wait_lds(A, "L_qpubwait", QRDY, 1, 1)
    DL = P.get("dma_lead", 40)
    A(f"s_cmp_eq_u32 s{S_FT}, 0")
    A("s_cbranch_scc1 L_s1_wo")
    A(f"s_cmp_eq_u32 s{S_FT}, 3")
    A("s_cbranch_scc1 L_dn_setup")
    A(f"s_cmp_eq_u32 s{S_FT}, 1")
    A(f"s_cselect_b32 s{SRD_T}, s{S_WG}, s{S_WU}")
    A(f"s_cselect_b32 s{SRD_T+1}, s{S_WG+1}, s{S_WU+1}")
    A(f"s_mov_b32 s{SRD_T+2}, {576*9216}")
    A(f"s_mov_b32 s{SRD_T+3}, 0x20000")
    dma_voff(A, 18, 19, 9216, vL, 20, 21)
    A(f"s_lshl_b32 s67, s{S_FCB}, 7")
    A(f"s_mov_b32 s71, {8*9216}")
    A("s_branch L_ffn_dma")
    A.lab("L_dn_setup")
    srd(A, SRD_T, S_WD, 4608 * 1152)
    dma_voff(A, 18, 19, 1152, vL, 20, 21)
    A(f"s_mul_i32 s72, s{S_FCB}, 57")
    A("s_lshr_b32 s72, s72, 9")
    A("s_mul_i32 s73, s72, 9")
    A(f"s_sub_u32 s73, s{S_FCB}, s73")
    A(f"s_mul_i32 s67, s72, {576*1152}")
    A("s_lshl_b32 s64, s73, 7")
    A("s_add_u32 s67, s67, s64")
    A(f"s_mov_b32 s71, {8*1152}")
    A.lab("L_ffn_dma")
    A(f"s_mov_b32 s68, {T_FFN}")
    A("s_mov_b32 s69, 36")
    A.lab("L_gudma")
    for par in range(2):
        A("s_mov_b32 m0, s68")
        A("s_add_u32 s68, s68, 1024")
        A(f"buffer_load_dwordx4 v{18+par}, s[{SRD_T}:{SRD_T+3}], s67 offen {WFL} lds")
        A(f"s_add_u32 s67, s67, s71")
    A(f"s_waitcnt vmcnt({DL})")
    A("s_sub_u32 s69, s69, 1")
    A("s_cmp_lg_u32 s69, 0")
    A("s_cbranch_scc1 L_gudma")
    A.lab("L_s1_wo")
    A(f"s_cmp_eq_u32 s{S_WCB}, 255")
    A("s_cbranch_scc1 L_s1_nowo")
    srd(A, SRD_T, S_WO, 4096 * 1152)
    dma_voff(A, 18, 19, 1152, vL, 20, 21)
    A(f"s_mul_i32 s67, s{S_HKV}, {256*1152}")
    A(f"s_lshl_b32 s68, s{S_WCB}, 7")
    A("s_add_u32 s67, s67, s68")
    A(f"s_mov_b32 s68, {T_WO}")
    A("s_mov_b32 s69, 16")
    A.lab("L_wodma")
    for par in range(2):
        A("s_mov_b32 m0, s68")
        A("s_add_u32 s68, s68, 1024")
        A(f"buffer_load_dwordx4 v{18+par}, s[{SRD_T}:{SRD_T+3}], s67 offen {WFL} lds")
        A(f"s_add_u32 s67, s67, 9216")
    A(f"s_waitcnt vmcnt({DL})")
    A("s_sub_u32 s69, s69, 1")
    A("s_cmp_lg_u32 s69, 0")
    A("s_cbranch_scc1 L_wodma")
    A.lab("L_s1_nowo")
    A("s_waitcnt vmcnt(0)")
    stamp(A, P, 4)
    A(f"s_cmp_eq_u32 s{S_FT}, 0")
    A("s_cbranch_scc1 L_s1_ffn_done")
    wait_lds(A, "L_xnwait", QRDY, 1, 4)
    tr_addr(A, 100, vL, 24, 25)
    A("v_and_b32 v104, 1, v0")
    A(f"v_mul_u32_u24 v104, {XROW}, v104")
    A("v_lshrrev_b32 v24, 4, v0")
    A("v_lshl_add_u32 v104, v24, 4, v104")
    A(f"s_cmp_eq_u32 s{S_FT}, 3")
    A("s_cbranch_scc0 L_ffn_gemv")
    if P.get("x_skipdown"): A("s_branch L_s1_ffn_done")
    wait_progress(A, "L_dnwait", P.get("t_dn", 26))
    A(f"s_mul_i32 s64, s72, {9*2048}")
    A(f"s_add_u32 s64, s64, {WS_GU}")
    for k in range(1, 5): A(f"s_add_u32 s{64+k}, s64, {4096*k}")
    poll_begin(A, "L_gupoll")
    for n in range(18):
        A(f"buffer_load_dwordx4 v[{24+4*n}:{27+4*n}], v1, s[{SRD_WS}:{SRD_WS+3}], s{64+(n>>2)} offen offset:{1024*(n&3)} sc1")
    A("s_waitcnt vmcnt(0)")
    check_tags(A, [25 + 4 * n + 2 * k for n in range(18) for k in range(2)], 96)
    poll_end(A, "L_gupoll", 32)
    A("v_lshlrev_b32 v3, 1, v0")
    A(f"v_mov_b32 v98, {hex(f2u(0.044715))}")
    for i9 in range(9):
        for bb in range(2):
            gt, up = 24 + 8 * i9 + 2 * bb, 28 + 8 * i9 + 2 * bb
            A(f"v_mul_f32 v96, v{gt}, v{gt}")
            A(f"v_mul_f32 v96, v96, v{gt}")
            A(f"v_fma_f32 v96, v96, v98, v{gt}")
            A(f"v_mul_f32 v96, {hex(f2u(-2.0 * math.sqrt(2.0 / math.pi) * LOG2E))}, v96")
            A("v_exp_f32 v96, v96")
            A("v_add_f32 v96, 1.0, v96")
            A("v_rcp_f32 v96, v96")
            A(f"v_mul_f32 v96, v{gt}, v96")
            round_bf16(A, 96, 96)
            A(f"v_mul_f32 v96, v96, v{up}")
            A(f"v_cvt_pk_bf16_f32 v97, v96, v96")
            A(f"ds_write_b16 v3, v97 offset:{XH + XROW*bb + 128*i9}")
    A(f"v_add_u32 v104, {XH - X_LN}, v104")
    A("s_waitcnt lgkmcnt(0)")
    A.lab("L_ffn_gemv")
    for ct in range(4):
        A(f"v_add_u32 v{106+ct}, {T_FFN}, v{100+ct}")
        A(f"v_add_u32 v{170+ct}, {T_FFN + 9*4096}, v{100+ct}")
    gemv(A, 18, [0, 1, 2, 3],
         lambda n, d: f"ds_read_b128 {vr(d,4)}, v104 offset:{X_LN + 64*n}",
         lambda n, ct, u, d: f"ds_read_b64_tr_b16 {vr(d,2)}, v{(106 if n < 9 else 170)+ct} offset:{4096*(n % 9) + 512*u}",
         ACC, lambda k: 128 + 20 * k, lambda k, ct: 132 + 20 * k + 4 * ct, 2)
    publish_pair(None)
    A(f"v_mov_b32 v9, s{S_TAG}")
    A(f"v_mov_b32 v11, s{S_TAG}")
    A(f"s_cmp_eq_u32 s{S_FT}, 3")
    A("s_cbranch_scc1 L_dn_pub")
    round_bf16(A, 8, 8); round_bf16(A, 10, 10)
    A(f"s_lshl_b32 s64, s{S_FCB}, 1")
    A(f"s_add_u32 s64, s64, s{S_FT}")
    A("s_sub_u32 s64, s64, 1")
    A("s_lshl_b32 s64, s64, 10")
    A(f"s_add_u32 s64, s64, {WS_GU}")
    A("s_branch L_ffn_pub")
    A.lab("L_dn_pub")
    A("s_lshl_b32 s64, s73, 3")
    A("s_add_u32 s64, s64, s72")
    A("s_lshl_b32 s64, s64, 10")
    A(f"s_add_u32 s64, s64, {WS_YP}")
    A.lab("L_ffn_pub")
    A(f"buffer_store_dwordx4 v[8:11], v1, s[{SRD_WS}:{SRD_WS+3}], s64 offen sc1")
    A.lab("L_s1_ffn_done")
    stamp(A, P, 5)

    A.lab("L_side_tail")
    A("s_barrier")
    stamp(A, P, 6)
    A(f"s_cmp_eq_u32 s{S_WCB}, 255")
    A("s_cbranch_scc1 L_final")
    A("v_lshlrev_b32 v1, 4, v0")
    A("v_bfe_u32 v2, v0, 3, 1")
    A("v_lshlrev_b32 v2, 3, v2")
    A(f"s_lshl_b32 s64, s{S_HKV}, 4")
    A(f"s_lshl_b32 s65, s{S_WAVE}, 3")
    A("s_add_u32 s64, s64, s65")
    A("s_lshl_b32 s66, s64, 7")
    A(f"s_add_u32 s66, s66, {WS_H1ML}")
    A("s_lshl_b32 s64, s64, 10")
    A(f"s_add_u32 s64, s64, {WS_H1O}")
    A("s_add_u32 s65, s64, 4096")
    poll_begin(A, "L_h1poll")
    for p in range(8):
        A(f"buffer_load_dwordx4 v[{24+4*p}:{27+4*p}], v1, s[{SRD_WS}:{SRD_WS+3}], s{64+(p>>2)} offen offset:{1024*(p&3)} sc1")
        A(f"buffer_load_dwordx2 v[{56+2*p}:{57+2*p}], v2, s[{SRD_WS}:{SRD_WS+3}], s66 offen offset:{128*p} sc1")
    A("s_waitcnt vmcnt(0)")
    A("v_max3_u32 v80, v24, v25, v26")
    for k in range(27, 72, 2):
        A(f"v_max3_u32 v80, v80, v{k}, v{min(k+1, 71)}")
    A("v_cmp_eq_u32 vcc, -1, v80")
    poll_end(A, "L_h1poll", 1)
    stamp(A, P, 7)
    MC = lambda p: 56 + 2 * p
    LL = lambda p: 57 + 2 * p
    A(f"v_max3_f32 v80, v{MC(0)}, v{MC(1)}, v{MC(2)}")
    A(f"v_max3_f32 v80, v80, v{MC(3)}, v{MC(4)}")
    A(f"v_max3_f32 v80, v80, v{MC(5)}, v{MC(6)}")
    A(f"v_max_f32 v80, v80, v{MC(7)}")
    for p in range(8): A(f"v_sub_f32 v{MC(p)}, v{MC(p)}, v80")
    for p in range(8): A(f"v_exp_f32 v{MC(p)}, v{MC(p)}")
    A(f"v_mul_f32 v81, v{MC(0)}, v{LL(0)}")
    for p in range(1, 8): A(f"v_fmac_f32 v81, v{MC(p)}, v{LL(p)}")
    A("v_rcp_f32 v81, v81")
    for rr in range(4):
        A(f"v_mul_f32 v{84+rr}, v{MC(0)}, v{24+rr}")
        for p in range(1, 8): A(f"v_fmac_f32 v{84+rr}, v{MC(p)}, v{24+4*p+rr}")
    A("v_bfe_u32 v82, v0, 3, 1")
    A("v_lshlrev_b32 v82, 8, v82")
    A("v_lshrrev_b32 v83, 4, v0")
    A("v_lshl_add_u32 v82, v83, 6, v82")
    A("v_and_b32 v83, 7, v0")
    A("v_lshl_add_u32 v82, v83, 1, v82")
    A(f"s_mul_i32 s64, s{S_WAVE}, {X2ROW}")
    A("v_add_u32 v82, s64, v82")
    for rr in range(4):
        A(f"v_mul_f32 v{84+rr}, v{84+rr}, v81")
        A(f"v_cvt_pk_bf16_f32 v{88+rr}, v{84+rr}, v{84+rr}")
        A(f"ds_write_b16 v82, v{88+rr} offset:{X2 + 16*rr}")
    A("s_waitcnt lgkmcnt(0)")
    A.lab("L_wogemv")
    A("s_barrier")
    stamp(A, P, 8)
    tr_addr(A, 100, vL, 24, 25)
    A(f"s_lshl_b32 s64, s{S_WAVE}, 5")
    A("v_xor_b32 v100, s64, v100")
    A("v_and_b32 v104, 1, v0")
    A(f"v_mul_u32_u24 v104, {X2ROW}, v104")
    A("v_lshrrev_b32 v24, 4, v0")
    A("v_lshl_add_u32 v104, v24, 4, v104")
    gemv(A, 8, [0],
         lambda n, d: f"ds_read_b128 {vr(d,4)}, v104 offset:{X2 + 64*n}",
         lambda n, ct, u, d: f"ds_read_b64_tr_b16 {vr(d,2)}, v100 offset:{T_WO + 4096*n + 512*u}",
         lambda ct: 110, lambda k: 128 + 8 * k, lambda k, ct: 132 + 8 * k, 8)
    A("v_mov_b32 v8, v110")
    A(f"v_mov_b32 v9, s{S_TAG}")
    A("v_mov_b32 v10, v111")
    A(f"v_mov_b32 v11, s{S_TAG}")
    A("v_lshlrev_b32 v2, 4, v0")
    A(f"s_lshl_b32 s64, s{S_WCB}, 14")
    A(f"s_lshl_b32 s65, s{S_HKV}, 10")
    A("s_add_u32 s64, s64, s65")
    A(f"s_lshl_b32 s65, s{S_WAVE}, 8")
    A("s_add_u32 s64, s64, s65")
    A(f"s_add_u32 s64, s64, {WS_SP}")
    A("s_mov_b64 exec, 0xffff")
    A(f"buffer_store_dwordx4 v[8:11], v2, s[{SRD_WS}:{SRD_WS+3}], s64 offen sc1")
    A("s_mov_b64 exec, -1")
    stamp(A, P, 9)
    A.lab("L_final")
    A(f"s_cmp_lg_u32 s{S_WAVE}, 0")
    A("s_cbranch_scc1 L_end")
    A(f"s_cmp_eq_u32 s{S_FIN}, 255")
    A("s_cbranch_scc1 L_end")
    A("v_lshlrev_b32 v1, 4, v0")
    A(f"s_lshl_b32 s64, s{S_FIN}, 14")
    A(f"s_add_u32 s64, s64, {WS_SP}")
    for k in range(1, 4): A(f"s_add_u32 s{64+k}, s64, {4096*k}")
    poll_begin(A, "L_h2poll")
    for n in range(16):
        A(f"buffer_load_dwordx4 v[{24+4*n}:{27+4*n}], v1, s[{SRD_WS}:{SRD_WS+3}], s{64+(n>>2)} offen offset:{1024*(n&3)} sc1")
    A("s_waitcnt vmcnt(0)")
    A("v_max3_u32 v96, v25, v27, v29")
    A("v_min3_u32 v97, v25, v27, v29")
    tags = [25 + 4 * n + 2 * k for n in range(16) for k in range(2)][3:]
    for k in range(0, len(tags), 2):
        a = tags[k]; b_ = tags[min(k + 1, len(tags) - 1)]
        A(f"v_max3_u32 v96, v96, v{a}, v{b_}")
        A(f"v_min3_u32 v97, v97, v{a}, v{b_}")
    A("v_xor_b32 v96, v96, v97")
    A(f"v_xor_b32 v97, s{S_TAG}, v97")
    A("v_or_b32 v96, v96, v97")
    A("v_cmp_ne_u32 vcc, 0, v96")
    poll_end(A, "L_h2poll", 1)
    for bb in range(2):
        a0, a1 = 96 + 2 * bb, 97 + 2 * bb
        A(f"v_add_f32 v{a0}, v{24+2*bb}, v{28+2*bb}")
        A(f"v_add_f32 v{a1}, v{32+2*bb}, v{36+2*bb}")
        for n in range(4, 16, 2):
            A(f"v_add_f32 v{a0}, v{a0}, v{24+4*n+2*bb}")
            A(f"v_add_f32 v{a1}, v{a1}, v{28+4*n+2*bb}")
        A(f"v_add_f32 v{a0}, v{a0}, v{a1}")
    A("v_cvt_pk_bf16_f32 v96, v96, v98")
    A("v_and_b32 v97, 0xffff0000, v96")
    A("v_lshlrev_b32 v96, 16, v96")
    A("v_mul_f32 v96, v96, v200")
    A("v_mul_f32 v97, v97, v201")
    A("v_cvt_pk_bf16_f32 v96, v96, v97")
    A("v_and_b32 v97, 0xffff0000, v96")
    A("v_lshlrev_b32 v96, 16, v96")
    A("v_lshlrev_b32 v98, 16, v202")
    A("v_lshlrev_b32 v99, 16, v203")
    A("v_add_f32 v96, v96, v98")
    A("v_add_f32 v97, v97, v99")
    A("v_cvt_pk_bf16_f32 v96, v96, v97")
    A("v_lshrrev_b32 v97, 16, v96")
    srd(A, SRD_U, S_OUT, 2304)
    A("v_lshlrev_b32 v204, 1, v0")
    A(f"s_lshl_b32 s70, s{S_FIN}, 7")
    A(f"buffer_store_short v96, v204, s[{SRD_U}:{SRD_U+3}], s70 offen")
    A(f"buffer_store_short v97, v204, s[{SRD_U}:{SRD_U+3}], s70 offen offset:1152")
    stamp(A, P, 10)
    if P.get("dbgdur"):
        A("s_memrealtime s[92:93]")
        A("s_waitcnt lgkmcnt(0)")
        A("s_sub_u32 s92, s92, s98")
        srd(A, SRD_U, S_DBG, 256)
        A("v_mov_b32 v96, s92")
        A(f"s_lshl_b32 s64, s{S_FIN}, 2")
        A("v_mov_b32 v97, 0")
        A("s_mov_b64 exec, 1")
        A(f"buffer_store_dword v96, v97, s[{SRD_U}:{SRD_U+3}], s64 offen")
        A("s_mov_b64 exec, -1")
    A(f"s_cmp_lg_u32 s{S_FIN}, 0")
    A("s_cbranch_scc1 L_end")
    A(f"v_mov_b32 v80, s{S_EPN}")
    A("v_mov_b32 v81, 0")
    A("s_mov_b64 exec, 1")
    A(f"buffer_store_dword v80, v81, s[{SRD_WS}:{SRD_WS+3}], 0 offen offset:{WS_EPOCH}")
    A("s_mov_b64 exec, -1")
    A("s_branch L_end")

    A.lab("L_att")
    A(f"s_sub_u32 s66, s{S_WAVE}, 2")
    A(f"s_lshl_b32 s64, s{S_B}, 4")
    A(f"s_add_u32 s64, s64, s{S_HKV}")
    A("s_lshr_b32 s65, s64, 9")
    A("s_lshl_b32 s64, s64, 23")
    A(f"s_add_u32 s{SRD_K}, s{S_K}, s64")
    A(f"s_addc_u32 s{SRD_K+1}, s{S_K+1}, s65")
    A(f"s_mov_b32 s{SRD_K+2}, 0x800000")
    A(f"s_mov_b32 s{SRD_K+3}, 0x20000")
    A(f"s_add_u32 s{SRD_V}, s{S_V}, s64")
    A(f"s_addc_u32 s{SRD_V+1}, s{S_V+1}, s65")
    A(f"s_mov_b32 s{SRD_V+2}, 0x800000")
    A(f"s_mov_b32 s{SRD_V+3}, 0x20000")
    S_OFF, S_STAT, S_NST, S_INF, S_CLM, S_IT, S_POOL = 70, 71, 74, 75, 76, 77, 78
    POOL = P.get("table", {}).get("pool", 128)
    A(f"s_add_u32 s{S_OFF}, s{S_KV0}, s66")
    A(f"s_lshl_b32 s{S_OFF}, s{S_OFF}, 13")
    A(f"s_add_u32 s{S_NST}, s{S_NSB}, 1")
    A(f"s_sub_u32 s{S_NST}, s{S_NST}, s66")
    A(f"s_lshr_b32 s{S_NST}, s{S_NST}, 1")
    A(f"s_sub_u32 s{S_NST}, s{S_NST}, {D}")
    A(f"s_mov_b32 s{S_INF}, {D}")
    A(f"s_mov_b32 s{S_IT}, 0")
    A("s_lshr_b32 s64, s2, 3")
    A("s_lshl_b32 s64, s64, 8")
    A(f"s_add_u32 s64, s64, {WS_CNT}")
    A(f"s_add_u32 s{S_POOL}, s{S_WS}, s64")
    A(f"s_addc_u32 s{S_POOL+1}, s{S_WS+1}, 0")
    VK0, VK1, VV0, VV1 = 2, 3, 4, 5
    A("v_and_b32 v6, 3, v0")
    A("v_bfe_u32 v7, v0, 2, 2")
    A("v_lshl_add_u32 v6, v6, 2, v7")
    A("v_lshlrev_b32 v6, 8, v6")
    A("v_lshrrev_b32 v7, 4, v0")
    A(f"v_lshl_add_u32 v{VK0}, v7, 4, v6")
    A(f"v_add_u32 v{VK1}, 4096, v{VK0}")
    A(f"v_lshlrev_b32 v{VV0}, 4, v0")
    A(f"v_add_u32 v{VV1}, 4096, v{VV0}")
    KA = lambda s, be, t: 64 * s + 16 * be + 4 * t
    VA = lambda s, be, r: 64 * s + 32 + 16 * be + 4 * r
    def issueK(s):
        for be in range(2):
            for t in range(4):
                A(f"buffer_load_dwordx4 {ar(KA(s,be,t),4)}, v{VK0+be}, s[{SRD_K}:{SRD_K+3}], s{S_OFF} offen offset:{64*t} {FLK}")
    def issueV(s):
        for be in range(2):
            for r in range(4):
                A(f"buffer_load_dwordx4 {ar(VA(s,be,r),4)}, v{VV0+be}, s[{SRD_V}:{SRD_V+3}], s{S_OFF} offen offset:{1024*r} {FLV}")
    groups = []
    for s in range(D): groups += [("K", s), ("V", s)]
    lead = P.get("lead", 2)
    early = P.get("early", 0)
    for k, (kind, s) in enumerate(groups):
        if k == early:
            A("s_barrier")
            stamp(A, P, 0)
        if k >= lead: A(f"s_waitcnt vmcnt({8*(lead-1)})")
        (issueK if kind == "K" else issueV)(s)
        if kind == "V": A(f"s_add_u32 s{S_OFF}, s{S_OFF}, 16384")
    A(f"s_mov_b32 s{S_STAT}, s{S_OFF}")
    stamp(A, P, 1)
    VQ = 8
    VM = 24
    VACC = 28
    VMC, VL_ = 32, 33
    VS = 36
    VP = 44
    VB = 52
    VT = 64
    A("v_and_b32 v6, 7, v0")
    A("v_and_b32 v7, 1, v6")
    A("v_mov_b32 v64, 0xffff")
    A("v_lshlrev_b32 v7, 4, v7")
    A("v_lshlrev_b32 v64, v7, v64")
    A("v_lshrrev_b32 v6, 1, v6")
    for q in range(4):
        A(f"v_cmp_eq_u32 vcc, {q}, v6")
        A(f"v_cndmask_b32 v{VM+q}, 0, v64, vcc")
    for k in range(4): A(f"v_mov_b32 v{VACC+k}, 0")
    A(f"v_mov_b32 v{VMC}, 0xff800000")
    A(f"v_mov_b32 v{VL_}, 0")
    A("v_bfe_u32 v6, v0, 3, 1")
    A("v_lshlrev_b32 v6, 8, v6")
    A("v_lshrrev_b32 v7, 4, v0")
    A("v_lshl_add_u32 v6, v7, 4, v6")
    A(f"s_mov_b32 s72, {hex(f2u(SCALE))}")
    A(f"s_mov_b32 s73, {hex(f2u(LOG2E))}")
    A("v_mov_b32 v34, 0")
    A("s_waitcnt lgkmcnt(0)")
    A(f"s_add_u32 s{S_EPN}, s{S_EPO}, 1")
    A(f"s_mul_i32 s{S_TAG}, s{S_EPN}, 0x9E3779B1")
    A(f"s_xor_b32 s{S_TAG}, s{S_TAG}, 0x5bd1e995")
    wait_lds(A, "L_qwait", QRDY, 1, 1, tv=66)
    for t in range(4):
        A(f"ds_read_b128 v[{VQ+4*t}:{VQ+4*t+3}], v6 offset:{Q_LDS + 64*t}")
    A("s_waitcnt lgkmcnt(0)")
    stamp(A, P, 2)
    A.lab("L_loop")
    for s in range(D):
        ldyn, ldead, lgo = A.uniq("L_dyn"), A.uniq("L_dead"), A.uniq("L_go")
        A(f"s_cmp_eq_u32 s{S_NST}, 0")
        A(f"s_cbranch_scc1 {ldyn}")
        A(f"s_mov_b32 s{S_OFF}, s{S_STAT}")
        A(f"s_add_u32 s{S_STAT}, s{S_STAT}, 16384")
        A(f"s_sub_u32 s{S_NST}, s{S_NST}, 1")
        A(f"s_cmp_eq_u32 s{S_NST}, 0")
        A(f"s_cbranch_scc0 {lgo}")
        A(f"s_mov_b32 s{S_CLM}, 1")
        A(f"s_atomic_add s{S_CLM}, s[{S_POOL}:{S_POOL+1}], 0 glc")
        A(f"s_branch {lgo}")
        A.lab(ldyn)
        A("s_waitcnt lgkmcnt(0)")
        A(f"s_cmp_lt_u32 s{S_CLM}, {POOL}")
        A(f"s_cbranch_scc0 {ldead}")
        A(f"s_add_u32 s{S_OFF}, s{S_CLM}, {1024 - POOL}")
        A(f"s_lshl_b32 s{S_OFF}, s{S_OFF}, 13")
        A(f"s_mov_b32 s{S_CLM}, 1")
        A(f"s_atomic_add s{S_CLM}, s[{S_POOL}:{S_POOL+1}], 0 glc")
        A(f"s_branch {lgo}")
        A.lab(ldead)
        A(f"s_mov_b32 s{SRD_K+2}, 0")
        A(f"s_mov_b32 s{SRD_V+2}, 0")
        A(f"s_sub_u32 s{S_INF}, s{S_INF}, 1")
        A.lab(lgo)
        A(f"s_waitcnt vmcnt({16*D-8})")
        for t in range(4):
            for be in range(2):
                c = "0" if t == 0 else vr(VS + 4 * be, 4)
                A(f"v_mfma_f32_16x16x32_bf16 {vr(VS+4*be,4)}, {ar(KA(s,be,t),4)}, {vr(VQ+4*t,4)}, {c}")
        issueK(s)
        for k in range(0, 8, 2):
            A(f"v_cvt_pk_bf16_f32 v{VT}, v{VS+k}, v{VS+k+1}")
            A(f"v_lshlrev_b32 v{VS+k}, 16, v{VT}")
            A(f"v_and_b32 v{VS+k+1}, 0xffff0000, v{VT}")
            A(f"v_mul_f32 v{VS+k}, s72, v{VS+k}")
            A(f"v_mul_f32 v{VS+k+1}, s72, v{VS+k+1}")
            A(f"v_cvt_pk_bf16_f32 v{VT+1}, v{VS+k}, v{VS+k+1}")
            A(f"v_lshlrev_b32 v{VS+k}, 16, v{VT+1}")
            A(f"v_and_b32 v{VS+k+1}, 0xffff0000, v{VT+1}")
        A(f"v_max3_f32 v{VT}, v{VS}, v{VS+1}, v{VS+2}")
        A(f"v_max3_f32 v{VT}, v{VT}, v{VS+3}, v{VS+4}")
        A(f"v_max3_f32 v{VT}, v{VT}, v{VS+5}, v{VS+6}")
        A(f"v_max_f32 v{VT}, v{VT}, v{VS+7}")
        A(f"v_mul_f32 v{VT}, s73, v{VT}")
        A(f"v_cmp_gt_f32 vcc, v{VT}, v{VMC}")
        skip = A.uniq("L_nomax")
        A(f"s_cbranch_vccz {skip}")
        swap16(A, VT, VT + 1, "v_max_f32")
        swap32(A, VT, VT + 1, "v_max_f32")
        A(f"v_max_f32 v{VT}, v{VT}, v{VMC}")
        A(f"v_sub_f32 v{VT+1}, v{VMC}, v{VT}")
        A(f"v_exp_f32 v{VT+1}, v{VT+1}")
        A(f"v_mov_b32 v{VMC}, v{VT}")
        for k in range(4): A(f"v_mul_f32 v{VACC+k}, v{VACC+k}, v{VT+1}")
        A(f"v_mul_f32 v{VL_}, v{VL_}, v{VT+1}")
        A.lab(skip)
        for k in range(8): A(f"v_fma_f32 v{VP+k}, v{VS+k}, s73, -v{VMC}")
        for k in range(8): A(f"v_exp_f32 v{VP+k}, v{VP+k}")
        def prep(k):
            bb = VB + 4 * (k % 3)
            A(f"v_cvt_pk_bf16_f32 v{VT+2}, v{VP+k}, v{VP+k}")
            for q in range(4): A(f"v_and_b32 v{bb+q}, v{VT+2}, v{VM+q}")
        prep(0); prep(1)
        A(f"v_add_f32 v{VT}, v{VP}, v{VP+1}")
        A(f"v_add_f32 v{VT+1}, v{VP+2}, v{VP+3}")
        A(f"s_waitcnt vmcnt({16*D-8})")
        for k in range(8):
            be, r = k >> 2, k & 3
            bb = VB + 4 * (k % 3)
            A(f"v_mfma_f32_16x16x32_bf16 {vr(VACC,4)}, {ar(VA(s,be,r),4)}, {vr(bb,4)}, {vr(VACC,4)}")
            if k + 2 < 8: prep(k + 2)
            if k == 1: A(f"v_add_f32 v{VT}, v{VT}, v{VP+4}"); A(f"v_add_f32 v{VT+1}, v{VT+1}, v{VP+5}")
            if k == 2: A(f"v_add_f32 v{VT}, v{VT}, v{VP+6}"); A(f"v_add_f32 v{VT+1}, v{VT+1}, v{VP+7}")
            if k == 3: A(f"v_add_f32 v{VT}, v{VT}, v{VT+1}"); A(f"v_add_f32 v{VL_}, v{VL_}, v{VT}")
        issueV(s)
        A(f"s_add_u32 s{S_IT}, s{S_IT}, 1")
        A(f"v_mov_b32 v35, s{S_IT}")
        A(f"ds_write_b32 v34, v35 offset:{PROG}")
        if P.get("stamps"):
            for idx, itv in ((5, 8), (6, 24), (7, 40), (10, 52)):
                l = A.uniq("L_st")
                A(f"s_cmp_lg_u32 s{S_IT}, {itv}")
                A(f"s_cbranch_scc1 {l}")
                stamp(A, P, idx)
                A.lab(l)
        A(f"s_cmp_eq_u32 s{S_INF}, 0")
        if s < D - 1: A("s_cbranch_scc1 L_att_done")
        else: A("s_cbranch_scc0 L_loop")
    A.lab("L_att_done")
    A("v_mov_b32 v35, 0xffff")
    A(f"ds_write_b32 v34, v35 offset:{PROG}")
    stamp(A, P, 3)
    if P.get("stamps"): A(f"v_writelane_b32 v253, s{S_IT}, 11")
    swap16(A, VL_, VT, "v_add_f32")
    swap32(A, VL_, VT, "v_add_f32")
    A(f"v_lshlrev_b32 v1, 4, v0")
    A(f"v_lshlrev_b32 v6, 3, v0")
    A(f"s_cmp_eq_u32 s{S_WAVE}, 2")
    A("s_cbranch_scc1 L_att0")
    A(f"ds_write_b128 v1, v[{VACC}:{VACC+3}] offset:{MERGE}")
    A(f"ds_write_b64 v6, v[{VMC}:{VMC+1}] offset:{MERGE + 1024}")
    A("s_waitcnt lgkmcnt(0)")
    A("s_barrier")
    A("s_branch L_att_join")
    A.lab("L_att0")
    A("s_barrier")
    A(f"ds_read_b128 v[68:71], v1 offset:{MERGE}")
    A(f"ds_read_b64 v[72:73], v6 offset:{MERGE + 1024}")
    A("s_waitcnt lgkmcnt(0)")
    A(f"v_max_f32 v74, v{VMC}, v72")
    A(f"v_sub_f32 v75, v{VMC}, v74")
    A("v_sub_f32 v76, v72, v74")
    A("v_exp_f32 v75, v75")
    A("v_exp_f32 v76, v76")
    for k in range(4):
        A(f"v_mul_f32 v{VACC+k}, v{VACC+k}, v75")
        A(f"v_fmac_f32 v{VACC+k}, v{68+k}, v76")
    A(f"v_mul_f32 v{VL_}, v{VL_}, v75")
    A(f"v_fmac_f32 v{VL_}, v73, v76")
    A(f"v_mov_b32 v{VMC}, v74")
    A(f"s_lshl_b32 s64, s{S_REC}, 10")
    A(f"s_add_u32 s64, s64, {WS_H1O}")
    A(f"buffer_store_dwordx4 v[{VACC}:{VACC+3}], v1, s[{SRD_WS}:{SRD_WS+3}], s64 offen sc1")
    A(f"v_mov_b32 v68, v{VMC}")
    A(f"v_mov_b32 v69, v{VL_}")
    A(f"v_mov_b32_dpp v70, v{VMC} row_ror:8 row_mask:0xf bank_mask:0xf")
    A(f"v_mov_b32_dpp v71, v{VL_} row_ror:8 row_mask:0xf bank_mask:0xf")
    A(f"s_lshl_b32 s65, s{S_REC}, 7")
    A(f"s_add_u32 s65, s65, {WS_H1ML}")
    A("s_mov_b64 exec, 0xff")
    A(f"buffer_store_dwordx4 v[68:71], v1, s[{SRD_WS}:{SRD_WS+3}], s65 offen sc1")
    A("s_mov_b64 exec, -1")
    stamp(A, P, 4)
    A.lab("L_att_join")
    A(f"s_cmp_lg_u32 s{S_WCB}, 255")
    A("s_cbranch_scc1 L_wogemv")
    A.lab("L_end")
    stamp_flush(A, P)
    A.lab("L_exit")
    A("s_endpgm")
    body = fix_hazards(A.L[body_start:], verbose=P.get("verbose", False))
    out = A.L[:body_start] + body
    out.append(".p2align 6")
    out.append(".type L_table,@object")
    out.append("L_table:")
    for row in tab: out.append("  .long " + ", ".join(str(v) for v in row))
    out.append(".size L_table, 8192")
    out += ['.section .rodata,"a"', ".p2align 6", f".amdhsa_kernel {NAME}",
            "  .amdhsa_next_free_vgpr 512", "  .amdhsa_next_free_sgpr 102", "  .amdhsa_accum_offset 256",
            "  .amdhsa_group_segment_fixed_size 0", "  .amdhsa_kernarg_size 96", "  .amdhsa_user_sgpr_count 2",
            "  .amdhsa_user_sgpr_kernarg_segment_ptr 1", "  .amdhsa_system_sgpr_workgroup_id_x 1",
            "  .amdhsa_float_denorm_mode_32 3",
            ".end_amdhsa_kernel"]
    return "\n".join(out) + "\n"

if __name__ == "__main__":
    P = eval(sys.argv[2]) if len(sys.argv) > 2 else {}
    P.setdefault("verbose", True)
    s = gen(P)
    open(sys.argv[1] if len(sys.argv) > 1 else "k.s", "w").write(s)
```

```python
import struct, sys, math
from asmlib import Asm, fix_hazards, vr, ar, sr

NAME = "recurrent_scan__gqa_block_cached__geglu_ffn__decode_kernel"

def f2u(x): return struct.unpack("<I", struct.pack("<f", x))[0]

WS_EPOCH = 0
WS_QP   = 0x001000
WS_H1O  = 0x050000
WS_H1ML = 0x090000
WS_GU   = 0x0A0000
WS_YP   = 0x100000
WS_SP   = 0x1B0000
WS_CNT  = 0x1E0000
WS_DBG  = 0x200000
WS_SIZE = 0x400000

X_LN, XROW = 0, 1184
Q_LDS = 2432
X2, X2ROW = 3072, 576
X3, X3ROW = 4352, 192
MERGE = 4864
PROG = 2368
QRDY = 2372
QPUB = 2376
T_WQ = 6400
XH = T_WQ
T_WO = T_WQ + 20480
T_FFN = T_WO + 32768
SCORES = T_FFN + 73728
LDS_BYTES = SCORES + 16384

LOG2E = 1.4426950408889634
SCALE = 128 ** -0.5
POLL_LIMIT = 400000

S_WAVE = 3
S_X, S_K, S_V, S_WQ, S_WO, S_BX, S_WG, S_WU = 4, 6, 8, 10, 12, 14, 16, 18
S_WD, S_OUT, S_DBG, S_WS = 20, 22, 24, 26
S_KV0, S_NSB, S_FT, S_FCB, S_WCB, S_FIN = 28, 29, 30, 31, 32, 33
S_HKV, S_B, S_M, S_REC = 36, 37, 38, 39
S_EPO, S_TAG, S_EPN = 40, 41, 42
SRD_K, SRD_V, SRD_WS, SRD_T, SRD_U = 44, 48, 52, 56, 60
SG1, SG2, SG3 = 80, 82, 84
S_CNT = 91
S_T0 = 92

def make_table(wside=0.8, c_ffn=72.0, c_wo=32.0, c_fin=12.0, pool=128, adj=None):
    info = {w: dict(x=w & 7, g=w >> 3, j=w & 7, ft=0, fcb=0, wcb=255, fin=255) for w in range(256)}
    free = lambda w: ((w & 7) == (w >> 3) % 8) or ((w >> 3) < 8 and (w & 7) == ((w >> 3) + 4) % 8)
    e = 0
    for w in range(256):
        if not free(w):
            info[w]["ft"] = 1 + e % 3; info[w]["fcb"] = e // 3; e += 1
    assert e == 216
    xcnt = [0] * 8
    for c in range(16):
        chosen = []
        quota = {2 * c: 5 if c % 2 == 0 else 4, 2 * c + 1: 4 if c % 2 == 0 else 5}
        mem = list(range(16 * c, 16 * c + 16))
        for w in mem:
            if free(w): chosen.append(w); quota[w >> 3] -= 1; xcnt[w & 7] += 1
        while len(chosen) < 9:
            cand = [w for w in mem if w not in chosen and quota[w >> 3] > 0]
            w = min(cand, key=lambda v: (xcnt[v & 7], v))
            chosen.append(w); quota[w >> 3] -= 1; xcnt[w & 7] += 1
        for cb, w in enumerate(chosen): info[w]["wcb"] = cb
    frees = [w for w in range(64) if free(w)]
    more = [w for w in range(64, 256) if free(w)]
    fins = [frees[0], frees[3], frees[4], frees[7], frees[8], frees[11], frees[12], frees[15], more[5]]
    assert len(fins) == 9
    for f, w in enumerate(fins): info[w]["fin"] = f
    static_total = 1024 - pool
    for g in range(32):
        ws_ = list(range(8 * g, 8 * g + 8))
        side = []
        for w in ws_:
            i = info[w]
            sd = (c_ffn if i["ft"] else 0) + (c_wo if i["wcb"] != 255 else 0) + (c_fin if i["fin"] != 255 else 0)
            if adj: sd += adj(w, i)
            side.append(sd * wside)
        tot = static_total * 16 + sum(side)
        ideal = [(tot / 8 - sd) / 16 for sd in side]
        n = [int(math.floor(v)) for v in ideal]
        rem = static_total - sum(n)
        order = sorted(range(8), key=lambda k: -(ideal[k] - n[k]))
        for k in order[:rem]: n[k] += 1
        assert sum(n) == static_total and min(n) >= 16 and max(n) <= 126
        st = 0
        for k, w in enumerate(ws_):
            info[w]["kv0"] = st; info[w]["nsb"] = n[k]; st += n[k]
        info[ws_[0]]["side_total"] = sum(side)
    tab = [[info[w]["kv0"], info[w]["nsb"], info[w]["ft"], info[w]["fcb"], info[w]["wcb"], info[w]["fin"], 0, 0] for w in range(256)]
    return tab, info

def gemv(A, nsteps, cts, a_read, tr_read, acc, abuf, bbuf, nbuf):
    reads = []
    last = {}
    for n in range(nsteps):
        reads.append((n, a_read(n, abuf(n % nbuf))))
        for ct in cts:
            for u in range(2):
                reads.append((n, tr_read(n, ct, u, bbuf(n % nbuf, ct) + 2 * u)))
            last[(n, ct)] = len(reads) - 1
    issued = 0; done = 0
    for n in range(nsteps):
        for ci, ct in enumerate(cts):
            while issued < len(reads) and (issued - done) < 15 and reads[issued][0] < n + nbuf - (0 if ci == 0 or True else 0):
                if reads[issued][0] - nbuf >= n: break
                A(reads[issued][1]); issued += 1
            need = last[(n, ct)]
            assert issued > need, (issued, need, n, ct)
            if done <= need:
                k = issued - 1 - need
                A(f"s_waitcnt lgkmcnt({k})")
                done = need + 1
            c = "0" if n == 0 else vr(acc(ct), 4)
            A(f"v_mfma_f32_16x16x32_bf16 {vr(acc(ct),4)}, {vr(abuf(n % nbuf),4)}, {vr(bbuf(n % nbuf, ct),4)}, {c}")

def poll_begin(A, name):
    A(f"s_mov_b32 s{S_CNT}, {POLL_LIMIT}")
    A.lab(name)

def poll_end(A, name, sleep):
    ok = name + "_ok"
    A(f"s_cbranch_vccz {ok}")
    A(f"s_sub_u32 s{S_CNT}, s{S_CNT}, 1")
    A(f"s_cmp_eq_u32 s{S_CNT}, 0")
    A(f"s_cbranch_scc1 {ok}")
    if sleep: A(f"s_sleep {sleep}")
    A(f"s_branch {name}")
    A.lab(ok)

def wait_progress(A, name, thr):
    A(f"s_mov_b32 s{S_CNT}, {POLL_LIMIT}")
    A("v_mov_b32 v250, 0")
    A.lab(name)
    A(f"ds_read_b32 v251, v250 offset:{PROG}")
    A("s_waitcnt lgkmcnt(0)")
    A("v_readfirstlane_b32 s90, v251")
    A(f"s_cmp_ge_u32 s90, {thr}")
    A(f"s_cbranch_scc1 {name}_ok")
    A(f"s_sub_u32 s{S_CNT}, s{S_CNT}, 1")
    A(f"s_cmp_eq_u32 s{S_CNT}, 0")
    A(f"s_cbranch_scc1 {name}_ok")
    A("s_sleep 8")
    A(f"s_branch {name}")
    A.lab(name + "_ok")

def wait_lds(A, name, off, thr, sleep, tv=250):
    A(f"s_mov_b32 s{S_CNT}, {POLL_LIMIT * 8}")
    A(f"v_mov_b32 v{tv}, 0")
    A.lab(name)
    A(f"ds_read_b32 v{tv+1}, v{tv} offset:{off}")
    A("s_waitcnt lgkmcnt(0)")
    A(f"v_readfirstlane_b32 s90, v{tv+1}")
    A(f"s_cmp_ge_u32 s90, {thr}")
    A(f"s_cbranch_scc1 {name}_ok")
    A(f"s_sub_u32 s{S_CNT}, s{S_CNT}, 1")
    A(f"s_cmp_eq_u32 s{S_CNT}, 0")
    A(f"s_cbranch_scc1 {name}_ok")
    A(f"s_sleep {sleep}")
    A(f"s_branch {name}")
    A.lab(name + "_ok")

def wait_counter(A, name, off, thr, sleep):
    A(f"s_mov_b32 s{S_CNT}, {POLL_LIMIT}")
    A.lab(name)
    A("s_mov_b32 s90, 0")
    A(f"s_atomic_add s90, s[{S_DBG}:{S_DBG+1}], {off} glc")
    A("s_waitcnt lgkmcnt(0)")
    A(f"s_cmp_ge_u32 s90, {thr}")
    A(f"s_cbranch_scc1 {name}_ok")
    A(f"s_sub_u32 s{S_CNT}, s{S_CNT}, 1")
    A(f"s_cmp_eq_u32 s{S_CNT}, 0")
    A(f"s_cbranch_scc1 {name}_ok")
    A(f"s_sleep {sleep}")
    A(f"s_branch {name}")
    A.lab(name + "_ok")

def check_tags(A, tags, t):
    A(f"v_max3_u32 v{t}, v{tags[0]}, v{tags[1]}, v{tags[2]}")
    A(f"v_min3_u32 v{t+1}, v{tags[0]}, v{tags[1]}, v{tags[2]}")
    rest = tags[3:]
    for k in range(0, len(rest), 2):
        a = rest[k]; b_ = rest[min(k + 1, len(rest) - 1)]
        A(f"v_max3_u32 v{t}, v{t}, v{a}, v{b_}")
        A(f"v_min3_u32 v{t+1}, v{t+1}, v{a}, v{b_}")
    A(f"v_xor_b32 v{t}, v{t}, v{t+1}")
    A(f"v_xor_b32 v{t+1}, s{S_TAG}, v{t+1}")
    A(f"v_or_b32 v{t}, v{t}, v{t+1}")
    A(f"v_cmp_ne_u32 vcc, 0, v{t}")

def reduce16(A, v, op="v_add_f32"):
    for k in (8, 4, 2, 1):
        A(f"{op}_dpp {vr(v)}, {vr(v)}, {vr(v)} row_ror:{k} row_mask:0xf bank_mask:0xf")

def swap16(A, v, t, op):
    A(f"v_mov_b32 {vr(t)}, {vr(v)}")
    A(f"v_permlane16_swap_b32 {vr(v)}, {vr(t)}")
    A(f"{op} {vr(v)}, {vr(v)}, {vr(t)}")

def swap32(A, v, t, op):
    A(f"v_mov_b32 {vr(t)}, {vr(v)}")
    A(f"v_permlane32_swap_b32 {vr(v)}, {vr(t)}")
    A(f"{op} {vr(v)}, {vr(v)}, {vr(t)}")

def round_bf16(A, dst, src):
    A(f"v_cvt_pk_bf16_f32 {vr(dst)}, {vr(src)}, {vr(src)}")
    A(f"v_and_b32 {vr(dst)}, 0xffff0000, {vr(dst)}")

def srd(A, base, ptr, nrec, off=None):
    if off is None:
        A(f"s_mov_b32 s{base}, s{ptr}")
        A(f"s_mov_b32 s{base+1}, s{ptr+1}")
    else:
        lo, hi = off
        A(f"s_add_u32 s{base}, s{ptr}, s{lo}")
        A(f"s_addc_u32 s{base+1}, s{ptr+1}, {hi}")
    A(f"s_mov_b32 s{base+2}, {nrec}")
    A(f"s_mov_b32 s{base+3}, 0x20000")

def stamp(A, P, idx):
    if not P.get("stamps"): return
    A("s_memrealtime s[92:93]")
    A("s_waitcnt lgkmcnt(0)")
    A(f"v_writelane_b32 v253, s92, {idx}")

def stamp_flush(A, P):
    if not P.get("stamps"): return
    A(f"s_lshl_b32 s94, s2, 2")
    A(f"s_add_u32 s94, s94, s{S_WAVE}")
    A(f"s_lshl_b32 s94, s94, 6")
    A(f"s_add_u32 s94, s94, {WS_DBG}")
    A("v_lshlrev_b32 v254, 2, v0")
    A("s_mov_b64 exec, 0xffff")
    A(f"buffer_store_dword v253, v254, s[{SRD_WS}:{SRD_WS+3}], s94 offen")

def dma_voff(A, vE, vO, stride, vL, t0, t1):
    A(f"v_lshrrev_b32 {vr(t0)}, 3, {vr(vL)}")
    A(f"s_mov_b32 s64, {stride}")
    A(f"v_mul_lo_u32 {vr(vE)}, {vr(t0)}, s64")
    A(f"v_bfe_u32 {vr(t0)}, {vr(vL)}, 4, 1")
    A(f"v_lshlrev_b32 {vr(t0)}, 1, {vr(t0)}")
    A(f"v_and_b32 {vr(t1)}, 7, {vr(vL)}")
    A(f"v_xor_b32 {vr(t0)}, {vr(t0)}, {vr(t1)}")
    A(f"v_lshl_add_u32 {vr(vE)}, {vr(t0)}, 4, {vr(vE)}")
    A(f"v_xor_b32 {vr(vO)}, 64, {vr(vE)}")

def tr_addr(A, vT, vL, t0, t1):
    A(f"v_lshrrev_b32 {vr(t0)}, 4, {vr(vL)}")
    A(f"v_bfe_u32 {vr(t1)}, {vr(vL)}, 2, 2")
    A(f"v_lshl_add_u32 {vr(vT)}, {vr(t0)}, 3, {vr(t1)}")
    A(f"v_lshlrev_b32 {vr(vT)}, 7, {vr(vT)}")
    A(f"v_and_b32 {vr(t0)}, 1, {vr(t0)}")
    A(f"v_lshlrev_b32 {vr(t0)}, 1, {vr(t0)}")
    A(f"v_lshrrev_b32 {vr(t1)}, 1, {vr(t1)}")
    A(f"v_or_b32 {vr(t0)}, {vr(t0)}, {vr(t1)}")
    A(f"v_lshlrev_b32 {vr(t0)}, 1, {vr(t0)}")
    A(f"v_bfe_u32 {vr(t1)}, {vr(vL)}, 1, 1")
    A(f"v_xor_b32 {vr(t0)}, {vr(t0)}, {vr(t1)}")
    A(f"v_lshl_add_u32 {vr(vT)}, {vr(t0)}, 4, {vr(vT)}")
    A(f"v_and_b32 {vr(t0)}, 1, {vr(vL)}")
    A(f"v_lshl_add_u32 {vr(vT)}, {vr(t0)}, 3, {vr(vT)}")
    for ct in range(1, 4):
        A(f"v_xor_b32 {vr(vT+ct)}, {32*ct}, {vr(vT)}")

def sel_by_group(A, dst, regs):
    A(f"v_cndmask_b32 {vr(dst)}, {vr(regs[0])}, {vr(regs[1])}, s[{SG1}:{SG1+1}]")
    A(f"v_cndmask_b32 {vr(dst)}, {vr(dst)}, {vr(regs[2])}, s[{SG2}:{SG2+1}]")
    A(f"v_cndmask_b32 {vr(dst)}, {vr(dst)}, {vr(regs[3])}, s[{SG3}:{SG3+1}]")

def gen(P=None):
    P = P or {}
    D = P.get("D", 2)
    FL = P.get("kvflags", "nt")
    FLK = P.get("kflags", FL); FLV = P.get("vflags", FL)
    WFL = P.get("wflags", "nt")
    tab, info = make_table(**P.get("table", {}))
    if P.get("no_ffn"):
        for row in tab: row[2] = 0; row[5] = 255
    if P.get("only_gu"):
        for row in tab:
            if row[2] == 3: row[2] = 0
            row[5] = 255
    if P.get("only_dn"):
        for row in tab:
            if row[2] in (1, 2): row[2] = 0
            row[5] = 255
    if P.get("no_y"):
        for row in tab: row[5] = 255
    if P.get("no_wo"):
        for row in tab: row[4] = 255; row[5] = 255
    A = Asm()
    A.L += open(P.get("header", "recurrent_scan__gqa_block_cached__geglu_ffn__decode.s.ref")).read().split("; Override launch")[0].rstrip("\n").split("\n")
    A.L.append(f"; @launch grid=(256,1,1) block=(256,1,1) lds={LDS_BYTES}")
    A('.amdgcn_target "amdgcn-amd-amdhsa--gfx950"')
    A(".text")
    A(f".globl {NAME}")
    A(".p2align 8")
    A(f".type {NAME},@function")
    body_start = len(A.L)
    A.lab(NAME)
    A("s_cmp_ge_u32 s2, 256")
    A("s_cbranch_scc1 L_exit")
    A("s_load_dwordx16 s[4:19], s[0:1], 0")
    A("s_load_dwordx8 s[20:27], s[0:1], 64")
    A("s_getpc_b64 s[64:65]")
    A.lab("L_pc")
    A("s_add_u32 s64, s64, L_table-L_pc")
    A("s_addc_u32 s65, s65, 0")
    A("s_lshl_b32 s66, s2, 5")
    A("s_add_u32 s64, s64, s66")
    A("s_addc_u32 s65, s65, 0")
    A("s_load_dwordx8 s[28:35], s[64:65], 0")
    A("v_lshrrev_b32 v1, 6, v0")
    A("v_and_b32 v0, 63, v0")
    A(f"v_readfirstlane_b32 s{S_WAVE}, v1")
    if P.get("stamps"):
        A("v_mov_b32 v253, 0")
        stamp(A, P, 15)
    A(f"s_lshr_b32 s{S_HKV}, s2, 4")
    A(f"s_and_b32 s{S_M}, s2, 15")
    A(f"s_lshr_b32 s{S_B}, s{S_M}, 3")
    A(f"s_mov_b32 s{S_REC}, s2")
    A(f"s_mov_b32 s{SG1}, 0xffff0000")
    A(f"s_mov_b32 s{SG1+1}, 0")
    A(f"s_mov_b32 s{SG2}, 0")
    A(f"s_mov_b32 s{SG2+1}, 0xffff")
    A(f"s_mov_b32 s{SG3}, 0")
    A(f"s_mov_b32 s{SG3+1}, 0xffff0000")
    A("s_waitcnt lgkmcnt(0)")
    if P.get("dbgdur"): A("s_memrealtime s[98:99]")
    A(f"s_load_dword s{S_EPO}, s[{S_WS}:{S_WS+1}], {WS_EPOCH}")
    srd(A, SRD_WS, S_WS, WS_SIZE)
    A(f"s_cmp_ge_u32 s{S_WAVE}, 2")
    A("s_cbranch_scc1 L_att")
    A(f"s_cmp_eq_u32 s{S_WAVE}, 1")
    A("s_cbranch_scc1 L_s1")

    vL = 0
    A("v_lshlrev_b32 v1, 4, v0")
    for k in range(4): A(f"v_mov_b32 v{4+k}, -1")
    A(f"s_lshl_b32 s64, s{S_REC}, 10")
    A(f"s_add_u32 s64, s64, {WS_H1O}")
    A(f"buffer_store_dwordx4 v[4:7], v1, s[{SRD_WS}:{SRD_WS+3}], s64 offen sc1")
    A(f"s_lshl_b32 s65, s{S_REC}, 7")
    A(f"s_add_u32 s65, s65, {WS_H1ML}")
    A("s_mov_b64 exec, 0xff")
    A(f"buffer_store_dwordx4 v[4:7], v1, s[{SRD_WS}:{SRD_WS+3}], s65 offen sc1")
    A("s_mov_b64 exec, -1")
    A("s_and_b32 s64, s2, 7")
    A("s_cmp_lg_u32 s64, 0")
    A("s_cbranch_scc1 L_nocnt")
    A("s_lshr_b32 s64, s2, 3")
    A("s_lshl_b32 s64, s64, 8")
    A(f"s_add_u32 s64, s64, {WS_CNT}")
    A("v_mov_b32 v8, 0")
    A("s_mov_b64 exec, 1")
    A(f"buffer_store_dword v8, v1, s[{SRD_WS}:{SRD_WS+3}], s64 offen sc1")
    A("s_mov_b64 exec, -1")
    A.lab("L_nocnt")
    srd(A, SRD_U, S_X, 2304)
    A("v_lshrrev_b32 v2, 5, v0")
    A("v_mul_u32_u24 v2, 1152, v2")
    A("v_and_b32 v3, 31, v0")
    A("v_lshl_add_u32 v2, v3, 2, v2")
    for n in range(9):
        A(f"buffer_load_dword v{8+n}, v2, s[{SRD_U}:{SRD_U+3}], 0 offen offset:{128*n}")
    srd(A, SRD_T, S_WQ, 576 * 8192)
    dma_voff(A, 18, 19, 8192, vL, 20, 21)
    A(f"s_lshr_b32 s66, s{S_M}, 2")
    A(f"s_mul_i32 s67, s66, {144*8192}")
    A(f"s_and_b32 s68, s{S_M}, 3")
    A(f"s_lshl_b32 s68, s68, 7")
    A("s_add_u32 s67, s67, s68")
    A(f"s_lshl_b32 s68, s{S_HKV}, 9")
    A("s_add_u32 s67, s67, s68")
    A(f"s_mov_b32 s68, {T_WQ}")
    A("s_mov_b32 s69, 9")
    A.lab("L_wqdma")
    for par in range(2):
        A("s_mov_b32 m0, s68")
        A("s_add_u32 s68, s68, 1024")
        A(f"buffer_load_dwordx4 v{18+par}, s[{SRD_T}:{SRD_T+3}], s67 offen {WFL} lds")
        A("s_add_u32 s67, s67, 65536")
    A("s_sub_u32 s69, s69, 1")
    A("s_cmp_lg_u32 s69, 0")
    A("s_cbranch_scc1 L_wqdma")
    A("v_mov_b32 v20, 0")
    A("v_mov_b32 v21, 0")
    A("v_mov_b32 v22, 0")
    A(f"ds_write_b32 v20, v20 offset:{PROG}")
    A(f"ds_write_b64 v20, v[20:21] offset:{QRDY + 4 - 4 + 0}") if False else None
    A(f"ds_write_b32 v20, v20 offset:{QRDY}")
    A(f"ds_write_b32 v20, v20 offset:{QPUB}")
    A("s_waitcnt lgkmcnt(0)")
    A("s_barrier")
    stamp(A, P, 0)
    for k in range(4): A(f"v_mov_b32 v{20+k}, 0")
    A(f"ds_write_b128 v1, v[20:23] offset:{T_WQ + 18432}")
    A(f"ds_write_b128 v1, v[20:23] offset:{T_WQ + 19456}")
    A("v_lshrrev_b32 v24, 3, v0")
    A(f"v_mul_u32_u24 v24, {XROW}, v24")
    A("v_and_b32 v25, 7, v0")
    A("v_lshl_add_u32 v24, v25, 2, v24")
    A("s_mov_b64 exec, 0xffff")
    A(f"ds_write_b32 v24, v20 offset:{X_LN + 1152}")
    A("s_mov_b64 exec, -1")
    tr_addr(A, 100, vL, 24, 25)
    A("v_and_b32 v104, 1, v0")
    A(f"v_mul_u32_u24 v104, {XROW}, v104")
    A("v_lshrrev_b32 v24, 4, v0")
    A("v_lshl_add_u32 v104, v24, 4, v104")
    A(f"s_mul_i32 s64, s66, 288")
    A("v_add_u32 v105, s64, v104")
    A("s_waitcnt vmcnt(18)")
    lo = lambda n: 24 + 2 * n
    hi = lambda n: 25 + 2 * n
    for n in range(9):
        A(f"v_lshlrev_b32 v{lo(n)}, 16, v{8+n}")
        A(f"v_and_b32 v{hi(n)}, 0xffff0000, v{8+n}")
    A(f"v_add_f32 v42, v{lo(0)}, v{hi(0)}")
    A(f"v_add_f32 v43, v{lo(1)}, v{hi(1)}")
    for n in range(2, 9):
        A(f"v_add_f32 v42, v42, v{lo(n)}")
        A(f"v_add_f32 v43, v43, v{hi(n)}")
    A("v_add_f32 v42, v42, v43")
    reduce16(A, 42); swap16(A, 42, 43, "v_add_f32")
    A(f"v_mul_f32 v42, {hex(f2u(1/576))}, v42")
    A("v_mov_b32 v44, 0")
    for n in range(9):
        A(f"v_sub_f32 v45, v{lo(n)}, v42")
        A(f"v_sub_f32 v46, v{hi(n)}, v42")
        A("v_fmac_f32 v44, v45, v45")
        A("v_fmac_f32 v44, v46, v46")
    reduce16(A, 44); swap16(A, 44, 43, "v_add_f32")
    A(f"v_mul_f32 v44, {hex(f2u(1/576))}, v44")
    round_bf16(A, 44, 44)
    A(f"v_add_f32 v44, {hex(f2u(1e-5))}, v44")
    round_bf16(A, 44, 44)
    A("v_sqrt_f32 v44, v44")
    round_bf16(A, 44, 44)
    A("v_rcp_f32 v44, v44")
    round_bf16(A, 42, 42)
    A("v_lshrrev_b32 v47, 5, v0")
    A(f"v_mul_u32_u24 v47, {XROW}, v47")
    A("v_and_b32 v48, 31, v0")
    A("v_lshl_add_u32 v47, v48, 2, v47")
    for n in range(9):
        A(f"v_sub_f32 v45, v{lo(n)}, v42")
        A(f"v_sub_f32 v46, v{hi(n)}, v42")
        A("v_cvt_pk_bf16_f32 v45, v45, v46")
        A("v_and_b32 v46, 0xffff0000, v45")
        A("v_lshlrev_b32 v45, 16, v45")
        A("v_mul_f32 v45, v45, v44")
        A("v_mul_f32 v46, v46, v44")
        A(f"v_cvt_pk_bf16_f32 v{50+n}, v45, v46")
        A(f"ds_write_b32 v47, v{50+n} offset:{X_LN + 128*n}")
    stamp(A, P, 1)
    A("s_waitcnt vmcnt(0) lgkmcnt(0)")
    A(f"s_add_u32 s{S_EPN}, s{S_EPO}, 1")
    A(f"s_mul_i32 s{S_TAG}, s{S_EPN}, 0x9E3779B1")
    A(f"s_xor_b32 s{S_TAG}, s{S_TAG}, 0x5bd1e995")
    stamp(A, P, 2)
    ACC = lambda ct: 110 + 4 * ct
    gemv(A, 5, [0, 1, 2, 3],
         lambda n, d: f"ds_read_b128 {vr(d,4)}, v105 offset:{X_LN + 64*n}",
         lambda n, ct, u, d: f"ds_read_b64_tr_b16 {vr(d,2)}, v{100+ct} offset:{T_WQ + 4096*n + 512*u}",
         ACC, lambda k: 128 + 20 * k, lambda k, ct: 132 + 20 * k + 4 * ct, 2)
    def publish_pair(soff):
        sel_by_group(A, 8, [ACC(ct) for ct in range(4)])
        sel_by_group(A, 10, [ACC(ct) + 1 for ct in range(4)])
        return
    publish_pair(None)
    A(f"v_mov_b32 v9, s{S_TAG}")
    A(f"v_mov_b32 v11, s{S_TAG}")
    A(f"s_lshl_b32 s64, s{S_REC}, 10")
    A(f"s_add_u32 s64, s64, {WS_QP}")
    A(f"buffer_store_dwordx4 v[8:11], v1, s[{SRD_WS}:{SRD_WS+3}], s64 offen sc1")
    A("v_mov_b32 v12, 0")
    A("v_mov_b32 v13, 1")
    A(f"ds_write_b32 v12, v13 offset:{QPUB}")
    stamp(A, P, 3)
    A(f"s_lshl_b32 s64, s{S_B}, 3")
    A("v_add_u32 v2, s64, v1")
    A(f"s_lshl_b32 s64, s{S_HKV}, 14")
    A(f"s_add_u32 s64, s64, {WS_QP}")
    for k in range(1, 4): A(f"s_add_u32 s{64+k}, s64, {4096*k}")
    poll_begin(A, "L_qpoll")
    for m in range(16):
        A(f"buffer_load_dwordx2 v[{24+2*m}:{25+2*m}], v2, s[{SRD_WS}:{SRD_WS+3}], s{64+(m>>2)} offen offset:{1024*(m&3)} sc1")
    A("s_waitcnt vmcnt(0)")
    A("v_max3_u32 v60, v25, v27, v29")
    A("v_min3_u32 v61, v25, v27, v29")
    for m in range(3, 16, 2):
        a, b_ = 25 + 2 * m, 25 + 2 * min(m + 1, 15)
        A(f"v_max3_u32 v60, v60, v{a}, v{b_}")
        A(f"v_min3_u32 v61, v61, v{a}, v{b_}")
    A("v_xor_b32 v60, v60, v61")
    A(f"v_xor_b32 v61, s{S_TAG}, v61")
    A("v_or_b32 v60, v60, v61")
    A("v_cmp_ne_u32 vcc, 0, v60")
    if P.get("stamps"):
        A(f"s_cmp_eq_u32 s{S_CNT}, {POLL_LIMIT}")
        A("s_cbranch_scc0 L_qp_nostamp")
        A("s_memrealtime s[92:93]")
        A("s_waitcnt lgkmcnt(0)")
        A("v_writelane_b32 v253, s92, 11")
        A.lab("L_qp_nostamp")
    poll_end(A, "L_qpoll", 1)
    if P.get("stamps"):
        A(f"s_sub_u32 s92, {POLL_LIMIT+1}, s{S_CNT}")
        A("v_writelane_b32 v253, s92, 12")
    A("v_lshlrev_b32 v3, 1, v0")
    for cbp in range(4):
        m = lambda kr: 24 + 2 * (kr * 4 + cbp)
        A(f"v_add_f32 v60, v{m(0)}, v{m(1)}")
        A(f"v_add_f32 v60, v60, v{m(2)}")
        A(f"v_add_f32 v60, v60, v{m(3)}")
        A(f"v_cvt_pk_bf16_f32 v{62+cbp}, v60, v60")
        A(f"ds_write_b16 v3, v{62+cbp} offset:{Q_LDS + 128*cbp}")
    A("s_waitcnt lgkmcnt(0)")
    A("v_mov_b32 v12, 0")
    A("v_mov_b32 v13, 1")
    A(f"ds_write_b32 v12, v13 offset:{QRDY}")
    stamp(A, P, 4)
    A(f"s_cmp_eq_u32 s{S_FIN}, 255")
    A("s_cbranch_scc1 L_s0_noy")
    wait_progress(A, "L_ywait", P.get("t_y", 88))
    A(f"s_lshl_b32 s64, s{S_FIN}, 13")
    A(f"s_add_u32 s64, s64, {WS_YP}")
    A("s_add_u32 s65, s64, 4096")
    poll_begin(A, "L_ypoll")
    for n in range(8):
        A(f"buffer_load_dwordx4 v[{24+4*n}:{27+4*n}], v1, s[{SRD_WS}:{SRD_WS+3}], s{64+(n>>2)} offen offset:{1024*(n&3)} sc1")
    A("s_waitcnt vmcnt(0)")
    check_tags(A, [25 + 4 * n + 2 * k for n in range(8) for k in range(2)], 80)
    poll_end(A, "L_ypoll", 32)
    A("v_add_f32 v200, v24, v28")
    A("v_add_f32 v201, v26, v30")
    for n in range(2, 8):
        A(f"v_add_f32 v200, v200, v{24+4*n}")
        A(f"v_add_f32 v201, v201, v{26+4*n}")
    for k in range(2):
        y = 200 + k
        round_bf16(A, y, y)
        A(f"v_mul_f32 v80, {hex(f2u(-LOG2E))}, v{y}")
        A("v_exp_f32 v80, v80")
        A("v_add_f32 v80, 1.0, v80")
        A("v_rcp_f32 v80, v80")
        A(f"v_mul_f32 v{y}, v{y}, v80")
        round_bf16(A, y, y)
    srd(A, SRD_U, S_X, 2304)
    A(f"s_lshl_b32 s70, s{S_FIN}, 7")
    A("v_lshlrev_b32 v204, 1, v0")
    A(f"buffer_load_ushort v202, v204, s[{SRD_U}:{SRD_U+3}], s70 offen")
    A(f"buffer_load_ushort v203, v204, s[{SRD_U}:{SRD_U+3}], s70 offen offset:1152")
    A("s_waitcnt vmcnt(0)")
    A.lab("L_s0_noy")
    stamp(A, P, 5)

    A("s_branch L_side_tail")

    A.lab("L_s1")
    A("v_lshlrev_b32 v1, 4, v0")
    A("s_barrier")
    A("s_waitcnt lgkmcnt(0)")
    A(f"s_add_u32 s{S_EPN}, s{S_EPO}, 1")
    A(f"s_mul_i32 s{S_TAG}, s{S_EPN}, 0x9E3779B1")
    A(f"s_xor_b32 s{S_TAG}, s{S_TAG}, 0x5bd1e995")
    if P.get("s1_start", "qpub") == "qpub": wait_lds(A, "L_qpubwait", QPUB, 1, 1)
    if P.get("s1_start") == "qrdy": wait_lds(A, "L_qpubwait", QRDY, 1, 1)
    DL = P.get("dma_lead", 40)
    A(f"s_cmp_eq_u32 s{S_FT}, 0")
    A("s_cbranch_scc1 L_s1_wo")
    A(f"s_cmp_eq_u32 s{S_FT}, 3")
    A("s_cbranch_scc1 L_dn_setup")
    A(f"s_cmp_eq_u32 s{S_FT}, 1")
    A(f"s_cselect_b32 s{SRD_T}, s{S_WG}, s{S_WU}")
    A(f"s_cselect_b32 s{SRD_T+1}, s{S_WG+1}, s{S_WU+1}")
    A(f"s_mov_b32 s{SRD_T+2}, {576*9216}")
    A(f"s_mov_b32 s{SRD_T+3}, 0x20000")
    dma_voff(A, 18, 19, 9216, vL, 20, 21)
    A(f"s_lshl_b32 s67, s{S_FCB}, 7")
    A(f"s_mov_b32 s71, {8*9216}")
    A("s_branch L_ffn_dma")
    A.lab("L_dn_setup")
    srd(A, SRD_T, S_WD, 4608 * 1152)
    dma_voff(A, 18, 19, 1152, vL, 20, 21)
    A(f"s_mul_i32 s72, s{S_FCB}, 57")
    A("s_lshr_b32 s72, s72, 9")
    A("s_mul_i32 s73, s72, 9")
    A(f"s_sub_u32 s73, s{S_FCB}, s73")
    A(f"s_mul_i32 s67, s72, {576*1152}")
    A("s_lshl_b32 s64, s73, 7")
    A("s_add_u32 s67, s67, s64")
    A(f"s_mov_b32 s71, {8*1152}")
    A.lab("L_ffn_dma")
    A(f"s_mov_b32 s68, {T_FFN}")
    A("s_mov_b32 s69, 36")
    A.lab("L_gudma")
    for par in range(2):
        A("s_mov_b32 m0, s68")
        A("s_add_u32 s68, s68, 1024")
        A(f"buffer_load_dwordx4 v{18+par}, s[{SRD_T}:{SRD_T+3}], s67 offen {WFL} lds")
        A(f"s_add_u32 s67, s67, s71")
    A(f"s_waitcnt vmcnt({DL})")
    A("s_sub_u32 s69, s69, 1")
    A("s_cmp_lg_u32 s69, 0")
    A("s_cbranch_scc1 L_gudma")
    A.lab("L_s1_wo")
    A(f"s_cmp_eq_u32 s{S_WCB}, 255")
    A("s_cbranch_scc1 L_s1_nowo")
    srd(A, SRD_T, S_WO, 4096 * 1152)
    dma_voff(A, 18, 19, 1152, vL, 20, 21)
    A(f"s_mul_i32 s67, s{S_HKV}, {256*1152}")
    A(f"s_lshl_b32 s68, s{S_WCB}, 7")
    A("s_add_u32 s67, s67, s68")
    A(f"s_mov_b32 s68, {T_WO}")
    A("s_mov_b32 s69, 16")
    A.lab("L_wodma")
    for par in range(2):
        A("s_mov_b32 m0, s68")
        A("s_add_u32 s68, s68, 1024")
        A(f"buffer_load_dwordx4 v{18+par}, s[{SRD_T}:{SRD_T+3}], s67 offen {WFL} lds")
        A(f"s_add_u32 s67, s67, 9216")
    A(f"s_waitcnt vmcnt({DL})")
    A("s_sub_u32 s69, s69, 1")
    A("s_cmp_lg_u32 s69, 0")
    A("s_cbranch_scc1 L_wodma")
    A.lab("L_s1_nowo")
    A("s_waitcnt vmcnt(0)")
    stamp(A, P, 4)
    A(f"s_cmp_eq_u32 s{S_FT}, 0")
    A("s_cbranch_scc1 L_s1_ffn_done")
    wait_lds(A, "L_xnwait", QRDY, 1, 4)
    tr_addr(A, 100, vL, 24, 25)
    A("v_and_b32 v104, 1, v0")
    A(f"v_mul_u32_u24 v104, {XROW}, v104")
    A("v_lshrrev_b32 v24, 4, v0")
    A("v_lshl_add_u32 v104, v24, 4, v104")
    A(f"s_cmp_eq_u32 s{S_FT}, 3")
    A("s_cbranch_scc0 L_ffn_gemv")
    if P.get("x_skipdown"): A("s_branch L_s1_ffn_done")
    wait_progress(A, "L_dnwait", P.get("t_dn", 52))
    A(f"s_mul_i32 s64, s72, {9*2048}")
    A(f"s_add_u32 s64, s64, {WS_GU}")
    for k in range(1, 5): A(f"s_add_u32 s{64+k}, s64, {4096*k}")
    poll_begin(A, "L_gupoll")
    for n in range(18):
        A(f"buffer_load_dwordx4 v[{24+4*n}:{27+4*n}], v1, s[{SRD_WS}:{SRD_WS+3}], s{64+(n>>2)} offen offset:{1024*(n&3)} sc1")
    A("s_waitcnt vmcnt(0)")
    check_tags(A, [25 + 4 * n + 2 * k for n in range(18) for k in range(2)], 96)
    poll_end(A, "L_gupoll", 32)
    A("v_lshlrev_b32 v3, 1, v0")
    A(f"v_mov_b32 v98, {hex(f2u(0.044715))}")
    for i9 in range(9):
        for bb in range(2):
            gt, up = 24 + 8 * i9 + 2 * bb, 28 + 8 * i9 + 2 * bb
            A(f"v_mul_f32 v96, v{gt}, v{gt}")
            A(f"v_mul_f32 v96, v96, v{gt}")
            A(f"v_fma_f32 v96, v96, v98, v{gt}")
            A(f"v_mul_f32 v96, {hex(f2u(-2.0 * math.sqrt(2.0 / math.pi) * LOG2E))}, v96")
            A("v_exp_f32 v96, v96")
            A("v_add_f32 v96, 1.0, v96")
            A("v_rcp_f32 v96, v96")
            A(f"v_mul_f32 v96, v{gt}, v96")
            round_bf16(A, 96, 96)
            A(f"v_mul_f32 v96, v96, v{up}")
            A(f"v_cvt_pk_bf16_f32 v97, v96, v96")
            A(f"ds_write_b16 v3, v97 offset:{XH + XROW*bb + 128*i9}")
    A(f"v_add_u32 v104, {XH - X_LN}, v104")
    A("s_waitcnt lgkmcnt(0)")
    A.lab("L_ffn_gemv")
    for ct in range(4):
        A(f"v_add_u32 v{106+ct}, {T_FFN}, v{100+ct}")
        A(f"v_add_u32 v{170+ct}, {T_FFN + 9*4096}, v{100+ct}")
    gemv(A, 18, [0, 1, 2, 3],
         lambda n, d: f"ds_read_b128 {vr(d,4)}, v104 offset:{X_LN + 64*n}",
         lambda n, ct, u, d: f"ds_read_b64_tr_b16 {vr(d,2)}, v{(106 if n < 9 else 170)+ct} offset:{4096*(n % 9) + 512*u}",
         ACC, lambda k: 128 + 20 * k, lambda k, ct: 132 + 20 * k + 4 * ct, 2)
    publish_pair(None)
    A(f"v_mov_b32 v9, s{S_TAG}")
    A(f"v_mov_b32 v11, s{S_TAG}")
    A(f"s_cmp_eq_u32 s{S_FT}, 3")
    A("s_cbranch_scc1 L_dn_pub")
    round_bf16(A, 8, 8); round_bf16(A, 10, 10)
    A(f"s_lshl_b32 s64, s{S_FCB}, 1")
    A(f"s_add_u32 s64, s64, s{S_FT}")
    A("s_sub_u32 s64, s64, 1")
    A("s_lshl_b32 s64, s64, 10")
    A(f"s_add_u32 s64, s64, {WS_GU}")
    A("s_branch L_ffn_pub")
    A.lab("L_dn_pub")
    A("s_lshl_b32 s64, s73, 3")
    A("s_add_u32 s64, s64, s72")
    A("s_lshl_b32 s64, s64, 10")
    A(f"s_add_u32 s64, s64, {WS_YP}")
    A.lab("L_ffn_pub")
    A(f"buffer_store_dwordx4 v[8:11], v1, s[{SRD_WS}:{SRD_WS+3}], s64 offen sc1")
    A.lab("L_s1_ffn_done")
    stamp(A, P, 5)

    A.lab("L_side_tail")
    A("s_barrier")
    stamp(A, P, 6)
    A(f"s_cmp_eq_u32 s{S_WCB}, 255")
    A("s_cbranch_scc1 L_final")
    A("v_lshlrev_b32 v1, 4, v0")
    A("v_bfe_u32 v2, v0, 2, 1")
    A("v_lshlrev_b32 v2, 3, v2")
    A(f"s_lshl_b32 s64, s{S_HKV}, 4")
    A(f"s_lshl_b32 s65, s{S_WAVE}, 3")
    A("s_add_u32 s64, s64, s65")
    A("s_lshl_b32 s66, s64, 7")
    A(f"s_add_u32 s66, s66, {WS_H1ML}")
    A("s_lshl_b32 s64, s64, 10")
    A(f"s_add_u32 s64, s64, {WS_H1O}")
    A("s_add_u32 s65, s64, 4096")
    poll_begin(A, "L_h1poll")
    for p in range(8):
        A(f"buffer_load_dwordx4 v[{24+4*p}:{27+4*p}], v1, s[{SRD_WS}:{SRD_WS+3}], s{64+(p>>2)} offen offset:{1024*(p&3)} sc1")
        A(f"buffer_load_dwordx2 v[{56+2*p}:{57+2*p}], v2, s[{SRD_WS}:{SRD_WS+3}], s66 offen offset:{128*p} sc1")
    A("s_waitcnt vmcnt(0)")
    A("v_max3_u32 v80, v24, v25, v26")
    for k in range(27, 72, 2):
        A(f"v_max3_u32 v80, v80, v{k}, v{min(k+1, 71)}")
    A("v_cmp_eq_u32 vcc, -1, v80")
    poll_end(A, "L_h1poll", 1)
    stamp(A, P, 7)
    MC = lambda p: 56 + 2 * p
    LL = lambda p: 57 + 2 * p
    A(f"v_max3_f32 v80, v{MC(0)}, v{MC(1)}, v{MC(2)}")
    A(f"v_max3_f32 v80, v80, v{MC(3)}, v{MC(4)}")
    A(f"v_max3_f32 v80, v80, v{MC(5)}, v{MC(6)}")
    A(f"v_max_f32 v80, v80, v{MC(7)}")
    for p in range(8): A(f"v_sub_f32 v{MC(p)}, v{MC(p)}, v80")
    for p in range(8): A(f"v_exp_f32 v{MC(p)}, v{MC(p)}")
    A(f"v_mul_f32 v81, v{MC(0)}, v{LL(0)}")
    for p in range(1, 8): A(f"v_fmac_f32 v81, v{MC(p)}, v{LL(p)}")
    A("v_rcp_f32 v81, v81")
    for rr in range(4):
        A(f"v_mul_f32 v{84+rr}, v{MC(0)}, v{24+rr}")
        for p in range(1, 8): A(f"v_fmac_f32 v{84+rr}, v{MC(p)}, v{24+4*p+rr}")
    A("v_bfe_u32 v82, v0, 2, 1")
    A("v_lshlrev_b32 v82, 8, v82")
    A("v_lshrrev_b32 v83, 4, v0")
    A("v_lshl_add_u32 v82, v83, 6, v82")
    A("v_and_b32 v83, 3, v0")
    A("v_lshl_add_u32 v82, v83, 1, v82")
    A("v_bfe_u32 v83, v0, 3, 1")
    A("v_lshl_add_u32 v82, v83, 3, v82")
    A(f"s_mul_i32 s64, s{S_WAVE}, {X2ROW}")
    A("v_add_u32 v82, s64, v82")
    for rr in range(4):
        A(f"v_mul_f32 v{84+rr}, v{84+rr}, v81")
        A(f"v_cvt_pk_bf16_f32 v{88+rr}, v{84+rr}, v{84+rr}")
        A(f"ds_write_b16 v82, v{88+rr} offset:{X2 + 16*rr}")
    A("s_waitcnt lgkmcnt(0)")
    A.lab("L_wogemv")
    A("s_barrier")
    stamp(A, P, 8)
    tr_addr(A, 100, vL, 24, 25)
    A(f"s_lshl_b32 s64, s{S_WAVE}, 5")
    A("v_xor_b32 v100, s64, v100")
    A("v_and_b32 v104, 1, v0")
    A(f"v_mul_u32_u24 v104, {X2ROW}, v104")
    A("v_lshrrev_b32 v24, 4, v0")
    A("v_lshl_add_u32 v104, v24, 4, v104")
    gemv(A, 8, [0],
         lambda n, d: f"ds_read_b128 {vr(d,4)}, v104 offset:{X2 + 64*n}",
         lambda n, ct, u, d: f"ds_read_b64_tr_b16 {vr(d,2)}, v100 offset:{T_WO + 4096*n + 512*u}",
         lambda ct: 110, lambda k: 128 + 8 * k, lambda k, ct: 132 + 8 * k, 8)
    A("v_mov_b32 v8, v110")
    A(f"v_mov_b32 v9, s{S_TAG}")
    A("v_mov_b32 v10, v111")
    A(f"v_mov_b32 v11, s{S_TAG}")
    A("v_lshlrev_b32 v2, 4, v0")
    A(f"s_lshl_b32 s64, s{S_WCB}, 14")
    A(f"s_lshl_b32 s65, s{S_HKV}, 10")
    A("s_add_u32 s64, s64, s65")
    A(f"s_lshl_b32 s65, s{S_WAVE}, 8")
    A("s_add_u32 s64, s64, s65")
    A(f"s_add_u32 s64, s64, {WS_SP}")
    A("s_mov_b64 exec, 0xffff")
    A(f"buffer_store_dwordx4 v[8:11], v2, s[{SRD_WS}:{SRD_WS+3}], s64 offen sc1")
    A("s_mov_b64 exec, -1")
    stamp(A, P, 9)
    A.lab("L_final")
    A(f"s_cmp_lg_u32 s{S_WAVE}, 0")
    A("s_cbranch_scc1 L_end")
    A(f"s_cmp_eq_u32 s{S_FIN}, 255")
    A("s_cbranch_scc1 L_end")
    A("v_lshlrev_b32 v1, 4, v0")
    A(f"s_lshl_b32 s64, s{S_FIN}, 14")
    A(f"s_add_u32 s64, s64, {WS_SP}")
    for k in range(1, 4): A(f"s_add_u32 s{64+k}, s64, {4096*k}")
    poll_begin(A, "L_h2poll")
    for n in range(16):
        A(f"buffer_load_dwordx4 v[{24+4*n}:{27+4*n}], v1, s[{SRD_WS}:{SRD_WS+3}], s{64+(n>>2)} offen offset:{1024*(n&3)} sc1")
    A("s_waitcnt vmcnt(0)")
    A("v_max3_u32 v96, v25, v27, v29")
    A("v_min3_u32 v97, v25, v27, v29")
    tags = [25 + 4 * n + 2 * k for n in range(16) for k in range(2)][3:]
    for k in range(0, len(tags), 2):
        a = tags[k]; b_ = tags[min(k + 1, len(tags) - 1)]
        A(f"v_max3_u32 v96, v96, v{a}, v{b_}")
        A(f"v_min3_u32 v97, v97, v{a}, v{b_}")
    A("v_xor_b32 v96, v96, v97")
    A(f"v_xor_b32 v97, s{S_TAG}, v97")
    A("v_or_b32 v96, v96, v97")
    A("v_cmp_ne_u32 vcc, 0, v96")
    poll_end(A, "L_h2poll", 1)
    for bb in range(2):
        a0, a1 = 96 + 2 * bb, 97 + 2 * bb
        A(f"v_add_f32 v{a0}, v{24+2*bb}, v{28+2*bb}")
        A(f"v_add_f32 v{a1}, v{32+2*bb}, v{36+2*bb}")
        for n in range(4, 16, 2):
            A(f"v_add_f32 v{a0}, v{a0}, v{24+4*n+2*bb}")
            A(f"v_add_f32 v{a1}, v{a1}, v{28+4*n+2*bb}")
        A(f"v_add_f32 v{a0}, v{a0}, v{a1}")
    A("v_cvt_pk_bf16_f32 v96, v96, v98")
    A("v_and_b32 v97, 0xffff0000, v96")
    A("v_lshlrev_b32 v96, 16, v96")
    A("v_mul_f32 v96, v96, v200")
    A("v_mul_f32 v97, v97, v201")
    A("v_cvt_pk_bf16_f32 v96, v96, v97")
    A("v_and_b32 v97, 0xffff0000, v96")
    A("v_lshlrev_b32 v96, 16, v96")
    A("v_lshlrev_b32 v98, 16, v202")
    A("v_lshlrev_b32 v99, 16, v203")
    A("v_add_f32 v96, v96, v98")
    A("v_add_f32 v97, v97, v99")
    A("v_cvt_pk_bf16_f32 v96, v96, v97")
    A("v_lshrrev_b32 v97, 16, v96")
    srd(A, SRD_U, S_OUT, 2304)
    A("v_lshlrev_b32 v204, 1, v0")
    A(f"s_lshl_b32 s70, s{S_FIN}, 7")
    A(f"buffer_store_short v96, v204, s[{SRD_U}:{SRD_U+3}], s70 offen")
    A(f"buffer_store_short v97, v204, s[{SRD_U}:{SRD_U+3}], s70 offen offset:1152")
    stamp(A, P, 10)
    if P.get("dbgdur"):
        A("s_memrealtime s[92:93]")
        A("s_waitcnt lgkmcnt(0)")
        A("s_sub_u32 s92, s92, s98")
        srd(A, SRD_U, S_DBG, 256)
        A("v_mov_b32 v96, s92")
        A(f"s_lshl_b32 s64, s{S_FIN}, 2")
        A("v_mov_b32 v97, 0")
        A("s_mov_b64 exec, 1")
        A(f"buffer_store_dword v96, v97, s[{SRD_U}:{SRD_U+3}], s64 offen")
        A("s_mov_b64 exec, -1")
    A(f"s_cmp_lg_u32 s{S_FIN}, 0")
    A("s_cbranch_scc1 L_end")
    A(f"v_mov_b32 v80, s{S_EPN}")
    A("v_mov_b32 v81, 0")
    A("s_mov_b64 exec, 1")
    A(f"buffer_store_dword v80, v81, s[{SRD_WS}:{SRD_WS+3}], 0 offen offset:{WS_EPOCH}")
    A("s_mov_b64 exec, -1")
    A("s_branch L_end")

    A.lab("L_att")
    DK = P.get("DK", 4)
    assert DK % 2 == 0 and DK <= 8
    A(f"s_sub_u32 s66, s{S_WAVE}, 2")
    A(f"s_lshl_b32 s64, s{S_B}, 4")
    A(f"s_add_u32 s64, s64, s{S_HKV}")
    A("s_lshr_b32 s65, s64, 9")
    A("s_lshl_b32 s64, s64, 23")
    A(f"s_add_u32 s{SRD_K}, s{S_K}, s64")
    A(f"s_addc_u32 s{SRD_K+1}, s{S_K+1}, s65")
    A(f"s_mov_b32 s{SRD_K+2}, 0x800000")
    A(f"s_mov_b32 s{SRD_K+3}, 0x20000")
    A(f"s_add_u32 s{SRD_V}, s{S_V}, s64")
    A(f"s_addc_u32 s{SRD_V+1}, s{S_V+1}, s65")
    A(f"s_mov_b32 s{SRD_V+2}, 0x800000")
    A(f"s_mov_b32 s{SRD_V+3}, 0x20000")
    S_KO, S_VO, S_RK, S_CLM, S_IT, S_POOL = 70, 71, 75, 76, 77, 78
    S_RV, S_PK, S_PVS, S_PV, S_NXT = 86, 87, 88, 89, 74
    S_PO = [67, 68, 69, 43]
    POOL = P.get("table", {}).get("pool", 128)
    A(f"s_add_u32 s{S_KO}, s{S_KV0}, s66")
    A(f"s_lshl_b32 s{S_KO}, s{S_KO}, 13")
    A(f"s_mov_b32 s{S_VO}, s{S_KO}")
    A(f"s_add_u32 s{S_PK}, s{S_NSB}, 1")
    A(f"s_sub_u32 s{S_PK}, s{S_PK}, s66")
    A(f"s_lshr_b32 s{S_PK}, s{S_PK}, 1")
    A(f"s_mov_b32 s{S_PVS}, s{S_PK}")
    A(f"s_mov_b32 s{S_RV}, s{S_PK}")
    A(f"s_sub_u32 s{S_RK}, s{S_PK}, {DK}")
    A(f"s_mov_b32 s{S_PV}, 0")
    A(f"s_mov_b32 s{S_IT}, 0")
    A("s_lshr_b32 s64, s2, 3")
    A("s_lshl_b32 s64, s64, 8")
    A(f"s_add_u32 s64, s64, {WS_CNT}")
    A(f"s_add_u32 s{S_POOL}, s{S_WS}, s64")
    A(f"s_addc_u32 s{S_POOL+1}, s{S_WS+1}, 0")
    VK0, VK1, VV0, VV1 = 2, 3, 4, 5
    A("v_bfe_u32 v6, v0, 2, 2")
    A("v_lshlrev_b32 v6, 8, v6")
    A("v_lshrrev_b32 v7, 4, v0")
    A("v_lshl_add_u32 v6, v7, 6, v6")
    A("v_and_b32 v7, 3, v0")
    A(f"v_lshl_add_u32 v{VK0}, v7, 4, v6")
    A(f"v_add_u32 v{VK1}, 4096, v{VK0}")
    A(f"v_lshlrev_b32 v{VV0}, 4, v0")
    A(f"v_add_u32 v{VV1}, 4096, v{VV0}")
    UA = lambda s, n: 32 * s + 4 * n
    def issue(kind, s, soff):
        vb, sd, fl = (VK0, SRD_K, FLK) if kind == "K" else (VV0, SRD_V, FLV)
        for n in range(8):
            A(f"buffer_load_dwordx4 {ar(UA(s,n),4)}, v{vb+(n>>2)}, s[{sd}:{sd+3}], s{soff} offen offset:{1024*(n&3)} {fl}")
    lead = P.get("lead", 2)
    early = P.get("early", 0)
    for s in range(DK):
        if s == early:
            A("s_barrier")
            stamp(A, P, 0)
        if s >= lead: A(f"s_waitcnt vmcnt({8*(lead-1)})")
        issue("K", s, S_KO)
        A(f"s_add_u32 s{S_KO}, s{S_KO}, 16384")
    if early >= DK:
        A("s_barrier")
    stamp(A, P, 1)
    VQ = 8
    VSW, VSR = 12, 13
    VMX = 14
    VSC = 16
    VM = 24
    VACC = 28
    VMC, VL_ = 32, 33
    VS = 36
    VP = 44
    VB = 52
    VT = 64
    VD = 68
    VPK = 100
    A("v_and_b32 v6, 3, v0")
    A("v_bfe_u32 v7, v0, 3, 1")
    A("v_lshl_add_u32 v6, v7, 2, v6")
    A("v_and_b32 v7, 1, v6")
    A("v_mov_b32 v64, 0xffff")
    A("v_lshlrev_b32 v7, 4, v7")
    A("v_lshlrev_b32 v64, v7, v64")
    A("v_lshrrev_b32 v6, 1, v6")
    for q in range(4):
        A(f"v_cmp_eq_u32 vcc, {q}, v6")
        A(f"v_cndmask_b32 v{VM+q}, 0, v64, vcc")
    for k in range(4): A(f"v_mov_b32 v{VACC+k}, 0")
    A(f"v_mov_b32 v{VMX}, 0xff800000")
    A(f"v_mov_b32 v{VL_}, 0")
    A("v_bfe_u32 v6, v0, 2, 1")
    A("v_lshrrev_b32 v7, 4, v0")
    A("v_lshl_add_u32 v7, v6, 2, v7")
    A("v_lshlrev_b32 v7, 4, v7")
    A("s_lshl_b32 s64, s66, 13")
    A(f"s_add_u32 s64, s64, {SCORES}")
    A(f"v_add_u32 v{VSW}, s64, v7")
    A(f"v_mov_b32 v{VSR}, v{VSW}")
    A("v_lshlrev_b32 v6, 8, v6")
    A("v_lshrrev_b32 v7, 4, v0")
    A("v_lshl_add_u32 v6, v7, 6, v6")
    A("v_and_b32 v7, 3, v0")
    A("v_lshl_add_u32 v6, v7, 4, v6")
    A(f"s_mov_b32 s72, {hex(f2u(SCALE))}")
    A(f"s_mov_b32 s73, {hex(f2u(LOG2E))}")
    A("v_mov_b32 v34, 0")
    A("s_waitcnt lgkmcnt(0)")
    A(f"s_add_u32 s{S_EPN}, s{S_EPO}, 1")
    A(f"s_mul_i32 s{S_TAG}, s{S_EPN}, 0x9E3779B1")
    A(f"s_xor_b32 s{S_TAG}, s{S_TAG}, 0x5bd1e995")
    wait_lds(A, "L_qwait", QRDY, 1, 1, tv=66)
    A(f"ds_read_b128 v[{VQ}:{VQ+3}], v6 offset:{Q_LDS}")
    A("s_waitcnt lgkmcnt(0)")
    stamp(A, P, 2)
    A(f"s_mov_b32 s{S_CLM}, 1")
    A(f"s_atomic_add s{S_CLM}, s[{S_POOL}:{S_POOL+1}], 0 glc")

    def progress():
        A(f"s_add_u32 s{S_IT}, s{S_IT}, 1")
        A(f"v_mov_b32 v35, s{S_IT}")
        A(f"ds_write_b32 v34, v35 offset:{PROG}")
        if P.get("stamps"):
            for idx, itv in ((5, 16), (6, 48), (7, 80), (10, 104)):
                l = A.uniq("L_st")
                A(f"s_cmp_lg_u32 s{S_IT}, {itv}")
                A(f"s_cbranch_scc1 {l}")
                stamp(A, P, idx)
                A.lab(l)
    def qk_mfma(s):
        for n in range(8):
            A(f"v_mfma_f32_16x16x32_bf16 {vr(VD+4*n,4)}, {ar(UA(s,n),4)}, {vr(VQ,4)}, 0")
    def qk_reduce():
        for c in range(4):
            for n in range(8):
                pat = f"quad_perm:[{c},{c},{c},{c}] row_mask:0xf bank_mask:0xf"
                if c == 0: A(f"v_mov_b32_dpp v{VS+n}, v{VD+4*n} {pat}")
                else: A(f"v_add_f32_dpp v{VS+n}, v{VD+4*n+c}, v{VS+n} {pat}")
        for k in range(0, 8, 2):
            A(f"v_cvt_pk_bf16_f32 v{VT+(k>>1)}, v{VS+k}, v{VS+k+1}")
        for k in range(0, 8, 2):
            A(f"v_lshlrev_b32 v{VS+k}, 16, v{VT+(k>>1)}")
            A(f"v_and_b32 v{VS+k+1}, 0xffff0000, v{VT+(k>>1)}")
        for k in range(8): A(f"v_mul_f32 v{VS+k}, s72, v{VS+k}")
        for k in range(0, 8, 2):
            A(f"v_cvt_pk_bf16_f32 v{VPK+(k>>1)}, v{VS+k}, v{VS+k+1}")
    def unpack(src):
        for k in range(4):
            A(f"v_lshlrev_b32 v{VS+2*k}, 16, v{src+k}")
            A(f"v_and_b32 v{VS+2*k+1}, 0xffff0000, v{src+k}")
    def pv(s):
        for k in range(8): A(f"v_fma_f32 v{VP+k}, v{VS+k}, s73, -v{VMC}")
        for k in range(8): A(f"v_exp_f32 v{VP+k}, v{VP+k}")
        def prep(k):
            bb = VB + 4 * (k % 3)
            A(f"v_cvt_pk_bf16_f32 v{VT+2}, v{VP+k}, v{VP+k}")
            for q in range(4): A(f"v_and_b32 v{bb+q}, v{VT+2}, v{VM+q}")
        prep(0); prep(1)
        A(f"v_add_f32 v{VT}, v{VP}, v{VP+1}")
        A(f"v_add_f32 v{VT+1}, v{VP+2}, v{VP+3}")
        A(f"s_waitcnt vmcnt({8*(DK-1)})")
        for k in range(8):
            bb = VB + 4 * (k % 3)
            A(f"v_mfma_f32_16x16x32_bf16 {vr(VACC,4)}, {ar(UA(s,k),4)}, {vr(bb,4)}, {vr(VACC,4)}")
            if k + 2 < 8: prep(k + 2)
            if k == 1: A(f"v_add_f32 v{VT}, v{VT}, v{VP+4}"); A(f"v_add_f32 v{VT+1}, v{VT+1}, v{VP+5}")
            if k == 2: A(f"v_add_f32 v{VT}, v{VT}, v{VP+6}"); A(f"v_add_f32 v{VT+1}, v{VT+1}, v{VP+7}")
            if k == 3: A(f"v_add_f32 v{VT}, v{VT}, v{VT+1}"); A(f"v_add_f32 v{VL_}, v{VL_}, v{VT}")
    def pool_refill(s):
        po = S_PO[s >> 1]
        if s & 1:
            issue("V", s, po)
            return
        ldead, lgo = A.uniq("L_dead"), A.uniq("L_go")
        A("s_waitcnt lgkmcnt(0)")
        A(f"s_cmp_lt_u32 s{S_CLM}, {POOL}")
        A(f"s_cbranch_scc0 {ldead}")
        A(f"s_add_u32 s{po}, s{S_CLM}, {1024 - POOL}")
        A(f"s_lshl_b32 s{po}, s{po}, 13")
        A(f"s_add_u32 s{S_PV}, s{S_PV}, 1")
        A(f"s_mov_b32 s{S_CLM}, 1")
        A(f"s_atomic_add s{S_CLM}, s[{S_POOL}:{S_POOL+1}], 0 glc")
        A(f"s_branch {lgo}")
        A.lab(ldead)
        A(f"s_mov_b32 s{SRD_K+2}, 0")
        A(f"s_mov_b32 s{SRD_V+2}, 0")
        A(f"s_mov_b32 s{po}, 0")
        A.lab(lgo)
        issue("K", s, po)

    A.lab("L_kloop")
    for s in range(DK):
        A.lab(f"L_k{s}")
        A(f"s_waitcnt vmcnt({8*(DK-1)})")
        qk_mfma(s)
        lv, lr = A.uniq("L_kv"), A.uniq("L_kr")
        A(f"s_cmp_eq_u32 s{S_RK}, 0")
        A(f"s_cbranch_scc1 {lv}")
        issue("K", s, S_KO)
        A(f"s_add_u32 s{S_KO}, s{S_KO}, 16384")
        A(f"s_sub_u32 s{S_RK}, s{S_RK}, 1")
        A(f"s_branch {lr}")
        A.lab(lv)
        issue("V", s, S_VO)
        A(f"s_add_u32 s{S_VO}, s{S_VO}, 16384")
        A(f"s_sub_u32 s{S_RV}, s{S_RV}, 1")
        A.lab(lr)
        qk_reduce()
        for k in range(0, 8, 2): A(f"v_max3_f32 v{VMX}, v{VMX}, v{VS+k}, v{VS+k+1}")
        A("s_mov_b32 exec_lo, 0x00110011")
        A("s_mov_b32 exec_hi, 0x00110011")
        A(f"ds_write_b128 v{VSW}, v[{VPK}:{VPK+3}]")
        A("s_mov_b64 exec, -1")
        A(f"v_add_u32 v{VSW}, 128, v{VSW}")
        progress()
        A(f"s_sub_u32 s{S_PK}, s{S_PK}, 1")
        A(f"s_cmp_eq_u32 s{S_PK}, 0")
        if s < DK - 1:
            A(f"s_cselect_b32 s{S_NXT}, {s+1}, s{S_NXT}")
            A("s_cbranch_scc1 L_kdone")
        else:
            A(f"s_cselect_b32 s{S_NXT}, 0, s{S_NXT}")
            A("s_cbranch_scc0 L_kloop")
    A.lab("L_kdone")
    round_bf16(A, VMC, VMX)
    A(f"v_mul_f32 v{VMC}, s73, v{VMC}")
    swap16(A, VMC, VT, "v_max_f32")
    swap32(A, VMC, VT, "v_max_f32")
    A("s_waitcnt lgkmcnt(0)")
    stamp(A, P, 12)
    for s in range(DK):
        l = A.uniq("L_kn")
        A(f"s_cmp_lg_u32 s{S_NXT}, {s}")
        A(f"s_cbranch_scc1 {l}")
        A(f"ds_read_b128 v[{VSC+4*(s&1)}:{VSC+4*(s&1)+3}], v{VSR}")
        A(f"s_branch L_v{s}")
        A.lab(l)
    A.lab("L_vloop")
    for s in range(DK):
        A.lab(f"L_v{s}")
        A("s_waitcnt lgkmcnt(0)")
        nb = (s + 1) & 1
        A(f"ds_read_b128 v[{VSC+4*nb}:{VSC+4*nb+3}], v{VSR} offset:128")
        A(f"v_add_u32 v{VSR}, 128, v{VSR}")
        unpack(VSC + 4 * (s & 1))
        pv(s)
        lp, lr = A.uniq("L_vp"), A.uniq("L_vr")
        A(f"s_cmp_eq_u32 s{S_RV}, 0")
        A(f"s_cbranch_scc1 {lp}")
        issue("V", s, S_VO)
        A(f"s_add_u32 s{S_VO}, s{S_VO}, 16384")
        A(f"s_sub_u32 s{S_RV}, s{S_RV}, 1")
        A(f"s_branch {lr}")
        A.lab(lp)
        pool_refill(s)
        A.lab(lr)
        progress()
        A(f"s_sub_u32 s{S_PVS}, s{S_PVS}, 1")
        if s & 1:
            A(f"s_cmp_eq_u32 s{S_PVS}, 0")
            A(f"s_cbranch_scc1 L_p{((s + 1) % DK) >> 1}")
        if s == DK - 1: A("s_branch L_vloop")
    A.lab("L_ploop")
    for a in range(DK // 2):
        sk, sv = 2 * a, 2 * a + 1
        A.lab(f"L_p{a}")
        A(f"s_cmp_eq_u32 s{S_PV}, 0")
        A("s_cbranch_scc1 L_att_done")
        A(f"s_sub_u32 s{S_PV}, s{S_PV}, 1")
        A(f"s_waitcnt vmcnt({8*(DK-1)})")
        qk_mfma(sk)
        pool_refill(sk)
        qk_reduce()
        unpack(VPK)
        A(f"v_max3_f32 v{VT}, v{VS}, v{VS+1}, v{VS+2}")
        A(f"v_max3_f32 v{VT}, v{VT}, v{VS+3}, v{VS+4}")
        A(f"v_max3_f32 v{VT}, v{VT}, v{VS+5}, v{VS+6}")
        A(f"v_max_f32 v{VT}, v{VT}, v{VS+7}")
        A(f"v_mul_f32 v{VT}, s73, v{VT}")
        A(f"v_cmp_gt_f32 vcc, v{VT}, v{VMC}")
        skip = A.uniq("L_nomax")
        A(f"s_cbranch_vccz {skip}")
        swap16(A, VT, VT + 1, "v_max_f32")
        swap32(A, VT, VT + 1, "v_max_f32")
        A(f"v_max_f32 v{VT}, v{VT}, v{VMC}")
        A(f"v_sub_f32 v{VT+1}, v{VMC}, v{VT}")
        A(f"v_exp_f32 v{VT+1}, v{VT+1}")
        A(f"v_mov_b32 v{VMC}, v{VT}")
        for k in range(4): A(f"v_mul_f32 v{VACC+k}, v{VACC+k}, v{VT+1}")
        A(f"v_mul_f32 v{VL_}, v{VL_}, v{VT+1}")
        A.lab(skip)
        pv(sv)
        pool_refill(sv)
        progress()
        progress()
        if a == DK // 2 - 1: A("s_branch L_ploop")
    A.lab("L_att_done")
    A("v_mov_b32 v35, 0xffff")
    A(f"ds_write_b32 v34, v35 offset:{PROG}")
    stamp(A, P, 3)
    if P.get("stamps"): A(f"v_writelane_b32 v253, s{S_IT}, 11")
    swap16(A, VL_, VT, "v_add_f32")
    swap32(A, VL_, VT, "v_add_f32")
    A(f"v_lshlrev_b32 v1, 4, v0")
    A(f"v_lshlrev_b32 v6, 3, v0")
    A(f"s_cmp_eq_u32 s{S_WAVE}, 2")
    A("s_cbranch_scc1 L_att0")
    A(f"ds_write_b128 v1, v[{VACC}:{VACC+3}] offset:{MERGE}")
    A(f"ds_write_b64 v6, v[{VMC}:{VMC+1}] offset:{MERGE + 1024}")
    A("s_waitcnt lgkmcnt(0)")
    A("s_barrier")
    A("s_branch L_att_join")
    A.lab("L_att0")
    A("s_barrier")
    A(f"ds_read_b128 v[68:71], v1 offset:{MERGE}")
    A(f"ds_read_b64 v[72:73], v6 offset:{MERGE + 1024}")
    A("s_waitcnt lgkmcnt(0)")
    A(f"v_max_f32 v74, v{VMC}, v72")
    A(f"v_sub_f32 v75, v{VMC}, v74")
    A("v_sub_f32 v76, v72, v74")
    A("v_exp_f32 v75, v75")
    A("v_exp_f32 v76, v76")
    for k in range(4):
        A(f"v_mul_f32 v{VACC+k}, v{VACC+k}, v75")
        A(f"v_fmac_f32 v{VACC+k}, v{68+k}, v76")
    A(f"v_mul_f32 v{VL_}, v{VL_}, v75")
    A(f"v_fmac_f32 v{VL_}, v73, v76")
    A(f"s_lshl_b32 s64, s{S_REC}, 10")
    A(f"s_add_u32 s64, s64, {WS_H1O}")
    A(f"buffer_store_dwordx4 v[{VACC}:{VACC+3}], v1, s[{SRD_WS}:{SRD_WS+3}], s64 offen sc1")
    A("v_readlane_b32 s66, v74, 0")
    A(f"v_readlane_b32 s67, v{VL_}, 0")
    A("v_readlane_b32 s68, v74, 4")
    A(f"v_readlane_b32 s69, v{VL_}, 4")
    A(f"s_lshl_b32 s65, s{S_REC}, 7")
    A(f"s_add_u32 s65, s65, {WS_H1ML}")
    for k in range(4): A(f"v_mov_b32 v{68+k}, s{66+k}")
    A("s_mov_b64 exec, 0xff")
    A(f"buffer_store_dwordx4 v[68:71], v1, s[{SRD_WS}:{SRD_WS+3}], s65 offen sc1")
    A("s_mov_b64 exec, -1")
    stamp(A, P, 4)
    A.lab("L_att_join")
    A(f"s_cmp_lg_u32 s{S_WCB}, 255")
    A("s_cbranch_scc1 L_wogemv")
    A.lab("L_end")
    stamp_flush(A, P)
    A.lab("L_exit")
    A("s_endpgm")
    body = fix_hazards(A.L[body_start:], verbose=P.get("verbose", False))
    out = A.L[:body_start] + body
    out.append(".p2align 6")
    out.append(".type L_table,@object")
    out.append("L_table:")
    for row in tab: out.append("  .long " + ", ".join(str(v) for v in row))
    out.append(".size L_table, 8192")
    out += ['.section .rodata,"a"', ".p2align 6", f".amdhsa_kernel {NAME}",
            "  .amdhsa_next_free_vgpr 512", "  .amdhsa_next_free_sgpr 102", "  .amdhsa_accum_offset 256",
            "  .amdhsa_group_segment_fixed_size 0", "  .amdhsa_kernarg_size 96", "  .amdhsa_user_sgpr_count 2",
            "  .amdhsa_user_sgpr_kernarg_segment_ptr 1", "  .amdhsa_system_sgpr_workgroup_id_x 1",
            "  .amdhsa_float_denorm_mode_32 3",
            ".end_amdhsa_kernel"]
    return "\n".join(out) + "\n"

if __name__ == "__main__":
    P = eval(sys.argv[2]) if len(sys.argv) > 2 else {}
    P.setdefault("verbose", True)
    s = gen(P)
    open(sys.argv[1] if len(sys.argv) > 1 else "k.s", "w").write(s)
```

```python
import struct, sys, math
from asmlib import Asm, fix_hazards, vr, ar, sr

NAME = "recurrent_scan__gqa_block_cached__geglu_ffn__decode_kernel"

def f2u(x): return struct.unpack("<I", struct.pack("<f", x))[0]

WS_EPOCH = 0
WS_QP   = 0x001000
WS_H1O  = 0x050000
WS_H1ML = 0x090000
WS_GU   = 0x0A0000
WS_YP   = 0x100000
WS_SP   = 0x1B0000
WS_CNT  = 0x1E0000
WS_DBG  = 0x200000
WS_SIZE = 0x400000

X_LN, XROW = 0, 1184
Q_LDS = 2432
X2, X2ROW = 3072, 576
X3, X3ROW = 4352, 192
MERGE = 4864
PROG = 2368
QRDY = 2372
QPUB = 2376
T_WQ = 6400
XH = T_WQ
T_WO = T_WQ + 20480
T_FFN = T_WO + 32768
SCORES = T_FFN + 73728
LDS_BYTES = SCORES + 16384

LOG2E = 1.4426950408889634
SCALE = 128 ** -0.5
POLL_LIMIT = 400000

S_WAVE = 3
S_X, S_K, S_V, S_WQ, S_WO, S_BX, S_WG, S_WU = 4, 6, 8, 10, 12, 14, 16, 18
S_WD, S_OUT, S_DBG, S_WS = 20, 22, 24, 26
S_KV0, S_NSB, S_FT, S_FCB, S_WCB, S_FIN = 28, 29, 30, 31, 32, 33
S_HKV, S_B, S_M, S_REC = 36, 37, 38, 39
S_EPO, S_TAG, S_EPN = 40, 41, 42
SRD_K, SRD_V, SRD_WS, SRD_T, SRD_U = 44, 48, 52, 56, 60
SG1, SG2, SG3 = 80, 82, 84
S_CNT = 91
S_T0 = 92

def make_table(wside=0.8, c_ffn=72.0, c_wo=32.0, c_fin=12.0, pool=160, adj=None):
    info = {w: dict(x=w & 7, g=w >> 3, j=w & 7, ft=0, fcb=0, wcb=255, fin=255) for w in range(256)}
    free = lambda w: ((w & 7) == (w >> 3) % 8) or ((w >> 3) < 8 and (w & 7) == ((w >> 3) + 4) % 8)
    e = 0
    for w in range(256):
        if not free(w):
            info[w]["ft"] = 1 + e % 3; info[w]["fcb"] = e // 3; e += 1
    assert e == 216
    xcnt = [0] * 8
    for c in range(16):
        chosen = []
        quota = {2 * c: 5 if c % 2 == 0 else 4, 2 * c + 1: 4 if c % 2 == 0 else 5}
        mem = list(range(16 * c, 16 * c + 16))
        for w in mem:
            if free(w): chosen.append(w); quota[w >> 3] -= 1; xcnt[w & 7] += 1
        while len(chosen) < 9:
            cand = [w for w in mem if w not in chosen and quota[w >> 3] > 0]
            w = min(cand, key=lambda v: (xcnt[v & 7], v))
            chosen.append(w); quota[w >> 3] -= 1; xcnt[w & 7] += 1
        for cb, w in enumerate(chosen): info[w]["wcb"] = cb
    frees = [w for w in range(64) if free(w)]
    more = [w for w in range(64, 256) if free(w)]
    fins = [frees[0], frees[3], frees[4], frees[7], frees[8], frees[11], frees[12], frees[15], more[5]]
    assert len(fins) == 9
    for f, w in enumerate(fins): info[w]["fin"] = f
    static_total = 1024 - pool
    for g in range(32):
        ws_ = list(range(8 * g, 8 * g + 8))
        side = []
        for w in ws_:
            i = info[w]
            sd = (c_ffn if i["ft"] else 0) + (c_wo if i["wcb"] != 255 else 0) + (c_fin if i["fin"] != 255 else 0)
            if adj: sd += adj(w, i)
            side.append(sd * wside)
        tot = static_total * 16 + sum(side)
        ideal = [(tot / 8 - sd) / 16 for sd in side]
        n = [int(math.floor(v)) for v in ideal]
        rem = static_total - sum(n)
        order = sorted(range(8), key=lambda k: -(ideal[k] - n[k]))
        for k in order[:rem]: n[k] += 1
        assert sum(n) == static_total and min(n) >= 16 and max(n) <= 126
        st = 0
        for k, w in enumerate(ws_):
            info[w]["kv0"] = st; info[w]["nsb"] = n[k]; st += n[k]
        info[ws_[0]]["side_total"] = sum(side)
    tab = [[info[w]["kv0"], info[w]["nsb"], info[w]["ft"], info[w]["fcb"], info[w]["wcb"], info[w]["fin"], 0, 0] for w in range(256)]
    return tab, info

def gemv(A, nsteps, cts, a_read, tr_read, acc, abuf, bbuf, nbuf):
    reads = []
    last = {}
    for n in range(nsteps):
        reads.append((n, a_read(n, abuf(n % nbuf))))
        for ct in cts:
            for u in range(2):
                reads.append((n, tr_read(n, ct, u, bbuf(n % nbuf, ct) + 2 * u)))
            last[(n, ct)] = len(reads) - 1
    issued = 0; done = 0
    for n in range(nsteps):
        for ci, ct in enumerate(cts):
            while issued < len(reads) and (issued - done) < 15 and reads[issued][0] < n + nbuf - (0 if ci == 0 or True else 0):
                if reads[issued][0] - nbuf >= n: break
                A(reads[issued][1]); issued += 1
            need = last[(n, ct)]
            assert issued > need, (issued, need, n, ct)
            if done <= need:
                k = issued - 1 - need
                A(f"s_waitcnt lgkmcnt({k})")
                done = need + 1
            c = "0" if n == 0 else vr(acc(ct), 4)
            A(f"v_mfma_f32_16x16x32_bf16 {vr(acc(ct),4)}, {vr(abuf(n % nbuf),4)}, {vr(bbuf(n % nbuf, ct),4)}, {c}")

def poll_begin(A, name):
    A(f"s_mov_b32 s{S_CNT}, {POLL_LIMIT}")
    A.lab(name)

def poll_end(A, name, sleep):
    ok = name + "_ok"
    A(f"s_cbranch_vccz {ok}")
    A(f"s_sub_u32 s{S_CNT}, s{S_CNT}, 1")
    A(f"s_cmp_eq_u32 s{S_CNT}, 0")
    A(f"s_cbranch_scc1 {ok}")
    if sleep: A(f"s_sleep {sleep}")
    A(f"s_branch {name}")
    A.lab(ok)

def wait_progress(A, name, thr):
    A(f"s_mov_b32 s{S_CNT}, {POLL_LIMIT}")
    A("v_mov_b32 v250, 0")
    A.lab(name)
    A(f"ds_read_b32 v251, v250 offset:{PROG}")
    A("s_waitcnt lgkmcnt(0)")
    A("v_readfirstlane_b32 s90, v251")
    A(f"s_cmp_ge_u32 s90, {thr}")
    A(f"s_cbranch_scc1 {name}_ok")
    A(f"s_sub_u32 s{S_CNT}, s{S_CNT}, 1")
    A(f"s_cmp_eq_u32 s{S_CNT}, 0")
    A(f"s_cbranch_scc1 {name}_ok")
    A("s_sleep 8")
    A(f"s_branch {name}")
    A.lab(name + "_ok")

def wait_lds(A, name, off, thr, sleep, tv=250):
    A(f"s_mov_b32 s{S_CNT}, {POLL_LIMIT * 8}")
    A(f"v_mov_b32 v{tv}, 0")
    A.lab(name)
    A(f"ds_read_b32 v{tv+1}, v{tv} offset:{off}")
    A("s_waitcnt lgkmcnt(0)")
    A(f"v_readfirstlane_b32 s90, v{tv+1}")
    A(f"s_cmp_ge_u32 s90, {thr}")
    A(f"s_cbranch_scc1 {name}_ok")
    A(f"s_sub_u32 s{S_CNT}, s{S_CNT}, 1")
    A(f"s_cmp_eq_u32 s{S_CNT}, 0")
    A(f"s_cbranch_scc1 {name}_ok")
    A(f"s_sleep {sleep}")
    A(f"s_branch {name}")
    A.lab(name + "_ok")

def wait_counter(A, name, off, thr, sleep):
    A(f"s_mov_b32 s{S_CNT}, {POLL_LIMIT}")
    A.lab(name)
    A("s_mov_b32 s90, 0")
    A(f"s_atomic_add s90, s[{S_DBG}:{S_DBG+1}], {off} glc")
    A("s_waitcnt lgkmcnt(0)")
    A(f"s_cmp_ge_u32 s90, {thr}")
    A(f"s_cbranch_scc1 {name}_ok")
    A(f"s_sub_u32 s{S_CNT}, s{S_CNT}, 1")
    A(f"s_cmp_eq_u32 s{S_CNT}, 0")
    A(f"s_cbranch_scc1 {name}_ok")
    A(f"s_sleep {sleep}")
    A(f"s_branch {name}")
    A.lab(name + "_ok")

def check_tags(A, tags, t):
    A(f"v_max3_u32 v{t}, v{tags[0]}, v{tags[1]}, v{tags[2]}")
    A(f"v_min3_u32 v{t+1}, v{tags[0]}, v{tags[1]}, v{tags[2]}")
    rest = tags[3:]
    for k in range(0, len(rest), 2):
        a = rest[k]; b_ = rest[min(k + 1, len(rest) - 1)]
        A(f"v_max3_u32 v{t}, v{t}, v{a}, v{b_}")
        A(f"v_min3_u32 v{t+1}, v{t+1}, v{a}, v{b_}")
    A(f"v_xor_b32 v{t}, v{t}, v{t+1}")
    A(f"v_xor_b32 v{t+1}, s{S_TAG}, v{t+1}")
    A(f"v_or_b32 v{t}, v{t}, v{t+1}")
    A(f"v_cmp_ne_u32 vcc, 0, v{t}")

def reduce16(A, v, op="v_add_f32"):
    for k in (8, 4, 2, 1):
        A(f"{op}_dpp {vr(v)}, {vr(v)}, {vr(v)} row_ror:{k} row_mask:0xf bank_mask:0xf")

def swap16(A, v, t, op):
    A(f"v_mov_b32 {vr(t)}, {vr(v)}")
    A(f"v_permlane16_swap_b32 {vr(v)}, {vr(t)}")
    A(f"{op} {vr(v)}, {vr(v)}, {vr(t)}")

def swap32(A, v, t, op):
    A(f"v_mov_b32 {vr(t)}, {vr(v)}")
    A(f"v_permlane32_swap_b32 {vr(v)}, {vr(t)}")
    A(f"{op} {vr(v)}, {vr(v)}, {vr(t)}")

def round_bf16(A, dst, src):
    A(f"v_cvt_pk_bf16_f32 {vr(dst)}, {vr(src)}, {vr(src)}")
    A(f"v_and_b32 {vr(dst)}, 0xffff0000, {vr(dst)}")

def srd(A, base, ptr, nrec, off=None):
    if off is None:
        A(f"s_mov_b32 s{base}, s{ptr}")
        A(f"s_mov_b32 s{base+1}, s{ptr+1}")
    else:
        lo, hi = off
        A(f"s_add_u32 s{base}, s{ptr}, s{lo}")
        A(f"s_addc_u32 s{base+1}, s{ptr+1}, {hi}")
    A(f"s_mov_b32 s{base+2}, {nrec}")
    A(f"s_mov_b32 s{base+3}, 0x20000")

def stamp(A, P, idx):
    if not P.get("stamps"): return
    A("s_memrealtime s[92:93]")
    A("s_waitcnt lgkmcnt(0)")
    A(f"v_writelane_b32 v253, s92, {idx}")

def stamp_flush(A, P):
    if not P.get("stamps"): return
    A(f"s_lshl_b32 s94, s2, 2")
    A(f"s_add_u32 s94, s94, s{S_WAVE}")
    A(f"s_lshl_b32 s94, s94, 6")
    A(f"s_add_u32 s94, s94, {WS_DBG}")
    A("v_lshlrev_b32 v254, 2, v0")
    A("s_mov_b64 exec, 0xffff")
    A(f"buffer_store_dword v253, v254, s[{SRD_WS}:{SRD_WS+3}], s94 offen")

def dma_voff(A, vE, vO, stride, vL, t0, t1):
    A(f"v_lshrrev_b32 {vr(t0)}, 3, {vr(vL)}")
    A(f"s_mov_b32 s64, {stride}")
    A(f"v_mul_lo_u32 {vr(vE)}, {vr(t0)}, s64")
    A(f"v_bfe_u32 {vr(t0)}, {vr(vL)}, 4, 1")
    A(f"v_lshlrev_b32 {vr(t0)}, 1, {vr(t0)}")
    A(f"v_and_b32 {vr(t1)}, 7, {vr(vL)}")
    A(f"v_xor_b32 {vr(t0)}, {vr(t0)}, {vr(t1)}")
    A(f"v_lshl_add_u32 {vr(vE)}, {vr(t0)}, 4, {vr(vE)}")
    A(f"v_xor_b32 {vr(vO)}, 64, {vr(vE)}")

def tr_addr(A, vT, vL, t0, t1):
    A(f"v_lshrrev_b32 {vr(t0)}, 4, {vr(vL)}")
    A(f"v_bfe_u32 {vr(t1)}, {vr(vL)}, 2, 2")
    A(f"v_lshl_add_u32 {vr(vT)}, {vr(t0)}, 3, {vr(t1)}")
    A(f"v_lshlrev_b32 {vr(vT)}, 7, {vr(vT)}")
    A(f"v_and_b32 {vr(t0)}, 1, {vr(t0)}")
    A(f"v_lshlrev_b32 {vr(t0)}, 1, {vr(t0)}")
    A(f"v_lshrrev_b32 {vr(t1)}, 1, {vr(t1)}")
    A(f"v_or_b32 {vr(t0)}, {vr(t0)}, {vr(t1)}")
    A(f"v_lshlrev_b32 {vr(t0)}, 1, {vr(t0)}")
    A(f"v_bfe_u32 {vr(t1)}, {vr(vL)}, 1, 1")
    A(f"v_xor_b32 {vr(t0)}, {vr(t0)}, {vr(t1)}")
    A(f"v_lshl_add_u32 {vr(vT)}, {vr(t0)}, 4, {vr(vT)}")
    A(f"v_and_b32 {vr(t0)}, 1, {vr(vL)}")
    A(f"v_lshl_add_u32 {vr(vT)}, {vr(t0)}, 3, {vr(vT)}")
    for ct in range(1, 4):
        A(f"v_xor_b32 {vr(vT+ct)}, {32*ct}, {vr(vT)}")

def sel_by_group(A, dst, regs):
    A(f"v_cndmask_b32 {vr(dst)}, {vr(regs[0])}, {vr(regs[1])}, s[{SG1}:{SG1+1}]")
    A(f"v_cndmask_b32 {vr(dst)}, {vr(dst)}, {vr(regs[2])}, s[{SG2}:{SG2+1}]")
    A(f"v_cndmask_b32 {vr(dst)}, {vr(dst)}, {vr(regs[3])}, s[{SG3}:{SG3+1}]")

def gen(P=None):
    P = P or {}
    D = P.get("D", 2)
    FL = P.get("kvflags", "nt")
    FLK = P.get("kflags", FL); FLV = P.get("vflags", FL)
    WFL = P.get("wflags", "nt")
    tab, info = make_table(**P.get("table", {}))
    if P.get("no_ffn"):
        for row in tab: row[2] = 0; row[5] = 255
    if P.get("only_gu"):
        for row in tab:
            if row[2] == 3: row[2] = 0
            row[5] = 255
    if P.get("only_dn"):
        for row in tab:
            if row[2] in (1, 2): row[2] = 0
            row[5] = 255
    if P.get("no_y"):
        for row in tab: row[5] = 255
    if P.get("no_wo"):
        for row in tab: row[4] = 255; row[5] = 255
    A = Asm()
    A.L += open(P.get("header", "recurrent_scan__gqa_block_cached__geglu_ffn__decode.s.ref")).read().split("; Override launch")[0].rstrip("\n").split("\n")
    A.L.append(f"; @launch grid=(256,1,1) block=(256,1,1) lds={LDS_BYTES}")
    A('.amdgcn_target "amdgcn-amd-amdhsa--gfx950"')
    A(".text")
    A(f".globl {NAME}")
    A(".p2align 8")
    A(f".type {NAME},@function")
    body_start = len(A.L)
    A.lab(NAME)
    A("s_cmp_ge_u32 s2, 256")
    A("s_cbranch_scc1 L_exit")
    A("s_load_dwordx16 s[4:19], s[0:1], 0")
    A("s_load_dwordx8 s[20:27], s[0:1], 64")
    A("s_getpc_b64 s[64:65]")
    A.lab("L_pc")
    A("s_add_u32 s64, s64, L_table-L_pc")
    A("s_addc_u32 s65, s65, 0")
    A("s_lshl_b32 s66, s2, 5")
    A("s_add_u32 s64, s64, s66")
    A("s_addc_u32 s65, s65, 0")
    A("s_load_dwordx8 s[28:35], s[64:65], 0")
    A("v_lshrrev_b32 v1, 6, v0")
    A("v_and_b32 v0, 63, v0")
    A(f"v_readfirstlane_b32 s{S_WAVE}, v1")
    if P.get("stamps"):
        A("v_mov_b32 v253, 0")
        stamp(A, P, 15)
    A(f"s_lshr_b32 s{S_HKV}, s2, 4")
    A(f"s_and_b32 s{S_M}, s2, 15")
    A(f"s_lshr_b32 s{S_B}, s{S_M}, 3")
    A(f"s_mov_b32 s{S_REC}, s2")
    A(f"s_mov_b32 s{SG1}, 0xffff0000")
    A(f"s_mov_b32 s{SG1+1}, 0")
    A(f"s_mov_b32 s{SG2}, 0")
    A(f"s_mov_b32 s{SG2+1}, 0xffff")
    A(f"s_mov_b32 s{SG3}, 0")
    A(f"s_mov_b32 s{SG3+1}, 0xffff0000")
    A("s_waitcnt lgkmcnt(0)")
    if P.get("dbgdur"): A("s_memrealtime s[98:99]")
    A(f"s_load_dword s{S_EPO}, s[{S_WS}:{S_WS+1}], {WS_EPOCH}")
    srd(A, SRD_WS, S_WS, WS_SIZE)
    A(f"s_cmp_ge_u32 s{S_WAVE}, 2")
    A("s_cbranch_scc1 L_att")
    A(f"s_cmp_eq_u32 s{S_WAVE}, 1")
    A("s_cbranch_scc1 L_s1")

    vL = 0
    A("v_lshlrev_b32 v1, 4, v0")
    for k in range(4): A(f"v_mov_b32 v{4+k}, -1")
    A(f"s_lshl_b32 s64, s{S_REC}, 10")
    A(f"s_add_u32 s64, s64, {WS_H1O}")
    A(f"buffer_store_dwordx4 v[4:7], v1, s[{SRD_WS}:{SRD_WS+3}], s64 offen sc1")
    A(f"s_lshl_b32 s65, s{S_REC}, 7")
    A(f"s_add_u32 s65, s65, {WS_H1ML}")
    A("s_mov_b64 exec, 0xff")
    A(f"buffer_store_dwordx4 v[4:7], v1, s[{SRD_WS}:{SRD_WS+3}], s65 offen sc1")
    A("s_mov_b64 exec, -1")
    A("s_and_b32 s64, s2, 7")
    A("s_cmp_lg_u32 s64, 0")
    A("s_cbranch_scc1 L_nocnt")
    A("s_lshr_b32 s64, s2, 3")
    A("s_lshl_b32 s64, s64, 8")
    A(f"s_add_u32 s64, s64, {WS_CNT}")
    A("v_mov_b32 v8, 0")
    A("s_mov_b64 exec, 1")
    A(f"buffer_store_dword v8, v1, s[{SRD_WS}:{SRD_WS+3}], s64 offen sc1")
    A("s_mov_b64 exec, -1")
    A.lab("L_nocnt")
    srd(A, SRD_U, S_X, 2304)
    A("v_lshrrev_b32 v2, 5, v0")
    A("v_mul_u32_u24 v2, 1152, v2")
    A("v_and_b32 v3, 31, v0")
    A("v_lshl_add_u32 v2, v3, 2, v2")
    for n in range(9):
        A(f"buffer_load_dword v{8+n}, v2, s[{SRD_U}:{SRD_U+3}], 0 offen offset:{128*n}")
    srd(A, SRD_T, S_WQ, 576 * 8192)
    dma_voff(A, 18, 19, 8192, vL, 20, 21)
    A(f"s_lshr_b32 s66, s{S_M}, 2")
    A(f"s_mul_i32 s67, s66, {144*8192}")
    A(f"s_and_b32 s68, s{S_M}, 3")
    A(f"s_lshl_b32 s68, s68, 7")
    A("s_add_u32 s67, s67, s68")
    A(f"s_lshl_b32 s68, s{S_HKV}, 9")
    A("s_add_u32 s67, s67, s68")
    A(f"s_mov_b32 s68, {T_WQ}")
    A("s_mov_b32 s69, 9")
    A.lab("L_wqdma")
    for par in range(2):
        A("s_mov_b32 m0, s68")
        A("s_add_u32 s68, s68, 1024")
        A(f"buffer_load_dwordx4 v{18+par}, s[{SRD_T}:{SRD_T+3}], s67 offen {WFL} lds")
        A("s_add_u32 s67, s67, 65536")
    A("s_sub_u32 s69, s69, 1")
    A("s_cmp_lg_u32 s69, 0")
    A("s_cbranch_scc1 L_wqdma")
    A("v_mov_b32 v20, 0")
    A("v_mov_b32 v21, 0")
    A("v_mov_b32 v22, 0")
    A(f"ds_write_b32 v20, v20 offset:{PROG}")
    A(f"ds_write_b64 v20, v[20:21] offset:{QRDY + 4 - 4 + 0}") if False else None
    A(f"ds_write_b32 v20, v20 offset:{QRDY}")
    A(f"ds_write_b32 v20, v20 offset:{QPUB}")
    A("s_waitcnt lgkmcnt(0)")
    A("s_barrier")
    stamp(A, P, 0)
    for k in range(4): A(f"v_mov_b32 v{20+k}, 0")
    A(f"ds_write_b128 v1, v[20:23] offset:{T_WQ + 18432}")
    A(f"ds_write_b128 v1, v[20:23] offset:{T_WQ + 19456}")
    A("v_lshrrev_b32 v24, 3, v0")
    A(f"v_mul_u32_u24 v24, {XROW}, v24")
    A("v_and_b32 v25, 7, v0")
    A("v_lshl_add_u32 v24, v25, 2, v24")
    A("s_mov_b64 exec, 0xffff")
    A(f"ds_write_b32 v24, v20 offset:{X_LN + 1152}")
    A("s_mov_b64 exec, -1")
    tr_addr(A, 100, vL, 24, 25)
    A("v_and_b32 v104, 1, v0")
    A(f"v_mul_u32_u24 v104, {XROW}, v104")
    A("v_lshrrev_b32 v24, 4, v0")
    A("v_lshl_add_u32 v104, v24, 4, v104")
    A(f"s_mul_i32 s64, s66, 288")
    A("v_add_u32 v105, s64, v104")
    A("s_waitcnt vmcnt(18)")
    lo = lambda n: 24 + 2 * n
    hi = lambda n: 25 + 2 * n
    for n in range(9):
        A(f"v_lshlrev_b32 v{lo(n)}, 16, v{8+n}")
        A(f"v_and_b32 v{hi(n)}, 0xffff0000, v{8+n}")
    A(f"v_add_f32 v42, v{lo(0)}, v{hi(0)}")
    A(f"v_add_f32 v43, v{lo(1)}, v{hi(1)}")
    for n in range(2, 9):
        A(f"v_add_f32 v42, v42, v{lo(n)}")
        A(f"v_add_f32 v43, v43, v{hi(n)}")
    A("v_add_f32 v42, v42, v43")
    reduce16(A, 42); swap16(A, 42, 43, "v_add_f32")
    A(f"v_mul_f32 v42, {hex(f2u(1/576))}, v42")
    A("v_mov_b32 v44, 0")
    for n in range(9):
        A(f"v_sub_f32 v45, v{lo(n)}, v42")
        A(f"v_sub_f32 v46, v{hi(n)}, v42")
        A("v_fmac_f32 v44, v45, v45")
        A("v_fmac_f32 v44, v46, v46")
    reduce16(A, 44); swap16(A, 44, 43, "v_add_f32")
    A(f"v_mul_f32 v44, {hex(f2u(1/576))}, v44")
    round_bf16(A, 44, 44)
    A(f"v_add_f32 v44, {hex(f2u(1e-5))}, v44")
    round_bf16(A, 44, 44)
    A("v_sqrt_f32 v44, v44")
    round_bf16(A, 44, 44)
    A("v_rcp_f32 v44, v44")
    round_bf16(A, 42, 42)
    A("v_lshrrev_b32 v47, 5, v0")
    A(f"v_mul_u32_u24 v47, {XROW}, v47")
    A("v_and_b32 v48, 31, v0")
    A("v_lshl_add_u32 v47, v48, 2, v47")
    for n in range(9):
        A(f"v_sub_f32 v45, v{lo(n)}, v42")
        A(f"v_sub_f32 v46, v{hi(n)}, v42")
        A("v_cvt_pk_bf16_f32 v45, v45, v46")
        A("v_and_b32 v46, 0xffff0000, v45")
        A("v_lshlrev_b32 v45, 16, v45")
        A("v_mul_f32 v45, v45, v44")
        A("v_mul_f32 v46, v46, v44")
        A(f"v_cvt_pk_bf16_f32 v{50+n}, v45, v46")
        A(f"ds_write_b32 v47, v{50+n} offset:{X_LN + 128*n}")
    stamp(A, P, 1)
    A("s_waitcnt vmcnt(0) lgkmcnt(0)")
    A(f"s_add_u32 s{S_EPN}, s{S_EPO}, 1")
    A(f"s_mul_i32 s{S_TAG}, s{S_EPN}, 0x9E3779B1")
    A(f"s_xor_b32 s{S_TAG}, s{S_TAG}, 0x5bd1e995")
    stamp(A, P, 2)
    ACC = lambda ct: 110 + 4 * ct
    gemv(A, 5, [0, 1, 2, 3],
         lambda n, d: f"ds_read_b128 {vr(d,4)}, v105 offset:{X_LN + 64*n}",
         lambda n, ct, u, d: f"ds_read_b64_tr_b16 {vr(d,2)}, v{100+ct} offset:{T_WQ + 4096*n + 512*u}",
         ACC, lambda k: 128 + 20 * k, lambda k, ct: 132 + 20 * k + 4 * ct, 2)
    def publish_pair(soff):
        sel_by_group(A, 8, [ACC(ct) for ct in range(4)])
        sel_by_group(A, 10, [ACC(ct) + 1 for ct in range(4)])
        return
    publish_pair(None)
    A(f"v_mov_b32 v9, s{S_TAG}")
    A(f"v_mov_b32 v11, s{S_TAG}")
    A(f"s_lshl_b32 s64, s{S_REC}, 10")
    A(f"s_add_u32 s64, s64, {WS_QP}")
    A(f"buffer_store_dwordx4 v[8:11], v1, s[{SRD_WS}:{SRD_WS+3}], s64 offen sc1")
    A("v_mov_b32 v12, 0")
    A("v_mov_b32 v13, 1")
    A(f"ds_write_b32 v12, v13 offset:{QPUB}")
    stamp(A, P, 3)
    A(f"s_lshl_b32 s64, s{S_B}, 3")
    A("v_add_u32 v2, s64, v1")
    A(f"s_lshl_b32 s64, s{S_HKV}, 14")
    A(f"s_add_u32 s64, s64, {WS_QP}")
    for k in range(1, 4): A(f"s_add_u32 s{64+k}, s64, {4096*k}")
    poll_begin(A, "L_qpoll")
    for m in range(16):
        A(f"buffer_load_dwordx2 v[{24+2*m}:{25+2*m}], v2, s[{SRD_WS}:{SRD_WS+3}], s{64+(m>>2)} offen offset:{1024*(m&3)} sc1")
    A("s_waitcnt vmcnt(0)")
    A("v_max3_u32 v60, v25, v27, v29")
    A("v_min3_u32 v61, v25, v27, v29")
    for m in range(3, 16, 2):
        a, b_ = 25 + 2 * m, 25 + 2 * min(m + 1, 15)
        A(f"v_max3_u32 v60, v60, v{a}, v{b_}")
        A(f"v_min3_u32 v61, v61, v{a}, v{b_}")
    A("v_xor_b32 v60, v60, v61")
    A(f"v_xor_b32 v61, s{S_TAG}, v61")
    A("v_or_b32 v60, v60, v61")
    A("v_cmp_ne_u32 vcc, 0, v60")
    if P.get("stamps"):
        A(f"s_cmp_eq_u32 s{S_CNT}, {POLL_LIMIT}")
        A("s_cbranch_scc0 L_qp_nostamp")
        A("s_memrealtime s[92:93]")
        A("s_waitcnt lgkmcnt(0)")
        A("v_writelane_b32 v253, s92, 11")
        A.lab("L_qp_nostamp")
    poll_end(A, "L_qpoll", 1)
    if P.get("stamps"):
        A(f"s_sub_u32 s92, {POLL_LIMIT+1}, s{S_CNT}")
        A("v_writelane_b32 v253, s92, 12")
    A("v_lshlrev_b32 v3, 1, v0")
    for cbp in range(4):
        m = lambda kr: 24 + 2 * (kr * 4 + cbp)
        A(f"v_add_f32 v60, v{m(0)}, v{m(1)}")
        A(f"v_add_f32 v60, v60, v{m(2)}")
        A(f"v_add_f32 v60, v60, v{m(3)}")
        A(f"v_cvt_pk_bf16_f32 v{62+cbp}, v60, v60")
        A(f"ds_write_b16 v3, v{62+cbp} offset:{Q_LDS + 128*cbp}")
    A("s_waitcnt lgkmcnt(0)")
    A("v_mov_b32 v12, 0")
    A("v_mov_b32 v13, 1")
    A(f"ds_write_b32 v12, v13 offset:{QRDY}")
    stamp(A, P, 4)
    A(f"s_cmp_eq_u32 s{S_FIN}, 255")
    A("s_cbranch_scc1 L_s0_noy")
    wait_progress(A, "L_ywait", P.get("t_y", 88))
    A(f"s_lshl_b32 s64, s{S_FIN}, 13")
    A(f"s_add_u32 s64, s64, {WS_YP}")
    A("s_add_u32 s65, s64, 4096")
    poll_begin(A, "L_ypoll")
    for n in range(8):
        A(f"buffer_load_dwordx4 v[{24+4*n}:{27+4*n}], v1, s[{SRD_WS}:{SRD_WS+3}], s{64+(n>>2)} offen offset:{1024*(n&3)} sc1")
    A("s_waitcnt vmcnt(0)")
    check_tags(A, [25 + 4 * n + 2 * k for n in range(8) for k in range(2)], 80)
    poll_end(A, "L_ypoll", 32)
    A("v_add_f32 v200, v24, v28")
    A("v_add_f32 v201, v26, v30")
    for n in range(2, 8):
        A(f"v_add_f32 v200, v200, v{24+4*n}")
        A(f"v_add_f32 v201, v201, v{26+4*n}")
    for k in range(2):
        y = 200 + k
        round_bf16(A, y, y)
        A(f"v_mul_f32 v80, {hex(f2u(-LOG2E))}, v{y}")
        A("v_exp_f32 v80, v80")
        A("v_add_f32 v80, 1.0, v80")
        A("v_rcp_f32 v80, v80")
        A(f"v_mul_f32 v{y}, v{y}, v80")
        round_bf16(A, y, y)
    srd(A, SRD_U, S_X, 2304)
    A(f"s_lshl_b32 s70, s{S_FIN}, 7")
    A("v_lshlrev_b32 v204, 1, v0")
    A(f"buffer_load_ushort v202, v204, s[{SRD_U}:{SRD_U+3}], s70 offen")
    A(f"buffer_load_ushort v203, v204, s[{SRD_U}:{SRD_U+3}], s70 offen offset:1152")
    A("s_waitcnt vmcnt(0)")
    A.lab("L_s0_noy")
    stamp(A, P, 5)

    A("s_branch L_side_tail")

    A.lab("L_s1")
    A("v_lshlrev_b32 v1, 4, v0")
    A("s_barrier")
    A("s_waitcnt lgkmcnt(0)")
    A(f"s_add_u32 s{S_EPN}, s{S_EPO}, 1")
    A(f"s_mul_i32 s{S_TAG}, s{S_EPN}, 0x9E3779B1")
    A(f"s_xor_b32 s{S_TAG}, s{S_TAG}, 0x5bd1e995")
    if P.get("s1_start", "qpub") == "qpub": wait_lds(A, "L_qpubwait", QPUB, 1, 1)
    if P.get("s1_start") == "qrdy": wait_lds(A, "L_qpubwait", QRDY, 1, 1)
    DL = P.get("dma_lead", 24)
    A(f"s_cmp_eq_u32 s{S_FT}, 0")
    A("s_cbranch_scc1 L_s1_wo")
    A(f"s_cmp_eq_u32 s{S_FT}, 3")
    A("s_cbranch_scc1 L_dn_setup")
    A(f"s_cmp_eq_u32 s{S_FT}, 1")
    A(f"s_cselect_b32 s{SRD_T}, s{S_WG}, s{S_WU}")
    A(f"s_cselect_b32 s{SRD_T+1}, s{S_WG+1}, s{S_WU+1}")
    A(f"s_mov_b32 s{SRD_T+2}, {576*9216}")
    A(f"s_mov_b32 s{SRD_T+3}, 0x20000")
    dma_voff(A, 18, 19, 9216, vL, 20, 21)
    A(f"s_lshl_b32 s67, s{S_FCB}, 7")
    A(f"s_mov_b32 s71, {8*9216}")
    A("s_branch L_ffn_dma")
    A.lab("L_dn_setup")
    srd(A, SRD_T, S_WD, 4608 * 1152)
    dma_voff(A, 18, 19, 1152, vL, 20, 21)
    A(f"s_mul_i32 s72, s{S_FCB}, 57")
    A("s_lshr_b32 s72, s72, 9")
    A("s_mul_i32 s73, s72, 9")
    A(f"s_sub_u32 s73, s{S_FCB}, s73")
    A(f"s_mul_i32 s67, s72, {576*1152}")
    A("s_lshl_b32 s64, s73, 7")
    A("s_add_u32 s67, s67, s64")
    A(f"s_mov_b32 s71, {8*1152}")
    A.lab("L_ffn_dma")
    A(f"s_mov_b32 s68, {T_FFN}")
    A("s_mov_b32 s69, 36")
    A.lab("L_gudma")
    for par in range(2):
        A("s_mov_b32 m0, s68")
        A("s_add_u32 s68, s68, 1024")
        A(f"buffer_load_dwordx4 v{18+par}, s[{SRD_T}:{SRD_T+3}], s67 offen {WFL} lds")
        A(f"s_add_u32 s67, s67, s71")
    A(f"s_waitcnt vmcnt({DL})")
    A("s_sub_u32 s69, s69, 1")
    A("s_cmp_lg_u32 s69, 0")
    A("s_cbranch_scc1 L_gudma")
    A.lab("L_s1_wo")
    A(f"s_cmp_eq_u32 s{S_WCB}, 255")
    A("s_cbranch_scc1 L_s1_nowo")
    srd(A, SRD_T, S_WO, 4096 * 1152)
    dma_voff(A, 18, 19, 1152, vL, 20, 21)
    A(f"s_mul_i32 s67, s{S_HKV}, {256*1152}")
    A(f"s_lshl_b32 s68, s{S_WCB}, 7")
    A("s_add_u32 s67, s67, s68")
    A(f"s_mov_b32 s68, {T_WO}")
    A("s_mov_b32 s69, 16")
    A.lab("L_wodma")
    for par in range(2):
        A("s_mov_b32 m0, s68")
        A("s_add_u32 s68, s68, 1024")
        A(f"buffer_load_dwordx4 v{18+par}, s[{SRD_T}:{SRD_T+3}], s67 offen {WFL} lds")
        A(f"s_add_u32 s67, s67, 9216")
    A(f"s_waitcnt vmcnt({DL})")
    A("s_sub_u32 s69, s69, 1")
    A("s_cmp_lg_u32 s69, 0")
    A("s_cbranch_scc1 L_wodma")
    A.lab("L_s1_nowo")
    A("s_waitcnt vmcnt(0)")
    stamp(A, P, 4)
    A(f"s_cmp_eq_u32 s{S_FT}, 0")
    A("s_cbranch_scc1 L_s1_ffn_done")
    wait_lds(A, "L_xnwait", QRDY, 1, 4)
    tr_addr(A, 100, vL, 24, 25)
    A("v_and_b32 v104, 1, v0")
    A(f"v_mul_u32_u24 v104, {XROW}, v104")
    A("v_lshrrev_b32 v24, 4, v0")
    A("v_lshl_add_u32 v104, v24, 4, v104")
    A(f"s_cmp_eq_u32 s{S_FT}, 3")
    A("s_cbranch_scc0 L_ffn_gemv")
    if P.get("x_skipdown"): A("s_branch L_s1_ffn_done")
    wait_progress(A, "L_dnwait", P.get("t_dn", 52))
    A(f"s_mul_i32 s64, s72, {9*2048}")
    A(f"s_add_u32 s64, s64, {WS_GU}")
    for k in range(1, 5): A(f"s_add_u32 s{64+k}, s64, {4096*k}")
    poll_begin(A, "L_gupoll")
    for n in range(18):
        A(f"buffer_load_dwordx4 v[{24+4*n}:{27+4*n}], v1, s[{SRD_WS}:{SRD_WS+3}], s{64+(n>>2)} offen offset:{1024*(n&3)} sc1")
    A("s_waitcnt vmcnt(0)")
    check_tags(A, [25 + 4 * n + 2 * k for n in range(18) for k in range(2)], 96)
    poll_end(A, "L_gupoll", 32)
    A("v_lshlrev_b32 v3, 1, v0")
    A(f"v_mov_b32 v98, {hex(f2u(0.044715))}")
    for i9 in range(9):
        for bb in range(2):
            gt, up = 24 + 8 * i9 + 2 * bb, 28 + 8 * i9 + 2 * bb
            A(f"v_mul_f32 v96, v{gt}, v{gt}")
            A(f"v_mul_f32 v96, v96, v{gt}")
            A(f"v_fma_f32 v96, v96, v98, v{gt}")
            A(f"v_mul_f32 v96, {hex(f2u(-2.0 * math.sqrt(2.0 / math.pi) * LOG2E))}, v96")
            A("v_exp_f32 v96, v96")
            A("v_add_f32 v96, 1.0, v96")
            A("v_rcp_f32 v96, v96")
            A(f"v_mul_f32 v96, v{gt}, v96")
            round_bf16(A, 96, 96)
            A(f"v_mul_f32 v96, v96, v{up}")
            A(f"v_cvt_pk_bf16_f32 v97, v96, v96")
            A(f"ds_write_b16 v3, v97 offset:{XH + XROW*bb + 128*i9}")
    A(f"v_add_u32 v104, {XH - X_LN}, v104")
    A("s_waitcnt lgkmcnt(0)")
    A.lab("L_ffn_gemv")
    for ct in range(4):
        A(f"v_add_u32 v{106+ct}, {T_FFN}, v{100+ct}")
        A(f"v_add_u32 v{170+ct}, {T_FFN + 9*4096}, v{100+ct}")
    gemv(A, 18, [0, 1, 2, 3],
         lambda n, d: f"ds_read_b128 {vr(d,4)}, v104 offset:{X_LN + 64*n}",
         lambda n, ct, u, d: f"ds_read_b64_tr_b16 {vr(d,2)}, v{(106 if n < 9 else 170)+ct} offset:{4096*(n % 9) + 512*u}",
         ACC, lambda k: 128 + 20 * k, lambda k, ct: 132 + 20 * k + 4 * ct, 2)
    publish_pair(None)
    A(f"v_mov_b32 v9, s{S_TAG}")
    A(f"v_mov_b32 v11, s{S_TAG}")
    A(f"s_cmp_eq_u32 s{S_FT}, 3")
    A("s_cbranch_scc1 L_dn_pub")
    round_bf16(A, 8, 8); round_bf16(A, 10, 10)
    A(f"s_lshl_b32 s64, s{S_FCB}, 1")
    A(f"s_add_u32 s64, s64, s{S_FT}")
    A("s_sub_u32 s64, s64, 1")
    A("s_lshl_b32 s64, s64, 10")
    A(f"s_add_u32 s64, s64, {WS_GU}")
    A("s_branch L_ffn_pub")
    A.lab("L_dn_pub")
    A("s_lshl_b32 s64, s73, 3")
    A("s_add_u32 s64, s64, s72")
    A("s_lshl_b32 s64, s64, 10")
    A(f"s_add_u32 s64, s64, {WS_YP}")
    A.lab("L_ffn_pub")
    A(f"buffer_store_dwordx4 v[8:11], v1, s[{SRD_WS}:{SRD_WS+3}], s64 offen sc1")
    A.lab("L_s1_ffn_done")
    stamp(A, P, 5)

    def wo_prep():
        tr_addr(A, 100, vL, 24, 25)
        A(f"s_lshl_b32 s64, s{S_WAVE}, 5")
        A("v_xor_b32 v100, s64, v100")
        A("v_and_b32 v104, 1, v0")
        A(f"v_mul_u32_u24 v104, {X2ROW}, v104")
        A("v_lshrrev_b32 v24, 4, v0")
        A("v_lshl_add_u32 v104, v24, 4, v104")
        A("v_lshlrev_b32 v105, 4, v0")
        A(f"v_mov_b32 v9, s{S_TAG}")
        A(f"v_mov_b32 v11, s{S_TAG}")
        A(f"s_lshl_b32 s87, s{S_WCB}, 14")
        A(f"s_lshl_b32 s65, s{S_HKV}, 10")
        A("s_add_u32 s87, s87, s65")
        A(f"s_lshl_b32 s65, s{S_WAVE}, 8")
        A("s_add_u32 s87, s87, s65")
        A(f"s_add_u32 s87, s87, {WS_SP}")
    A.lab("L_side_tail")
    wo_prep()
    A("v_lshlrev_b32 v1, 4, v0")
    A("v_bfe_u32 v2, v0, 2, 1")
    A("v_lshlrev_b32 v2, 3, v2")
    A(f"s_lshl_b32 s64, s{S_HKV}, 4")
    A(f"s_lshl_b32 s65, s{S_WAVE}, 3")
    A("s_add_u32 s64, s64, s65")
    A("s_lshl_b32 s66, s64, 7")
    A(f"s_add_u32 s66, s66, {WS_H1ML}")
    A("s_lshl_b32 s64, s64, 10")
    A(f"s_add_u32 s64, s64, {WS_H1O}")
    A("s_add_u32 s65, s64, 4096")
    A("v_bfe_u32 v90, v0, 2, 1")
    A("v_lshlrev_b32 v90, 8, v90")
    A("v_lshrrev_b32 v83, 4, v0")
    A("v_lshl_add_u32 v90, v83, 6, v90")
    A("v_and_b32 v83, 3, v0")
    A("v_lshl_add_u32 v90, v83, 1, v90")
    A("v_bfe_u32 v83, v0, 3, 1")
    A("v_lshl_add_u32 v90, v83, 3, v90")
    A(f"s_mul_i32 s68, s{S_WAVE}, {X2ROW}")
    A("v_add_u32 v90, s68, v90")
    A("s_mov_b32 s67, 0xff")
    A("s_barrier")
    stamp(A, P, 6)
    A(f"s_cmp_eq_u32 s{S_WCB}, 255")
    A("s_cbranch_scc1 L_final")
    MC = lambda p: 56 + 2 * p
    LL = lambda p: 57 + 2 * p
    poll_begin(A, "L_h1poll")
    if not P.get("h1inc", False):
        for p in range(8):
            A(f"buffer_load_dwordx4 v[{24+4*p}:{27+4*p}], v1, s[{SRD_WS}:{SRD_WS+3}], s{64+(p>>2)} offen offset:{1024*(p&3)} sc1")
            A(f"buffer_load_dwordx2 v[{56+2*p}:{57+2*p}], v2, s[{SRD_WS}:{SRD_WS+3}], s66 offen offset:{128*p} sc1")
        A("s_waitcnt vmcnt(0)")
        A("v_max3_u32 v80, v24, v25, v26")
        for k in range(27, 72, 2): A(f"v_max3_u32 v80, v80, v{k}, v{min(k+1, 71)}")
        A("v_cmp_eq_u32 vcc, -1, v80")
        A("s_mov_b32 s67, 0")
        A("s_cbranch_vccz L_h1poll_ok")
        A("s_mov_b32 s67, 1")
    for p in range(8 if P.get("h1inc", False) else 0):
        l = A.uniq("L_h1l")
        A(f"s_bitcmp1_b32 s67, {p}")
        A(f"s_cbranch_scc0 {l}")
        A(f"buffer_load_dwordx4 v[{24+4*p}:{27+4*p}], v1, s[{SRD_WS}:{SRD_WS+3}], s{64+(p>>2)} offen offset:{1024*(p&3)} sc1")
        A(f"buffer_load_dwordx2 v[{56+2*p}:{57+2*p}], v2, s[{SRD_WS}:{SRD_WS+3}], s66 offen offset:{128*p} sc1")
        A.lab(l)
    A("s_waitcnt vmcnt(0)")
    for p in range(8 if P.get("h1inc", False) else 0):
        l = A.uniq("L_h1m")
        o = 24 + 4 * p
        A(f"s_bitcmp1_b32 s67, {p}")
        A(f"s_cbranch_scc0 {l}")
        A(f"v_max3_u32 v82, v{o}, v{o+1}, v{o+2}")
        A(f"v_max3_u32 v82, v82, v{o+3}, v{MC(p)}")
        A(f"v_max_u32 v82, v82, v{LL(p)}")
        A("v_cmp_eq_u32 vcc, -1, v82")
        A(f"s_cbranch_vccnz {l}")
        A(f"s_bitset0_b32 s67, {p}")
        A.lab(l)
    A("s_cmp_eq_u32 s67, 0")
    A("s_cbranch_scc1 L_h1poll_ok")
    A(f"s_sub_u32 s{S_CNT}, s{S_CNT}, 1")
    A(f"s_cmp_eq_u32 s{S_CNT}, 0")
    A("s_cbranch_scc1 L_h1poll_ok")
    if P.get("h1sleep", 0): A(f"s_sleep {P.get('h1sleep', 0)}")
    A("s_branch L_h1poll")
    A.lab("L_h1poll_ok")
    stamp(A, P, 7)
    A(f"v_max3_f32 v80, v{MC(0)}, v{MC(1)}, v{MC(2)}")
    A(f"v_max3_f32 v80, v80, v{MC(3)}, v{MC(4)}")
    A(f"v_max3_f32 v80, v80, v{MC(5)}, v{MC(6)}")
    A(f"v_max_f32 v80, v80, v{MC(7)}")
    for p in range(8): A(f"v_sub_f32 v{MC(p)}, v{MC(p)}, v80")
    for p in range(8): A(f"v_exp_f32 v{MC(p)}, v{MC(p)}")
    A(f"v_mul_f32 v81, v{MC(0)}, v{LL(0)}")
    for rr in range(4): A(f"v_mul_f32 v{84+rr}, v{MC(0)}, v{24+rr}")
    for p in range(1, 8):
        A(f"v_fmac_f32 v81, v{MC(p)}, v{LL(p)}")
        for rr in range(4): A(f"v_fmac_f32 v{84+rr}, v{MC(p)}, v{24+4*p+rr}")
    A("v_rcp_f32 v81, v81")
    for rr in range(4):
        A(f"v_mul_f32 v{84+rr}, v{84+rr}, v81")
    A("v_cvt_pk_bf16_f32 v88, v84, v85")
    A("v_cvt_pk_bf16_f32 v89, v86, v87")
    A(f"ds_write_b16 v90, v88 offset:{X2}")
    A(f"ds_write_b16_d16_hi v90, v88 offset:{X2 + 16}")
    A(f"ds_write_b16 v90, v89 offset:{X2 + 32}")
    A(f"ds_write_b16_d16_hi v90, v89 offset:{X2 + 48}")
    A("s_waitcnt lgkmcnt(0)")
    A.lab("L_wogemv")
    A("s_barrier")
    stamp(A, P, 8)
    gemv(A, 8, [0],
         lambda n, d: f"ds_read_b128 {vr(d,4)}, v104 offset:{X2 + 64*n}",
         lambda n, ct, u, d: f"ds_read_b64_tr_b16 {vr(d,2)}, v100 offset:{T_WO + 4096*n + 512*u}",
         lambda ct: 110, lambda k: 128 + 8 * k, lambda k, ct: 132 + 8 * k, 8)
    A("v_mov_b32 v8, v110")
    A("v_mov_b32 v10, v111")
    A("s_mov_b64 exec, 0xffff")
    A(f"buffer_store_dwordx4 v[8:11], v105, s[{SRD_WS}:{SRD_WS+3}], s87 offen sc1")
    A("s_mov_b64 exec, -1")
    stamp(A, P, 9)
    A.lab("L_final")
    A(f"s_cmp_lg_u32 s{S_WAVE}, 0")
    A("s_cbranch_scc1 L_end")
    A(f"s_cmp_eq_u32 s{S_FIN}, 255")
    A("s_cbranch_scc1 L_end")
    A("v_lshlrev_b32 v1, 4, v0")
    A(f"s_lshl_b32 s64, s{S_FIN}, 14")
    A(f"s_add_u32 s64, s64, {WS_SP}")
    for k in range(1, 4): A(f"s_add_u32 s{64+k}, s64, {4096*k}")
    srd(A, SRD_U, S_OUT, 2304)
    A("v_lshlrev_b32 v204, 1, v0")
    A(f"s_lshl_b32 s70, s{S_FIN}, 7")
    A("v_lshlrev_b32 v202, 16, v202")
    A("v_lshlrev_b32 v203, 16, v203")
    poll_begin(A, "L_h2poll")
    for n in range(16):
        A(f"buffer_load_dwordx4 v[{24+4*n}:{27+4*n}], v1, s[{SRD_WS}:{SRD_WS+3}], s{64+(n>>2)} offen offset:{1024*(n&3)} sc1")
    A("s_waitcnt vmcnt(0)")
    check_tags(A, [25 + 4 * n + 2 * k for n in range(16) for k in range(2)], 96)
    poll_end(A, "L_h2poll", P.get("h2sleep", 0))
    for step in (8, 4, 2, 1):
        for n in range(step):
            A(f"v_add_f32 v{24+4*n}, v{24+4*n}, v{24+4*(n+step)}")
            A(f"v_add_f32 v{26+4*n}, v{26+4*n}, v{26+4*(n+step)}")
    A("v_cvt_pk_bf16_f32 v96, v24, v26")
    A("v_and_b32 v97, 0xffff0000, v96")
    A("v_lshlrev_b32 v96, 16, v96")
    A("v_mul_f32 v96, v96, v200")
    A("v_mul_f32 v97, v97, v201")
    A("v_cvt_pk_bf16_f32 v96, v96, v97")
    A("v_and_b32 v97, 0xffff0000, v96")
    A("v_lshlrev_b32 v96, 16, v96")
    A("v_add_f32 v96, v96, v202")
    A("v_add_f32 v97, v97, v203")
    A("v_cvt_pk_bf16_f32 v96, v96, v97")
    A(f"buffer_store_short v96, v204, s[{SRD_U}:{SRD_U+3}], s70 offen")
    A(f"buffer_store_short_d16_hi v96, v204, s[{SRD_U}:{SRD_U+3}], s70 offen offset:1152")
    stamp(A, P, 10)
    if P.get("dbgdur"):
        A("s_memrealtime s[92:93]")
        A("s_waitcnt lgkmcnt(0)")
        A("s_sub_u32 s92, s92, s98")
        srd(A, SRD_U, S_DBG, 256)
        A("v_mov_b32 v96, s92")
        A(f"s_lshl_b32 s64, s{S_FIN}, 2")
        A("v_mov_b32 v97, 0")
        A("s_mov_b64 exec, 1")
        A(f"buffer_store_dword v96, v97, s[{SRD_U}:{SRD_U+3}], s64 offen")
        A("s_mov_b64 exec, -1")
    A(f"s_cmp_lg_u32 s{S_FIN}, 0")
    A("s_cbranch_scc1 L_end")
    A(f"v_mov_b32 v80, s{S_EPN}")
    A("v_mov_b32 v81, 0")
    A("s_mov_b64 exec, 1")
    A(f"buffer_store_dword v80, v81, s[{SRD_WS}:{SRD_WS+3}], 0 offen offset:{WS_EPOCH}")
    A("s_mov_b64 exec, -1")
    A("s_branch L_end")

    A.lab("L_att")
    DK = P.get("DK", 2)
    assert DK % 2 == 0 and DK <= 8
    A(f"s_sub_u32 s66, s{S_WAVE}, 2")
    A(f"s_lshl_b32 s64, s{S_B}, 4")
    A(f"s_add_u32 s64, s64, s{S_HKV}")
    A("s_lshr_b32 s65, s64, 9")
    A("s_lshl_b32 s64, s64, 23")
    A(f"s_add_u32 s{SRD_K}, s{S_K}, s64")
    A(f"s_addc_u32 s{SRD_K+1}, s{S_K+1}, s65")
    A(f"s_mov_b32 s{SRD_K+2}, 0x800000")
    A(f"s_mov_b32 s{SRD_K+3}, 0x20000")
    A(f"s_add_u32 s{SRD_V}, s{S_V}, s64")
    A(f"s_addc_u32 s{SRD_V+1}, s{S_V+1}, s65")
    A(f"s_mov_b32 s{SRD_V+2}, 0x800000")
    A(f"s_mov_b32 s{SRD_V+3}, 0x20000")
    S_KO, S_VO, S_RK, S_CLM, S_IT, S_POOL = 70, 71, 75, 76, 77, 78
    S_RV, S_PK, S_PVS, S_PV, S_NXT = 86, 87, 88, 89, 74
    S_PO = [67, 68, 69, 43]
    POOL = P.get("table", {}).get("pool", 160)
    A(f"s_add_u32 s{S_KO}, s{S_KV0}, s66")
    A(f"s_lshl_b32 s{S_KO}, s{S_KO}, 13")
    A(f"s_mov_b32 s{S_VO}, s{S_KO}")
    A(f"s_add_u32 s{S_PK}, s{S_NSB}, 1")
    A(f"s_sub_u32 s{S_PK}, s{S_PK}, s66")
    A(f"s_lshr_b32 s{S_PK}, s{S_PK}, 1")
    A(f"s_mov_b32 s{S_PVS}, s{S_PK}")
    A(f"s_mov_b32 s{S_RV}, s{S_PK}")
    A(f"s_sub_u32 s{S_RK}, s{S_PK}, {DK}")
    A(f"s_mov_b32 s{S_PV}, 0")
    A(f"s_mov_b32 s{S_IT}, 0")
    A("s_lshr_b32 s64, s2, 3")
    A("s_lshl_b32 s64, s64, 8")
    A(f"s_add_u32 s64, s64, {WS_CNT}")
    A(f"s_add_u32 s{S_POOL}, s{S_WS}, s64")
    A(f"s_addc_u32 s{S_POOL+1}, s{S_WS+1}, 0")
    VK0, VK1, VV0, VV1 = 2, 3, 4, 5
    A("v_bfe_u32 v6, v0, 2, 2")
    A("v_lshlrev_b32 v6, 8, v6")
    A("v_lshrrev_b32 v7, 4, v0")
    A("v_lshl_add_u32 v6, v7, 6, v6")
    A("v_and_b32 v7, 3, v0")
    A(f"v_lshl_add_u32 v{VK0}, v7, 4, v6")
    A(f"v_add_u32 v{VK1}, 4096, v{VK0}")
    A(f"v_lshlrev_b32 v{VV0}, 4, v0")
    A(f"v_add_u32 v{VV1}, 4096, v{VV0}")
    UA = lambda s, n: 32 * s + 4 * n
    def issue(kind, s, soff):
        vb, sd, fl = (VK0, SRD_K, FLK) if kind == "K" else (VV0, SRD_V, FLV)
        for n in range(8):
            A(f"buffer_load_dwordx4 {ar(UA(s,n),4)}, v{vb+(n>>2)}, s[{sd}:{sd+3}], s{soff} offen offset:{1024*(n&3)} {fl}")
    lead = P.get("lead", 2)
    early = P.get("early", 1)
    for s in range(DK):
        if s == early:
            A("s_barrier")
            stamp(A, P, 0)
        if s >= lead: A(f"s_waitcnt vmcnt({8*(lead-1)})")
        issue("K", s, S_KO)
        A(f"s_add_u32 s{S_KO}, s{S_KO}, 16384")
    if early >= DK:
        A("s_barrier")
    stamp(A, P, 1)
    VQ = 8
    VSW, VSR = 12, 13
    VMX = 14
    VSC = 16
    VM = 24
    VACC = 28
    VMC, VL_ = 32, 33
    VS = 36
    VP = 44
    VB = 52
    VT = 64
    VD = 68
    VPK = 100
    A("v_and_b32 v6, 3, v0")
    A("v_bfe_u32 v7, v0, 3, 1")
    A("v_lshl_add_u32 v6, v7, 2, v6")
    A("v_and_b32 v7, 1, v6")
    A("v_mov_b32 v64, 0xffff")
    A("v_lshlrev_b32 v7, 4, v7")
    A("v_lshlrev_b32 v64, v7, v64")
    A("v_lshrrev_b32 v6, 1, v6")
    for q in range(4):
        A(f"v_cmp_eq_u32 vcc, {q}, v6")
        A(f"v_cndmask_b32 v{VM+q}, 0, v64, vcc")
    for k in range(4): A(f"v_mov_b32 v{VACC+k}, 0")
    A(f"v_mov_b32 v{VMX}, 0xff800000")
    A(f"v_mov_b32 v{VL_}, 0")
    A("v_bfe_u32 v6, v0, 2, 1")
    A("v_lshrrev_b32 v7, 4, v0")
    A("v_lshl_add_u32 v7, v6, 2, v7")
    A("v_lshlrev_b32 v7, 4, v7")
    A("s_lshl_b32 s64, s66, 13")
    A(f"s_add_u32 s64, s64, {SCORES}")
    A(f"v_add_u32 v{VSW}, s64, v7")
    A(f"v_mov_b32 v{VSR}, v{VSW}")
    A("v_lshlrev_b32 v6, 8, v6")
    A("v_lshrrev_b32 v7, 4, v0")
    A("v_lshl_add_u32 v6, v7, 6, v6")
    A("v_and_b32 v7, 3, v0")
    A("v_lshl_add_u32 v6, v7, 4, v6")
    A(f"s_mov_b32 s72, {hex(f2u(SCALE))}")
    A(f"s_mov_b32 s73, {hex(f2u(LOG2E))}")
    A("v_mov_b32 v34, 0")
    A("s_waitcnt lgkmcnt(0)")
    A(f"s_add_u32 s{S_EPN}, s{S_EPO}, 1")
    A(f"s_mul_i32 s{S_TAG}, s{S_EPN}, 0x9E3779B1")
    A(f"s_xor_b32 s{S_TAG}, s{S_TAG}, 0x5bd1e995")
    wait_lds(A, "L_qwait", QRDY, 1, 1, tv=66)
    A(f"ds_read_b128 v[{VQ}:{VQ+3}], v6 offset:{Q_LDS}")
    A("s_waitcnt lgkmcnt(0)")
    stamp(A, P, 2)
    A(f"s_mov_b32 s{S_CLM}, 1")
    A(f"s_atomic_add s{S_CLM}, s[{S_POOL}:{S_POOL+1}], 0 glc")

    def progress():
        A(f"s_add_u32 s{S_IT}, s{S_IT}, 1")
        A(f"v_mov_b32 v35, s{S_IT}")
        A(f"ds_write_b32 v34, v35 offset:{PROG}")
        if P.get("stamps"):
            for idx, itv in ((5, 16), (6, 48), (7, 80), (10, 104)):
                l = A.uniq("L_st")
                A(f"s_cmp_lg_u32 s{S_IT}, {itv}")
                A(f"s_cbranch_scc1 {l}")
                stamp(A, P, idx)
                A.lab(l)
    def qk_mfma(s):
        for n in range(8):
            A(f"v_mfma_f32_16x16x32_bf16 {vr(VD+4*n,4)}, {ar(UA(s,n),4)}, {vr(VQ,4)}, 0")
    def qk_reduce():
        for c in range(4):
            for n in range(8):
                pat = f"quad_perm:[{c},{c},{c},{c}] row_mask:0xf bank_mask:0xf"
                if c == 0: A(f"v_mov_b32_dpp v{VS+n}, v{VD+4*n} {pat}")
                else: A(f"v_add_f32_dpp v{VS+n}, v{VD+4*n+c}, v{VS+n} {pat}")
        for k in range(0, 8, 2):
            A(f"v_cvt_pk_bf16_f32 v{VT+(k>>1)}, v{VS+k}, v{VS+k+1}")
        for k in range(0, 8, 2):
            A(f"v_lshlrev_b32 v{VS+k}, 16, v{VT+(k>>1)}")
            A(f"v_and_b32 v{VS+k+1}, 0xffff0000, v{VT+(k>>1)}")
        for k in range(8): A(f"v_mul_f32 v{VS+k}, s72, v{VS+k}")
        for k in range(0, 8, 2):
            A(f"v_cvt_pk_bf16_f32 v{VPK+(k>>1)}, v{VS+k}, v{VS+k+1}")
    def unpack(src):
        for k in range(4):
            A(f"v_lshlrev_b32 v{VS+2*k}, 16, v{src+k}")
            A(f"v_and_b32 v{VS+2*k+1}, 0xffff0000, v{src+k}")
    def pv(s):
        for k in range(8): A(f"v_fma_f32 v{VP+k}, v{VS+k}, s73, -v{VMC}")
        for k in range(8): A(f"v_exp_f32 v{VP+k}, v{VP+k}")
        def prep(k):
            bb = VB + 4 * (k % 3)
            A(f"v_cvt_pk_bf16_f32 v{VT+2}, v{VP+k}, v{VP+k}")
            for q in range(4): A(f"v_and_b32 v{bb+q}, v{VT+2}, v{VM+q}")
        prep(0); prep(1)
        A(f"v_add_f32 v{VT}, v{VP}, v{VP+1}")
        A(f"v_add_f32 v{VT+1}, v{VP+2}, v{VP+3}")
        A(f"s_waitcnt vmcnt({8*(DK-1)})")
        for k in range(8):
            bb = VB + 4 * (k % 3)
            A(f"v_mfma_f32_16x16x32_bf16 {vr(VACC,4)}, {ar(UA(s,k),4)}, {vr(bb,4)}, {vr(VACC,4)}")
            if k + 2 < 8: prep(k + 2)
            if k == 1: A(f"v_add_f32 v{VT}, v{VT}, v{VP+4}"); A(f"v_add_f32 v{VT+1}, v{VT+1}, v{VP+5}")
            if k == 2: A(f"v_add_f32 v{VT}, v{VT}, v{VP+6}"); A(f"v_add_f32 v{VT+1}, v{VT+1}, v{VP+7}")
            if k == 3: A(f"v_add_f32 v{VT}, v{VT}, v{VT+1}"); A(f"v_add_f32 v{VL_}, v{VL_}, v{VT}")
    def pool_refill(s):
        po = S_PO[s >> 1]
        if s & 1:
            issue("V", s, po)
            return
        ldead, lgo = A.uniq("L_dead"), A.uniq("L_go")
        A("s_waitcnt lgkmcnt(0)")
        A(f"s_cmp_lt_u32 s{S_CLM}, {POOL}")
        A(f"s_cbranch_scc0 {ldead}")
        A(f"s_add_u32 s{po}, s{S_CLM}, {1024 - POOL}")
        A(f"s_lshl_b32 s{po}, s{po}, 13")
        A(f"s_add_u32 s{S_PV}, s{S_PV}, 1")
        A(f"s_mov_b32 s{S_CLM}, 1")
        A(f"s_atomic_add s{S_CLM}, s[{S_POOL}:{S_POOL+1}], 0 glc")
        A(f"s_branch {lgo}")
        A.lab(ldead)
        A(f"s_mov_b32 s{SRD_K+2}, 0")
        A(f"s_mov_b32 s{SRD_V+2}, 0")
        A(f"s_mov_b32 s{po}, 0")
        A.lab(lgo)
        issue("K", s, po)

    A.lab("L_kloop")
    for s in range(DK):
        A.lab(f"L_k{s}")
        A(f"s_waitcnt vmcnt({8*(DK-1)})")
        qk_mfma(s)
        lv, lr = A.uniq("L_kv"), A.uniq("L_kr")
        A(f"s_cmp_eq_u32 s{S_RK}, 0")
        A(f"s_cbranch_scc1 {lv}")
        issue("K", s, S_KO)
        A(f"s_add_u32 s{S_KO}, s{S_KO}, 16384")
        A(f"s_sub_u32 s{S_RK}, s{S_RK}, 1")
        A(f"s_branch {lr}")
        A.lab(lv)
        issue("V", s, S_VO)
        A(f"s_add_u32 s{S_VO}, s{S_VO}, 16384")
        A(f"s_sub_u32 s{S_RV}, s{S_RV}, 1")
        A.lab(lr)
        qk_reduce()
        for k in range(0, 8, 2): A(f"v_max3_f32 v{VMX}, v{VMX}, v{VS+k}, v{VS+k+1}")
        A("s_mov_b32 exec_lo, 0x00110011")
        A("s_mov_b32 exec_hi, 0x00110011")
        A(f"ds_write_b128 v{VSW}, v[{VPK}:{VPK+3}]")
        A("s_mov_b64 exec, -1")
        A(f"v_add_u32 v{VSW}, 128, v{VSW}")
        progress()
        A(f"s_sub_u32 s{S_PK}, s{S_PK}, 1")
        A(f"s_cmp_eq_u32 s{S_PK}, 0")
        if s < DK - 1:
            A(f"s_cselect_b32 s{S_NXT}, {s+1}, s{S_NXT}")
            A("s_cbranch_scc1 L_kdone")
        else:
            A(f"s_cselect_b32 s{S_NXT}, 0, s{S_NXT}")
            A("s_cbranch_scc0 L_kloop")
    A.lab("L_kdone")
    round_bf16(A, VMC, VMX)
    A(f"v_mul_f32 v{VMC}, s73, v{VMC}")
    swap16(A, VMC, VT, "v_max_f32")
    swap32(A, VMC, VT, "v_max_f32")
    A("s_waitcnt lgkmcnt(0)")
    stamp(A, P, 12)
    for s in range(DK):
        l = A.uniq("L_kn")
        A(f"s_cmp_lg_u32 s{S_NXT}, {s}")
        A(f"s_cbranch_scc1 {l}")
        A(f"ds_read_b128 v[{VSC+4*(s&1)}:{VSC+4*(s&1)+3}], v{VSR}")
        A(f"s_branch L_v{s}")
        A.lab(l)
    A.lab("L_vloop")
    for s in range(DK):
        A.lab(f"L_v{s}")
        A("s_waitcnt lgkmcnt(0)")
        nb = (s + 1) & 1
        A(f"ds_read_b128 v[{VSC+4*nb}:{VSC+4*nb+3}], v{VSR} offset:128")
        A(f"v_add_u32 v{VSR}, 128, v{VSR}")
        unpack(VSC + 4 * (s & 1))
        pv(s)
        lp, lr = A.uniq("L_vp"), A.uniq("L_vr")
        A(f"s_cmp_eq_u32 s{S_RV}, 0")
        A(f"s_cbranch_scc1 {lp}")
        issue("V", s, S_VO)
        A(f"s_add_u32 s{S_VO}, s{S_VO}, 16384")
        A(f"s_sub_u32 s{S_RV}, s{S_RV}, 1")
        A(f"s_branch {lr}")
        A.lab(lp)
        pool_refill(s)
        A.lab(lr)
        progress()
        A(f"s_sub_u32 s{S_PVS}, s{S_PVS}, 1")
        if s & 1:
            A(f"s_cmp_eq_u32 s{S_PVS}, 0")
            A(f"s_cbranch_scc1 L_p{((s + 1) % DK) >> 1}")
        if s == DK - 1: A("s_branch L_vloop")
    A.lab("L_ploop")
    for a in range(DK // 2):
        sk, sv = 2 * a, 2 * a + 1
        A.lab(f"L_p{a}")
        A(f"s_cmp_eq_u32 s{S_PV}, 0")
        A("s_cbranch_scc1 L_att_done")
        A(f"s_sub_u32 s{S_PV}, s{S_PV}, 1")
        A(f"s_waitcnt vmcnt({8*(DK-1)})")
        qk_mfma(sk)
        pool_refill(sk)
        qk_reduce()
        unpack(VPK)
        A(f"v_max3_f32 v{VT}, v{VS}, v{VS+1}, v{VS+2}")
        A(f"v_max3_f32 v{VT}, v{VT}, v{VS+3}, v{VS+4}")
        A(f"v_max3_f32 v{VT}, v{VT}, v{VS+5}, v{VS+6}")
        A(f"v_max_f32 v{VT}, v{VT}, v{VS+7}")
        A(f"v_mul_f32 v{VT}, s73, v{VT}")
        A(f"v_cmp_gt_f32 vcc, v{VT}, v{VMC}")
        skip = A.uniq("L_nomax")
        A(f"s_cbranch_vccz {skip}")
        swap16(A, VT, VT + 1, "v_max_f32")
        swap32(A, VT, VT + 1, "v_max_f32")
        A(f"v_max_f32 v{VT}, v{VT}, v{VMC}")
        A(f"v_sub_f32 v{VT+1}, v{VMC}, v{VT}")
        A(f"v_exp_f32 v{VT+1}, v{VT+1}")
        A(f"v_mov_b32 v{VMC}, v{VT}")
        for k in range(4): A(f"v_mul_f32 v{VACC+k}, v{VACC+k}, v{VT+1}")
        A(f"v_mul_f32 v{VL_}, v{VL_}, v{VT+1}")
        A.lab(skip)
        pv(sv)
        pool_refill(sv)
        progress()
        progress()
        if a == DK // 2 - 1: A("s_branch L_ploop")
    A.lab("L_att_done")
    A("v_mov_b32 v35, 0xffff")
    A(f"ds_write_b32 v34, v35 offset:{PROG}")
    stamp(A, P, 3)
    if P.get("stamps"): A(f"v_writelane_b32 v253, s{S_IT}, 11")
    swap16(A, VL_, VT, "v_add_f32")
    swap32(A, VL_, VT, "v_add_f32")
    A(f"v_lshlrev_b32 v1, 4, v0")
    A(f"v_lshlrev_b32 v6, 3, v0")
    A(f"s_cmp_eq_u32 s{S_WAVE}, 2")
    A("s_cbranch_scc1 L_att0")
    A(f"ds_write_b128 v1, v[{VACC}:{VACC+3}] offset:{MERGE}")
    A(f"ds_write_b64 v6, v[{VMC}:{VMC+1}] offset:{MERGE + 1024}")
    A("s_waitcnt lgkmcnt(0)")
    A("s_barrier")
    A("s_branch L_att_join")
    A.lab("L_att0")
    A(f"s_lshl_b32 s64, s{S_REC}, 10")
    A(f"s_add_u32 s64, s64, {WS_H1O}")
    A(f"s_lshl_b32 s65, s{S_REC}, 7")
    A(f"s_add_u32 s65, s65, {WS_H1ML}")
    A("s_barrier")
    A(f"ds_read_b128 v[68:71], v1 offset:{MERGE}")
    A(f"ds_read_b64 v[72:73], v6 offset:{MERGE + 1024}")
    A("s_waitcnt lgkmcnt(0)")
    A(f"v_max_f32 v74, v{VMC}, v72")
    A(f"v_sub_f32 v75, v{VMC}, v74")
    A("v_sub_f32 v76, v72, v74")
    A("v_exp_f32 v75, v75")
    A("v_exp_f32 v76, v76")
    for k in range(4):
        A(f"v_mul_f32 v{VACC+k}, v{VACC+k}, v75")
        A(f"v_fmac_f32 v{VACC+k}, v{68+k}, v76")
    A(f"v_mul_f32 v{VL_}, v{VL_}, v75")
    A(f"v_fmac_f32 v{VL_}, v73, v76")
    A(f"buffer_store_dwordx4 v[{VACC}:{VACC+3}], v1, s[{SRD_WS}:{SRD_WS+3}], s64 offen sc1")
    A("v_readlane_b32 s66, v74, 0")
    A(f"v_readlane_b32 s67, v{VL_}, 0")
    A("v_readlane_b32 s68, v74, 4")
    A(f"v_readlane_b32 s69, v{VL_}, 4")
    for k in range(4): A(f"v_mov_b32 v{68+k}, s{66+k}")
    A("s_mov_b64 exec, 0xff")
    A(f"buffer_store_dwordx4 v[68:71], v1, s[{SRD_WS}:{SRD_WS+3}], s65 offen sc1")
    A("s_mov_b64 exec, -1")
    stamp(A, P, 4)
    A.lab("L_att_join")
    A(f"s_cmp_eq_u32 s{S_WCB}, 255")
    A("s_cbranch_scc1 L_end")
    wo_prep()
    A("s_branch L_wogemv")
    A.lab("L_end")
    stamp_flush(A, P)
    A.lab("L_exit")
    A("s_endpgm")
    body = fix_hazards(A.L[body_start:], verbose=P.get("verbose", False))
    out = A.L[:body_start] + body
    out.append(".p2align 6")
    out.append(".type L_table,@object")
    out.append("L_table:")
    for row in tab: out.append("  .long " + ", ".join(str(v) for v in row))
    out.append(".size L_table, 8192")
    out += ['.section .rodata,"a"', ".p2align 6", f".amdhsa_kernel {NAME}",
            "  .amdhsa_next_free_vgpr 512", "  .amdhsa_next_free_sgpr 102", "  .amdhsa_accum_offset 256",
            "  .amdhsa_group_segment_fixed_size 0", "  .amdhsa_kernarg_size 96", "  .amdhsa_user_sgpr_count 2",
            "  .amdhsa_user_sgpr_kernarg_segment_ptr 1", "  .amdhsa_system_sgpr_workgroup_id_x 1",
            "  .amdhsa_float_denorm_mode_32 3",
            ".end_amdhsa_kernel"]
    return "\n".join(out) + "\n"

if __name__ == "__main__":
    P = eval(sys.argv[2]) if len(sys.argv) > 2 else {}
    P.setdefault("verbose", True)
    s = gen(P)
    open(sys.argv[1] if len(sys.argv) > 1 else "k.s", "w").write(s)
```

```python
import struct, sys, math
from asmlib import Asm, fix_hazards, vr, ar, sr

NAME = "recurrent_scan__gqa_block_cached__geglu_ffn__decode_kernel"

def f2u(x): return struct.unpack("<I", struct.pack("<f", x))[0]

WS_EPOCH = 0
WS_QP   = 0x001000
WS_H1O  = 0x050000
WS_H1ML = 0x090000
WS_GU   = 0x0A0000
WS_YP   = 0x100000
WS_SP   = 0x1B0000
WS_CNT  = 0x1E0000
WS_DBG  = 0x200000
WS_SIZE = 0x400000

X_LN, XROW = 0, 1184
Q_LDS = 2432
X2, X2ROW = 3072, 576
X3, X3ROW = 4352, 192
MERGE = 4864
PROG = 2368
QRDY = 2372
QPUB = 2376
DEADF = 2380
PUBD = 2384
T_WQ = 6400
XH = T_WQ
T_WO = T_WQ + 20480
T_FFN = T_WO + 32768
SCORES = T_FFN + 73728
LDS_BYTES = SCORES + 16384

LOG2E = 1.4426950408889634
SCALE = 128 ** -0.5
POLL_LIMIT = 400000

S_WAVE = 3
S_X, S_K, S_V, S_WQ, S_WO, S_BX, S_WG, S_WU = 4, 6, 8, 10, 12, 14, 16, 18
S_WD, S_OUT, S_DBG, S_WS = 20, 22, 24, 26
S_KV0, S_NSB, S_FT, S_FCB, S_WCB, S_FIN = 28, 29, 30, 31, 32, 33
S_HKV, S_B, S_M, S_REC = 36, 37, 38, 39
S_EPO, S_TAG, S_EPN = 40, 41, 42
SRD_K, SRD_V, SRD_WS, SRD_T, SRD_U = 44, 48, 52, 56, 60
SG1, SG2, SG3 = 80, 82, 84
S_CNT = 91
S_T0 = 92

def make_table(wside=0.8, c_ffn=72.0, c_wo=0.0, c_fin=12.0, pool=128, adj=None):
    info = {w: dict(x=w & 7, g=w >> 3, j=w & 7, ft=0, fcb=0, wcb=255, fin=255) for w in range(256)}
    free = lambda w: ((w & 7) == (w >> 3) % 8) or ((w >> 3) < 8 and (w & 7) == ((w >> 3) + 4) % 8)
    e = 0
    for w in range(256):
        if not free(w):
            info[w]["ft"] = 1 + e % 3; info[w]["fcb"] = e // 3; e += 1
    assert e == 216
    xcnt = [0] * 8
    for c in range(16):
        chosen = []
        quota = {2 * c: 5 if c % 2 == 0 else 4, 2 * c + 1: 4 if c % 2 == 0 else 5}
        mem = list(range(16 * c, 16 * c + 16))
        for w in mem:
            if free(w): chosen.append(w); quota[w >> 3] -= 1; xcnt[w & 7] += 1
        while len(chosen) < 9:
            cand = [w for w in mem if w not in chosen and quota[w >> 3] > 0]
            w = min(cand, key=lambda v: (xcnt[v & 7], v))
            chosen.append(w); quota[w >> 3] -= 1; xcnt[w & 7] += 1
        for cb, w in enumerate(chosen): info[w]["wcb"] = cb
    frees = [w for w in range(64) if free(w)]
    more = [w for w in range(64, 256) if free(w)]
    fins = [frees[0], frees[3], frees[4], frees[7], frees[8], frees[11], frees[12], frees[15], more[5]]
    assert len(fins) == 9
    for f, w in enumerate(fins): info[w]["fin"] = f
    static_total = 1024 - pool
    for g in range(32):
        ws_ = list(range(8 * g, 8 * g + 8))
        side = []
        for w in ws_:
            i = info[w]
            sd = (c_ffn if i["ft"] else 0) + (c_wo if i["wcb"] != 255 else 0) + (c_fin if i["fin"] != 255 else 0)
            if adj: sd += adj(w, i)
            side.append(sd * wside)
        tot = static_total * 16 + sum(side)
        ideal = [(tot / 8 - sd) / 16 for sd in side]
        n = [int(math.floor(v)) for v in ideal]
        rem = static_total - sum(n)
        order = sorted(range(8), key=lambda k: -(ideal[k] - n[k]))
        for k in order[:rem]: n[k] += 1
        assert sum(n) == static_total and min(n) >= 16 and max(n) <= 126
        st = 0
        for k, w in enumerate(ws_):
            info[w]["kv0"] = st; info[w]["nsb"] = n[k]; st += n[k]
        info[ws_[0]]["side_total"] = sum(side)
    tab = [[info[w]["kv0"], info[w]["nsb"], info[w]["ft"], info[w]["fcb"], info[w]["wcb"], info[w]["fin"], 0, 0] for w in range(256)]
    return tab, info

def gemv(A, nsteps, cts, a_read, tr_read, acc, abuf, bbuf, nbuf):
    reads = []
    last = {}
    for n in range(nsteps):
        reads.append((n, a_read(n, abuf(n % nbuf))))
        for ct in cts:
            for u in range(2):
                reads.append((n, tr_read(n, ct, u, bbuf(n % nbuf, ct) + 2 * u)))
            last[(n, ct)] = len(reads) - 1
    issued = 0; done = 0
    for n in range(nsteps):
        for ci, ct in enumerate(cts):
            while issued < len(reads) and (issued - done) < 15 and reads[issued][0] < n + nbuf - (0 if ci == 0 or True else 0):
                if reads[issued][0] - nbuf >= n: break
                A(reads[issued][1]); issued += 1
            need = last[(n, ct)]
            assert issued > need, (issued, need, n, ct)
            if done <= need:
                k = issued - 1 - need
                A(f"s_waitcnt lgkmcnt({k})")
                done = need + 1
            c = "0" if n == 0 else vr(acc(ct), 4)
            A(f"v_mfma_f32_16x16x32_bf16 {vr(acc(ct),4)}, {vr(abuf(n % nbuf),4)}, {vr(bbuf(n % nbuf, ct),4)}, {c}")

def poll_begin(A, name):
    A(f"s_mov_b32 s{S_CNT}, {POLL_LIMIT}")
    A.lab(name)

def poll_end(A, name, sleep):
    ok = name + "_ok"
    A(f"s_cbranch_vccz {ok}")
    A(f"s_sub_u32 s{S_CNT}, s{S_CNT}, 1")
    A(f"s_cmp_eq_u32 s{S_CNT}, 0")
    A(f"s_cbranch_scc1 {ok}")
    if sleep: A(f"s_sleep {sleep}")
    A(f"s_branch {name}")
    A.lab(ok)

def wait_progress(A, name, thr):
    A(f"s_mov_b32 s{S_CNT}, {POLL_LIMIT}")
    A("v_mov_b32 v250, 0")
    A.lab(name)
    A(f"ds_read_b32 v251, v250 offset:{PROG}")
    A("s_waitcnt lgkmcnt(0)")
    A("v_readfirstlane_b32 s90, v251")
    A(f"s_cmp_ge_u32 s90, {thr}")
    A(f"s_cbranch_scc1 {name}_ok")
    A(f"s_sub_u32 s{S_CNT}, s{S_CNT}, 1")
    A(f"s_cmp_eq_u32 s{S_CNT}, 0")
    A(f"s_cbranch_scc1 {name}_ok")
    A("s_sleep 8")
    A(f"s_branch {name}")
    A.lab(name + "_ok")

def wait_lds(A, name, off, thr, sleep, tv=250):
    A(f"s_mov_b32 s{S_CNT}, {POLL_LIMIT * 8}")
    A(f"v_mov_b32 v{tv}, 0")
    A.lab(name)
    A(f"ds_read_b32 v{tv+1}, v{tv} offset:{off}")
    A("s_waitcnt lgkmcnt(0)")
    A(f"v_readfirstlane_b32 s90, v{tv+1}")
    A(f"s_cmp_ge_u32 s90, {thr}")
    A(f"s_cbranch_scc1 {name}_ok")
    A(f"s_sub_u32 s{S_CNT}, s{S_CNT}, 1")
    A(f"s_cmp_eq_u32 s{S_CNT}, 0")
    A(f"s_cbranch_scc1 {name}_ok")
    if sleep: A(f"s_sleep {sleep}")
    A(f"s_branch {name}")
    A.lab(name + "_ok")

def wait_counter(A, name, off, thr, sleep):
    A(f"s_mov_b32 s{S_CNT}, {POLL_LIMIT}")
    A.lab(name)
    A("s_mov_b32 s90, 0")
    A(f"s_atomic_add s90, s[{S_DBG}:{S_DBG+1}], {off} glc")
    A("s_waitcnt lgkmcnt(0)")
    A(f"s_cmp_ge_u32 s90, {thr}")
    A(f"s_cbranch_scc1 {name}_ok")
    A(f"s_sub_u32 s{S_CNT}, s{S_CNT}, 1")
    A(f"s_cmp_eq_u32 s{S_CNT}, 0")
    A(f"s_cbranch_scc1 {name}_ok")
    A(f"s_sleep {sleep}")
    A(f"s_branch {name}")
    A.lab(name + "_ok")

def check_tags(A, tags, t):
    A(f"v_max3_u32 v{t}, v{tags[0]}, v{tags[1]}, v{tags[2]}")
    A(f"v_min3_u32 v{t+1}, v{tags[0]}, v{tags[1]}, v{tags[2]}")
    rest = tags[3:]
    for k in range(0, len(rest), 2):
        a = rest[k]; b_ = rest[min(k + 1, len(rest) - 1)]
        A(f"v_max3_u32 v{t}, v{t}, v{a}, v{b_}")
        A(f"v_min3_u32 v{t+1}, v{t+1}, v{a}, v{b_}")
    A(f"v_xor_b32 v{t}, v{t}, v{t+1}")
    A(f"v_xor_b32 v{t+1}, s{S_TAG}, v{t+1}")
    A(f"v_or_b32 v{t}, v{t}, v{t+1}")
    A(f"v_cmp_ne_u32 vcc, 0, v{t}")

def reduce16(A, v, op="v_add_f32"):
    for k in (8, 4, 2, 1):
        A(f"{op}_dpp {vr(v)}, {vr(v)}, {vr(v)} row_ror:{k} row_mask:0xf bank_mask:0xf")

def swap16(A, v, t, op):
    A(f"v_mov_b32 {vr(t)}, {vr(v)}")
    A(f"v_permlane16_swap_b32 {vr(v)}, {vr(t)}")
    A(f"{op} {vr(v)}, {vr(v)}, {vr(t)}")

def swap32(A, v, t, op):
    A(f"v_mov_b32 {vr(t)}, {vr(v)}")
    A(f"v_permlane32_swap_b32 {vr(v)}, {vr(t)}")
    A(f"{op} {vr(v)}, {vr(v)}, {vr(t)}")

def round_bf16(A, dst, src):
    A(f"v_cvt_pk_bf16_f32 {vr(dst)}, {vr(src)}, {vr(src)}")
    A(f"v_and_b32 {vr(dst)}, 0xffff0000, {vr(dst)}")

def srd(A, base, ptr, nrec, off=None):
    if off is None:
        A(f"s_mov_b32 s{base}, s{ptr}")
        A(f"s_mov_b32 s{base+1}, s{ptr+1}")
    else:
        lo, hi = off
        A(f"s_add_u32 s{base}, s{ptr}, s{lo}")
        A(f"s_addc_u32 s{base+1}, s{ptr+1}, {hi}")
    A(f"s_mov_b32 s{base+2}, {nrec}")
    A(f"s_mov_b32 s{base+3}, 0x20000")

def stamp(A, P, idx):
    if not P.get("stamps"): return
    A("s_memrealtime s[92:93]")
    A("s_waitcnt lgkmcnt(0)")
    A(f"v_writelane_b32 v253, s92, {idx}")

def stamp_flush(A, P):
    if not P.get("stamps"): return
    A(f"s_lshl_b32 s94, s2, 2")
    A(f"s_add_u32 s94, s94, s{S_WAVE}")
    A(f"s_lshl_b32 s94, s94, 6")
    A(f"s_add_u32 s94, s94, {WS_DBG}")
    A("v_lshlrev_b32 v254, 2, v0")
    A("s_mov_b64 exec, 0xffff")
    A(f"buffer_store_dword v253, v254, s[{SRD_WS}:{SRD_WS+3}], s94 offen")

def dma_voff(A, vE, vO, stride, vL, t0, t1):
    A(f"v_lshrrev_b32 {vr(t0)}, 3, {vr(vL)}")
    A(f"s_mov_b32 s64, {stride}")
    A(f"v_mul_lo_u32 {vr(vE)}, {vr(t0)}, s64")
    A(f"v_bfe_u32 {vr(t0)}, {vr(vL)}, 4, 1")
    A(f"v_lshlrev_b32 {vr(t0)}, 1, {vr(t0)}")
    A(f"v_and_b32 {vr(t1)}, 7, {vr(vL)}")
    A(f"v_xor_b32 {vr(t0)}, {vr(t0)}, {vr(t1)}")
    A(f"v_lshl_add_u32 {vr(vE)}, {vr(t0)}, 4, {vr(vE)}")
    A(f"v_xor_b32 {vr(vO)}, 64, {vr(vE)}")

def tr_addr(A, vT, vL, t0, t1):
    A(f"v_lshrrev_b32 {vr(t0)}, 4, {vr(vL)}")
    A(f"v_bfe_u32 {vr(t1)}, {vr(vL)}, 2, 2")
    A(f"v_lshl_add_u32 {vr(vT)}, {vr(t0)}, 3, {vr(t1)}")
    A(f"v_lshlrev_b32 {vr(vT)}, 7, {vr(vT)}")
    A(f"v_and_b32 {vr(t0)}, 1, {vr(t0)}")
    A(f"v_lshlrev_b32 {vr(t0)}, 1, {vr(t0)}")
    A(f"v_lshrrev_b32 {vr(t1)}, 1, {vr(t1)}")
    A(f"v_or_b32 {vr(t0)}, {vr(t0)}, {vr(t1)}")
    A(f"v_lshlrev_b32 {vr(t0)}, 1, {vr(t0)}")
    A(f"v_bfe_u32 {vr(t1)}, {vr(vL)}, 1, 1")
    A(f"v_xor_b32 {vr(t0)}, {vr(t0)}, {vr(t1)}")
    A(f"v_lshl_add_u32 {vr(vT)}, {vr(t0)}, 4, {vr(vT)}")
    A(f"v_and_b32 {vr(t0)}, 1, {vr(vL)}")
    A(f"v_lshl_add_u32 {vr(vT)}, {vr(t0)}, 3, {vr(vT)}")
    for ct in range(1, 4):
        A(f"v_xor_b32 {vr(vT+ct)}, {32*ct}, {vr(vT)}")

def sel_by_group(A, dst, regs):
    A(f"v_cndmask_b32 {vr(dst)}, {vr(regs[0])}, {vr(regs[1])}, s[{SG1}:{SG1+1}]")
    A(f"v_cndmask_b32 {vr(dst)}, {vr(dst)}, {vr(regs[2])}, s[{SG2}:{SG2+1}]")
    A(f"v_cndmask_b32 {vr(dst)}, {vr(dst)}, {vr(regs[3])}, s[{SG3}:{SG3+1}]")

def gen(P=None):
    P = P or {}
    D = P.get("D", 2)
    FL = P.get("kvflags", "nt")
    FLK = P.get("kflags", FL); FLV = P.get("vflags", FL)
    HST = P.get("hst", "sc1"); HLD = P.get("hld", "sc1")
    WFL = P.get("wflags", "nt")
    tab, info = make_table(**P.get("table", {}))
    if P.get("no_ffn"):
        for row in tab: row[2] = 0; row[5] = 255
    if P.get("only_gu"):
        for row in tab:
            if row[2] == 3: row[2] = 0
            row[5] = 255
    if P.get("only_dn"):
        for row in tab:
            if row[2] in (1, 2): row[2] = 0
            row[5] = 255
    if P.get("no_y"):
        for row in tab: row[5] = 255
    if P.get("no_wo"):
        for row in tab: row[4] = 255; row[5] = 255
    A = Asm()
    A.L += open(P.get("header", "recurrent_scan__gqa_block_cached__geglu_ffn__decode.s.ref")).read().split("; Override launch")[0].rstrip("\n").split("\n")
    A.L.append(f"; @launch grid=(256,1,1) block=(256,1,1) lds={LDS_BYTES}")
    A('.amdgcn_target "amdgcn-amd-amdhsa--gfx950"')
    A(".text")
    A(f".globl {NAME}")
    A(".p2align 8")
    A(f".type {NAME},@function")
    body_start = len(A.L)
    A.lab(NAME)
    A("s_cmp_ge_u32 s2, 256")
    A("s_cbranch_scc1 L_exit")
    A("s_load_dwordx16 s[4:19], s[0:1], 0")
    A("s_load_dwordx8 s[20:27], s[0:1], 64")
    A("s_getpc_b64 s[64:65]")
    A.lab("L_pc")
    A("s_add_u32 s64, s64, L_table-L_pc")
    A("s_addc_u32 s65, s65, 0")
    A("s_lshl_b32 s66, s2, 5")
    A("s_add_u32 s64, s64, s66")
    A("s_addc_u32 s65, s65, 0")
    A("s_load_dwordx8 s[28:35], s[64:65], 0")
    A("v_lshrrev_b32 v1, 6, v0")
    A("v_and_b32 v0, 63, v0")
    A(f"v_readfirstlane_b32 s{S_WAVE}, v1")
    if P.get("stamps"):
        A("v_mov_b32 v253, 0")
        stamp(A, P, 15)
    A(f"s_lshr_b32 s{S_HKV}, s2, 4")
    A(f"s_and_b32 s{S_M}, s2, 15")
    A(f"s_lshr_b32 s{S_B}, s{S_M}, 3")
    A(f"s_mov_b32 s{S_REC}, s2")
    A(f"s_mov_b32 s{SG1}, 0xffff0000")
    A(f"s_mov_b32 s{SG1+1}, 0")
    A(f"s_mov_b32 s{SG2}, 0")
    A(f"s_mov_b32 s{SG2+1}, 0xffff")
    A(f"s_mov_b32 s{SG3}, 0")
    A(f"s_mov_b32 s{SG3+1}, 0xffff0000")
    A("s_waitcnt lgkmcnt(0)")
    if P.get("dbgdur"): A("s_memrealtime s[98:99]")
    A(f"s_load_dword s{S_EPO}, s[{S_WS}:{S_WS+1}], {WS_EPOCH}")
    srd(A, SRD_WS, S_WS, WS_SIZE)
    A(f"s_cmp_ge_u32 s{S_WAVE}, 2")
    A("s_cbranch_scc1 L_att")
    A(f"s_cmp_eq_u32 s{S_WAVE}, 1")
    A("s_cbranch_scc1 L_s1")

    vL = 0
    A("v_lshlrev_b32 v1, 4, v0")
    for k in range(4): A(f"v_mov_b32 v{4+k}, -1")
    A(f"s_lshl_b32 s64, s{S_REC}, 10")
    A(f"s_add_u32 s64, s64, {WS_H1O}")
    A(f"buffer_store_dwordx4 v[4:7], v1, s[{SRD_WS}:{SRD_WS+3}], s64 offen sc1")
    A(f"s_lshl_b32 s65, s{S_REC}, 7")
    A(f"s_add_u32 s65, s65, {WS_H1ML}")
    A("s_mov_b64 exec, 0xff")
    A(f"buffer_store_dwordx4 v[4:7], v1, s[{SRD_WS}:{SRD_WS+3}], s65 offen sc1")
    A("s_mov_b64 exec, -1")
    A("s_and_b32 s64, s2, 7")
    A("s_cmp_lg_u32 s64, 0")
    A("s_cbranch_scc1 L_nocnt")
    A("s_lshr_b32 s64, s2, 3")
    A("s_lshl_b32 s64, s64, 8")
    A(f"s_add_u32 s64, s64, {WS_CNT}")
    A("v_mov_b32 v8, 0")
    A("s_mov_b64 exec, 1")
    A(f"buffer_store_dword v8, v1, s[{SRD_WS}:{SRD_WS+3}], s64 offen sc1")
    A("s_mov_b64 exec, -1")
    A.lab("L_nocnt")
    srd(A, SRD_U, S_X, 2304)
    A("v_lshrrev_b32 v2, 5, v0")
    A("v_mul_u32_u24 v2, 1152, v2")
    A("v_and_b32 v3, 31, v0")
    A("v_lshl_add_u32 v2, v3, 2, v2")
    for n in range(9):
        A(f"buffer_load_dword v{8+n}, v2, s[{SRD_U}:{SRD_U+3}], 0 offen offset:{128*n}")
    srd(A, SRD_T, S_WQ, 576 * 8192)
    dma_voff(A, 18, 19, 8192, vL, 20, 21)
    A(f"s_lshr_b32 s66, s{S_M}, 2")
    A(f"s_mul_i32 s67, s66, {144*8192}")
    A(f"s_and_b32 s68, s{S_M}, 3")
    A(f"s_lshl_b32 s68, s68, 7")
    A("s_add_u32 s67, s67, s68")
    A(f"s_lshl_b32 s68, s{S_HKV}, 9")
    A("s_add_u32 s67, s67, s68")
    A(f"s_mov_b32 s68, {T_WQ}")
    A("s_mov_b32 s69, 9")
    A.lab("L_wqdma")
    for par in range(2):
        A("s_mov_b32 m0, s68")
        A("s_add_u32 s68, s68, 1024")
        A(f"buffer_load_dwordx4 v{18+par}, s[{SRD_T}:{SRD_T+3}], s67 offen {WFL} lds")
        A("s_add_u32 s67, s67, 65536")
    A("s_sub_u32 s69, s69, 1")
    A("s_cmp_lg_u32 s69, 0")
    A("s_cbranch_scc1 L_wqdma")
    A("v_mov_b32 v20, 0")
    A("v_mov_b32 v21, 0")
    A("v_mov_b32 v22, 0")
    A(f"ds_write_b32 v20, v20 offset:{PROG}")
    A(f"ds_write_b64 v20, v[20:21] offset:{QRDY + 4 - 4 + 0}") if False else None
    A(f"ds_write_b32 v20, v20 offset:{QRDY}")
    A(f"ds_write_b32 v20, v20 offset:{QPUB}")
    A(f"ds_write_b32 v20, v20 offset:{DEADF}")
    A(f"ds_write_b32 v20, v20 offset:{PUBD}")
    A("s_waitcnt lgkmcnt(0)")
    A("s_barrier")
    stamp(A, P, 0)
    for k in range(4): A(f"v_mov_b32 v{20+k}, 0")
    A(f"ds_write_b128 v1, v[20:23] offset:{T_WQ + 18432}")
    A(f"ds_write_b128 v1, v[20:23] offset:{T_WQ + 19456}")
    A("v_lshrrev_b32 v24, 3, v0")
    A(f"v_mul_u32_u24 v24, {XROW}, v24")
    A("v_and_b32 v25, 7, v0")
    A("v_lshl_add_u32 v24, v25, 2, v24")
    A("s_mov_b64 exec, 0xffff")
    A(f"ds_write_b32 v24, v20 offset:{X_LN + 1152}")
    A("s_mov_b64 exec, -1")
    tr_addr(A, 100, vL, 24, 25)
    A("v_and_b32 v104, 1, v0")
    A(f"v_mul_u32_u24 v104, {XROW}, v104")
    A("v_lshrrev_b32 v24, 4, v0")
    A("v_lshl_add_u32 v104, v24, 4, v104")
    A(f"s_mul_i32 s64, s66, 288")
    A("v_add_u32 v105, s64, v104")
    A("s_waitcnt vmcnt(18)")
    lo = lambda n: 24 + 2 * n
    hi = lambda n: 25 + 2 * n
    for n in range(9):
        A(f"v_lshlrev_b32 v{lo(n)}, 16, v{8+n}")
        A(f"v_and_b32 v{hi(n)}, 0xffff0000, v{8+n}")
    A(f"v_add_f32 v42, v{lo(0)}, v{hi(0)}")
    A(f"v_add_f32 v43, v{lo(1)}, v{hi(1)}")
    for n in range(2, 9):
        A(f"v_add_f32 v42, v42, v{lo(n)}")
        A(f"v_add_f32 v43, v43, v{hi(n)}")
    A("v_add_f32 v42, v42, v43")
    reduce16(A, 42); swap16(A, 42, 43, "v_add_f32")
    A(f"v_mul_f32 v42, {hex(f2u(1/576))}, v42")
    A("v_mov_b32 v44, 0")
    for n in range(9):
        A(f"v_sub_f32 v45, v{lo(n)}, v42")
        A(f"v_sub_f32 v46, v{hi(n)}, v42")
        A("v_fmac_f32 v44, v45, v45")
        A("v_fmac_f32 v44, v46, v46")
    reduce16(A, 44); swap16(A, 44, 43, "v_add_f32")
    A(f"v_mul_f32 v44, {hex(f2u(1/576))}, v44")
    round_bf16(A, 44, 44)
    A(f"v_add_f32 v44, {hex(f2u(1e-5))}, v44")
    round_bf16(A, 44, 44)
    A("v_sqrt_f32 v44, v44")
    round_bf16(A, 44, 44)
    A("v_rcp_f32 v44, v44")
    round_bf16(A, 42, 42)
    A("v_lshrrev_b32 v47, 5, v0")
    A(f"v_mul_u32_u24 v47, {XROW}, v47")
    A("v_and_b32 v48, 31, v0")
    A("v_lshl_add_u32 v47, v48, 2, v47")
    for n in range(9):
        A(f"v_sub_f32 v45, v{lo(n)}, v42")
        A(f"v_sub_f32 v46, v{hi(n)}, v42")
        A("v_cvt_pk_bf16_f32 v45, v45, v46")
        A("v_and_b32 v46, 0xffff0000, v45")
        A("v_lshlrev_b32 v45, 16, v45")
        A("v_mul_f32 v45, v45, v44")
        A("v_mul_f32 v46, v46, v44")
        A(f"v_cvt_pk_bf16_f32 v{50+n}, v45, v46")
        A(f"ds_write_b32 v47, v{50+n} offset:{X_LN + 128*n}")
    stamp(A, P, 1)
    A("s_waitcnt vmcnt(0) lgkmcnt(0)")
    A(f"s_add_u32 s{S_EPN}, s{S_EPO}, 1")
    A(f"s_mul_i32 s{S_TAG}, s{S_EPN}, 0x9E3779B1")
    A(f"s_xor_b32 s{S_TAG}, s{S_TAG}, 0x5bd1e995")
    stamp(A, P, 2)
    ACC = lambda ct: 110 + 4 * ct
    gemv(A, 5, [0, 1, 2, 3],
         lambda n, d: f"ds_read_b128 {vr(d,4)}, v105 offset:{X_LN + 64*n}",
         lambda n, ct, u, d: f"ds_read_b64_tr_b16 {vr(d,2)}, v{100+ct} offset:{T_WQ + 4096*n + 512*u}",
         ACC, lambda k: 128 + 20 * k, lambda k, ct: 132 + 20 * k + 4 * ct, 2)
    def publish_pair(soff):
        sel_by_group(A, 8, [ACC(ct) for ct in range(4)])
        sel_by_group(A, 10, [ACC(ct) + 1 for ct in range(4)])
        return
    publish_pair(None)
    A(f"v_mov_b32 v9, s{S_TAG}")
    A(f"v_mov_b32 v11, s{S_TAG}")
    A(f"s_lshl_b32 s64, s{S_REC}, 10")
    A(f"s_add_u32 s64, s64, {WS_QP}")
    A(f"buffer_store_dwordx4 v[8:11], v1, s[{SRD_WS}:{SRD_WS+3}], s64 offen sc1")
    A("v_mov_b32 v12, 0")
    A("v_mov_b32 v13, 1")
    A(f"ds_write_b32 v12, v13 offset:{QPUB}")
    stamp(A, P, 3)
    A(f"s_lshl_b32 s64, s{S_B}, 3")
    A("v_add_u32 v2, s64, v1")
    A(f"s_lshl_b32 s64, s{S_HKV}, 14")
    A(f"s_add_u32 s64, s64, {WS_QP}")
    for k in range(1, 4): A(f"s_add_u32 s{64+k}, s64, {4096*k}")
    poll_begin(A, "L_qpoll")
    for m in range(16):
        A(f"buffer_load_dwordx2 v[{24+2*m}:{25+2*m}], v2, s[{SRD_WS}:{SRD_WS+3}], s{64+(m>>2)} offen offset:{1024*(m&3)} sc1")
    A("s_waitcnt vmcnt(0)")
    A("v_max3_u32 v60, v25, v27, v29")
    A("v_min3_u32 v61, v25, v27, v29")
    for m in range(3, 16, 2):
        a, b_ = 25 + 2 * m, 25 + 2 * min(m + 1, 15)
        A(f"v_max3_u32 v60, v60, v{a}, v{b_}")
        A(f"v_min3_u32 v61, v61, v{a}, v{b_}")
    A("v_xor_b32 v60, v60, v61")
    A(f"v_xor_b32 v61, s{S_TAG}, v61")
    A("v_or_b32 v60, v60, v61")
    A("v_cmp_ne_u32 vcc, 0, v60")
    if P.get("stamps"):
        A(f"s_cmp_eq_u32 s{S_CNT}, {POLL_LIMIT}")
        A("s_cbranch_scc0 L_qp_nostamp")
        A("s_memrealtime s[92:93]")
        A("s_waitcnt lgkmcnt(0)")
        A("v_writelane_b32 v253, s92, 11")
        A.lab("L_qp_nostamp")
    poll_end(A, "L_qpoll", 1)
    if P.get("stamps"):
        A(f"s_sub_u32 s92, {POLL_LIMIT+1}, s{S_CNT}")
        A("v_writelane_b32 v253, s92, 12")
    A("v_lshlrev_b32 v3, 1, v0")
    for cbp in range(4):
        m = lambda kr: 24 + 2 * (kr * 4 + cbp)
        A(f"v_add_f32 v60, v{m(0)}, v{m(1)}")
        A(f"v_add_f32 v60, v60, v{m(2)}")
        A(f"v_add_f32 v60, v60, v{m(3)}")
        A(f"v_cvt_pk_bf16_f32 v{62+cbp}, v60, v60")
        A(f"ds_write_b16 v3, v{62+cbp} offset:{Q_LDS + 128*cbp}")
    A("s_waitcnt lgkmcnt(0)")
    A("v_mov_b32 v12, 0")
    A("v_mov_b32 v13, 1")
    A(f"ds_write_b32 v12, v13 offset:{QRDY}")
    stamp(A, P, 4)
    A(f"s_cmp_eq_u32 s{S_FIN}, 255")
    A("s_cbranch_scc1 L_s0_noy")
    wait_progress(A, "L_ywait", P.get("t_y", 88))
    A(f"s_lshl_b32 s64, s{S_FIN}, 13")
    A(f"s_add_u32 s64, s64, {WS_YP}")
    A("s_add_u32 s65, s64, 4096")
    poll_begin(A, "L_ypoll")
    for n in range(8):
        A(f"buffer_load_dwordx4 v[{24+4*n}:{27+4*n}], v1, s[{SRD_WS}:{SRD_WS+3}], s{64+(n>>2)} offen offset:{1024*(n&3)} sc1")
    A("s_waitcnt vmcnt(0)")
    check_tags(A, [25 + 4 * n + 2 * k for n in range(8) for k in range(2)], 80)
    poll_end(A, "L_ypoll", 32)
    A("v_add_f32 v200, v24, v28")
    A("v_add_f32 v201, v26, v30")
    for n in range(2, 8):
        A(f"v_add_f32 v200, v200, v{24+4*n}")
        A(f"v_add_f32 v201, v201, v{26+4*n}")
    for k in range(2):
        y = 200 + k
        round_bf16(A, y, y)
        A(f"v_mul_f32 v80, {hex(f2u(-LOG2E))}, v{y}")
        A("v_exp_f32 v80, v80")
        A("v_add_f32 v80, 1.0, v80")
        A("v_rcp_f32 v80, v80")
        A(f"v_mul_f32 v{y}, v{y}, v80")
        round_bf16(A, y, y)
    srd(A, SRD_U, S_X, 2304)
    A(f"s_lshl_b32 s70, s{S_FIN}, 7")
    A("v_lshlrev_b32 v204, 1, v0")
    A(f"buffer_load_ushort v202, v204, s[{SRD_U}:{SRD_U+3}], s70 offen")
    A(f"buffer_load_ushort v203, v204, s[{SRD_U}:{SRD_U+3}], s70 offen offset:1152")
    A("s_waitcnt vmcnt(0)")
    A.lab("L_s0_noy")
    stamp(A, P, 5)

    A("s_branch L_side_tail")

    A.lab("L_s1")
    A("v_lshlrev_b32 v1, 4, v0")
    A("s_barrier")
    A("s_waitcnt lgkmcnt(0)")
    A(f"s_add_u32 s{S_EPN}, s{S_EPO}, 1")
    A(f"s_mul_i32 s{S_TAG}, s{S_EPN}, 0x9E3779B1")
    A(f"s_xor_b32 s{S_TAG}, s{S_TAG}, 0x5bd1e995")
    if P.get("s1_start", "b0") == "qpub": wait_lds(A, "L_qpubwait", QPUB, 1, 1)
    if P.get("s1_start") == "qrdy": wait_lds(A, "L_qpubwait", QRDY, 1, 1)
    DL = P.get("dma_lead", 16)
    A(f"s_cmp_eq_u32 s{S_FT}, 0")
    A("s_cbranch_scc1 L_s1_wo")
    A(f"s_cmp_eq_u32 s{S_FT}, 3")
    A("s_cbranch_scc1 L_dn_setup")
    A(f"s_cmp_eq_u32 s{S_FT}, 1")
    A(f"s_cselect_b32 s{SRD_T}, s{S_WG}, s{S_WU}")
    A(f"s_cselect_b32 s{SRD_T+1}, s{S_WG+1}, s{S_WU+1}")
    A(f"s_mov_b32 s{SRD_T+2}, {576*9216}")
    A(f"s_mov_b32 s{SRD_T+3}, 0x20000")
    dma_voff(A, 18, 19, 9216, vL, 20, 21)
    A(f"s_lshl_b32 s67, s{S_FCB}, 7")
    A(f"s_mov_b32 s71, {8*9216}")
    A("s_branch L_ffn_dma")
    A.lab("L_dn_setup")
    srd(A, SRD_T, S_WD, 4608 * 1152)
    dma_voff(A, 18, 19, 1152, vL, 20, 21)
    A(f"s_mul_i32 s72, s{S_FCB}, 57")
    A("s_lshr_b32 s72, s72, 9")
    A("s_mul_i32 s73, s72, 9")
    A(f"s_sub_u32 s73, s{S_FCB}, s73")
    A(f"s_mul_i32 s67, s72, {576*1152}")
    A("s_lshl_b32 s64, s73, 7")
    A("s_add_u32 s67, s67, s64")
    A(f"s_mov_b32 s71, {8*1152}")
    A.lab("L_ffn_dma")
    A(f"s_mov_b32 s68, {T_FFN}")
    A("s_mov_b32 s69, 36")
    A.lab("L_gudma")
    for par in range(2):
        A("s_mov_b32 m0, s68")
        A("s_add_u32 s68, s68, 1024")
        A(f"buffer_load_dwordx4 v{18+par}, s[{SRD_T}:{SRD_T+3}], s67 offen {WFL} lds")
        A(f"s_add_u32 s67, s67, s71")
    A(f"s_waitcnt vmcnt({DL})")
    A("s_sub_u32 s69, s69, 1")
    A("s_cmp_lg_u32 s69, 0")
    A("s_cbranch_scc1 L_gudma")
    A.lab("L_s1_wo")
    if P.get("wo_late", True): A("s_branch L_s1_nowo")
    A(f"s_cmp_eq_u32 s{S_WCB}, 255")
    A("s_cbranch_scc1 L_s1_nowo")
    srd(A, SRD_T, S_WO, 4096 * 1152)
    dma_voff(A, 18, 19, 1152, vL, 20, 21)
    A(f"s_mul_i32 s67, s{S_HKV}, {256*1152}")
    A(f"s_lshl_b32 s68, s{S_WCB}, 7")
    A("s_add_u32 s67, s67, s68")
    A(f"s_mov_b32 s68, {T_WO}")
    A("s_mov_b32 s69, 16")
    A.lab("L_wodma")
    for par in range(2):
        A("s_mov_b32 m0, s68")
        A("s_add_u32 s68, s68, 1024")
        A(f"buffer_load_dwordx4 v{18+par}, s[{SRD_T}:{SRD_T+3}], s67 offen {WFL} lds")
        A(f"s_add_u32 s67, s67, 9216")
    A(f"s_waitcnt vmcnt({DL})")
    A("s_sub_u32 s69, s69, 1")
    A("s_cmp_lg_u32 s69, 0")
    A("s_cbranch_scc1 L_wodma")
    A.lab("L_s1_nowo")
    A("s_waitcnt vmcnt(0)")
    stamp(A, P, 4)
    A(f"s_cmp_eq_u32 s{S_FT}, 0")
    A("s_cbranch_scc1 L_s1_ffn_done")
    wait_lds(A, "L_xnwait", QRDY, 1, 4)
    tr_addr(A, 100, vL, 24, 25)
    A("v_and_b32 v104, 1, v0")
    A(f"v_mul_u32_u24 v104, {XROW}, v104")
    A("v_lshrrev_b32 v24, 4, v0")
    A("v_lshl_add_u32 v104, v24, 4, v104")
    A(f"s_cmp_eq_u32 s{S_FT}, 3")
    A("s_cbranch_scc0 L_ffn_gemv")
    if P.get("x_skipdown"): A("s_branch L_s1_ffn_done")
    wait_progress(A, "L_dnwait", P.get("t_dn", 52))
    A(f"s_mul_i32 s64, s72, {9*2048}")
    A(f"s_add_u32 s64, s64, {WS_GU}")
    for k in range(1, 5): A(f"s_add_u32 s{64+k}, s64, {4096*k}")
    poll_begin(A, "L_gupoll")
    for n in range(18):
        A(f"buffer_load_dwordx4 v[{24+4*n}:{27+4*n}], v1, s[{SRD_WS}:{SRD_WS+3}], s{64+(n>>2)} offen offset:{1024*(n&3)} sc1")
    A("s_waitcnt vmcnt(0)")
    check_tags(A, [25 + 4 * n + 2 * k for n in range(18) for k in range(2)], 96)
    poll_end(A, "L_gupoll", 32)
    A("v_lshlrev_b32 v3, 1, v0")
    A(f"v_mov_b32 v98, {hex(f2u(0.044715))}")
    for i9 in range(9):
        for bb in range(2):
            gt, up = 24 + 8 * i9 + 2 * bb, 28 + 8 * i9 + 2 * bb
            A(f"v_mul_f32 v96, v{gt}, v{gt}")
            A(f"v_mul_f32 v96, v96, v{gt}")
            A(f"v_fma_f32 v96, v96, v98, v{gt}")
            A(f"v_mul_f32 v96, {hex(f2u(-2.0 * math.sqrt(2.0 / math.pi) * LOG2E))}, v96")
            A("v_exp_f32 v96, v96")
            A("v_add_f32 v96, 1.0, v96")
            A("v_rcp_f32 v96, v96")
            A(f"v_mul_f32 v96, v{gt}, v96")
            round_bf16(A, 96, 96)
            A(f"v_mul_f32 v96, v96, v{up}")
            A(f"v_cvt_pk_bf16_f32 v97, v96, v96")
            A(f"ds_write_b16 v3, v97 offset:{XH + XROW*bb + 128*i9}")
    A(f"v_add_u32 v104, {XH - X_LN}, v104")
    A("s_waitcnt lgkmcnt(0)")
    A.lab("L_ffn_gemv")
    for ct in range(4):
        A(f"v_add_u32 v{106+ct}, {T_FFN}, v{100+ct}")
        A(f"v_add_u32 v{170+ct}, {T_FFN + 9*4096}, v{100+ct}")
    gemv(A, 18, [0, 1, 2, 3],
         lambda n, d: f"ds_read_b128 {vr(d,4)}, v104 offset:{X_LN + 64*n}",
         lambda n, ct, u, d: f"ds_read_b64_tr_b16 {vr(d,2)}, v{(106 if n < 9 else 170)+ct} offset:{4096*(n % 9) + 512*u}",
         ACC, lambda k: 128 + 20 * k, lambda k, ct: 132 + 20 * k + 4 * ct, 2)
    publish_pair(None)
    A(f"v_mov_b32 v9, s{S_TAG}")
    A(f"v_mov_b32 v11, s{S_TAG}")
    A(f"s_cmp_eq_u32 s{S_FT}, 3")
    A("s_cbranch_scc1 L_dn_pub")
    round_bf16(A, 8, 8); round_bf16(A, 10, 10)
    A(f"s_lshl_b32 s64, s{S_FCB}, 1")
    A(f"s_add_u32 s64, s64, s{S_FT}")
    A("s_sub_u32 s64, s64, 1")
    A("s_lshl_b32 s64, s64, 10")
    A(f"s_add_u32 s64, s64, {WS_GU}")
    A("s_branch L_ffn_pub")
    A.lab("L_dn_pub")
    A("s_lshl_b32 s64, s73, 3")
    A("s_add_u32 s64, s64, s72")
    A("s_lshl_b32 s64, s64, 10")
    A(f"s_add_u32 s64, s64, {WS_YP}")
    A.lab("L_ffn_pub")
    A(f"buffer_store_dwordx4 v[8:11], v1, s[{SRD_WS}:{SRD_WS+3}], s64 offen sc1")
    A.lab("L_s1_ffn_done")
    stamp(A, P, 5)

    def wo_prep():
        tr_addr(A, 100, vL, 24, 25)
        A(f"s_lshl_b32 s64, s{S_WAVE}, 5")
        A("v_xor_b32 v100, s64, v100")
        A("v_and_b32 v104, 1, v0")
        A(f"v_mul_u32_u24 v104, {X2ROW}, v104")
        A("v_lshrrev_b32 v24, 4, v0")
        A("v_lshl_add_u32 v104, v24, 4, v104")
        A("v_lshlrev_b32 v105, 4, v0")
        A(f"v_mov_b32 v9, s{S_TAG}")
        A(f"v_mov_b32 v11, s{S_TAG}")
        A(f"s_lshl_b32 s87, s{S_WCB}, 14")
        A(f"s_lshl_b32 s65, s{S_HKV}, 10")
        A("s_add_u32 s87, s87, s65")
        A(f"s_lshl_b32 s65, s{S_WAVE}, 8")
        A("s_add_u32 s87, s87, s65")
        A(f"s_add_u32 s87, s87, {WS_SP}")
    A.lab("L_side_tail")
    wo_prep()
    A("v_lshlrev_b32 v1, 4, v0")
    A("v_bfe_u32 v2, v0, 2, 1")
    A("v_lshlrev_b32 v2, 3, v2")
    A(f"s_lshl_b32 s64, s{S_HKV}, 4")
    A(f"s_lshl_b32 s65, s{S_WAVE}, 3")
    A("s_add_u32 s64, s64, s65")
    A("s_lshl_b32 s66, s64, 7")
    A(f"s_add_u32 s66, s66, {WS_H1ML}")
    A("s_lshl_b32 s64, s64, 10")
    A(f"s_add_u32 s64, s64, {WS_H1O}")
    A("s_add_u32 s65, s64, 4096")
    A("v_bfe_u32 v90, v0, 2, 1")
    A("v_lshlrev_b32 v90, 8, v90")
    A("v_lshrrev_b32 v83, 4, v0")
    A("v_lshl_add_u32 v90, v83, 6, v90")
    A("v_and_b32 v83, 3, v0")
    A("v_lshl_add_u32 v90, v83, 1, v90")
    A("v_bfe_u32 v83, v0, 3, 1")
    A("v_lshl_add_u32 v90, v83, 3, v90")
    A(f"s_mul_i32 s68, s{S_WAVE}, {X2ROW}")
    A("v_add_u32 v90, s68, v90")
    A("s_mov_b32 s67, 0xff")
    if P.get("wo_late", True):
        srd(A, SRD_T, S_WO, 4096 * 1152)
        dma_voff(A, 18, 19, 1152, vL, 20, 21)
        A(f"s_lshl_b32 s69, s{S_HKV}, 1")
        A(f"s_add_u32 s69, s69, s{S_WAVE}")
        A(f"s_mul_i32 s69, s69, {128*1152}")
        A(f"s_lshl_b32 s71, s{S_WCB}, 7")
        A("s_add_u32 s69, s69, s71")
        A(f"s_lshl_b32 s71, s{S_WAVE}, 14")
        A(f"s_add_u32 s71, s71, {T_WO}")
        A(f"s_lshl_b32 s64, s{S_HKV}, 4")
        A(f"s_lshl_b32 s72, s{S_WAVE}, 3")
        A("s_add_u32 s64, s64, s72")
        A("s_lshl_b32 s64, s64, 10")
        A(f"s_add_u32 s64, s64, {WS_H1O}")
    def wo_dma():
        for n in range(16):
            A("s_mov_b32 m0, s71")
            A("s_add_u32 s71, s71, 1024")
            A(f"buffer_load_dwordx4 v{18+(n&1)}, s[{SRD_T}:{SRD_T+3}], s69 offen {WFL} lds")
            A("s_add_u32 s69, s69, 9216")
    at_dead = P.get("wo_late", True) and P.get("wo_at", "b2") == "dead"
    if at_dead:
        A(f"s_cmp_eq_u32 s{S_WCB}, 255")
        A("s_cbranch_scc1 L_nowodma")
        wait_lds(A, "L_deadwait", DEADF, 128, 2)
        wo_dma()
        A.lab("L_nowodma")
    A("s_barrier")
    stamp(A, P, 6)
    A(f"s_cmp_eq_u32 s{S_WCB}, 255")
    A("s_cbranch_scc1 L_final")
    if P.get("wo_late", True) and not at_dead:
        if P.get("wo_afterpub"): wait_lds(A, "L_pubwait", PUBD, 1, 0)
        wo_dma()
    MC = lambda p: 56 + 2 * p
    LL = lambda p: 57 + 2 * p
    poll_begin(A, "L_h1poll")
    if not P.get("h1inc", False):
        for p in range(8):
            A(f"buffer_load_dwordx4 v[{24+4*p}:{27+4*p}], v1, s[{SRD_WS}:{SRD_WS+3}], s{64+(p>>2)} offen offset:{1024*(p&3)} {HLD}")
            A(f"buffer_load_dwordx2 v[{56+2*p}:{57+2*p}], v2, s[{SRD_WS}:{SRD_WS+3}], s66 offen offset:{128*p} {HLD}")
        A("s_waitcnt vmcnt(0)")
        A("v_max3_u32 v80, v24, v25, v26")
        for k in range(27, 72, 2): A(f"v_max3_u32 v80, v80, v{k}, v{min(k+1, 71)}")
        A("v_cmp_eq_u32 vcc, -1, v80")
        A("s_mov_b32 s67, 0")
        A("s_cbranch_vccz L_h1poll_ok")
        A("s_mov_b32 s67, 1")
    for p in range(8 if P.get("h1inc", False) else 0):
        l = A.uniq("L_h1l")
        A(f"s_bitcmp1_b32 s67, {p}")
        A(f"s_cbranch_scc0 {l}")
        A(f"buffer_load_dwordx4 v[{24+4*p}:{27+4*p}], v1, s[{SRD_WS}:{SRD_WS+3}], s{64+(p>>2)} offen offset:{1024*(p&3)} sc1")
        A(f"buffer_load_dwordx2 v[{56+2*p}:{57+2*p}], v2, s[{SRD_WS}:{SRD_WS+3}], s66 offen offset:{128*p} sc1")
        A.lab(l)
    A("s_waitcnt vmcnt(0)")
    for p in range(8 if P.get("h1inc", False) else 0):
        l = A.uniq("L_h1m")
        o = 24 + 4 * p
        A(f"s_bitcmp1_b32 s67, {p}")
        A(f"s_cbranch_scc0 {l}")
        A(f"v_max3_u32 v82, v{o}, v{o+1}, v{o+2}")
        A(f"v_max3_u32 v82, v82, v{o+3}, v{MC(p)}")
        A(f"v_max_u32 v82, v82, v{LL(p)}")
        A("v_cmp_eq_u32 vcc, -1, v82")
        A(f"s_cbranch_vccnz {l}")
        A(f"s_bitset0_b32 s67, {p}")
        A.lab(l)
    A("s_cmp_eq_u32 s67, 0")
    A("s_cbranch_scc1 L_h1poll_ok")
    A(f"s_sub_u32 s{S_CNT}, s{S_CNT}, 1")
    A(f"s_cmp_eq_u32 s{S_CNT}, 0")
    A("s_cbranch_scc1 L_h1poll_ok")
    if P.get("h1sleep", 0): A(f"s_sleep {P.get('h1sleep', 0)}")
    A("s_branch L_h1poll")
    A.lab("L_h1poll_ok")
    stamp(A, P, 7)
    A(f"v_max3_f32 v80, v{MC(0)}, v{MC(1)}, v{MC(2)}")
    A(f"v_max3_f32 v80, v80, v{MC(3)}, v{MC(4)}")
    A(f"v_max3_f32 v80, v80, v{MC(5)}, v{MC(6)}")
    A(f"v_max_f32 v80, v80, v{MC(7)}")
    for p in range(8): A(f"v_sub_f32 v{MC(p)}, v{MC(p)}, v80")
    for p in range(8): A(f"v_exp_f32 v{MC(p)}, v{MC(p)}")
    A(f"v_mul_f32 v81, v{MC(0)}, v{LL(0)}")
    for rr in range(4): A(f"v_mul_f32 v{84+rr}, v{MC(0)}, v{24+rr}")
    for p in range(1, 8):
        A(f"v_fmac_f32 v81, v{MC(p)}, v{LL(p)}")
        for rr in range(4): A(f"v_fmac_f32 v{84+rr}, v{MC(p)}, v{24+4*p+rr}")
    A("v_rcp_f32 v81, v81")
    for rr in range(4):
        A(f"v_mul_f32 v{84+rr}, v{84+rr}, v81")
    A("v_cvt_pk_bf16_f32 v88, v84, v85")
    A("v_cvt_pk_bf16_f32 v89, v86, v87")
    A(f"ds_write_b16 v90, v88 offset:{X2}")
    A(f"ds_write_b16_d16_hi v90, v88 offset:{X2 + 16}")
    A(f"ds_write_b16 v90, v89 offset:{X2 + 32}")
    A(f"ds_write_b16_d16_hi v90, v89 offset:{X2 + 48}")
    A("s_waitcnt lgkmcnt(0)")
    A.lab("L_wogemv")
    A("s_barrier")
    stamp(A, P, 8)
    gemv(A, 8, [0],
         lambda n, d: f"ds_read_b128 {vr(d,4)}, v104 offset:{X2 + 64*n}",
         lambda n, ct, u, d: f"ds_read_b64_tr_b16 {vr(d,2)}, v100 offset:{T_WO + 4096*n + 512*u}",
         lambda ct: 110, lambda k: 128 + 8 * k, lambda k, ct: 132 + 8 * k, 8)
    A("v_mov_b32 v8, v110")
    A("v_mov_b32 v10, v111")
    A("s_mov_b64 exec, 0xffff")
    A(f"buffer_store_dwordx4 v[8:11], v105, s[{SRD_WS}:{SRD_WS+3}], s87 offen {HST}")
    A("s_mov_b64 exec, -1")
    stamp(A, P, 9)
    A.lab("L_final")
    A(f"s_cmp_lg_u32 s{S_WAVE}, 0")
    A("s_cbranch_scc1 L_end")
    A(f"s_cmp_eq_u32 s{S_FIN}, 255")
    A("s_cbranch_scc1 L_end")
    A("v_lshlrev_b32 v1, 4, v0")
    A(f"s_lshl_b32 s64, s{S_FIN}, 14")
    A(f"s_add_u32 s64, s64, {WS_SP}")
    for k in range(1, 4): A(f"s_add_u32 s{64+k}, s64, {4096*k}")
    srd(A, SRD_U, S_OUT, 2304)
    A("v_lshlrev_b32 v204, 1, v0")
    A(f"s_lshl_b32 s70, s{S_FIN}, 7")
    A("v_lshlrev_b32 v202, 16, v202")
    A("v_lshlrev_b32 v203, 16, v203")
    poll_begin(A, "L_h2poll")
    for n in range(16):
        A(f"buffer_load_dwordx4 v[{24+4*n}:{27+4*n}], v1, s[{SRD_WS}:{SRD_WS+3}], s{64+(n>>2)} offen offset:{1024*(n&3)} {HLD}")
    A("s_waitcnt vmcnt(0)")
    check_tags(A, [25 + 4 * n + 2 * k for n in range(16) for k in range(2)], 96)
    poll_end(A, "L_h2poll", P.get("h2sleep", 0))
    for step in (8, 4, 2, 1):
        for n in range(step):
            A(f"v_add_f32 v{24+4*n}, v{24+4*n}, v{24+4*(n+step)}")
            A(f"v_add_f32 v{26+4*n}, v{26+4*n}, v{26+4*(n+step)}")
    A("v_cvt_pk_bf16_f32 v96, v24, v26")
    A("v_and_b32 v97, 0xffff0000, v96")
    A("v_lshlrev_b32 v96, 16, v96")
    A("v_mul_f32 v96, v96, v200")
    A("v_mul_f32 v97, v97, v201")
    A("v_cvt_pk_bf16_f32 v96, v96, v97")
    A("v_and_b32 v97, 0xffff0000, v96")
    A("v_lshlrev_b32 v96, 16, v96")
    A("v_add_f32 v96, v96, v202")
    A("v_add_f32 v97, v97, v203")
    A("v_cvt_pk_bf16_f32 v96, v96, v97")
    A(f"buffer_store_short v96, v204, s[{SRD_U}:{SRD_U+3}], s70 offen")
    A(f"buffer_store_short_d16_hi v96, v204, s[{SRD_U}:{SRD_U+3}], s70 offen offset:1152")
    stamp(A, P, 10)
    if P.get("dbgdur"):
        A("s_memrealtime s[92:93]")
        A("s_waitcnt lgkmcnt(0)")
        A("s_sub_u32 s92, s92, s98")
        srd(A, SRD_U, S_DBG, 256)
        A("v_mov_b32 v96, s92")
        A(f"s_lshl_b32 s64, s{S_FIN}, 2")
        A("v_mov_b32 v97, 0")
        A("s_mov_b64 exec, 1")
        A(f"buffer_store_dword v96, v97, s[{SRD_U}:{SRD_U+3}], s64 offen")
        A("s_mov_b64 exec, -1")
    A(f"s_cmp_lg_u32 s{S_FIN}, 0")
    A("s_cbranch_scc1 L_end")
    A(f"v_mov_b32 v80, s{S_EPN}")
    A("v_mov_b32 v81, 0")
    A("s_mov_b64 exec, 1")
    A(f"buffer_store_dword v80, v81, s[{SRD_WS}:{SRD_WS+3}], 0 offen offset:{WS_EPOCH}")
    A("s_mov_b64 exec, -1")
    A("s_branch L_end")

    A.lab("L_att")
    DK = P.get("DK", 2)
    assert DK % 2 == 0 and DK <= 8
    A(f"s_sub_u32 s66, s{S_WAVE}, 2")
    A(f"s_lshl_b32 s64, s{S_B}, 4")
    A(f"s_add_u32 s64, s64, s{S_HKV}")
    A("s_lshr_b32 s65, s64, 9")
    A("s_lshl_b32 s64, s64, 23")
    A(f"s_add_u32 s{SRD_K}, s{S_K}, s64")
    A(f"s_addc_u32 s{SRD_K+1}, s{S_K+1}, s65")
    A(f"s_mov_b32 s{SRD_K+2}, 0x800000")
    A(f"s_mov_b32 s{SRD_K+3}, 0x20000")
    A(f"s_add_u32 s{SRD_V}, s{S_V}, s64")
    A(f"s_addc_u32 s{SRD_V+1}, s{S_V+1}, s65")
    A(f"s_mov_b32 s{SRD_V+2}, 0x800000")
    A(f"s_mov_b32 s{SRD_V+3}, 0x20000")
    S_KO, S_VO, S_RK, S_CLM, S_IT, S_POOL = 70, 71, 75, 76, 77, 78
    S_RV, S_PK, S_PVS, S_PV, S_NXT = 86, 87, 88, 89, 74
    S_PO = [67, 68, 69, 43]
    POOL = P.get("table", {}).get("pool", 128)
    A(f"s_add_u32 s{S_KO}, s{S_KV0}, s66")
    A(f"s_lshl_b32 s{S_KO}, s{S_KO}, 13")
    A(f"s_mov_b32 s{S_VO}, s{S_KO}")
    A(f"s_add_u32 s{S_PK}, s{S_NSB}, 1")
    A(f"s_sub_u32 s{S_PK}, s{S_PK}, s66")
    A(f"s_lshr_b32 s{S_PK}, s{S_PK}, 1")
    A(f"s_mov_b32 s{S_PVS}, s{S_PK}")
    A(f"s_mov_b32 s{S_RV}, s{S_PK}")
    A(f"s_sub_u32 s{S_RK}, s{S_PK}, {DK}")
    A(f"s_mov_b32 s{S_PV}, 0")
    A(f"s_mov_b32 s{S_IT}, 0")
    A("s_mov_b32 s80, 0")
    A("s_lshr_b32 s64, s2, 3")
    A("s_lshl_b32 s64, s64, 8")
    A(f"s_add_u32 s64, s64, {WS_CNT}")
    A(f"s_add_u32 s{S_POOL}, s{S_WS}, s64")
    A(f"s_addc_u32 s{S_POOL+1}, s{S_WS+1}, 0")
    VK0, VK1, VV0, VV1 = 2, 3, 4, 5
    A("v_bfe_u32 v6, v0, 2, 2")
    A("v_lshlrev_b32 v6, 8, v6")
    A("v_lshrrev_b32 v7, 4, v0")
    A("v_lshl_add_u32 v6, v7, 6, v6")
    A("v_and_b32 v7, 3, v0")
    A(f"v_lshl_add_u32 v{VK0}, v7, 4, v6")
    A(f"v_add_u32 v{VK1}, 4096, v{VK0}")
    A(f"v_lshlrev_b32 v{VV0}, 4, v0")
    A(f"v_add_u32 v{VV1}, 4096, v{VV0}")
    UA = lambda s, n: 32 * s + 4 * n
    def issue(kind, s, soff):
        vb, sd, fl = (VK0, SRD_K, FLK) if kind == "K" else (VV0, SRD_V, FLV)
        for n in range(8):
            A(f"buffer_load_dwordx4 {ar(UA(s,n),4)}, v{vb+(n>>2)}, s[{sd}:{sd+3}], s{soff} offen offset:{1024*(n&3)} {fl}")
    lead = P.get("lead", 2)
    early = P.get("early", 1)
    for s in range(DK):
        if s == early:
            A("s_barrier")
            stamp(A, P, 0)
        if s >= lead: A(f"s_waitcnt vmcnt({8*(lead-1)})")
        issue("K", s, S_KO)
        A(f"s_add_u32 s{S_KO}, s{S_KO}, 16384")
    if early >= DK:
        A("s_barrier")
    stamp(A, P, 1)
    VQ = 8
    VSW, VSR = 12, 13
    VMX = 14
    VSC = 16
    VM = 24
    VACC = 28
    VMC, VL_ = 32, 33
    VS = 36
    VP = 44
    VB = 52
    VT = 64
    VD = 68
    VPK = 100
    A("v_and_b32 v6, 3, v0")
    A("v_bfe_u32 v7, v0, 3, 1")
    A("v_lshl_add_u32 v6, v7, 2, v6")
    A("v_and_b32 v7, 1, v6")
    A("v_mov_b32 v64, 0xffff")
    A("v_lshlrev_b32 v7, 4, v7")
    A("v_lshlrev_b32 v64, v7, v64")
    A("v_lshrrev_b32 v6, 1, v6")
    for q in range(4):
        A(f"v_cmp_eq_u32 vcc, {q}, v6")
        A(f"v_cndmask_b32 v{VM+q}, 0, v64, vcc")
    for k in range(4): A(f"v_mov_b32 v{VACC+k}, 0")
    A(f"v_mov_b32 v{VMX}, 0xff800000")
    A(f"v_mov_b32 v{VL_}, 0")
    A("v_bfe_u32 v6, v0, 2, 1")
    A("v_lshrrev_b32 v7, 4, v0")
    A("v_lshl_add_u32 v7, v6, 2, v7")
    A("v_lshlrev_b32 v7, 4, v7")
    A("s_lshl_b32 s64, s66, 13")
    A(f"s_add_u32 s64, s64, {SCORES}")
    A(f"v_add_u32 v{VSW}, s64, v7")
    A(f"v_mov_b32 v{VSR}, v{VSW}")
    A("v_lshlrev_b32 v6, 8, v6")
    A("v_lshrrev_b32 v7, 4, v0")
    A("v_lshl_add_u32 v6, v7, 6, v6")
    A("v_and_b32 v7, 3, v0")
    A("v_lshl_add_u32 v6, v7, 4, v6")
    A(f"s_mov_b32 s72, {hex(f2u(SCALE))}")
    A(f"s_mov_b32 s73, {hex(f2u(LOG2E))}")
    A("v_mov_b32 v34, 0")
    A("s_waitcnt lgkmcnt(0)")
    A(f"s_add_u32 s{S_EPN}, s{S_EPO}, 1")
    A(f"s_mul_i32 s{S_TAG}, s{S_EPN}, 0x9E3779B1")
    A(f"s_xor_b32 s{S_TAG}, s{S_TAG}, 0x5bd1e995")
    wait_lds(A, "L_qwait", QRDY, 1, 1, tv=66)
    A(f"ds_read_b128 v[{VQ}:{VQ+3}], v6 offset:{Q_LDS}")
    A("s_waitcnt lgkmcnt(0)")
    stamp(A, P, 2)
    A(f"s_mov_b32 s{S_CLM}, 1")
    A(f"s_atomic_add s{S_CLM}, s[{S_POOL}:{S_POOL+1}], 0 glc")

    def progress():
        A(f"s_add_u32 s{S_IT}, s{S_IT}, 1")
        A(f"v_mov_b32 v35, s{S_IT}")
        A(f"ds_write_b32 v34, v35 offset:{PROG}")
        if P.get("stamps"):
            for idx, itv in ((5, 16), (6, 48), (7, 80), (10, 104)):
                l = A.uniq("L_st")
                A(f"s_cmp_lg_u32 s{S_IT}, {itv}")
                A(f"s_cbranch_scc1 {l}")
                stamp(A, P, idx)
                A.lab(l)
    def qk_mfma(s):
        for n in range(8):
            A(f"v_mfma_f32_16x16x32_bf16 {vr(VD+4*n,4)}, {ar(UA(s,n),4)}, {vr(VQ,4)}, 0")
    def qk_reduce():
        for c in range(4):
            for n in range(8):
                pat = f"quad_perm:[{c},{c},{c},{c}] row_mask:0xf bank_mask:0xf"
                if c == 0: A(f"v_mov_b32_dpp v{VS+n}, v{VD+4*n} {pat}")
                else: A(f"v_add_f32_dpp v{VS+n}, v{VD+4*n+c}, v{VS+n} {pat}")
        for k in range(0, 8, 2):
            A(f"v_cvt_pk_bf16_f32 v{VT+(k>>1)}, v{VS+k}, v{VS+k+1}")
        for k in range(0, 8, 2):
            A(f"v_lshlrev_b32 v{VS+k}, 16, v{VT+(k>>1)}")
            A(f"v_and_b32 v{VS+k+1}, 0xffff0000, v{VT+(k>>1)}")
        for k in range(8): A(f"v_mul_f32 v{VS+k}, s72, v{VS+k}")
        for k in range(0, 8, 2):
            A(f"v_cvt_pk_bf16_f32 v{VPK+(k>>1)}, v{VS+k}, v{VS+k+1}")
    def unpack(src):
        for k in range(4):
            A(f"v_lshlrev_b32 v{VS+2*k}, 16, v{src+k}")
            A(f"v_and_b32 v{VS+2*k+1}, 0xffff0000, v{src+k}")
    def pv(s):
        for k in range(8): A(f"v_fma_f32 v{VP+k}, v{VS+k}, s73, -v{VMC}")
        for k in range(8): A(f"v_exp_f32 v{VP+k}, v{VP+k}")
        def prep(k):
            bb = VB + 4 * (k % 3)
            A(f"v_cvt_pk_bf16_f32 v{VT+2}, v{VP+k}, v{VP+k}")
            for q in range(4): A(f"v_and_b32 v{bb+q}, v{VT+2}, v{VM+q}")
        prep(0); prep(1)
        A(f"v_add_f32 v{VT}, v{VP}, v{VP+1}")
        A(f"v_add_f32 v{VT+1}, v{VP+2}, v{VP+3}")
        A(f"s_waitcnt vmcnt({8*(DK-1)})")
        for k in range(8):
            bb = VB + 4 * (k % 3)
            A(f"v_mfma_f32_16x16x32_bf16 {vr(VACC,4)}, {ar(UA(s,k),4)}, {vr(bb,4)}, {vr(VACC,4)}")
            if k + 2 < 8: prep(k + 2)
            if k == 1: A(f"v_add_f32 v{VT}, v{VT}, v{VP+4}"); A(f"v_add_f32 v{VT+1}, v{VT+1}, v{VP+5}")
            if k == 2: A(f"v_add_f32 v{VT}, v{VT}, v{VP+6}"); A(f"v_add_f32 v{VT+1}, v{VT+1}, v{VP+7}")
            if k == 3: A(f"v_add_f32 v{VT}, v{VT}, v{VT+1}"); A(f"v_add_f32 v{VL_}, v{VL_}, v{VT}")
    def pool_refill(s):
        po = S_PO[s >> 1]
        if s & 1:
            issue("V", s, po)
            return
        ldead, lgo = A.uniq("L_dead"), A.uniq("L_go")
        A("s_waitcnt lgkmcnt(0)")
        A(f"s_cmp_lt_u32 s{S_CLM}, {POOL}")
        A(f"s_cbranch_scc0 {ldead}")
        A(f"s_add_u32 s{po}, s{S_CLM}, {1024 - POOL}")
        A(f"s_lshl_b32 s{po}, s{po}, 13")
        A(f"s_add_u32 s{S_PV}, s{S_PV}, 1")
        A(f"s_mov_b32 s{S_CLM}, 1")
        A(f"s_atomic_add s{S_CLM}, s[{S_POOL}:{S_POOL+1}], 0 glc")
        A(f"s_branch {lgo}")
        A.lab(ldead)
        A(f"s_mov_b32 s{SRD_K+2}, 0")
        A(f"s_mov_b32 s{SRD_V+2}, 0")
        A(f"s_mov_b32 s{po}, 0")
        if P.get("wo_late", True) == "dead" or P.get("wo_at", "b2") == "dead":
            lonce = A.uniq("L_once")
            A("s_cmp_eq_u32 s80, 0")
            A(f"s_cbranch_scc0 {lonce}")
            A("s_mov_b32 s80, 1")
            A("v_mov_b32 v35, 1")
            A(f"ds_add_u32 v34, v35 offset:{DEADF}")
            A.lab(lonce)
        A.lab(lgo)
        issue("K", s, po)

    A.lab("L_kloop")
    for s in range(DK):
        A.lab(f"L_k{s}")
        A(f"s_waitcnt vmcnt({8*(DK-1)})")
        qk_mfma(s)
        lv, lr = A.uniq("L_kv"), A.uniq("L_kr")
        A(f"s_cmp_eq_u32 s{S_RK}, 0")
        A(f"s_cbranch_scc1 {lv}")
        issue("K", s, S_KO)
        A(f"s_add_u32 s{S_KO}, s{S_KO}, 16384")
        A(f"s_sub_u32 s{S_RK}, s{S_RK}, 1")
        A(f"s_branch {lr}")
        A.lab(lv)
        issue("V", s, S_VO)
        A(f"s_add_u32 s{S_VO}, s{S_VO}, 16384")
        A(f"s_sub_u32 s{S_RV}, s{S_RV}, 1")
        A.lab(lr)
        qk_reduce()
        for k in range(0, 8, 2): A(f"v_max3_f32 v{VMX}, v{VMX}, v{VS+k}, v{VS+k+1}")
        A("s_mov_b32 exec_lo, 0x00110011")
        A("s_mov_b32 exec_hi, 0x00110011")
        A(f"ds_write_b128 v{VSW}, v[{VPK}:{VPK+3}]")
        A("s_mov_b64 exec, -1")
        A(f"v_add_u32 v{VSW}, 128, v{VSW}")
        progress()
        A(f"s_sub_u32 s{S_PK}, s{S_PK}, 1")
        A(f"s_cmp_eq_u32 s{S_PK}, 0")
        if s < DK - 1:
            A(f"s_cselect_b32 s{S_NXT}, {s+1}, s{S_NXT}")
            A("s_cbranch_scc1 L_kdone")
        else:
            A(f"s_cselect_b32 s{S_NXT}, 0, s{S_NXT}")
            A("s_cbranch_scc0 L_kloop")
    A.lab("L_kdone")
    round_bf16(A, VMC, VMX)
    A(f"v_mul_f32 v{VMC}, s73, v{VMC}")
    swap16(A, VMC, VT, "v_max_f32")
    swap32(A, VMC, VT, "v_max_f32")
    A("s_waitcnt lgkmcnt(0)")
    stamp(A, P, 12)
    for s in range(DK):
        l = A.uniq("L_kn")
        A(f"s_cmp_lg_u32 s{S_NXT}, {s}")
        A(f"s_cbranch_scc1 {l}")
        A(f"ds_read_b128 v[{VSC+4*(s&1)}:{VSC+4*(s&1)+3}], v{VSR}")
        A(f"s_branch L_v{s}")
        A.lab(l)
    A.lab("L_vloop")
    for s in range(DK):
        A.lab(f"L_v{s}")
        A("s_waitcnt lgkmcnt(0)")
        nb = (s + 1) & 1
        A(f"ds_read_b128 v[{VSC+4*nb}:{VSC+4*nb+3}], v{VSR} offset:128")
        A(f"v_add_u32 v{VSR}, 128, v{VSR}")
        unpack(VSC + 4 * (s & 1))
        pv(s)
        lp, lr = A.uniq("L_vp"), A.uniq("L_vr")
        A(f"s_cmp_eq_u32 s{S_RV}, 0")
        A(f"s_cbranch_scc1 {lp}")
        issue("V", s, S_VO)
        A(f"s_add_u32 s{S_VO}, s{S_VO}, 16384")
        A(f"s_sub_u32 s{S_RV}, s{S_RV}, 1")
        A(f"s_branch {lr}")
        A.lab(lp)
        pool_refill(s)
        A.lab(lr)
        progress()
        A(f"s_sub_u32 s{S_PVS}, s{S_PVS}, 1")
        if s & 1:
            A(f"s_cmp_eq_u32 s{S_PVS}, 0")
            A(f"s_cbranch_scc1 L_p{((s + 1) % DK) >> 1}")
        if s == DK - 1: A("s_branch L_vloop")
    A.lab("L_ploop")
    for a in range(DK // 2):
        sk, sv = 2 * a, 2 * a + 1
        A.lab(f"L_p{a}")
        A(f"s_cmp_eq_u32 s{S_PV}, 0")
        A("s_cbranch_scc1 L_att_done")
        A(f"s_sub_u32 s{S_PV}, s{S_PV}, 1")
        A(f"s_waitcnt vmcnt({8*(DK-1)})")
        qk_mfma(sk)
        pool_refill(sk)
        qk_reduce()
        unpack(VPK)
        A(f"v_max3_f32 v{VT}, v{VS}, v{VS+1}, v{VS+2}")
        A(f"v_max3_f32 v{VT}, v{VT}, v{VS+3}, v{VS+4}")
        A(f"v_max3_f32 v{VT}, v{VT}, v{VS+5}, v{VS+6}")
        A(f"v_max_f32 v{VT}, v{VT}, v{VS+7}")
        A(f"v_mul_f32 v{VT}, s73, v{VT}")
        A(f"v_cmp_gt_f32 vcc, v{VT}, v{VMC}")
        skip = A.uniq("L_nomax")
        A(f"s_cbranch_vccz {skip}")
        swap16(A, VT, VT + 1, "v_max_f32")
        swap32(A, VT, VT + 1, "v_max_f32")
        A(f"v_max_f32 v{VT}, v{VT}, v{VMC}")
        A(f"v_sub_f32 v{VT+1}, v{VMC}, v{VT}")
        A(f"v_exp_f32 v{VT+1}, v{VT+1}")
        A(f"v_mov_b32 v{VMC}, v{VT}")
        for k in range(4): A(f"v_mul_f32 v{VACC+k}, v{VACC+k}, v{VT+1}")
        A(f"v_mul_f32 v{VL_}, v{VL_}, v{VT+1}")
        A.lab(skip)
        pv(sv)
        pool_refill(sv)
        progress()
        progress()
        if a == DK // 2 - 1: A("s_branch L_ploop")
    A.lab("L_att_done")
    A("v_mov_b32 v35, 0xffff")
    A(f"ds_write_b32 v34, v35 offset:{PROG}")
    stamp(A, P, 3)
    if P.get("stamps"): A(f"v_writelane_b32 v253, s{S_IT}, 11")
    swap16(A, VL_, VT, "v_add_f32")
    swap32(A, VL_, VT, "v_add_f32")
    A(f"v_lshlrev_b32 v1, 4, v0")
    A(f"v_lshlrev_b32 v6, 3, v0")
    A(f"s_cmp_eq_u32 s{S_WAVE}, 2")
    A("s_cbranch_scc1 L_att0")
    A(f"ds_write_b128 v1, v[{VACC}:{VACC+3}] offset:{MERGE}")
    A(f"ds_write_b64 v6, v[{VMC}:{VMC+1}] offset:{MERGE + 1024}")
    A("s_waitcnt lgkmcnt(0)")
    A("s_barrier")
    A("s_branch L_att_join")
    A.lab("L_att0")
    A(f"s_lshl_b32 s64, s{S_REC}, 10")
    A(f"s_add_u32 s64, s64, {WS_H1O}")
    A(f"s_lshl_b32 s65, s{S_REC}, 7")
    A(f"s_add_u32 s65, s65, {WS_H1ML}")
    A("s_barrier")
    A(f"ds_read_b128 v[68:71], v1 offset:{MERGE}")
    A(f"ds_read_b64 v[72:73], v6 offset:{MERGE + 1024}")
    A("s_waitcnt lgkmcnt(0)")
    A(f"v_max_f32 v74, v{VMC}, v72")
    A(f"v_sub_f32 v75, v{VMC}, v74")
    A("v_sub_f32 v76, v72, v74")
    A("v_exp_f32 v75, v75")
    A("v_exp_f32 v76, v76")
    for k in range(4):
        A(f"v_mul_f32 v{VACC+k}, v{VACC+k}, v75")
        A(f"v_fmac_f32 v{VACC+k}, v{68+k}, v76")
    A(f"v_mul_f32 v{VL_}, v{VL_}, v75")
    A(f"v_fmac_f32 v{VL_}, v73, v76")
    A(f"buffer_store_dwordx4 v[{VACC}:{VACC+3}], v1, s[{SRD_WS}:{SRD_WS+3}], s64 offen {HST}")
    A("v_readlane_b32 s66, v74, 0")
    A(f"v_readlane_b32 s67, v{VL_}, 0")
    A("v_readlane_b32 s68, v74, 4")
    A(f"v_readlane_b32 s69, v{VL_}, 4")
    for k in range(4): A(f"v_mov_b32 v{68+k}, s{66+k}")
    A("s_mov_b64 exec, 0xff")
    A(f"buffer_store_dwordx4 v[68:71], v1, s[{SRD_WS}:{SRD_WS+3}], s65 offen {HST}")
    A("s_mov_b64 exec, -1")
    if P.get("wo_afterpub"):
        A("v_mov_b32 v35, 1")
        A(f"ds_write_b32 v34, v35 offset:{PUBD}")
    stamp(A, P, 4)
    A.lab("L_att_join")
    A(f"s_cmp_eq_u32 s{S_WCB}, 255")
    A("s_cbranch_scc1 L_end")
    wo_prep()
    A("s_branch L_wogemv")
    A.lab("L_end")
    stamp_flush(A, P)
    A.lab("L_exit")
    A("s_endpgm")
    body = fix_hazards(A.L[body_start:], verbose=P.get("verbose", False))
    out = A.L[:body_start] + body
    out.append(".p2align 6")
    out.append(".type L_table,@object")
    out.append("L_table:")
    for row in tab: out.append("  .long " + ", ".join(str(v) for v in row))
    out.append(".size L_table, 8192")
    out += ['.section .rodata,"a"', ".p2align 6", f".amdhsa_kernel {NAME}",
            "  .amdhsa_next_free_vgpr 512", "  .amdhsa_next_free_sgpr 102", "  .amdhsa_accum_offset 256",
            "  .amdhsa_group_segment_fixed_size 0", "  .amdhsa_kernarg_size 96", "  .amdhsa_user_sgpr_count 2",
            "  .amdhsa_user_sgpr_kernarg_segment_ptr 1", "  .amdhsa_system_sgpr_workgroup_id_x 1",
            "  .amdhsa_float_denorm_mode_32 3",
            ".end_amdhsa_kernel"]
    return "\n".join(out) + "\n"

if __name__ == "__main__":
    P = eval(sys.argv[2]) if len(sys.argv) > 2 else {}
    P.setdefault("verbose", True)
    s = gen(P)
    open(sys.argv[1] if len(sys.argv) > 1 else "k.s", "w").write(s)
```

```python
import struct, sys, math
from asmlib import Asm, fix_hazards, vr, ar, sr

NAME = "recurrent_scan__gqa_block_cached__geglu_ffn__decode_kernel"

def f2u(x): return struct.unpack("<I", struct.pack("<f", x))[0]

WS_EPOCH = 0
WS_QP   = 0x001000
WS_H1O  = 0x050000
WS_H1ML = 0x090000
WS_GU   = 0x0A0000
WS_YP   = 0x100000
WS_SP   = 0x1B0000
WS_CNT  = 0x1E0000
WS_DBG  = 0x200000
WS_SIZE = 0x400000

X_LN, XROW = 0, 1184
Q_LDS = 2432
X2, X2ROW = 3072, 576
X3, X3ROW = 4352, 192
MERGE = 4864
PROG = 2368
QRDY = 2372
QPUB = 2376
DEADF = 2380
PUBD = 2384
T_WQ = 6400
XH = T_WQ
T_WO = T_WQ + 20480
T_FFN = T_WO + 32768
SCORES = T_FFN + 73728
LDS_BYTES = SCORES + 16384

LOG2E = 1.4426950408889634
SCALE = 128 ** -0.5
POLL_LIMIT = 400000

S_WAVE = 3
S_X, S_K, S_V, S_WQ, S_WO, S_BX, S_WG, S_WU = 4, 6, 8, 10, 12, 14, 16, 18
S_WD, S_OUT, S_DBG, S_WS = 20, 22, 24, 26
S_KV0, S_NSB, S_FT, S_FCB, S_WCB, S_FIN = 28, 29, 30, 31, 32, 33
S_HKV, S_B, S_M, S_REC = 36, 37, 38, 39
S_EPO, S_TAG, S_EPN = 40, 41, 42
SRD_K, SRD_V, SRD_WS, SRD_T, SRD_U = 44, 48, 52, 56, 60
SG1, SG2, SG3 = 80, 82, 84
S_CNT = 91
S_T0 = 92

def make_table(wside=0.8, c_ffn=72.0, c_wo=0.0, c_fin=12.0, pool=128, adj=None):
    info = {w: dict(x=w & 7, g=w >> 3, j=w & 7, ft=0, fcb=0, wcb=255, fin=255) for w in range(256)}
    free = lambda w: ((w & 7) == (w >> 3) % 8) or ((w >> 3) < 8 and (w & 7) == ((w >> 3) + 4) % 8)
    e = 0
    for w in range(256):
        if not free(w):
            info[w]["ft"] = 1 + e % 3; info[w]["fcb"] = e // 3; e += 1
    assert e == 216
    xcnt = [0] * 8
    for c in range(16):
        chosen = []
        quota = {2 * c: 5 if c % 2 == 0 else 4, 2 * c + 1: 4 if c % 2 == 0 else 5}
        mem = list(range(16 * c, 16 * c + 16))
        for w in mem:
            if free(w): chosen.append(w); quota[w >> 3] -= 1; xcnt[w & 7] += 1
        while len(chosen) < 9:
            cand = [w for w in mem if w not in chosen and quota[w >> 3] > 0]
            w = min(cand, key=lambda v: (xcnt[v & 7], v))
            chosen.append(w); quota[w >> 3] -= 1; xcnt[w & 7] += 1
        for cb, w in enumerate(chosen): info[w]["wcb"] = cb
    frees = [w for w in range(64) if free(w)]
    more = [w for w in range(64, 256) if free(w)]
    fins = [frees[0], frees[3], frees[4], frees[7], frees[8], frees[11], frees[12], frees[15], more[5]]
    assert len(fins) == 9
    for f, w in enumerate(fins): info[w]["fin"] = f
    static_total = 1024 - pool
    for g in range(32):
        ws_ = list(range(8 * g, 8 * g + 8))
        side = []
        for w in ws_:
            i = info[w]
            sd = (c_ffn if i["ft"] else 0) + (c_wo if i["wcb"] != 255 else 0) + (c_fin if i["fin"] != 255 else 0)
            if adj: sd += adj(w, i)
            side.append(sd * wside)
        tot = static_total * 16 + sum(side)
        ideal = [(tot / 8 - sd) / 16 for sd in side]
        n = [int(math.floor(v)) for v in ideal]
        rem = static_total - sum(n)
        order = sorted(range(8), key=lambda k: -(ideal[k] - n[k]))
        for k in order[:rem]: n[k] += 1
        assert sum(n) == static_total and min(n) >= 16 and max(n) <= 126
        st = 0
        for k, w in enumerate(ws_):
            info[w]["kv0"] = st; info[w]["nsb"] = n[k]; st += n[k]
        info[ws_[0]]["side_total"] = sum(side)
    tab = [[info[w]["kv0"], info[w]["nsb"], info[w]["ft"], info[w]["fcb"], info[w]["wcb"], info[w]["fin"], 0, 0] for w in range(256)]
    return tab, info

def gemv(A, nsteps, cts, a_read, tr_read, acc, abuf, bbuf, nbuf):
    reads = []
    last = {}
    for n in range(nsteps):
        reads.append((n, a_read(n, abuf(n % nbuf))))
        for ct in cts:
            for u in range(2):
                reads.append((n, tr_read(n, ct, u, bbuf(n % nbuf, ct) + 2 * u)))
            last[(n, ct)] = len(reads) - 1
    issued = 0; done = 0
    for n in range(nsteps):
        for ci, ct in enumerate(cts):
            while issued < len(reads) and (issued - done) < 15 and reads[issued][0] < n + nbuf - (0 if ci == 0 or True else 0):
                if reads[issued][0] - nbuf >= n: break
                A(reads[issued][1]); issued += 1
            need = last[(n, ct)]
            assert issued > need, (issued, need, n, ct)
            if done <= need:
                k = issued - 1 - need
                A(f"s_waitcnt lgkmcnt({k})")
                done = need + 1
            c = "0" if n == 0 else vr(acc(ct), 4)
            A(f"v_mfma_f32_16x16x32_bf16 {vr(acc(ct),4)}, {vr(abuf(n % nbuf),4)}, {vr(bbuf(n % nbuf, ct),4)}, {c}")

def poll_begin(A, name):
    A(f"s_mov_b32 s{S_CNT}, {POLL_LIMIT}")
    A.lab(name)

def poll_end(A, name, sleep):
    ok = name + "_ok"
    A(f"s_cbranch_vccz {ok}")
    A(f"s_sub_u32 s{S_CNT}, s{S_CNT}, 1")
    A(f"s_cmp_eq_u32 s{S_CNT}, 0")
    A(f"s_cbranch_scc1 {ok}")
    if sleep: A(f"s_sleep {sleep}")
    A(f"s_branch {name}")
    A.lab(ok)

def wait_progress(A, name, thr):
    A(f"s_mov_b32 s{S_CNT}, {POLL_LIMIT}")
    A("v_mov_b32 v250, 0")
    A.lab(name)
    A(f"ds_read_b32 v251, v250 offset:{PROG}")
    A("s_waitcnt lgkmcnt(0)")
    A("v_readfirstlane_b32 s90, v251")
    A(f"s_cmp_ge_u32 s90, {thr}")
    A(f"s_cbranch_scc1 {name}_ok")
    A(f"s_sub_u32 s{S_CNT}, s{S_CNT}, 1")
    A(f"s_cmp_eq_u32 s{S_CNT}, 0")
    A(f"s_cbranch_scc1 {name}_ok")
    A("s_sleep 8")
    A(f"s_branch {name}")
    A.lab(name + "_ok")

def wait_lds(A, name, off, thr, sleep, tv=250):
    A(f"s_mov_b32 s{S_CNT}, {POLL_LIMIT * 8}")
    A(f"v_mov_b32 v{tv}, 0")
    A.lab(name)
    A(f"ds_read_b32 v{tv+1}, v{tv} offset:{off}")
    A("s_waitcnt lgkmcnt(0)")
    A(f"v_readfirstlane_b32 s90, v{tv+1}")
    A(f"s_cmp_ge_u32 s90, {thr}")
    A(f"s_cbranch_scc1 {name}_ok")
    A(f"s_sub_u32 s{S_CNT}, s{S_CNT}, 1")
    A(f"s_cmp_eq_u32 s{S_CNT}, 0")
    A(f"s_cbranch_scc1 {name}_ok")
    if sleep: A(f"s_sleep {sleep}")
    A(f"s_branch {name}")
    A.lab(name + "_ok")

def wait_counter(A, name, off, thr, sleep):
    A(f"s_mov_b32 s{S_CNT}, {POLL_LIMIT}")
    A.lab(name)
    A("s_mov_b32 s90, 0")
    A(f"s_atomic_add s90, s[{S_DBG}:{S_DBG+1}], {off} glc")
    A("s_waitcnt lgkmcnt(0)")
    A(f"s_cmp_ge_u32 s90, {thr}")
    A(f"s_cbranch_scc1 {name}_ok")
    A(f"s_sub_u32 s{S_CNT}, s{S_CNT}, 1")
    A(f"s_cmp_eq_u32 s{S_CNT}, 0")
    A(f"s_cbranch_scc1 {name}_ok")
    A(f"s_sleep {sleep}")
    A(f"s_branch {name}")
    A.lab(name + "_ok")

def check_tags(A, tags, t):
    A(f"v_max3_u32 v{t}, v{tags[0]}, v{tags[1]}, v{tags[2]}")
    A(f"v_min3_u32 v{t+1}, v{tags[0]}, v{tags[1]}, v{tags[2]}")
    rest = tags[3:]
    for k in range(0, len(rest), 2):
        a = rest[k]; b_ = rest[min(k + 1, len(rest) - 1)]
        A(f"v_max3_u32 v{t}, v{t}, v{a}, v{b_}")
        A(f"v_min3_u32 v{t+1}, v{t+1}, v{a}, v{b_}")
    A(f"v_xor_b32 v{t}, v{t}, v{t+1}")
    A(f"v_xor_b32 v{t+1}, s{S_TAG}, v{t+1}")
    A(f"v_or_b32 v{t}, v{t}, v{t+1}")
    A(f"v_cmp_ne_u32 vcc, 0, v{t}")

def reduce16(A, v, op="v_add_f32"):
    for k in (8, 4, 2, 1):
        A(f"{op}_dpp {vr(v)}, {vr(v)}, {vr(v)} row_ror:{k} row_mask:0xf bank_mask:0xf")

def swap16(A, v, t, op):
    A(f"v_mov_b32 {vr(t)}, {vr(v)}")
    A(f"v_permlane16_swap_b32 {vr(v)}, {vr(t)}")
    A(f"{op} {vr(v)}, {vr(v)}, {vr(t)}")

def swap32(A, v, t, op):
    A(f"v_mov_b32 {vr(t)}, {vr(v)}")
    A(f"v_permlane32_swap_b32 {vr(v)}, {vr(t)}")
    A(f"{op} {vr(v)}, {vr(v)}, {vr(t)}")

def round_bf16(A, dst, src):
    A(f"v_cvt_pk_bf16_f32 {vr(dst)}, {vr(src)}, {vr(src)}")
    A(f"v_and_b32 {vr(dst)}, 0xffff0000, {vr(dst)}")

def srd(A, base, ptr, nrec, off=None):
    if off is None:
        A(f"s_mov_b32 s{base}, s{ptr}")
        A(f"s_mov_b32 s{base+1}, s{ptr+1}")
    else:
        lo, hi = off
        A(f"s_add_u32 s{base}, s{ptr}, s{lo}")
        A(f"s_addc_u32 s{base+1}, s{ptr+1}, {hi}")
    A(f"s_mov_b32 s{base+2}, {nrec}")
    A(f"s_mov_b32 s{base+3}, 0x20000")

def stamp(A, P, idx):
    if not P.get("stamps"): return
    A("s_memrealtime s[92:93]")
    A("s_waitcnt lgkmcnt(0)")
    A(f"v_writelane_b32 v253, s92, {idx}")

def stamp_flush(A, P):
    if not P.get("stamps"): return
    A(f"s_lshl_b32 s94, s2, 2")
    A(f"s_add_u32 s94, s94, s{S_WAVE}")
    A(f"s_lshl_b32 s94, s94, 6")
    A(f"s_add_u32 s94, s94, {WS_DBG}")
    A("v_lshlrev_b32 v254, 2, v0")
    A("s_mov_b64 exec, 0xffff")
    A(f"buffer_store_dword v253, v254, s[{SRD_WS}:{SRD_WS+3}], s94 offen")

def dma_voff(A, vE, vO, stride, vL, t0, t1):
    A(f"v_lshrrev_b32 {vr(t0)}, 3, {vr(vL)}")
    A(f"s_mov_b32 s64, {stride}")
    A(f"v_mul_lo_u32 {vr(vE)}, {vr(t0)}, s64")
    A(f"v_bfe_u32 {vr(t0)}, {vr(vL)}, 4, 1")
    A(f"v_lshlrev_b32 {vr(t0)}, 1, {vr(t0)}")
    A(f"v_and_b32 {vr(t1)}, 7, {vr(vL)}")
    A(f"v_xor_b32 {vr(t0)}, {vr(t0)}, {vr(t1)}")
    A(f"v_lshl_add_u32 {vr(vE)}, {vr(t0)}, 4, {vr(vE)}")
    A(f"v_xor_b32 {vr(vO)}, 64, {vr(vE)}")

def tr_addr(A, vT, vL, t0, t1):
    A(f"v_lshrrev_b32 {vr(t0)}, 4, {vr(vL)}")
    A(f"v_bfe_u32 {vr(t1)}, {vr(vL)}, 2, 2")
    A(f"v_lshl_add_u32 {vr(vT)}, {vr(t0)}, 3, {vr(t1)}")
    A(f"v_lshlrev_b32 {vr(vT)}, 7, {vr(vT)}")
    A(f"v_and_b32 {vr(t0)}, 1, {vr(t0)}")
    A(f"v_lshlrev_b32 {vr(t0)}, 1, {vr(t0)}")
    A(f"v_lshrrev_b32 {vr(t1)}, 1, {vr(t1)}")
    A(f"v_or_b32 {vr(t0)}, {vr(t0)}, {vr(t1)}")
    A(f"v_lshlrev_b32 {vr(t0)}, 1, {vr(t0)}")
    A(f"v_bfe_u32 {vr(t1)}, {vr(vL)}, 1, 1")
    A(f"v_xor_b32 {vr(t0)}, {vr(t0)}, {vr(t1)}")
    A(f"v_lshl_add_u32 {vr(vT)}, {vr(t0)}, 4, {vr(vT)}")
    A(f"v_and_b32 {vr(t0)}, 1, {vr(vL)}")
    A(f"v_lshl_add_u32 {vr(vT)}, {vr(t0)}, 3, {vr(vT)}")
    for ct in range(1, 4):
        A(f"v_xor_b32 {vr(vT+ct)}, {32*ct}, {vr(vT)}")

def sel_by_group(A, dst, regs):
    A(f"v_cndmask_b32 {vr(dst)}, {vr(regs[0])}, {vr(regs[1])}, s[{SG1}:{SG1+1}]")
    A(f"v_cndmask_b32 {vr(dst)}, {vr(dst)}, {vr(regs[2])}, s[{SG2}:{SG2+1}]")
    A(f"v_cndmask_b32 {vr(dst)}, {vr(dst)}, {vr(regs[3])}, s[{SG3}:{SG3+1}]")

def gen(P=None):
    P = P or {}
    D = P.get("D", 2)
    FL = P.get("kvflags", "nt")
    FLK = P.get("kflags", FL); FLV = P.get("vflags", FL)
    HST = P.get("hst", "sc1"); HLD = P.get("hld", "sc1")
    WFL = P.get("wflags", "nt")
    tab, info = make_table(**P.get("table", {}))
    if P.get("no_ffn"):
        for row in tab: row[2] = 0; row[5] = 255
    if P.get("only_gu"):
        for row in tab:
            if row[2] == 3: row[2] = 0
            row[5] = 255
    if P.get("only_dn"):
        for row in tab:
            if row[2] in (1, 2): row[2] = 0
            row[5] = 255
    if P.get("no_y"):
        for row in tab: row[5] = 255
    if P.get("no_wo"):
        for row in tab: row[4] = 255; row[5] = 255
    A = Asm()
    A.L += open(P.get("header", "recurrent_scan__gqa_block_cached__geglu_ffn__decode.s.ref")).read().split("; Override launch")[0].rstrip("\n").split("\n")
    A.L.append(f"; @launch grid=(256,1,1) block=(256,1,1) lds={LDS_BYTES}")
    A('.amdgcn_target "amdgcn-amd-amdhsa--gfx950"')
    A(".text")
    A(f".globl {NAME}")
    A(".p2align 8")
    A(f".type {NAME},@function")
    body_start = len(A.L)
    A.lab(NAME)
    A("s_cmp_ge_u32 s2, 256")
    A("s_cbranch_scc1 L_exit")
    A("s_load_dwordx16 s[4:19], s[0:1], 0")
    A("s_load_dwordx8 s[20:27], s[0:1], 64")
    A("s_getpc_b64 s[64:65]")
    A.lab("L_pc")
    A("s_add_u32 s64, s64, L_table-L_pc")
    A("s_addc_u32 s65, s65, 0")
    A("s_lshl_b32 s66, s2, 5")
    A("s_add_u32 s64, s64, s66")
    A("s_addc_u32 s65, s65, 0")
    A("s_load_dwordx8 s[28:35], s[64:65], 0")
    A("v_lshrrev_b32 v1, 6, v0")
    A("v_and_b32 v0, 63, v0")
    A(f"v_readfirstlane_b32 s{S_WAVE}, v1")
    if P.get("stamps"):
        A("v_mov_b32 v253, 0")
        stamp(A, P, 15)
    A(f"s_lshr_b32 s{S_HKV}, s2, 4")
    A(f"s_and_b32 s{S_M}, s2, 15")
    A(f"s_lshr_b32 s{S_B}, s{S_M}, 3")
    A(f"s_mov_b32 s{S_REC}, s2")
    A(f"s_mov_b32 s{SG1}, 0xffff0000")
    A(f"s_mov_b32 s{SG1+1}, 0")
    A(f"s_mov_b32 s{SG2}, 0")
    A(f"s_mov_b32 s{SG2+1}, 0xffff")
    A(f"s_mov_b32 s{SG3}, 0")
    A(f"s_mov_b32 s{SG3+1}, 0xffff0000")
    A("s_waitcnt lgkmcnt(0)")
    if P.get("dbgdur") or P.get("diag_hold"): A("s_memrealtime s[98:99]")
    A(f"s_load_dword s{S_EPO}, s[{S_WS}:{S_WS+1}], {WS_EPOCH}")
    srd(A, SRD_WS, S_WS, WS_SIZE)
    A(f"s_cmp_ge_u32 s{S_WAVE}, 2")
    A("s_cbranch_scc1 L_att")
    A(f"s_cmp_eq_u32 s{S_WAVE}, 1")
    A("s_cbranch_scc1 L_s1")

    vL = 0
    A("v_lshlrev_b32 v1, 4, v0")
    for k in range(4): A(f"v_mov_b32 v{4+k}, -1")
    A(f"s_lshl_b32 s64, s{S_REC}, 10")
    A(f"s_add_u32 s64, s64, {WS_H1O}")
    A(f"buffer_store_dwordx4 v[4:7], v1, s[{SRD_WS}:{SRD_WS+3}], s64 offen sc1")
    A(f"s_lshl_b32 s65, s{S_REC}, 7")
    A(f"s_add_u32 s65, s65, {WS_H1ML}")
    A("s_mov_b64 exec, 0xff")
    A(f"buffer_store_dwordx4 v[4:7], v1, s[{SRD_WS}:{SRD_WS+3}], s65 offen sc1")
    A("s_mov_b64 exec, -1")
    A("s_and_b32 s64, s2, 7")
    A("s_cmp_lg_u32 s64, 0")
    A("s_cbranch_scc1 L_nocnt")
    A("s_lshr_b32 s64, s2, 3")
    A("s_lshl_b32 s64, s64, 8")
    A(f"s_add_u32 s64, s64, {WS_CNT}")
    A("v_mov_b32 v8, 0")
    A("s_mov_b64 exec, 1")
    A(f"buffer_store_dword v8, v1, s[{SRD_WS}:{SRD_WS+3}], s64 offen sc1")
    A("s_mov_b64 exec, -1")
    A.lab("L_nocnt")
    srd(A, SRD_U, S_X, 2304)
    A("v_lshrrev_b32 v2, 5, v0")
    A("v_mul_u32_u24 v2, 1152, v2")
    A("v_and_b32 v3, 31, v0")
    A("v_lshl_add_u32 v2, v3, 2, v2")
    for n in range(9):
        A(f"buffer_load_dword v{8+n}, v2, s[{SRD_U}:{SRD_U+3}], 0 offen offset:{128*n}")
    srd(A, SRD_T, S_WQ, 576 * 8192)
    dma_voff(A, 18, 19, 8192, vL, 20, 21)
    A(f"s_lshr_b32 s66, s{S_M}, 2")
    A(f"s_mul_i32 s67, s66, {144*8192}")
    A(f"s_and_b32 s68, s{S_M}, 3")
    A(f"s_lshl_b32 s68, s68, 7")
    A("s_add_u32 s67, s67, s68")
    A(f"s_lshl_b32 s68, s{S_HKV}, 9")
    A("s_add_u32 s67, s67, s68")
    A(f"s_mov_b32 s68, {T_WQ}")
    A("s_mov_b32 s69, 9")
    A.lab("L_wqdma")
    for par in range(2):
        A("s_mov_b32 m0, s68")
        A("s_add_u32 s68, s68, 1024")
        A(f"buffer_load_dwordx4 v{18+par}, s[{SRD_T}:{SRD_T+3}], s67 offen {WFL} lds")
        A("s_add_u32 s67, s67, 65536")
    A("s_sub_u32 s69, s69, 1")
    A("s_cmp_lg_u32 s69, 0")
    A("s_cbranch_scc1 L_wqdma")
    A("v_mov_b32 v20, 0")
    A("v_mov_b32 v21, 0")
    A("v_mov_b32 v22, 0")
    A(f"ds_write_b32 v20, v20 offset:{PROG}")
    A(f"ds_write_b64 v20, v[20:21] offset:{QRDY + 4 - 4 + 0}") if False else None
    A(f"ds_write_b32 v20, v20 offset:{QRDY}")
    A(f"ds_write_b32 v20, v20 offset:{QPUB}")
    A(f"ds_write_b32 v20, v20 offset:{DEADF}")
    A(f"ds_write_b32 v20, v20 offset:{PUBD}")
    A("s_waitcnt lgkmcnt(0)")
    A("s_barrier")
    stamp(A, P, 0)
    for k in range(4): A(f"v_mov_b32 v{20+k}, 0")
    A(f"ds_write_b128 v1, v[20:23] offset:{T_WQ + 18432}")
    A(f"ds_write_b128 v1, v[20:23] offset:{T_WQ + 19456}")
    A("v_lshrrev_b32 v24, 3, v0")
    A(f"v_mul_u32_u24 v24, {XROW}, v24")
    A("v_and_b32 v25, 7, v0")
    A("v_lshl_add_u32 v24, v25, 2, v24")
    A("s_mov_b64 exec, 0xffff")
    A(f"ds_write_b32 v24, v20 offset:{X_LN + 1152}")
    A("s_mov_b64 exec, -1")
    tr_addr(A, 100, vL, 24, 25)
    A("v_and_b32 v104, 1, v0")
    A(f"v_mul_u32_u24 v104, {XROW}, v104")
    A("v_lshrrev_b32 v24, 4, v0")
    A("v_lshl_add_u32 v104, v24, 4, v104")
    A(f"s_mul_i32 s64, s66, 288")
    A("v_add_u32 v105, s64, v104")
    A("s_waitcnt vmcnt(18)")
    lo = lambda n: 24 + 2 * n
    hi = lambda n: 25 + 2 * n
    for n in range(9):
        A(f"v_lshlrev_b32 v{lo(n)}, 16, v{8+n}")
        A(f"v_and_b32 v{hi(n)}, 0xffff0000, v{8+n}")
    A(f"v_add_f32 v42, v{lo(0)}, v{hi(0)}")
    A(f"v_add_f32 v43, v{lo(1)}, v{hi(1)}")
    for n in range(2, 9):
        A(f"v_add_f32 v42, v42, v{lo(n)}")
        A(f"v_add_f32 v43, v43, v{hi(n)}")
    A("v_add_f32 v42, v42, v43")
    reduce16(A, 42); swap16(A, 42, 43, "v_add_f32")
    A(f"v_mul_f32 v42, {hex(f2u(1/576))}, v42")
    A("v_mov_b32 v44, 0")
    for n in range(9):
        A(f"v_sub_f32 v45, v{lo(n)}, v42")
        A(f"v_sub_f32 v46, v{hi(n)}, v42")
        A("v_fmac_f32 v44, v45, v45")
        A("v_fmac_f32 v44, v46, v46")
    reduce16(A, 44); swap16(A, 44, 43, "v_add_f32")
    A(f"v_mul_f32 v44, {hex(f2u(1/576))}, v44")
    round_bf16(A, 44, 44)
    A(f"v_add_f32 v44, {hex(f2u(1e-5))}, v44")
    round_bf16(A, 44, 44)
    A("v_sqrt_f32 v44, v44")
    round_bf16(A, 44, 44)
    A("v_rcp_f32 v44, v44")
    round_bf16(A, 42, 42)
    A("v_lshrrev_b32 v47, 5, v0")
    A(f"v_mul_u32_u24 v47, {XROW}, v47")
    A("v_and_b32 v48, 31, v0")
    A("v_lshl_add_u32 v47, v48, 2, v47")
    for n in range(9):
        A(f"v_sub_f32 v45, v{lo(n)}, v42")
        A(f"v_sub_f32 v46, v{hi(n)}, v42")
        A("v_cvt_pk_bf16_f32 v45, v45, v46")
        A("v_and_b32 v46, 0xffff0000, v45")
        A("v_lshlrev_b32 v45, 16, v45")
        A("v_mul_f32 v45, v45, v44")
        A("v_mul_f32 v46, v46, v44")
        A(f"v_cvt_pk_bf16_f32 v{50+n}, v45, v46")
        A(f"ds_write_b32 v47, v{50+n} offset:{X_LN + 128*n}")
    stamp(A, P, 1)
    A("s_waitcnt vmcnt(0) lgkmcnt(0)")
    A(f"s_add_u32 s{S_EPN}, s{S_EPO}, 1")
    A(f"s_mul_i32 s{S_TAG}, s{S_EPN}, 0x9E3779B1")
    A(f"s_xor_b32 s{S_TAG}, s{S_TAG}, 0x5bd1e995")
    stamp(A, P, 2)
    ACC = lambda ct: 110 + 4 * ct
    gemv(A, 5, [0, 1, 2, 3],
         lambda n, d: f"ds_read_b128 {vr(d,4)}, v105 offset:{X_LN + 64*n}",
         lambda n, ct, u, d: f"ds_read_b64_tr_b16 {vr(d,2)}, v{100+ct} offset:{T_WQ + 4096*n + 512*u}",
         ACC, lambda k: 128 + 20 * k, lambda k, ct: 132 + 20 * k + 4 * ct, 2)
    def publish_pair(soff):
        sel_by_group(A, 8, [ACC(ct) for ct in range(4)])
        sel_by_group(A, 10, [ACC(ct) + 1 for ct in range(4)])
        return
    publish_pair(None)
    A(f"v_mov_b32 v9, s{S_TAG}")
    A(f"v_mov_b32 v11, s{S_TAG}")
    A(f"s_lshl_b32 s64, s{S_REC}, 10")
    A(f"s_add_u32 s64, s64, {WS_QP}")
    A(f"buffer_store_dwordx4 v[8:11], v1, s[{SRD_WS}:{SRD_WS+3}], s64 offen sc1")
    A("v_mov_b32 v12, 0")
    A("v_mov_b32 v13, 1")
    A(f"ds_write_b32 v12, v13 offset:{QPUB}")
    stamp(A, P, 3)
    A(f"s_lshl_b32 s64, s{S_B}, 3")
    A("v_add_u32 v2, s64, v1")
    A(f"s_lshl_b32 s64, s{S_HKV}, 14")
    A(f"s_add_u32 s64, s64, {WS_QP}")
    for k in range(1, 4): A(f"s_add_u32 s{64+k}, s64, {4096*k}")
    poll_begin(A, "L_qpoll")
    for m in range(16):
        A(f"buffer_load_dwordx2 v[{24+2*m}:{25+2*m}], v2, s[{SRD_WS}:{SRD_WS+3}], s{64+(m>>2)} offen offset:{1024*(m&3)} sc1")
    A("s_waitcnt vmcnt(0)")
    A("v_max3_u32 v60, v25, v27, v29")
    A("v_min3_u32 v61, v25, v27, v29")
    for m in range(3, 16, 2):
        a, b_ = 25 + 2 * m, 25 + 2 * min(m + 1, 15)
        A(f"v_max3_u32 v60, v60, v{a}, v{b_}")
        A(f"v_min3_u32 v61, v61, v{a}, v{b_}")
    A("v_xor_b32 v60, v60, v61")
    A(f"v_xor_b32 v61, s{S_TAG}, v61")
    A("v_or_b32 v60, v60, v61")
    A("v_cmp_ne_u32 vcc, 0, v60")
    if P.get("stamps"):
        A(f"s_cmp_eq_u32 s{S_CNT}, {POLL_LIMIT}")
        A("s_cbranch_scc0 L_qp_nostamp")
        A("s_memrealtime s[92:93]")
        A("s_waitcnt lgkmcnt(0)")
        A("v_writelane_b32 v253, s92, 11")
        A.lab("L_qp_nostamp")
    poll_end(A, "L_qpoll", 1)
    if P.get("stamps"):
        A(f"s_sub_u32 s92, {POLL_LIMIT+1}, s{S_CNT}")
        A("v_writelane_b32 v253, s92, 12")
    A("v_lshlrev_b32 v3, 1, v0")
    for cbp in range(4):
        m = lambda kr: 24 + 2 * (kr * 4 + cbp)
        A(f"v_add_f32 v60, v{m(0)}, v{m(1)}")
        A(f"v_add_f32 v60, v60, v{m(2)}")
        A(f"v_add_f32 v60, v60, v{m(3)}")
        A(f"v_cvt_pk_bf16_f32 v{62+cbp}, v60, v60")
        A(f"ds_write_b16 v3, v{62+cbp} offset:{Q_LDS + 128*cbp}")
    A("s_waitcnt lgkmcnt(0)")
    A("v_mov_b32 v12, 0")
    A("v_mov_b32 v13, 1")
    A(f"ds_write_b32 v12, v13 offset:{QRDY}")
    stamp(A, P, 4)
    A(f"s_cmp_eq_u32 s{S_FIN}, 255")
    A("s_cbranch_scc1 L_s0_noy")
    wait_progress(A, "L_ywait", P.get("t_y", 88))
    A(f"s_lshl_b32 s64, s{S_FIN}, 13")
    A(f"s_add_u32 s64, s64, {WS_YP}")
    A("s_add_u32 s65, s64, 4096")
    poll_begin(A, "L_ypoll")
    for n in range(8):
        A(f"buffer_load_dwordx4 v[{24+4*n}:{27+4*n}], v1, s[{SRD_WS}:{SRD_WS+3}], s{64+(n>>2)} offen offset:{1024*(n&3)} sc1")
    A("s_waitcnt vmcnt(0)")
    check_tags(A, [25 + 4 * n + 2 * k for n in range(8) for k in range(2)], 80)
    poll_end(A, "L_ypoll", 32)
    A("v_add_f32 v200, v24, v28")
    A("v_add_f32 v201, v26, v30")
    for n in range(2, 8):
        A(f"v_add_f32 v200, v200, v{24+4*n}")
        A(f"v_add_f32 v201, v201, v{26+4*n}")
    for k in range(2):
        y = 200 + k
        round_bf16(A, y, y)
        A(f"v_mul_f32 v80, {hex(f2u(-LOG2E))}, v{y}")
        A("v_exp_f32 v80, v80")
        A("v_add_f32 v80, 1.0, v80")
        A("v_rcp_f32 v80, v80")
        A(f"v_mul_f32 v{y}, v{y}, v80")
        round_bf16(A, y, y)
    srd(A, SRD_U, S_X, 2304)
    A(f"s_lshl_b32 s70, s{S_FIN}, 7")
    A("v_lshlrev_b32 v204, 1, v0")
    A(f"buffer_load_ushort v202, v204, s[{SRD_U}:{SRD_U+3}], s70 offen")
    A(f"buffer_load_ushort v203, v204, s[{SRD_U}:{SRD_U+3}], s70 offen offset:1152")
    A("s_waitcnt vmcnt(0)")
    A.lab("L_s0_noy")
    stamp(A, P, 5)

    A("s_branch L_side_tail")

    A.lab("L_s1")
    A("v_lshlrev_b32 v1, 4, v0")
    A("s_barrier")
    A("s_waitcnt lgkmcnt(0)")
    A(f"s_add_u32 s{S_EPN}, s{S_EPO}, 1")
    A(f"s_mul_i32 s{S_TAG}, s{S_EPN}, 0x9E3779B1")
    A(f"s_xor_b32 s{S_TAG}, s{S_TAG}, 0x5bd1e995")
    if P.get("s1_start", "b0") == "qpub": wait_lds(A, "L_qpubwait", QPUB, 1, 1)
    if P.get("s1_start") == "qrdy": wait_lds(A, "L_qpubwait", QRDY, 1, 1)
    DL = P.get("dma_lead", 16)
    A(f"s_cmp_eq_u32 s{S_FT}, 0")
    A("s_cbranch_scc1 L_s1_wo")
    A(f"s_cmp_eq_u32 s{S_FT}, 3")
    A("s_cbranch_scc1 L_dn_setup")
    A(f"s_cmp_eq_u32 s{S_FT}, 1")
    A(f"s_cselect_b32 s{SRD_T}, s{S_WG}, s{S_WU}")
    A(f"s_cselect_b32 s{SRD_T+1}, s{S_WG+1}, s{S_WU+1}")
    A(f"s_mov_b32 s{SRD_T+2}, {576*9216}")
    A(f"s_mov_b32 s{SRD_T+3}, 0x20000")
    dma_voff(A, 18, 19, 9216, vL, 20, 21)
    A(f"s_lshl_b32 s67, s{S_FCB}, 7")
    A(f"s_mov_b32 s71, {8*9216}")
    A("s_branch L_ffn_dma")
    A.lab("L_dn_setup")
    srd(A, SRD_T, S_WD, 4608 * 1152)
    dma_voff(A, 18, 19, 1152, vL, 20, 21)
    A(f"s_mul_i32 s72, s{S_FCB}, 57")
    A("s_lshr_b32 s72, s72, 9")
    A("s_mul_i32 s73, s72, 9")
    A(f"s_sub_u32 s73, s{S_FCB}, s73")
    A(f"s_mul_i32 s67, s72, {576*1152}")
    A("s_lshl_b32 s64, s73, 7")
    A("s_add_u32 s67, s67, s64")
    A(f"s_mov_b32 s71, {8*1152}")
    A.lab("L_ffn_dma")
    A(f"s_mov_b32 s68, {T_FFN}")
    A("s_mov_b32 s69, 36")
    A.lab("L_gudma")
    for par in range(2):
        A("s_mov_b32 m0, s68")
        A("s_add_u32 s68, s68, 1024")
        A(f"buffer_load_dwordx4 v{18+par}, s[{SRD_T}:{SRD_T+3}], s67 offen {WFL} lds")
        A(f"s_add_u32 s67, s67, s71")
    A(f"s_waitcnt vmcnt({DL})")
    A("s_sub_u32 s69, s69, 1")
    A("s_cmp_lg_u32 s69, 0")
    A("s_cbranch_scc1 L_gudma")
    A.lab("L_s1_wo")
    if P.get("wo_late", True): A("s_branch L_s1_nowo")
    A(f"s_cmp_eq_u32 s{S_WCB}, 255")
    A("s_cbranch_scc1 L_s1_nowo")
    srd(A, SRD_T, S_WO, 4096 * 1152)
    dma_voff(A, 18, 19, 1152, vL, 20, 21)
    A(f"s_mul_i32 s67, s{S_HKV}, {256*1152}")
    A(f"s_lshl_b32 s68, s{S_WCB}, 7")
    A("s_add_u32 s67, s67, s68")
    A(f"s_mov_b32 s68, {T_WO}")
    A("s_mov_b32 s69, 16")
    A.lab("L_wodma")
    for par in range(2):
        A("s_mov_b32 m0, s68")
        A("s_add_u32 s68, s68, 1024")
        A(f"buffer_load_dwordx4 v{18+par}, s[{SRD_T}:{SRD_T+3}], s67 offen {WFL} lds")
        A(f"s_add_u32 s67, s67, 9216")
    A(f"s_waitcnt vmcnt({DL})")
    A("s_sub_u32 s69, s69, 1")
    A("s_cmp_lg_u32 s69, 0")
    A("s_cbranch_scc1 L_wodma")
    A.lab("L_s1_nowo")
    A("s_waitcnt vmcnt(0)")
    stamp(A, P, 4)
    A(f"s_cmp_eq_u32 s{S_FT}, 0")
    A("s_cbranch_scc1 L_s1_ffn_done")
    wait_lds(A, "L_xnwait", QRDY, 1, 4)
    tr_addr(A, 100, vL, 24, 25)
    A("v_and_b32 v104, 1, v0")
    A(f"v_mul_u32_u24 v104, {XROW}, v104")
    A("v_lshrrev_b32 v24, 4, v0")
    A("v_lshl_add_u32 v104, v24, 4, v104")
    A(f"s_cmp_eq_u32 s{S_FT}, 3")
    A("s_cbranch_scc0 L_ffn_gemv")
    if P.get("x_skipdown"): A("s_branch L_s1_ffn_done")
    wait_progress(A, "L_dnwait", P.get("t_dn", 52))
    A(f"s_mul_i32 s64, s72, {9*2048}")
    A(f"s_add_u32 s64, s64, {WS_GU}")
    for k in range(1, 5): A(f"s_add_u32 s{64+k}, s64, {4096*k}")
    poll_begin(A, "L_gupoll")
    for n in range(18):
        A(f"buffer_load_dwordx4 v[{24+4*n}:{27+4*n}], v1, s[{SRD_WS}:{SRD_WS+3}], s{64+(n>>2)} offen offset:{1024*(n&3)} sc1")
    A("s_waitcnt vmcnt(0)")
    check_tags(A, [25 + 4 * n + 2 * k for n in range(18) for k in range(2)], 96)
    poll_end(A, "L_gupoll", 32)
    A("v_lshlrev_b32 v3, 1, v0")
    A(f"v_mov_b32 v98, {hex(f2u(0.044715))}")
    for i9 in range(9):
        for bb in range(2):
            gt, up = 24 + 8 * i9 + 2 * bb, 28 + 8 * i9 + 2 * bb
            A(f"v_mul_f32 v96, v{gt}, v{gt}")
            A(f"v_mul_f32 v96, v96, v{gt}")
            A(f"v_fma_f32 v96, v96, v98, v{gt}")
            A(f"v_mul_f32 v96, {hex(f2u(-2.0 * math.sqrt(2.0 / math.pi) * LOG2E))}, v96")
            A("v_exp_f32 v96, v96")
            A("v_add_f32 v96, 1.0, v96")
            A("v_rcp_f32 v96, v96")
            A(f"v_mul_f32 v96, v{gt}, v96")
            round_bf16(A, 96, 96)
            A(f"v_mul_f32 v96, v96, v{up}")
            A(f"v_cvt_pk_bf16_f32 v97, v96, v96")
            A(f"ds_write_b16 v3, v97 offset:{XH + XROW*bb + 128*i9}")
    A(f"v_add_u32 v104, {XH - X_LN}, v104")
    A("s_waitcnt lgkmcnt(0)")
    A.lab("L_ffn_gemv")
    for ct in range(4):
        A(f"v_add_u32 v{106+ct}, {T_FFN}, v{100+ct}")
        A(f"v_add_u32 v{170+ct}, {T_FFN + 9*4096}, v{100+ct}")
    gemv(A, 18, [0, 1, 2, 3],
         lambda n, d: f"ds_read_b128 {vr(d,4)}, v104 offset:{X_LN + 64*n}",
         lambda n, ct, u, d: f"ds_read_b64_tr_b16 {vr(d,2)}, v{(106 if n < 9 else 170)+ct} offset:{4096*(n % 9) + 512*u}",
         ACC, lambda k: 128 + 20 * k, lambda k, ct: 132 + 20 * k + 4 * ct, 2)
    publish_pair(None)
    A(f"v_mov_b32 v9, s{S_TAG}")
    A(f"v_mov_b32 v11, s{S_TAG}")
    A(f"s_cmp_eq_u32 s{S_FT}, 3")
    A("s_cbranch_scc1 L_dn_pub")
    round_bf16(A, 8, 8); round_bf16(A, 10, 10)
    A(f"s_lshl_b32 s64, s{S_FCB}, 1")
    A(f"s_add_u32 s64, s64, s{S_FT}")
    A("s_sub_u32 s64, s64, 1")
    A("s_lshl_b32 s64, s64, 10")
    A(f"s_add_u32 s64, s64, {WS_GU}")
    A("s_branch L_ffn_pub")
    A.lab("L_dn_pub")
    A("s_lshl_b32 s64, s73, 3")
    A("s_add_u32 s64, s64, s72")
    A("s_lshl_b32 s64, s64, 10")
    A(f"s_add_u32 s64, s64, {WS_YP}")
    A.lab("L_ffn_pub")
    A(f"buffer_store_dwordx4 v[8:11], v1, s[{SRD_WS}:{SRD_WS+3}], s64 offen sc1")
    A.lab("L_s1_ffn_done")
    stamp(A, P, 5)

    def wo_prep():
        tr_addr(A, 100, vL, 24, 25)
        A(f"s_lshl_b32 s64, s{S_WAVE}, 5")
        A("v_xor_b32 v100, s64, v100")
        A("v_and_b32 v104, 1, v0")
        A(f"v_mul_u32_u24 v104, {X2ROW}, v104")
        A("v_lshrrev_b32 v24, 4, v0")
        A("v_lshl_add_u32 v104, v24, 4, v104")
        A("v_lshlrev_b32 v105, 4, v0")
        A(f"v_mov_b32 v9, s{S_TAG}")
        A(f"v_mov_b32 v11, s{S_TAG}")
        A(f"s_lshl_b32 s87, s{S_WCB}, 14")
        A(f"s_lshl_b32 s65, s{S_HKV}, 10")
        A("s_add_u32 s87, s87, s65")
        A(f"s_lshl_b32 s65, s{S_WAVE}, 8")
        A("s_add_u32 s87, s87, s65")
        A(f"s_add_u32 s87, s87, {WS_SP}")
    A.lab("L_side_tail")
    wo_prep()
    A("v_lshlrev_b32 v1, 4, v0")
    A("v_bfe_u32 v2, v0, 2, 1")
    A("v_lshlrev_b32 v2, 3, v2")
    A(f"s_lshl_b32 s64, s{S_HKV}, 4")
    A(f"s_lshl_b32 s65, s{S_WAVE}, 3")
    A("s_add_u32 s64, s64, s65")
    A("s_lshl_b32 s66, s64, 7")
    A(f"s_add_u32 s66, s66, {WS_H1ML}")
    A("s_lshl_b32 s64, s64, 10")
    A(f"s_add_u32 s64, s64, {WS_H1O}")
    A("s_add_u32 s65, s64, 4096")
    A("v_bfe_u32 v90, v0, 2, 1")
    A("v_lshlrev_b32 v90, 8, v90")
    A("v_lshrrev_b32 v83, 4, v0")
    A("v_lshl_add_u32 v90, v83, 6, v90")
    A("v_and_b32 v83, 3, v0")
    A("v_lshl_add_u32 v90, v83, 1, v90")
    A("v_bfe_u32 v83, v0, 3, 1")
    A("v_lshl_add_u32 v90, v83, 3, v90")
    A(f"s_mul_i32 s68, s{S_WAVE}, {X2ROW}")
    A("v_add_u32 v90, s68, v90")
    A("s_mov_b32 s67, 0xff")
    if P.get("wo_late", True):
        srd(A, SRD_T, S_WO, 4096 * 1152)
        dma_voff(A, 18, 19, 1152, vL, 20, 21)
        A(f"s_lshl_b32 s69, s{S_HKV}, 1")
        A(f"s_add_u32 s69, s69, s{S_WAVE}")
        A(f"s_mul_i32 s69, s69, {128*1152}")
        A(f"s_lshl_b32 s71, s{S_WCB}, 7")
        A("s_add_u32 s69, s69, s71")
        A(f"s_lshl_b32 s71, s{S_WAVE}, 14")
        A(f"s_add_u32 s71, s71, {T_WO}")
        A(f"s_lshl_b32 s64, s{S_HKV}, 4")
        A(f"s_lshl_b32 s72, s{S_WAVE}, 3")
        A("s_add_u32 s64, s64, s72")
        A("s_lshl_b32 s64, s64, 10")
        A(f"s_add_u32 s64, s64, {WS_H1O}")
    def wo_dma():
        for n in range(16):
            A("s_mov_b32 m0, s71")
            A("s_add_u32 s71, s71, 1024")
            A(f"buffer_load_dwordx4 v{18+(n&1)}, s[{SRD_T}:{SRD_T+3}], s69 offen {WFL} lds")
            A("s_add_u32 s69, s69, 9216")
    at_dead = P.get("wo_late", True) and P.get("wo_at", "b2") == "dead"
    if at_dead:
        A(f"s_cmp_eq_u32 s{S_WCB}, 255")
        A("s_cbranch_scc1 L_nowodma")
        wait_lds(A, "L_deadwait", DEADF, 128, 2)
        wo_dma()
        A.lab("L_nowodma")
    A("s_barrier")
    stamp(A, P, 6)
    A(f"s_cmp_eq_u32 s{S_WCB}, 255")
    A("s_cbranch_scc1 L_final")
    if P.get("wo_late", True) and not at_dead:
        if P.get("wo_afterpub"): wait_lds(A, "L_pubwait", PUBD, 1, 0)
        wo_dma()
    MC = lambda p: 56 + 2 * p
    LL = lambda p: 57 + 2 * p
    poll_begin(A, "L_h1poll")
    if not P.get("h1inc", False):
        for p in range(8):
            A(f"buffer_load_dwordx4 v[{24+4*p}:{27+4*p}], v1, s[{SRD_WS}:{SRD_WS+3}], s{64+(p>>2)} offen offset:{1024*(p&3)} {HLD}")
            A(f"buffer_load_dwordx2 v[{56+2*p}:{57+2*p}], v2, s[{SRD_WS}:{SRD_WS+3}], s66 offen offset:{128*p} {HLD}")
        A("s_waitcnt vmcnt(0)")
        A("v_max3_u32 v80, v24, v25, v26")
        for k in range(27, 72, 2): A(f"v_max3_u32 v80, v80, v{k}, v{min(k+1, 71)}")
        A("v_cmp_eq_u32 vcc, -1, v80")
        A("s_mov_b32 s67, 0")
        A("s_cbranch_vccz L_h1poll_ok")
        A("s_mov_b32 s67, 1")
    for p in range(8 if P.get("h1inc", False) else 0):
        l = A.uniq("L_h1l")
        A(f"s_bitcmp1_b32 s67, {p}")
        A(f"s_cbranch_scc0 {l}")
        A(f"buffer_load_dwordx4 v[{24+4*p}:{27+4*p}], v1, s[{SRD_WS}:{SRD_WS+3}], s{64+(p>>2)} offen offset:{1024*(p&3)} sc1")
        A(f"buffer_load_dwordx2 v[{56+2*p}:{57+2*p}], v2, s[{SRD_WS}:{SRD_WS+3}], s66 offen offset:{128*p} sc1")
        A.lab(l)
    A("s_waitcnt vmcnt(0)")
    for p in range(8 if P.get("h1inc", False) else 0):
        l = A.uniq("L_h1m")
        o = 24 + 4 * p
        A(f"s_bitcmp1_b32 s67, {p}")
        A(f"s_cbranch_scc0 {l}")
        A(f"v_max3_u32 v82, v{o}, v{o+1}, v{o+2}")
        A(f"v_max3_u32 v82, v82, v{o+3}, v{MC(p)}")
        A(f"v_max_u32 v82, v82, v{LL(p)}")
        A("v_cmp_eq_u32 vcc, -1, v82")
        A(f"s_cbranch_vccnz {l}")
        A(f"s_bitset0_b32 s67, {p}")
        A.lab(l)
    A("s_cmp_eq_u32 s67, 0")
    A("s_cbranch_scc1 L_h1poll_ok")
    A(f"s_sub_u32 s{S_CNT}, s{S_CNT}, 1")
    A(f"s_cmp_eq_u32 s{S_CNT}, 0")
    A("s_cbranch_scc1 L_h1poll_ok")
    if P.get("h1sleep", 0): A(f"s_sleep {P.get('h1sleep', 0)}")
    A("s_branch L_h1poll")
    A.lab("L_h1poll_ok")
    stamp(A, P, 7)
    A(f"v_max3_f32 v80, v{MC(0)}, v{MC(1)}, v{MC(2)}")
    A(f"v_max3_f32 v80, v80, v{MC(3)}, v{MC(4)}")
    A(f"v_max3_f32 v80, v80, v{MC(5)}, v{MC(6)}")
    A(f"v_max_f32 v80, v80, v{MC(7)}")
    for p in range(8): A(f"v_sub_f32 v{MC(p)}, v{MC(p)}, v80")
    for p in range(8): A(f"v_exp_f32 v{MC(p)}, v{MC(p)}")
    A(f"v_mul_f32 v81, v{MC(0)}, v{LL(0)}")
    for rr in range(4): A(f"v_mul_f32 v{84+rr}, v{MC(0)}, v{24+rr}")
    for p in range(1, 8):
        A(f"v_fmac_f32 v81, v{MC(p)}, v{LL(p)}")
        for rr in range(4): A(f"v_fmac_f32 v{84+rr}, v{MC(p)}, v{24+4*p+rr}")
    A("v_rcp_f32 v81, v81")
    for rr in range(4):
        A(f"v_mul_f32 v{84+rr}, v{84+rr}, v81")
    A("v_cvt_pk_bf16_f32 v88, v84, v85")
    A("v_cvt_pk_bf16_f32 v89, v86, v87")
    A(f"ds_write_b16 v90, v88 offset:{X2}")
    A(f"ds_write_b16_d16_hi v90, v88 offset:{X2 + 16}")
    A(f"ds_write_b16 v90, v89 offset:{X2 + 32}")
    A(f"ds_write_b16_d16_hi v90, v89 offset:{X2 + 48}")
    A("s_waitcnt lgkmcnt(0)")
    A.lab("L_wogemv")
    A("s_barrier")
    stamp(A, P, 8)
    gemv(A, 8, [0],
         lambda n, d: f"ds_read_b128 {vr(d,4)}, v104 offset:{X2 + 64*n}",
         lambda n, ct, u, d: f"ds_read_b64_tr_b16 {vr(d,2)}, v100 offset:{T_WO + 4096*n + 512*u}",
         lambda ct: 110, lambda k: 128 + 8 * k, lambda k, ct: 132 + 8 * k, 8)
    A("v_mov_b32 v8, v110")
    A("v_mov_b32 v10, v111")
    A("s_mov_b64 exec, 0xffff")
    A(f"buffer_store_dwordx4 v[8:11], v105, s[{SRD_WS}:{SRD_WS+3}], s87 offen {HST}")
    A("s_mov_b64 exec, -1")
    stamp(A, P, 9)
    A.lab("L_final")
    A(f"s_cmp_lg_u32 s{S_WAVE}, 0")
    A("s_cbranch_scc1 L_end")
    A(f"s_cmp_eq_u32 s{S_FIN}, 255")
    A("s_cbranch_scc1 L_end")
    A("v_lshlrev_b32 v1, 4, v0")
    A(f"s_lshl_b32 s64, s{S_FIN}, 14")
    A(f"s_add_u32 s64, s64, {WS_SP}")
    for k in range(1, 4): A(f"s_add_u32 s{64+k}, s64, {4096*k}")
    srd(A, SRD_U, S_OUT, 2304)
    A("v_lshlrev_b32 v204, 1, v0")
    A(f"s_lshl_b32 s70, s{S_FIN}, 7")
    A("v_lshlrev_b32 v202, 16, v202")
    A("v_lshlrev_b32 v203, 16, v203")
    poll_begin(A, "L_h2poll")
    for n in range(16):
        A(f"buffer_load_dwordx4 v[{24+4*n}:{27+4*n}], v1, s[{SRD_WS}:{SRD_WS+3}], s{64+(n>>2)} offen offset:{1024*(n&3)} {HLD}")
    A("s_waitcnt vmcnt(0)")
    check_tags(A, [25 + 4 * n + 2 * k for n in range(16) for k in range(2)], 96)
    poll_end(A, "L_h2poll", P.get("h2sleep", 0))
    for step in (8, 4, 2, 1):
        for n in range(step):
            A(f"v_add_f32 v{24+4*n}, v{24+4*n}, v{24+4*(n+step)}")
            A(f"v_add_f32 v{26+4*n}, v{26+4*n}, v{26+4*(n+step)}")
    A("v_cvt_pk_bf16_f32 v96, v24, v26")
    A("v_and_b32 v97, 0xffff0000, v96")
    A("v_lshlrev_b32 v96, 16, v96")
    A("v_mul_f32 v96, v96, v200")
    A("v_mul_f32 v97, v97, v201")
    A("v_cvt_pk_bf16_f32 v96, v96, v97")
    A("v_and_b32 v97, 0xffff0000, v96")
    A("v_lshlrev_b32 v96, 16, v96")
    A("v_add_f32 v96, v96, v202")
    A("v_add_f32 v97, v97, v203")
    A("v_cvt_pk_bf16_f32 v96, v96, v97")
    if P.get("diag_hold"):
        A.lab("L_hold")
        A("s_memrealtime s[92:93]")
        A("s_waitcnt lgkmcnt(0)")
        A("s_sub_u32 s92, s92, s98")
        A(f"s_cmp_lt_u32 s92, {P['diag_hold']}")
        A("s_cbranch_scc1 L_hold")
    A(f"buffer_store_short v96, v204, s[{SRD_U}:{SRD_U+3}], s70 offen")
    A(f"buffer_store_short_d16_hi v96, v204, s[{SRD_U}:{SRD_U+3}], s70 offen offset:1152")
    stamp(A, P, 10)
    if P.get("dbgdur"):
        A("s_memrealtime s[92:93]")
        A("s_waitcnt lgkmcnt(0)")
        A("s_sub_u32 s92, s92, s98")
        srd(A, SRD_U, S_DBG, 256)
        A("v_mov_b32 v96, s92")
        A(f"s_lshl_b32 s64, s{S_FIN}, 2")
        A("v_mov_b32 v97, 0")
        A("s_mov_b64 exec, 1")
        A(f"buffer_store_dword v96, v97, s[{SRD_U}:{SRD_U+3}], s64 offen")
        A("s_mov_b64 exec, -1")
    A(f"s_cmp_lg_u32 s{S_FIN}, 0")
    A("s_cbranch_scc1 L_end")
    A(f"v_mov_b32 v80, s{S_EPN}")
    A("v_mov_b32 v81, 0")
    A("s_mov_b64 exec, 1")
    A(f"buffer_store_dword v80, v81, s[{SRD_WS}:{SRD_WS+3}], 0 offen offset:{WS_EPOCH}")
    A("s_mov_b64 exec, -1")
    A("s_branch L_end")

    A.lab("L_att")
    DK = P.get("DK", 2)
    assert DK % 2 == 0 and DK <= 8
    A(f"s_sub_u32 s66, s{S_WAVE}, 2")
    A(f"s_lshl_b32 s64, s{S_B}, 4")
    A(f"s_add_u32 s64, s64, s{S_HKV}")
    A("s_lshr_b32 s65, s64, 9")
    A("s_lshl_b32 s64, s64, 23")
    A(f"s_add_u32 s{SRD_K}, s{S_K}, s64")
    A(f"s_addc_u32 s{SRD_K+1}, s{S_K+1}, s65")
    A(f"s_mov_b32 s{SRD_K+2}, 0x800000")
    A(f"s_mov_b32 s{SRD_K+3}, 0x20000")
    A(f"s_add_u32 s{SRD_V}, s{S_V}, s64")
    A(f"s_addc_u32 s{SRD_V+1}, s{S_V+1}, s65")
    A(f"s_mov_b32 s{SRD_V+2}, 0x800000")
    A(f"s_mov_b32 s{SRD_V+3}, 0x20000")
    S_KO, S_VO, S_RK, S_CLM, S_IT, S_POOL = 70, 71, 75, 76, 77, 78
    S_RV, S_PK, S_PVS, S_PV, S_NXT = 86, 87, 88, 89, 74
    S_PO = [67, 68, 69, 43]
    POOL = P.get("table", {}).get("pool", 128)
    A(f"s_add_u32 s{S_KO}, s{S_KV0}, s66")
    A(f"s_lshl_b32 s{S_KO}, s{S_KO}, 13")
    A(f"s_mov_b32 s{S_VO}, s{S_KO}")
    A(f"s_add_u32 s{S_PK}, s{S_NSB}, 1")
    A(f"s_sub_u32 s{S_PK}, s{S_PK}, s66")
    A(f"s_lshr_b32 s{S_PK}, s{S_PK}, 1")
    A(f"s_mov_b32 s{S_PVS}, s{S_PK}")
    A(f"s_mov_b32 s{S_RV}, s{S_PK}")
    A(f"s_sub_u32 s{S_RK}, s{S_PK}, {DK}")
    A(f"s_mov_b32 s{S_PV}, 0")
    A(f"s_mov_b32 s{S_IT}, 0")
    A("s_mov_b32 s80, 0")
    A("s_lshr_b32 s64, s2, 3")
    A("s_lshl_b32 s64, s64, 8")
    A(f"s_add_u32 s64, s64, {WS_CNT}")
    A(f"s_add_u32 s{S_POOL}, s{S_WS}, s64")
    A(f"s_addc_u32 s{S_POOL+1}, s{S_WS+1}, 0")
    VK0, VK1, VV0, VV1 = 2, 3, 4, 5
    A("v_bfe_u32 v6, v0, 2, 2")
    A("v_lshlrev_b32 v6, 8, v6")
    A("v_lshrrev_b32 v7, 4, v0")
    A("v_lshl_add_u32 v6, v7, 6, v6")
    A("v_and_b32 v7, 3, v0")
    A(f"v_lshl_add_u32 v{VK0}, v7, 4, v6")
    A(f"v_add_u32 v{VK1}, 4096, v{VK0}")
    A(f"v_lshlrev_b32 v{VV0}, 4, v0")
    A(f"v_add_u32 v{VV1}, 4096, v{VV0}")
    UA = lambda s, n: 32 * s + 4 * n
    def issue(kind, s, soff):
        vb, sd, fl = (VK0, SRD_K, FLK) if kind == "K" else (VV0, SRD_V, FLV)
        for n in range(8):
            A(f"buffer_load_dwordx4 {ar(UA(s,n),4)}, v{vb+(n>>2)}, s[{sd}:{sd+3}], s{soff} offen offset:{1024*(n&3)} {fl}")
    lead = P.get("lead", 2)
    early = P.get("early", 1)
    for s in range(DK):
        if s == early:
            A("s_barrier")
            stamp(A, P, 0)
        if s >= lead: A(f"s_waitcnt vmcnt({8*(lead-1)})")
        issue("K", s, S_KO)
        A(f"s_add_u32 s{S_KO}, s{S_KO}, 16384")
    if early >= DK:
        A("s_barrier")
    stamp(A, P, 1)
    VQ = 8
    VSW, VSR = 12, 13
    VMX = 14
    VSC = 16
    VM = 24
    VACC = 28
    VMC, VL_ = 32, 33
    VS = 36
    VP = 44
    VB = 52
    VT = 64
    VD = 68
    VPK = 100
    A("v_and_b32 v6, 3, v0")
    A("v_bfe_u32 v7, v0, 3, 1")
    A("v_lshl_add_u32 v6, v7, 2, v6")
    A("v_and_b32 v7, 1, v6")
    A("v_mov_b32 v64, 0xffff")
    A("v_lshlrev_b32 v7, 4, v7")
    A("v_lshlrev_b32 v64, v7, v64")
    A("v_lshrrev_b32 v6, 1, v6")
    for q in range(4):
        A(f"v_cmp_eq_u32 vcc, {q}, v6")
        A(f"v_cndmask_b32 v{VM+q}, 0, v64, vcc")
    for k in range(4): A(f"v_mov_b32 v{VACC+k}, 0")
    A(f"v_mov_b32 v{VMX}, 0xff800000")
    A(f"v_mov_b32 v{VL_}, 0")
    A("v_bfe_u32 v6, v0, 2, 1")
    A("v_lshrrev_b32 v7, 4, v0")
    A("v_lshl_add_u32 v7, v6, 2, v7")
    A("v_lshlrev_b32 v7, 4, v7")
    A("s_lshl_b32 s64, s66, 13")
    A(f"s_add_u32 s64, s64, {SCORES}")
    A(f"v_add_u32 v{VSW}, s64, v7")
    A(f"v_mov_b32 v{VSR}, v{VSW}")
    A("v_lshlrev_b32 v6, 8, v6")
    A("v_lshrrev_b32 v7, 4, v0")
    A("v_lshl_add_u32 v6, v7, 6, v6")
    A("v_and_b32 v7, 3, v0")
    A("v_lshl_add_u32 v6, v7, 4, v6")
    A(f"s_mov_b32 s72, {hex(f2u(SCALE))}")
    A(f"s_mov_b32 s73, {hex(f2u(LOG2E))}")
    A("v_mov_b32 v34, 0")
    A("s_waitcnt lgkmcnt(0)")
    A(f"s_add_u32 s{S_EPN}, s{S_EPO}, 1")
    A(f"s_mul_i32 s{S_TAG}, s{S_EPN}, 0x9E3779B1")
    A(f"s_xor_b32 s{S_TAG}, s{S_TAG}, 0x5bd1e995")
    wait_lds(A, "L_qwait", QRDY, 1, 1, tv=66)
    A(f"ds_read_b128 v[{VQ}:{VQ+3}], v6 offset:{Q_LDS}")
    A("s_waitcnt lgkmcnt(0)")
    stamp(A, P, 2)
    A(f"s_mov_b32 s{S_CLM}, 1")
    A(f"s_atomic_add s{S_CLM}, s[{S_POOL}:{S_POOL+1}], 0 glc")

    def progress():
        A(f"s_add_u32 s{S_IT}, s{S_IT}, 1")
        A(f"v_mov_b32 v35, s{S_IT}")
        A(f"ds_write_b32 v34, v35 offset:{PROG}")
        if P.get("stamps"):
            for idx, itv in ((5, 16), (6, 48), (7, 80), (10, 104)):
                l = A.uniq("L_st")
                A(f"s_cmp_lg_u32 s{S_IT}, {itv}")
                A(f"s_cbranch_scc1 {l}")
                stamp(A, P, idx)
                A.lab(l)
    def qk_mfma(s):
        for n in range(8):
            A(f"v_mfma_f32_16x16x32_bf16 {vr(VD+4*n,4)}, {ar(UA(s,n),4)}, {vr(VQ,4)}, 0")
    def qk_reduce():
        for c in range(4):
            for n in range(8):
                pat = f"quad_perm:[{c},{c},{c},{c}] row_mask:0xf bank_mask:0xf"
                if c == 0: A(f"v_mov_b32_dpp v{VS+n}, v{VD+4*n} {pat}")
                else: A(f"v_add_f32_dpp v{VS+n}, v{VD+4*n+c}, v{VS+n} {pat}")
        for k in range(0, 8, 2):
            A(f"v_cvt_pk_bf16_f32 v{VT+(k>>1)}, v{VS+k}, v{VS+k+1}")
        for k in range(0, 8, 2):
            A(f"v_lshlrev_b32 v{VS+k}, 16, v{VT+(k>>1)}")
            A(f"v_and_b32 v{VS+k+1}, 0xffff0000, v{VT+(k>>1)}")
        for k in range(8): A(f"v_mul_f32 v{VS+k}, s72, v{VS+k}")
        for k in range(0, 8, 2):
            A(f"v_cvt_pk_bf16_f32 v{VPK+(k>>1)}, v{VS+k}, v{VS+k+1}")
    def unpack(src):
        for k in range(4):
            A(f"v_lshlrev_b32 v{VS+2*k}, 16, v{src+k}")
            A(f"v_and_b32 v{VS+2*k+1}, 0xffff0000, v{src+k}")
    def pv(s):
        for k in range(8): A(f"v_fma_f32 v{VP+k}, v{VS+k}, s73, -v{VMC}")
        for k in range(8): A(f"v_exp_f32 v{VP+k}, v{VP+k}")
        def prep(k):
            bb = VB + 4 * (k % 3)
            A(f"v_cvt_pk_bf16_f32 v{VT+2}, v{VP+k}, v{VP+k}")
            for q in range(4): A(f"v_and_b32 v{bb+q}, v{VT+2}, v{VM+q}")
        prep(0); prep(1)
        A(f"v_add_f32 v{VT}, v{VP}, v{VP+1}")
        A(f"v_add_f32 v{VT+1}, v{VP+2}, v{VP+3}")
        A(f"s_waitcnt vmcnt({8*(DK-1)})")
        for k in range(8):
            bb = VB + 4 * (k % 3)
            A(f"v_mfma_f32_16x16x32_bf16 {vr(VACC,4)}, {ar(UA(s,k),4)}, {vr(bb,4)}, {vr(VACC,4)}")
            if k + 2 < 8: prep(k + 2)
            if k == 1: A(f"v_add_f32 v{VT}, v{VT}, v{VP+4}"); A(f"v_add_f32 v{VT+1}, v{VT+1}, v{VP+5}")
            if k == 2: A(f"v_add_f32 v{VT}, v{VT}, v{VP+6}"); A(f"v_add_f32 v{VT+1}, v{VT+1}, v{VP+7}")
            if k == 3: A(f"v_add_f32 v{VT}, v{VT}, v{VT+1}"); A(f"v_add_f32 v{VL_}, v{VL_}, v{VT}")
    def pool_refill(s):
        po = S_PO[s >> 1]
        if s & 1:
            issue("V", s, po)
            return
        ldead, lgo = A.uniq("L_dead"), A.uniq("L_go")
        A("s_waitcnt lgkmcnt(0)")
        A(f"s_cmp_lt_u32 s{S_CLM}, {POOL}")
        A(f"s_cbranch_scc0 {ldead}")
        A(f"s_add_u32 s{po}, s{S_CLM}, {1024 - POOL}")
        A(f"s_lshl_b32 s{po}, s{po}, 13")
        A(f"s_add_u32 s{S_PV}, s{S_PV}, 1")
        A(f"s_mov_b32 s{S_CLM}, 1")
        A(f"s_atomic_add s{S_CLM}, s[{S_POOL}:{S_POOL+1}], 0 glc")
        A(f"s_branch {lgo}")
        A.lab(ldead)
        A(f"s_mov_b32 s{SRD_K+2}, 0")
        A(f"s_mov_b32 s{SRD_V+2}, 0")
        A(f"s_mov_b32 s{po}, 0")
        if P.get("wo_late", True) == "dead" or P.get("wo_at", "b2") == "dead":
            lonce = A.uniq("L_once")
            A("s_cmp_eq_u32 s80, 0")
            A(f"s_cbranch_scc0 {lonce}")
            A("s_mov_b32 s80, 1")
            A("v_mov_b32 v35, 1")
            A(f"ds_add_u32 v34, v35 offset:{DEADF}")
            A.lab(lonce)
        A.lab(lgo)
        issue("K", s, po)

    A.lab("L_kloop")
    for s in range(DK):
        A.lab(f"L_k{s}")
        A(f"s_waitcnt vmcnt({8*(DK-1)})")
        qk_mfma(s)
        lv, lr = A.uniq("L_kv"), A.uniq("L_kr")
        A(f"s_cmp_eq_u32 s{S_RK}, 0")
        A(f"s_cbranch_scc1 {lv}")
        issue("K", s, S_KO)
        A(f"s_add_u32 s{S_KO}, s{S_KO}, 16384")
        A(f"s_sub_u32 s{S_RK}, s{S_RK}, 1")
        A(f"s_branch {lr}")
        A.lab(lv)
        issue("V", s, S_VO)
        A(f"s_add_u32 s{S_VO}, s{S_VO}, 16384")
        A(f"s_sub_u32 s{S_RV}, s{S_RV}, 1")
        A.lab(lr)
        qk_reduce()
        for k in range(0, 8, 2): A(f"v_max3_f32 v{VMX}, v{VMX}, v{VS+k}, v{VS+k+1}")
        A("s_mov_b32 exec_lo, 0x00110011")
        A("s_mov_b32 exec_hi, 0x00110011")
        A(f"ds_write_b128 v{VSW}, v[{VPK}:{VPK+3}]")
        A("s_mov_b64 exec, -1")
        A(f"v_add_u32 v{VSW}, 128, v{VSW}")
        progress()
        A(f"s_sub_u32 s{S_PK}, s{S_PK}, 1")
        A(f"s_cmp_eq_u32 s{S_PK}, 0")
        if s < DK - 1:
            A(f"s_cselect_b32 s{S_NXT}, {s+1}, s{S_NXT}")
            A("s_cbranch_scc1 L_kdone")
        else:
            A(f"s_cselect_b32 s{S_NXT}, 0, s{S_NXT}")
            A("s_cbranch_scc0 L_kloop")
    A.lab("L_kdone")
    round_bf16(A, VMC, VMX)
    A(f"v_mul_f32 v{VMC}, s73, v{VMC}")
    swap16(A, VMC, VT, "v_max_f32")
    swap32(A, VMC, VT, "v_max_f32")
    A("s_waitcnt lgkmcnt(0)")
    stamp(A, P, 12)
    for s in range(DK):
        l = A.uniq("L_kn")
        A(f"s_cmp_lg_u32 s{S_NXT}, {s}")
        A(f"s_cbranch_scc1 {l}")
        A(f"ds_read_b128 v[{VSC+4*(s&1)}:{VSC+4*(s&1)+3}], v{VSR}")
        A(f"s_branch L_v{s}")
        A.lab(l)
    A.lab("L_vloop")
    for s in range(DK):
        A.lab(f"L_v{s}")
        A("s_waitcnt lgkmcnt(0)")
        nb = (s + 1) & 1
        A(f"ds_read_b128 v[{VSC+4*nb}:{VSC+4*nb+3}], v{VSR} offset:128")
        A(f"v_add_u32 v{VSR}, 128, v{VSR}")
        unpack(VSC + 4 * (s & 1))
        pv(s)
        lp, lr = A.uniq("L_vp"), A.uniq("L_vr")
        A(f"s_cmp_eq_u32 s{S_RV}, 0")
        A(f"s_cbranch_scc1 {lp}")
        issue("V", s, S_VO)
        A(f"s_add_u32 s{S_VO}, s{S_VO}, 16384")
        A(f"s_sub_u32 s{S_RV}, s{S_RV}, 1")
        A(f"s_branch {lr}")
        A.lab(lp)
        pool_refill(s)
        A.lab(lr)
        progress()
        A(f"s_sub_u32 s{S_PVS}, s{S_PVS}, 1")
        if s & 1:
            A(f"s_cmp_eq_u32 s{S_PVS}, 0")
            A(f"s_cbranch_scc1 L_p{((s + 1) % DK) >> 1}")
        if s == DK - 1: A("s_branch L_vloop")
    A.lab("L_ploop")
    for a in range(DK // 2):
        sk, sv = 2 * a, 2 * a + 1
        A.lab(f"L_p{a}")
        A(f"s_cmp_eq_u32 s{S_PV}, 0")
        A("s_cbranch_scc1 L_att_done")
        A(f"s_sub_u32 s{S_PV}, s{S_PV}, 1")
        A(f"s_waitcnt vmcnt({8*(DK-1)})")
        qk_mfma(sk)
        pool_refill(sk)
        qk_reduce()
        unpack(VPK)
        A(f"v_max3_f32 v{VT}, v{VS}, v{VS+1}, v{VS+2}")
        A(f"v_max3_f32 v{VT}, v{VT}, v{VS+3}, v{VS+4}")
        A(f"v_max3_f32 v{VT}, v{VT}, v{VS+5}, v{VS+6}")
        A(f"v_max_f32 v{VT}, v{VT}, v{VS+7}")
        A(f"v_mul_f32 v{VT}, s73, v{VT}")
        A(f"v_cmp_gt_f32 vcc, v{VT}, v{VMC}")
        skip = A.uniq("L_nomax")
        A(f"s_cbranch_vccz {skip}")
        swap16(A, VT, VT + 1, "v_max_f32")
        swap32(A, VT, VT + 1, "v_max_f32")
        A(f"v_max_f32 v{VT}, v{VT}, v{VMC}")
        A(f"v_sub_f32 v{VT+1}, v{VMC}, v{VT}")
        A(f"v_exp_f32 v{VT+1}, v{VT+1}")
        A(f"v_mov_b32 v{VMC}, v{VT}")
        for k in range(4): A(f"v_mul_f32 v{VACC+k}, v{VACC+k}, v{VT+1}")
        A(f"v_mul_f32 v{VL_}, v{VL_}, v{VT+1}")
        A.lab(skip)
        pv(sv)
        pool_refill(sv)
        progress()
        progress()
        if a == DK // 2 - 1: A("s_branch L_ploop")
    A.lab("L_att_done")
    A("v_mov_b32 v35, 0xffff")
    A(f"ds_write_b32 v34, v35 offset:{PROG}")
    stamp(A, P, 3)
    if P.get("stamps"): A(f"v_writelane_b32 v253, s{S_IT}, 11")
    swap16(A, VL_, VT, "v_add_f32")
    swap32(A, VL_, VT, "v_add_f32")
    A(f"v_lshlrev_b32 v1, 4, v0")
    A(f"v_lshlrev_b32 v6, 3, v0")
    A(f"s_cmp_eq_u32 s{S_WAVE}, 2")
    A("s_cbranch_scc1 L_att0")
    A(f"ds_write_b128 v1, v[{VACC}:{VACC+3}] offset:{MERGE}")
    A(f"ds_write_b64 v6, v[{VMC}:{VMC+1}] offset:{MERGE + 1024}")
    A("s_waitcnt lgkmcnt(0)")
    A("s_barrier")
    A("s_branch L_att_join")
    A.lab("L_att0")
    A(f"s_lshl_b32 s64, s{S_REC}, 10")
    A(f"s_add_u32 s64, s64, {WS_H1O}")
    A(f"s_lshl_b32 s65, s{S_REC}, 7")
    A(f"s_add_u32 s65, s65, {WS_H1ML}")
    A("s_barrier")
    A(f"ds_read_b128 v[68:71], v1 offset:{MERGE}")
    A(f"ds_read_b64 v[72:73], v6 offset:{MERGE + 1024}")
    A("s_waitcnt lgkmcnt(0)")
    A(f"v_max_f32 v74, v{VMC}, v72")
    A(f"v_sub_f32 v75, v{VMC}, v74")
    A("v_sub_f32 v76, v72, v74")
    A("v_exp_f32 v75, v75")
    A("v_exp_f32 v76, v76")
    for k in range(4):
        A(f"v_mul_f32 v{VACC+k}, v{VACC+k}, v75")
        A(f"v_fmac_f32 v{VACC+k}, v{68+k}, v76")
    A(f"v_mul_f32 v{VL_}, v{VL_}, v75")
    A(f"v_fmac_f32 v{VL_}, v73, v76")
    A(f"buffer_store_dwordx4 v[{VACC}:{VACC+3}], v1, s[{SRD_WS}:{SRD_WS+3}], s64 offen {HST}")
    A("v_readlane_b32 s66, v74, 0")
    A(f"v_readlane_b32 s67, v{VL_}, 0")
    A("v_readlane_b32 s68, v74, 4")
    A(f"v_readlane_b32 s69, v{VL_}, 4")
    for k in range(4): A(f"v_mov_b32 v{68+k}, s{66+k}")
    A("s_mov_b64 exec, 0xff")
    A(f"buffer_store_dwordx4 v[68:71], v1, s[{SRD_WS}:{SRD_WS+3}], s65 offen {HST}")
    A("s_mov_b64 exec, -1")
    if P.get("wo_afterpub"):
        A("v_mov_b32 v35, 1")
        A(f"ds_write_b32 v34, v35 offset:{PUBD}")
    stamp(A, P, 4)
    A.lab("L_att_join")
    A(f"s_cmp_eq_u32 s{S_WCB}, 255")
    A("s_cbranch_scc1 L_end")
    wo_prep()
    A("s_branch L_wogemv")
    A.lab("L_end")
    stamp_flush(A, P)
    A.lab("L_exit")
    A("s_endpgm")
    body = fix_hazards(A.L[body_start:], verbose=P.get("verbose", False))
    out = A.L[:body_start] + body
    out.append(".p2align 6")
    out.append(".type L_table,@object")
    out.append("L_table:")
    for row in tab: out.append("  .long " + ", ".join(str(v) for v in row))
    out.append(".size L_table, 8192")
    out += ['.section .rodata,"a"', ".p2align 6", f".amdhsa_kernel {NAME}",
            "  .amdhsa_next_free_vgpr 512", "  .amdhsa_next_free_sgpr 102", "  .amdhsa_accum_offset 256",
            "  .amdhsa_group_segment_fixed_size 0", "  .amdhsa_kernarg_size 96", "  .amdhsa_user_sgpr_count 2",
            "  .amdhsa_user_sgpr_kernarg_segment_ptr 1", "  .amdhsa_system_sgpr_workgroup_id_x 1",
            "  .amdhsa_float_denorm_mode_32 3",
            ".end_amdhsa_kernel"]
    return "\n".join(out) + "\n"

if __name__ == "__main__":
    P = eval(sys.argv[2]) if len(sys.argv) > 2 else {}
    P.setdefault("verbose", True)
    s = gen(P)
    open(sys.argv[1] if len(sys.argv) > 1 else "k.s", "w").write(s)
```

```python
import struct, sys, math
from asmlib import Asm, fix_hazards, vr, ar, sr

NAME = "recurrent_scan__gqa_block_cached__geglu_ffn__decode_kernel"

def f2u(x): return struct.unpack("<I", struct.pack("<f", x))[0]

WS_EPOCH = 0
WS_QP   = 0x001000
WS_H1O  = 0x050000
WS_H1ML = 0x090000
WS_GU   = 0x0A0000
WS_YP   = 0x100000
WS_SP   = 0x1B0000
WS_CNT  = 0x1E0000
WS_DBG  = 0x200000
WS_SIZE = 0x400000

X_LN, XROW = 0, 1184
Q_LDS = 2432
X2, X2ROW = 3072, 576
X3, X3ROW = 4352, 192
MERGE = 4864
PROG = 2368
QRDY = 2372
QPUB = 2376
DEADF = 2380
PUBD = 2384
T_WQ = 6400
XH = T_WQ
T_WO = T_WQ + 20480
T_FFN = T_WO + 32768
SCORES = T_FFN + 73728
LDS_BYTES = SCORES + 16384

LOG2E = 1.4426950408889634
SCALE = 128 ** -0.5
POLL_LIMIT = 400000

S_WAVE = 3
S_X, S_K, S_V, S_WQ, S_WO, S_BX, S_WG, S_WU = 4, 6, 8, 10, 12, 14, 16, 18
S_WD, S_OUT, S_DBG, S_WS = 20, 22, 24, 26
S_KV0, S_NSB, S_FT, S_FCB, S_WCB, S_FIN = 28, 29, 30, 31, 32, 33
S_HKV, S_B, S_M, S_REC = 36, 37, 38, 39
S_EPO, S_TAG, S_EPN = 40, 41, 42
SRD_K, SRD_V, SRD_WS, SRD_T, SRD_U = 44, 48, 52, 56, 60
SG1, SG2, SG3 = 80, 82, 84
S_CNT = 91
S_T0 = 92

def make_table(wside=0.8, c_ffn=72.0, c_wo=0.0, c_fin=12.0, pool=128, adj=None):
    info = {w: dict(x=w & 7, g=w >> 3, j=w & 7, ft=0, fcb=0, wcb=255, fin=255) for w in range(256)}
    free = lambda w: ((w & 7) == (w >> 3) % 8) or ((w >> 3) < 8 and (w & 7) == ((w >> 3) + 4) % 8)
    e = 0
    for w in range(256):
        if not free(w):
            info[w]["ft"] = 1 + e % 3; info[w]["fcb"] = e // 3; e += 1
    assert e == 216
    xcnt = [0] * 8
    for c in range(16):
        chosen = []
        quota = {2 * c: 5 if c % 2 == 0 else 4, 2 * c + 1: 4 if c % 2 == 0 else 5}
        mem = list(range(16 * c, 16 * c + 16))
        for w in mem:
            if free(w): chosen.append(w); quota[w >> 3] -= 1; xcnt[w & 7] += 1
        while len(chosen) < 9:
            cand = [w for w in mem if w not in chosen and quota[w >> 3] > 0]
            w = min(cand, key=lambda v: (xcnt[v & 7], v))
            chosen.append(w); quota[w >> 3] -= 1; xcnt[w & 7] += 1
        for cb, w in enumerate(chosen): info[w]["wcb"] = cb
    frees = [w for w in range(64) if free(w)]
    more = [w for w in range(64, 256) if free(w)]
    fins = [frees[0], frees[3], frees[4], frees[7], frees[8], frees[11], frees[12], frees[15], more[5]]
    assert len(fins) == 9
    for f, w in enumerate(fins): info[w]["fin"] = f
    static_total = 1024 - pool
    for g in range(32):
        ws_ = list(range(8 * g, 8 * g + 8))
        side = []
        for w in ws_:
            i = info[w]
            sd = (c_ffn if i["ft"] else 0) + (c_wo if i["wcb"] != 255 else 0) + (c_fin if i["fin"] != 255 else 0)
            if adj: sd += adj(w, i)
            side.append(sd * wside)
        tot = static_total * 16 + sum(side)
        ideal = [(tot / 8 - sd) / 16 for sd in side]
        n = [int(math.floor(v)) for v in ideal]
        rem = static_total - sum(n)
        order = sorted(range(8), key=lambda k: -(ideal[k] - n[k]))
        for k in order[:rem]: n[k] += 1
        assert sum(n) == static_total and min(n) >= 16 and max(n) <= 126
        st = 0
        for k, w in enumerate(ws_):
            info[w]["kv0"] = st; info[w]["nsb"] = n[k]; st += n[k]
        info[ws_[0]]["side_total"] = sum(side)
    tab = [[info[w]["kv0"], info[w]["nsb"], info[w]["ft"], info[w]["fcb"], info[w]["wcb"], info[w]["fin"], 0, 0] for w in range(256)]
    return tab, info

def gemv(A, nsteps, cts, a_read, tr_read, acc, abuf, bbuf, nbuf):
    reads = []
    last = {}
    for n in range(nsteps):
        reads.append((n, a_read(n, abuf(n % nbuf))))
        for ct in cts:
            for u in range(2):
                reads.append((n, tr_read(n, ct, u, bbuf(n % nbuf, ct) + 2 * u)))
            last[(n, ct)] = len(reads) - 1
    issued = 0; done = 0
    for n in range(nsteps):
        for ci, ct in enumerate(cts):
            while issued < len(reads) and (issued - done) < 15 and reads[issued][0] < n + nbuf - (0 if ci == 0 or True else 0):
                if reads[issued][0] - nbuf >= n: break
                A(reads[issued][1]); issued += 1
            need = last[(n, ct)]
            assert issued > need, (issued, need, n, ct)
            if done <= need:
                k = issued - 1 - need
                A(f"s_waitcnt lgkmcnt({k})")
                done = need + 1
            c = "0" if n == 0 else vr(acc(ct), 4)
            A(f"v_mfma_f32_16x16x32_bf16 {vr(acc(ct),4)}, {vr(abuf(n % nbuf),4)}, {vr(bbuf(n % nbuf, ct),4)}, {c}")

def poll_begin(A, name):
    A(f"s_mov_b32 s{S_CNT}, {POLL_LIMIT}")
    A.lab(name)

def poll_end(A, name, sleep):
    ok = name + "_ok"
    A(f"s_cbranch_vccz {ok}")
    A(f"s_sub_u32 s{S_CNT}, s{S_CNT}, 1")
    A(f"s_cmp_eq_u32 s{S_CNT}, 0")
    A(f"s_cbranch_scc1 {ok}")
    if sleep: A(f"s_sleep {sleep}")
    A(f"s_branch {name}")
    A.lab(ok)

def wait_progress(A, name, thr):
    A(f"s_mov_b32 s{S_CNT}, {POLL_LIMIT}")
    A("v_mov_b32 v250, 0")
    A.lab(name)
    A(f"ds_read_b32 v251, v250 offset:{PROG}")
    A("s_waitcnt lgkmcnt(0)")
    A("v_readfirstlane_b32 s90, v251")
    A(f"s_cmp_ge_u32 s90, {thr}")
    A(f"s_cbranch_scc1 {name}_ok")
    A(f"s_sub_u32 s{S_CNT}, s{S_CNT}, 1")
    A(f"s_cmp_eq_u32 s{S_CNT}, 0")
    A(f"s_cbranch_scc1 {name}_ok")
    A("s_sleep 8")
    A(f"s_branch {name}")
    A.lab(name + "_ok")

def wait_lds(A, name, off, thr, sleep, tv=250):
    A(f"s_mov_b32 s{S_CNT}, {POLL_LIMIT * 8}")
    A(f"v_mov_b32 v{tv}, 0")
    A.lab(name)
    A(f"ds_read_b32 v{tv+1}, v{tv} offset:{off}")
    A("s_waitcnt lgkmcnt(0)")
    A(f"v_readfirstlane_b32 s90, v{tv+1}")
    A(f"s_cmp_ge_u32 s90, {thr}")
    A(f"s_cbranch_scc1 {name}_ok")
    A(f"s_sub_u32 s{S_CNT}, s{S_CNT}, 1")
    A(f"s_cmp_eq_u32 s{S_CNT}, 0")
    A(f"s_cbranch_scc1 {name}_ok")
    if sleep: A(f"s_sleep {sleep}")
    A(f"s_branch {name}")
    A.lab(name + "_ok")

def wait_counter(A, name, off, thr, sleep):
    A(f"s_mov_b32 s{S_CNT}, {POLL_LIMIT}")
    A.lab(name)
    A("s_mov_b32 s90, 0")
    A(f"s_atomic_add s90, s[{S_DBG}:{S_DBG+1}], {off} glc")
    A("s_waitcnt lgkmcnt(0)")
    A(f"s_cmp_ge_u32 s90, {thr}")
    A(f"s_cbranch_scc1 {name}_ok")
    A(f"s_sub_u32 s{S_CNT}, s{S_CNT}, 1")
    A(f"s_cmp_eq_u32 s{S_CNT}, 0")
    A(f"s_cbranch_scc1 {name}_ok")
    A(f"s_sleep {sleep}")
    A(f"s_branch {name}")
    A.lab(name + "_ok")

def check_tags(A, tags, t):
    A(f"v_max3_u32 v{t}, v{tags[0]}, v{tags[1]}, v{tags[2]}")
    A(f"v_min3_u32 v{t+1}, v{tags[0]}, v{tags[1]}, v{tags[2]}")
    rest = tags[3:]
    for k in range(0, len(rest), 2):
        a = rest[k]; b_ = rest[min(k + 1, len(rest) - 1)]
        A(f"v_max3_u32 v{t}, v{t}, v{a}, v{b_}")
        A(f"v_min3_u32 v{t+1}, v{t+1}, v{a}, v{b_}")
    A(f"v_xor_b32 v{t}, v{t}, v{t+1}")
    A(f"v_xor_b32 v{t+1}, s{S_TAG}, v{t+1}")
    A(f"v_or_b32 v{t}, v{t}, v{t+1}")
    A(f"v_cmp_ne_u32 vcc, 0, v{t}")

def reduce16(A, v, op="v_add_f32"):
    for k in (8, 4, 2, 1):
        A(f"{op}_dpp {vr(v)}, {vr(v)}, {vr(v)} row_ror:{k} row_mask:0xf bank_mask:0xf")

def swap16(A, v, t, op):
    A(f"v_mov_b32 {vr(t)}, {vr(v)}")
    A(f"v_permlane16_swap_b32 {vr(v)}, {vr(t)}")
    A(f"{op} {vr(v)}, {vr(v)}, {vr(t)}")

def swap32(A, v, t, op):
    A(f"v_mov_b32 {vr(t)}, {vr(v)}")
    A(f"v_permlane32_swap_b32 {vr(v)}, {vr(t)}")
    A(f"{op} {vr(v)}, {vr(v)}, {vr(t)}")

def round_bf16(A, dst, src):
    A(f"v_cvt_pk_bf16_f32 {vr(dst)}, {vr(src)}, {vr(src)}")
    A(f"v_and_b32 {vr(dst)}, 0xffff0000, {vr(dst)}")

def srd(A, base, ptr, nrec, off=None):
    if off is None:
        A(f"s_mov_b32 s{base}, s{ptr}")
        A(f"s_mov_b32 s{base+1}, s{ptr+1}")
    else:
        lo, hi = off
        A(f"s_add_u32 s{base}, s{ptr}, s{lo}")
        A(f"s_addc_u32 s{base+1}, s{ptr+1}, {hi}")
    A(f"s_mov_b32 s{base+2}, {nrec}")
    A(f"s_mov_b32 s{base+3}, 0x20000")

def stamp(A, P, idx):
    if not P.get("stamps"): return
    A("s_memrealtime s[92:93]")
    A("s_waitcnt lgkmcnt(0)")
    A(f"v_writelane_b32 v253, s92, {idx}")

def stamp_flush(A, P):
    if not P.get("stamps"): return
    A(f"s_lshl_b32 s94, s2, 2")
    A(f"s_add_u32 s94, s94, s{S_WAVE}")
    A(f"s_lshl_b32 s94, s94, 6")
    A(f"s_add_u32 s94, s94, {WS_DBG}")
    A("v_lshlrev_b32 v254, 2, v0")
    A("s_mov_b64 exec, 0xffff")
    A(f"buffer_store_dword v253, v254, s[{SRD_WS}:{SRD_WS+3}], s94 offen")

def dma_voff(A, vE, vO, stride, vL, t0, t1):
    A(f"v_lshrrev_b32 {vr(t0)}, 3, {vr(vL)}")
    A(f"s_mov_b32 s64, {stride}")
    A(f"v_mul_lo_u32 {vr(vE)}, {vr(t0)}, s64")
    A(f"v_bfe_u32 {vr(t0)}, {vr(vL)}, 4, 1")
    A(f"v_lshlrev_b32 {vr(t0)}, 1, {vr(t0)}")
    A(f"v_and_b32 {vr(t1)}, 7, {vr(vL)}")
    A(f"v_xor_b32 {vr(t0)}, {vr(t0)}, {vr(t1)}")
    A(f"v_lshl_add_u32 {vr(vE)}, {vr(t0)}, 4, {vr(vE)}")
    A(f"v_xor_b32 {vr(vO)}, 64, {vr(vE)}")

def tr_addr(A, vT, vL, t0, t1):
    A(f"v_lshrrev_b32 {vr(t0)}, 4, {vr(vL)}")
    A(f"v_bfe_u32 {vr(t1)}, {vr(vL)}, 2, 2")
    A(f"v_lshl_add_u32 {vr(vT)}, {vr(t0)}, 3, {vr(t1)}")
    A(f"v_lshlrev_b32 {vr(vT)}, 7, {vr(vT)}")
    A(f"v_and_b32 {vr(t0)}, 1, {vr(t0)}")
    A(f"v_lshlrev_b32 {vr(t0)}, 1, {vr(t0)}")
    A(f"v_lshrrev_b32 {vr(t1)}, 1, {vr(t1)}")
    A(f"v_or_b32 {vr(t0)}, {vr(t0)}, {vr(t1)}")
    A(f"v_lshlrev_b32 {vr(t0)}, 1, {vr(t0)}")
    A(f"v_bfe_u32 {vr(t1)}, {vr(vL)}, 1, 1")
    A(f"v_xor_b32 {vr(t0)}, {vr(t0)}, {vr(t1)}")
    A(f"v_lshl_add_u32 {vr(vT)}, {vr(t0)}, 4, {vr(vT)}")
    A(f"v_and_b32 {vr(t0)}, 1, {vr(vL)}")
    A(f"v_lshl_add_u32 {vr(vT)}, {vr(t0)}, 3, {vr(vT)}")
    for ct in range(1, 4):
        A(f"v_xor_b32 {vr(vT+ct)}, {32*ct}, {vr(vT)}")

def sel_by_group(A, dst, regs):
    A(f"v_cndmask_b32 {vr(dst)}, {vr(regs[0])}, {vr(regs[1])}, s[{SG1}:{SG1+1}]")
    A(f"v_cndmask_b32 {vr(dst)}, {vr(dst)}, {vr(regs[2])}, s[{SG2}:{SG2+1}]")
    A(f"v_cndmask_b32 {vr(dst)}, {vr(dst)}, {vr(regs[3])}, s[{SG3}:{SG3+1}]")

def gen(P=None):
    P = P or {}
    D = P.get("D", 2)
    FL = P.get("kvflags", "nt")
    FLK = P.get("kflags", FL); FLV = P.get("vflags", FL)
    HST = P.get("hst", "sc1"); HLD = P.get("hld", "sc1")
    WFL = P.get("wflags", "nt")
    tab, info = make_table(**P.get("table", {}))
    if P.get("no_ffn"):
        for row in tab: row[2] = 0; row[5] = 255
    if P.get("only_gu"):
        for row in tab:
            if row[2] == 3: row[2] = 0
            row[5] = 255
    if P.get("only_dn"):
        for row in tab:
            if row[2] in (1, 2): row[2] = 0
            row[5] = 255
    if P.get("no_y"):
        for row in tab: row[5] = 255
    if P.get("no_wo"):
        for row in tab: row[4] = 255; row[5] = 255
    A = Asm()
    A.L += open(P.get("header", "recurrent_scan__gqa_block_cached__geglu_ffn__decode.s.ref")).read().split("; Override launch")[0].rstrip("\n").split("\n")
    A.L.append(f"; @launch grid=(256,1,1) block=(256,1,1) lds={LDS_BYTES}")
    A('.amdgcn_target "amdgcn-amd-amdhsa--gfx950"')
    A(".text")
    A(f".globl {NAME}")
    A(".p2align 8")
    A(f".type {NAME},@function")
    body_start = len(A.L)
    A.lab(NAME)
    if P.get("diag_entry"): A("s_memrealtime s[98:99]")
    A("s_cmp_ge_u32 s2, 256")
    A("s_cbranch_scc1 L_exit")
    A("s_load_dwordx16 s[4:19], s[0:1], 0")
    A("s_load_dwordx8 s[20:27], s[0:1], 64")
    A("s_getpc_b64 s[64:65]")
    A.lab("L_pc")
    A("s_add_u32 s64, s64, L_table-L_pc")
    A("s_addc_u32 s65, s65, 0")
    A("s_lshl_b32 s66, s2, 5")
    A("s_add_u32 s64, s64, s66")
    A("s_addc_u32 s65, s65, 0")
    A("s_load_dwordx8 s[28:35], s[64:65], 0")
    A("v_lshrrev_b32 v1, 6, v0")
    A("v_and_b32 v0, 63, v0")
    A(f"v_readfirstlane_b32 s{S_WAVE}, v1")
    if P.get("stamps"):
        A("v_mov_b32 v253, 0")
        stamp(A, P, 15)
    A(f"s_lshr_b32 s{S_HKV}, s2, 4")
    A(f"s_and_b32 s{S_M}, s2, 15")
    A(f"s_lshr_b32 s{S_B}, s{S_M}, 3")
    A(f"s_mov_b32 s{S_REC}, s2")
    A(f"s_mov_b32 s{SG1}, 0xffff0000")
    A(f"s_mov_b32 s{SG1+1}, 0")
    A(f"s_mov_b32 s{SG2}, 0")
    A(f"s_mov_b32 s{SG2+1}, 0xffff")
    A(f"s_mov_b32 s{SG3}, 0")
    A(f"s_mov_b32 s{SG3+1}, 0xffff0000")
    A("s_waitcnt lgkmcnt(0)")
    if (P.get("dbgdur") or P.get("diag_hold")) and not P.get("diag_entry"): A("s_memrealtime s[98:99]")
    if P.get("diag_entry") and P.get("dbgdur"):
        A("s_memrealtime s[100:101]")
        A("s_waitcnt lgkmcnt(0)")
        A("s_sub_u32 s35, s100, s98")
    A(f"s_load_dword s{S_EPO}, s[{S_WS}:{S_WS+1}], {WS_EPOCH}")
    srd(A, SRD_WS, S_WS, WS_SIZE)
    A(f"s_cmp_ge_u32 s{S_WAVE}, 2")
    A("s_cbranch_scc1 L_att")
    A(f"s_cmp_eq_u32 s{S_WAVE}, 1")
    A("s_cbranch_scc1 L_s1")

    vL = 0
    A("v_lshlrev_b32 v1, 4, v0")
    for k in range(4): A(f"v_mov_b32 v{4+k}, -1")
    A(f"s_lshl_b32 s64, s{S_REC}, 10")
    A(f"s_add_u32 s64, s64, {WS_H1O}")
    A(f"buffer_store_dwordx4 v[4:7], v1, s[{SRD_WS}:{SRD_WS+3}], s64 offen sc1")
    A(f"s_lshl_b32 s65, s{S_REC}, 7")
    A(f"s_add_u32 s65, s65, {WS_H1ML}")
    A("s_mov_b64 exec, 0xff")
    A(f"buffer_store_dwordx4 v[4:7], v1, s[{SRD_WS}:{SRD_WS+3}], s65 offen sc1")
    A("s_mov_b64 exec, -1")
    A("s_and_b32 s64, s2, 7")
    A("s_cmp_lg_u32 s64, 0")
    A("s_cbranch_scc1 L_nocnt")
    A("s_lshr_b32 s64, s2, 3")
    A("s_lshl_b32 s64, s64, 8")
    A(f"s_add_u32 s64, s64, {WS_CNT}")
    A("v_mov_b32 v8, 0")
    A("s_mov_b64 exec, 1")
    A(f"buffer_store_dword v8, v1, s[{SRD_WS}:{SRD_WS+3}], s64 offen sc1")
    A("s_mov_b64 exec, -1")
    A.lab("L_nocnt")
    srd(A, SRD_U, S_X, 2304)
    A("v_lshrrev_b32 v2, 5, v0")
    A("v_mul_u32_u24 v2, 1152, v2")
    A("v_and_b32 v3, 31, v0")
    A("v_lshl_add_u32 v2, v3, 2, v2")
    for n in range(9):
        A(f"buffer_load_dword v{8+n}, v2, s[{SRD_U}:{SRD_U+3}], 0 offen offset:{128*n}")
    srd(A, SRD_T, S_WQ, 576 * 8192)
    dma_voff(A, 18, 19, 8192, vL, 20, 21)
    A(f"s_lshr_b32 s66, s{S_M}, 2")
    A(f"s_mul_i32 s67, s66, {144*8192}")
    A(f"s_and_b32 s68, s{S_M}, 3")
    A(f"s_lshl_b32 s68, s68, 7")
    A("s_add_u32 s67, s67, s68")
    A(f"s_lshl_b32 s68, s{S_HKV}, 9")
    A("s_add_u32 s67, s67, s68")
    A(f"s_mov_b32 s68, {T_WQ}")
    A("s_mov_b32 s69, 9")
    A.lab("L_wqdma")
    for par in range(2):
        A("s_mov_b32 m0, s68")
        A("s_add_u32 s68, s68, 1024")
        A(f"buffer_load_dwordx4 v{18+par}, s[{SRD_T}:{SRD_T+3}], s67 offen {WFL} lds")
        A("s_add_u32 s67, s67, 65536")
    A("s_sub_u32 s69, s69, 1")
    A("s_cmp_lg_u32 s69, 0")
    A("s_cbranch_scc1 L_wqdma")
    A("v_mov_b32 v20, 0")
    A("v_mov_b32 v21, 0")
    A("v_mov_b32 v22, 0")
    A(f"ds_write_b32 v20, v20 offset:{PROG}")
    A(f"ds_write_b64 v20, v[20:21] offset:{QRDY + 4 - 4 + 0}") if False else None
    A(f"ds_write_b32 v20, v20 offset:{QRDY}")
    A(f"ds_write_b32 v20, v20 offset:{QPUB}")
    A(f"ds_write_b32 v20, v20 offset:{DEADF}")
    A(f"ds_write_b32 v20, v20 offset:{PUBD}")
    A("s_waitcnt lgkmcnt(0)")
    A("s_barrier")
    stamp(A, P, 0)
    for k in range(4): A(f"v_mov_b32 v{20+k}, 0")
    A(f"ds_write_b128 v1, v[20:23] offset:{T_WQ + 18432}")
    A(f"ds_write_b128 v1, v[20:23] offset:{T_WQ + 19456}")
    A("v_lshrrev_b32 v24, 3, v0")
    A(f"v_mul_u32_u24 v24, {XROW}, v24")
    A("v_and_b32 v25, 7, v0")
    A("v_lshl_add_u32 v24, v25, 2, v24")
    A("s_mov_b64 exec, 0xffff")
    A(f"ds_write_b32 v24, v20 offset:{X_LN + 1152}")
    A("s_mov_b64 exec, -1")
    tr_addr(A, 100, vL, 24, 25)
    A("v_and_b32 v104, 1, v0")
    A(f"v_mul_u32_u24 v104, {XROW}, v104")
    A("v_lshrrev_b32 v24, 4, v0")
    A("v_lshl_add_u32 v104, v24, 4, v104")
    A(f"s_mul_i32 s64, s66, 288")
    A("v_add_u32 v105, s64, v104")
    A("s_waitcnt vmcnt(18)")
    lo = lambda n: 24 + 2 * n
    hi = lambda n: 25 + 2 * n
    for n in range(9):
        A(f"v_lshlrev_b32 v{lo(n)}, 16, v{8+n}")
        A(f"v_and_b32 v{hi(n)}, 0xffff0000, v{8+n}")
    A(f"v_add_f32 v42, v{lo(0)}, v{hi(0)}")
    A(f"v_add_f32 v43, v{lo(1)}, v{hi(1)}")
    for n in range(2, 9):
        A(f"v_add_f32 v42, v42, v{lo(n)}")
        A(f"v_add_f32 v43, v43, v{hi(n)}")
    A("v_add_f32 v42, v42, v43")
    reduce16(A, 42); swap16(A, 42, 43, "v_add_f32")
    A(f"v_mul_f32 v42, {hex(f2u(1/576))}, v42")
    A("v_mov_b32 v44, 0")
    for n in range(9):
        A(f"v_sub_f32 v45, v{lo(n)}, v42")
        A(f"v_sub_f32 v46, v{hi(n)}, v42")
        A("v_fmac_f32 v44, v45, v45")
        A("v_fmac_f32 v44, v46, v46")
    reduce16(A, 44); swap16(A, 44, 43, "v_add_f32")
    A(f"v_mul_f32 v44, {hex(f2u(1/576))}, v44")
    round_bf16(A, 44, 44)
    A(f"v_add_f32 v44, {hex(f2u(1e-5))}, v44")
    round_bf16(A, 44, 44)
    A("v_sqrt_f32 v44, v44")
    round_bf16(A, 44, 44)
    A("v_rcp_f32 v44, v44")
    round_bf16(A, 42, 42)
    A("v_lshrrev_b32 v47, 5, v0")
    A(f"v_mul_u32_u24 v47, {XROW}, v47")
    A("v_and_b32 v48, 31, v0")
    A("v_lshl_add_u32 v47, v48, 2, v47")
    for n in range(9):
        A(f"v_sub_f32 v45, v{lo(n)}, v42")
        A(f"v_sub_f32 v46, v{hi(n)}, v42")
        A("v_cvt_pk_bf16_f32 v45, v45, v46")
        A("v_and_b32 v46, 0xffff0000, v45")
        A("v_lshlrev_b32 v45, 16, v45")
        A("v_mul_f32 v45, v45, v44")
        A("v_mul_f32 v46, v46, v44")
        A(f"v_cvt_pk_bf16_f32 v{50+n}, v45, v46")
        A(f"ds_write_b32 v47, v{50+n} offset:{X_LN + 128*n}")
    stamp(A, P, 1)
    A("s_waitcnt vmcnt(0) lgkmcnt(0)")
    A(f"s_add_u32 s{S_EPN}, s{S_EPO}, 1")
    A(f"s_mul_i32 s{S_TAG}, s{S_EPN}, 0x9E3779B1")
    A(f"s_xor_b32 s{S_TAG}, s{S_TAG}, 0x5bd1e995")
    stamp(A, P, 2)
    ACC = lambda ct: 110 + 4 * ct
    gemv(A, 5, [0, 1, 2, 3],
         lambda n, d: f"ds_read_b128 {vr(d,4)}, v105 offset:{X_LN + 64*n}",
         lambda n, ct, u, d: f"ds_read_b64_tr_b16 {vr(d,2)}, v{100+ct} offset:{T_WQ + 4096*n + 512*u}",
         ACC, lambda k: 128 + 20 * k, lambda k, ct: 132 + 20 * k + 4 * ct, 2)
    def publish_pair(soff):
        sel_by_group(A, 8, [ACC(ct) for ct in range(4)])
        sel_by_group(A, 10, [ACC(ct) + 1 for ct in range(4)])
        return
    publish_pair(None)
    A(f"v_mov_b32 v9, s{S_TAG}")
    A(f"v_mov_b32 v11, s{S_TAG}")
    A(f"s_lshl_b32 s64, s{S_REC}, 10")
    A(f"s_add_u32 s64, s64, {WS_QP}")
    A(f"buffer_store_dwordx4 v[8:11], v1, s[{SRD_WS}:{SRD_WS+3}], s64 offen sc1")
    A("v_mov_b32 v12, 0")
    A("v_mov_b32 v13, 1")
    A(f"ds_write_b32 v12, v13 offset:{QPUB}")
    stamp(A, P, 3)
    A(f"s_lshl_b32 s64, s{S_B}, 3")
    A("v_add_u32 v2, s64, v1")
    A(f"s_lshl_b32 s64, s{S_HKV}, 14")
    A(f"s_add_u32 s64, s64, {WS_QP}")
    for k in range(1, 4): A(f"s_add_u32 s{64+k}, s64, {4096*k}")
    poll_begin(A, "L_qpoll")
    for m in range(16):
        A(f"buffer_load_dwordx2 v[{24+2*m}:{25+2*m}], v2, s[{SRD_WS}:{SRD_WS+3}], s{64+(m>>2)} offen offset:{1024*(m&3)} sc1")
    A("s_waitcnt vmcnt(0)")
    A("v_max3_u32 v60, v25, v27, v29")
    A("v_min3_u32 v61, v25, v27, v29")
    for m in range(3, 16, 2):
        a, b_ = 25 + 2 * m, 25 + 2 * min(m + 1, 15)
        A(f"v_max3_u32 v60, v60, v{a}, v{b_}")
        A(f"v_min3_u32 v61, v61, v{a}, v{b_}")
    A("v_xor_b32 v60, v60, v61")
    A(f"v_xor_b32 v61, s{S_TAG}, v61")
    A("v_or_b32 v60, v60, v61")
    A("v_cmp_ne_u32 vcc, 0, v60")
    if P.get("stamps"):
        A(f"s_cmp_eq_u32 s{S_CNT}, {POLL_LIMIT}")
        A("s_cbranch_scc0 L_qp_nostamp")
        A("s_memrealtime s[92:93]")
        A("s_waitcnt lgkmcnt(0)")
        A("v_writelane_b32 v253, s92, 11")
        A.lab("L_qp_nostamp")
    poll_end(A, "L_qpoll", 1)
    if P.get("stamps"):
        A(f"s_sub_u32 s92, {POLL_LIMIT+1}, s{S_CNT}")
        A("v_writelane_b32 v253, s92, 12")
    A("v_lshlrev_b32 v3, 1, v0")
    for cbp in range(4):
        m = lambda kr: 24 + 2 * (kr * 4 + cbp)
        A(f"v_add_f32 v60, v{m(0)}, v{m(1)}")
        A(f"v_add_f32 v60, v60, v{m(2)}")
        A(f"v_add_f32 v60, v60, v{m(3)}")
        A(f"v_cvt_pk_bf16_f32 v{62+cbp}, v60, v60")
        A(f"ds_write_b16 v3, v{62+cbp} offset:{Q_LDS + 128*cbp}")
    A("s_waitcnt lgkmcnt(0)")
    A("v_mov_b32 v12, 0")
    A("v_mov_b32 v13, 1")
    A(f"ds_write_b32 v12, v13 offset:{QRDY}")
    stamp(A, P, 4)
    A(f"s_cmp_eq_u32 s{S_FIN}, 255")
    A("s_cbranch_scc1 L_s0_noy")
    wait_progress(A, "L_ywait", P.get("t_y", 88))
    A(f"s_lshl_b32 s64, s{S_FIN}, 13")
    A(f"s_add_u32 s64, s64, {WS_YP}")
    A("s_add_u32 s65, s64, 4096")
    poll_begin(A, "L_ypoll")
    for n in range(8):
        A(f"buffer_load_dwordx4 v[{24+4*n}:{27+4*n}], v1, s[{SRD_WS}:{SRD_WS+3}], s{64+(n>>2)} offen offset:{1024*(n&3)} sc1")
    A("s_waitcnt vmcnt(0)")
    check_tags(A, [25 + 4 * n + 2 * k for n in range(8) for k in range(2)], 80)
    poll_end(A, "L_ypoll", 32)
    A("v_add_f32 v200, v24, v28")
    A("v_add_f32 v201, v26, v30")
    for n in range(2, 8):
        A(f"v_add_f32 v200, v200, v{24+4*n}")
        A(f"v_add_f32 v201, v201, v{26+4*n}")
    for k in range(2):
        y = 200 + k
        round_bf16(A, y, y)
        A(f"v_mul_f32 v80, {hex(f2u(-LOG2E))}, v{y}")
        A("v_exp_f32 v80, v80")
        A("v_add_f32 v80, 1.0, v80")
        A("v_rcp_f32 v80, v80")
        A(f"v_mul_f32 v{y}, v{y}, v80")
        round_bf16(A, y, y)
    srd(A, SRD_U, S_X, 2304)
    A(f"s_lshl_b32 s70, s{S_FIN}, 7")
    A("v_lshlrev_b32 v204, 1, v0")
    A(f"buffer_load_ushort v202, v204, s[{SRD_U}:{SRD_U+3}], s70 offen")
    A(f"buffer_load_ushort v203, v204, s[{SRD_U}:{SRD_U+3}], s70 offen offset:1152")
    A("s_waitcnt vmcnt(0)")
    A.lab("L_s0_noy")
    stamp(A, P, 5)

    A("s_branch L_side_tail")

    A.lab("L_s1")
    A("v_lshlrev_b32 v1, 4, v0")
    A("s_barrier")
    A("s_waitcnt lgkmcnt(0)")
    A(f"s_add_u32 s{S_EPN}, s{S_EPO}, 1")
    A(f"s_mul_i32 s{S_TAG}, s{S_EPN}, 0x9E3779B1")
    A(f"s_xor_b32 s{S_TAG}, s{S_TAG}, 0x5bd1e995")
    if P.get("s1_start", "b0") == "qpub": wait_lds(A, "L_qpubwait", QPUB, 1, 1)
    if P.get("s1_start") == "qrdy": wait_lds(A, "L_qpubwait", QRDY, 1, 1)
    DL = P.get("dma_lead", 16)
    A(f"s_cmp_eq_u32 s{S_FT}, 0")
    A("s_cbranch_scc1 L_s1_wo")
    A(f"s_cmp_eq_u32 s{S_FT}, 3")
    A("s_cbranch_scc1 L_dn_setup")
    A(f"s_cmp_eq_u32 s{S_FT}, 1")
    A(f"s_cselect_b32 s{SRD_T}, s{S_WG}, s{S_WU}")
    A(f"s_cselect_b32 s{SRD_T+1}, s{S_WG+1}, s{S_WU+1}")
    A(f"s_mov_b32 s{SRD_T+2}, {576*9216}")
    A(f"s_mov_b32 s{SRD_T+3}, 0x20000")
    dma_voff(A, 18, 19, 9216, vL, 20, 21)
    A(f"s_lshl_b32 s67, s{S_FCB}, 7")
    A(f"s_mov_b32 s71, {8*9216}")
    A("s_branch L_ffn_dma")
    A.lab("L_dn_setup")
    srd(A, SRD_T, S_WD, 4608 * 1152)
    dma_voff(A, 18, 19, 1152, vL, 20, 21)
    A(f"s_mul_i32 s72, s{S_FCB}, 57")
    A("s_lshr_b32 s72, s72, 9")
    A("s_mul_i32 s73, s72, 9")
    A(f"s_sub_u32 s73, s{S_FCB}, s73")
    A(f"s_mul_i32 s67, s72, {576*1152}")
    A("s_lshl_b32 s64, s73, 7")
    A("s_add_u32 s67, s67, s64")
    A(f"s_mov_b32 s71, {8*1152}")
    A.lab("L_ffn_dma")
    A(f"s_mov_b32 s68, {T_FFN}")
    A("s_mov_b32 s69, 36")
    A.lab("L_gudma")
    for par in range(2):
        A("s_mov_b32 m0, s68")
        A("s_add_u32 s68, s68, 1024")
        A(f"buffer_load_dwordx4 v{18+par}, s[{SRD_T}:{SRD_T+3}], s67 offen {WFL} lds")
        A(f"s_add_u32 s67, s67, s71")
    A(f"s_waitcnt vmcnt({DL})")
    A("s_sub_u32 s69, s69, 1")
    A("s_cmp_lg_u32 s69, 0")
    A("s_cbranch_scc1 L_gudma")
    A.lab("L_s1_wo")
    if P.get("wo_late", True): A("s_branch L_s1_nowo")
    A(f"s_cmp_eq_u32 s{S_WCB}, 255")
    A("s_cbranch_scc1 L_s1_nowo")
    srd(A, SRD_T, S_WO, 4096 * 1152)
    dma_voff(A, 18, 19, 1152, vL, 20, 21)
    A(f"s_mul_i32 s67, s{S_HKV}, {256*1152}")
    A(f"s_lshl_b32 s68, s{S_WCB}, 7")
    A("s_add_u32 s67, s67, s68")
    A(f"s_mov_b32 s68, {T_WO}")
    A("s_mov_b32 s69, 16")
    A.lab("L_wodma")
    for par in range(2):
        A("s_mov_b32 m0, s68")
        A("s_add_u32 s68, s68, 1024")
        A(f"buffer_load_dwordx4 v{18+par}, s[{SRD_T}:{SRD_T+3}], s67 offen {WFL} lds")
        A(f"s_add_u32 s67, s67, 9216")
    A(f"s_waitcnt vmcnt({DL})")
    A("s_sub_u32 s69, s69, 1")
    A("s_cmp_lg_u32 s69, 0")
    A("s_cbranch_scc1 L_wodma")
    A.lab("L_s1_nowo")
    A("s_waitcnt vmcnt(0)")
    stamp(A, P, 4)
    A(f"s_cmp_eq_u32 s{S_FT}, 0")
    A("s_cbranch_scc1 L_s1_ffn_done")
    wait_lds(A, "L_xnwait", QRDY, 1, 4)
    tr_addr(A, 100, vL, 24, 25)
    A("v_and_b32 v104, 1, v0")
    A(f"v_mul_u32_u24 v104, {XROW}, v104")
    A("v_lshrrev_b32 v24, 4, v0")
    A("v_lshl_add_u32 v104, v24, 4, v104")
    A(f"s_cmp_eq_u32 s{S_FT}, 3")
    A("s_cbranch_scc0 L_ffn_gemv")
    if P.get("x_skipdown"): A("s_branch L_s1_ffn_done")
    wait_progress(A, "L_dnwait", P.get("t_dn", 52))
    A(f"s_mul_i32 s64, s72, {9*2048}")
    A(f"s_add_u32 s64, s64, {WS_GU}")
    for k in range(1, 5): A(f"s_add_u32 s{64+k}, s64, {4096*k}")
    poll_begin(A, "L_gupoll")
    for n in range(18):
        A(f"buffer_load_dwordx4 v[{24+4*n}:{27+4*n}], v1, s[{SRD_WS}:{SRD_WS+3}], s{64+(n>>2)} offen offset:{1024*(n&3)} sc1")
    A("s_waitcnt vmcnt(0)")
    check_tags(A, [25 + 4 * n + 2 * k for n in range(18) for k in range(2)], 96)
    poll_end(A, "L_gupoll", 32)
    A("v_lshlrev_b32 v3, 1, v0")
    A(f"v_mov_b32 v98, {hex(f2u(0.044715))}")
    for i9 in range(9):
        for bb in range(2):
            gt, up = 24 + 8 * i9 + 2 * bb, 28 + 8 * i9 + 2 * bb
            A(f"v_mul_f32 v96, v{gt}, v{gt}")
            A(f"v_mul_f32 v96, v96, v{gt}")
            A(f"v_fma_f32 v96, v96, v98, v{gt}")
            A(f"v_mul_f32 v96, {hex(f2u(-2.0 * math.sqrt(2.0 / math.pi) * LOG2E))}, v96")
            A("v_exp_f32 v96, v96")
            A("v_add_f32 v96, 1.0, v96")
            A("v_rcp_f32 v96, v96")
            A(f"v_mul_f32 v96, v{gt}, v96")
            round_bf16(A, 96, 96)
            A(f"v_mul_f32 v96, v96, v{up}")
            A(f"v_cvt_pk_bf16_f32 v97, v96, v96")
            A(f"ds_write_b16 v3, v97 offset:{XH + XROW*bb + 128*i9}")
    A(f"v_add_u32 v104, {XH - X_LN}, v104")
    A("s_waitcnt lgkmcnt(0)")
    A.lab("L_ffn_gemv")
    for ct in range(4):
        A(f"v_add_u32 v{106+ct}, {T_FFN}, v{100+ct}")
        A(f"v_add_u32 v{170+ct}, {T_FFN + 9*4096}, v{100+ct}")
    gemv(A, 18, [0, 1, 2, 3],
         lambda n, d: f"ds_read_b128 {vr(d,4)}, v104 offset:{X_LN + 64*n}",
         lambda n, ct, u, d: f"ds_read_b64_tr_b16 {vr(d,2)}, v{(106 if n < 9 else 170)+ct} offset:{4096*(n % 9) + 512*u}",
         ACC, lambda k: 128 + 20 * k, lambda k, ct: 132 + 20 * k + 4 * ct, 2)
    publish_pair(None)
    A(f"v_mov_b32 v9, s{S_TAG}")
    A(f"v_mov_b32 v11, s{S_TAG}")
    A(f"s_cmp_eq_u32 s{S_FT}, 3")
    A("s_cbranch_scc1 L_dn_pub")
    round_bf16(A, 8, 8); round_bf16(A, 10, 10)
    A(f"s_lshl_b32 s64, s{S_FCB}, 1")
    A(f"s_add_u32 s64, s64, s{S_FT}")
    A("s_sub_u32 s64, s64, 1")
    A("s_lshl_b32 s64, s64, 10")
    A(f"s_add_u32 s64, s64, {WS_GU}")
    A("s_branch L_ffn_pub")
    A.lab("L_dn_pub")
    A("s_lshl_b32 s64, s73, 3")
    A("s_add_u32 s64, s64, s72")
    A("s_lshl_b32 s64, s64, 10")
    A(f"s_add_u32 s64, s64, {WS_YP}")
    A.lab("L_ffn_pub")
    A(f"buffer_store_dwordx4 v[8:11], v1, s[{SRD_WS}:{SRD_WS+3}], s64 offen sc1")
    A.lab("L_s1_ffn_done")
    stamp(A, P, 5)

    def wo_prep():
        tr_addr(A, 100, vL, 24, 25)
        A(f"s_lshl_b32 s64, s{S_WAVE}, 5")
        A("v_xor_b32 v100, s64, v100")
        A("v_and_b32 v104, 1, v0")
        A(f"v_mul_u32_u24 v104, {X2ROW}, v104")
        A("v_lshrrev_b32 v24, 4, v0")
        A("v_lshl_add_u32 v104, v24, 4, v104")
        A("v_lshlrev_b32 v105, 4, v0")
        A(f"v_mov_b32 v9, s{S_TAG}")
        A(f"v_mov_b32 v11, s{S_TAG}")
        A(f"s_lshl_b32 s87, s{S_WCB}, 14")
        A(f"s_lshl_b32 s65, s{S_HKV}, 10")
        A("s_add_u32 s87, s87, s65")
        A(f"s_lshl_b32 s65, s{S_WAVE}, 8")
        A("s_add_u32 s87, s87, s65")
        A(f"s_add_u32 s87, s87, {WS_SP}")
    A.lab("L_side_tail")
    wo_prep()
    A("v_lshlrev_b32 v1, 4, v0")
    A("v_bfe_u32 v2, v0, 2, 1")
    A("v_lshlrev_b32 v2, 3, v2")
    A(f"s_lshl_b32 s64, s{S_HKV}, 4")
    A(f"s_lshl_b32 s65, s{S_WAVE}, 3")
    A("s_add_u32 s64, s64, s65")
    A("s_lshl_b32 s66, s64, 7")
    A(f"s_add_u32 s66, s66, {WS_H1ML}")
    A("s_lshl_b32 s64, s64, 10")
    A(f"s_add_u32 s64, s64, {WS_H1O}")
    A("s_add_u32 s65, s64, 4096")
    A("v_bfe_u32 v90, v0, 2, 1")
    A("v_lshlrev_b32 v90, 8, v90")
    A("v_lshrrev_b32 v83, 4, v0")
    A("v_lshl_add_u32 v90, v83, 6, v90")
    A("v_and_b32 v83, 3, v0")
    A("v_lshl_add_u32 v90, v83, 1, v90")
    A("v_bfe_u32 v83, v0, 3, 1")
    A("v_lshl_add_u32 v90, v83, 3, v90")
    A(f"s_mul_i32 s68, s{S_WAVE}, {X2ROW}")
    A("v_add_u32 v90, s68, v90")
    A("s_mov_b32 s67, 0xff")
    if P.get("wo_late", True):
        srd(A, SRD_T, S_WO, 4096 * 1152)
        dma_voff(A, 18, 19, 1152, vL, 20, 21)
        A(f"s_lshl_b32 s69, s{S_HKV}, 1")
        A(f"s_add_u32 s69, s69, s{S_WAVE}")
        A(f"s_mul_i32 s69, s69, {128*1152}")
        A(f"s_lshl_b32 s71, s{S_WCB}, 7")
        A("s_add_u32 s69, s69, s71")
        A(f"s_lshl_b32 s71, s{S_WAVE}, 14")
        A(f"s_add_u32 s71, s71, {T_WO}")
        A(f"s_lshl_b32 s64, s{S_HKV}, 4")
        A(f"s_lshl_b32 s72, s{S_WAVE}, 3")
        A("s_add_u32 s64, s64, s72")
        A("s_lshl_b32 s64, s64, 10")
        A(f"s_add_u32 s64, s64, {WS_H1O}")
    def wo_dma():
        for n in range(16):
            A("s_mov_b32 m0, s71")
            A("s_add_u32 s71, s71, 1024")
            A(f"buffer_load_dwordx4 v{18+(n&1)}, s[{SRD_T}:{SRD_T+3}], s69 offen {WFL} lds")
            A("s_add_u32 s69, s69, 9216")
    at_dead = P.get("wo_late", True) and P.get("wo_at", "b2") == "dead"
    if at_dead:
        A(f"s_cmp_eq_u32 s{S_WCB}, 255")
        A("s_cbranch_scc1 L_nowodma")
        wait_lds(A, "L_deadwait", DEADF, 128, 2)
        wo_dma()
        A.lab("L_nowodma")
    A("s_barrier")
    stamp(A, P, 6)
    A(f"s_cmp_eq_u32 s{S_WCB}, 255")
    A("s_cbranch_scc1 L_final")
    if P.get("wo_late", True) and not at_dead:
        if P.get("wo_afterpub"): wait_lds(A, "L_pubwait", PUBD, 1, 0)
        wo_dma()
    MC = lambda p: 56 + 2 * p
    LL = lambda p: 57 + 2 * p
    poll_begin(A, "L_h1poll")
    if not P.get("h1inc", False):
        for p in range(8):
            A(f"buffer_load_dwordx4 v[{24+4*p}:{27+4*p}], v1, s[{SRD_WS}:{SRD_WS+3}], s{64+(p>>2)} offen offset:{1024*(p&3)} {HLD}")
            A(f"buffer_load_dwordx2 v[{56+2*p}:{57+2*p}], v2, s[{SRD_WS}:{SRD_WS+3}], s66 offen offset:{128*p} {HLD}")
        A("s_waitcnt vmcnt(0)")
        A("v_max3_u32 v80, v24, v25, v26")
        for k in range(27, 72, 2): A(f"v_max3_u32 v80, v80, v{k}, v{min(k+1, 71)}")
        A("v_cmp_eq_u32 vcc, -1, v80")
        A("s_mov_b32 s67, 0")
        A("s_cbranch_vccz L_h1poll_ok")
        A("s_mov_b32 s67, 1")
    for p in range(8 if P.get("h1inc", False) else 0):
        l = A.uniq("L_h1l")
        A(f"s_bitcmp1_b32 s67, {p}")
        A(f"s_cbranch_scc0 {l}")
        A(f"buffer_load_dwordx4 v[{24+4*p}:{27+4*p}], v1, s[{SRD_WS}:{SRD_WS+3}], s{64+(p>>2)} offen offset:{1024*(p&3)} sc1")
        A(f"buffer_load_dwordx2 v[{56+2*p}:{57+2*p}], v2, s[{SRD_WS}:{SRD_WS+3}], s66 offen offset:{128*p} sc1")
        A.lab(l)
    A("s_waitcnt vmcnt(0)")
    for p in range(8 if P.get("h1inc", False) else 0):
        l = A.uniq("L_h1m")
        o = 24 + 4 * p
        A(f"s_bitcmp1_b32 s67, {p}")
        A(f"s_cbranch_scc0 {l}")
        A(f"v_max3_u32 v82, v{o}, v{o+1}, v{o+2}")
        A(f"v_max3_u32 v82, v82, v{o+3}, v{MC(p)}")
        A(f"v_max_u32 v82, v82, v{LL(p)}")
        A("v_cmp_eq_u32 vcc, -1, v82")
        A(f"s_cbranch_vccnz {l}")
        A(f"s_bitset0_b32 s67, {p}")
        A.lab(l)
    A("s_cmp_eq_u32 s67, 0")
    A("s_cbranch_scc1 L_h1poll_ok")
    A(f"s_sub_u32 s{S_CNT}, s{S_CNT}, 1")
    A(f"s_cmp_eq_u32 s{S_CNT}, 0")
    A("s_cbranch_scc1 L_h1poll_ok")
    if P.get("h1sleep", 0): A(f"s_sleep {P.get('h1sleep', 0)}")
    A("s_branch L_h1poll")
    A.lab("L_h1poll_ok")
    stamp(A, P, 7)
    A(f"v_max3_f32 v80, v{MC(0)}, v{MC(1)}, v{MC(2)}")
    A(f"v_max3_f32 v80, v80, v{MC(3)}, v{MC(4)}")
    A(f"v_max3_f32 v80, v80, v{MC(5)}, v{MC(6)}")
    A(f"v_max_f32 v80, v80, v{MC(7)}")
    for p in range(8): A(f"v_sub_f32 v{MC(p)}, v{MC(p)}, v80")
    for p in range(8): A(f"v_exp_f32 v{MC(p)}, v{MC(p)}")
    A(f"v_mul_f32 v81, v{MC(0)}, v{LL(0)}")
    for rr in range(4): A(f"v_mul_f32 v{84+rr}, v{MC(0)}, v{24+rr}")
    for p in range(1, 8):
        A(f"v_fmac_f32 v81, v{MC(p)}, v{LL(p)}")
        for rr in range(4): A(f"v_fmac_f32 v{84+rr}, v{MC(p)}, v{24+4*p+rr}")
    A("v_rcp_f32 v81, v81")
    for rr in range(4):
        A(f"v_mul_f32 v{84+rr}, v{84+rr}, v81")
    A("v_cvt_pk_bf16_f32 v88, v84, v85")
    A("v_cvt_pk_bf16_f32 v89, v86, v87")
    A(f"ds_write_b16 v90, v88 offset:{X2}")
    A(f"ds_write_b16_d16_hi v90, v88 offset:{X2 + 16}")
    A(f"ds_write_b16 v90, v89 offset:{X2 + 32}")
    A(f"ds_write_b16_d16_hi v90, v89 offset:{X2 + 48}")
    A("s_waitcnt lgkmcnt(0)")
    A.lab("L_wogemv")
    A("s_barrier")
    stamp(A, P, 8)
    gemv(A, 8, [0],
         lambda n, d: f"ds_read_b128 {vr(d,4)}, v104 offset:{X2 + 64*n}",
         lambda n, ct, u, d: f"ds_read_b64_tr_b16 {vr(d,2)}, v100 offset:{T_WO + 4096*n + 512*u}",
         lambda ct: 110, lambda k: 128 + 8 * k, lambda k, ct: 132 + 8 * k, 8)
    A("v_mov_b32 v8, v110")
    A("v_mov_b32 v10, v111")
    A("s_mov_b64 exec, 0xffff")
    A(f"buffer_store_dwordx4 v[8:11], v105, s[{SRD_WS}:{SRD_WS+3}], s87 offen {HST}")
    A("s_mov_b64 exec, -1")
    stamp(A, P, 9)
    A.lab("L_final")
    A(f"s_cmp_lg_u32 s{S_WAVE}, 0")
    A("s_cbranch_scc1 L_end")
    A(f"s_cmp_eq_u32 s{S_FIN}, 255")
    A("s_cbranch_scc1 L_end")
    A("v_lshlrev_b32 v1, 4, v0")
    A(f"s_lshl_b32 s64, s{S_FIN}, 14")
    A(f"s_add_u32 s64, s64, {WS_SP}")
    for k in range(1, 4): A(f"s_add_u32 s{64+k}, s64, {4096*k}")
    srd(A, SRD_U, S_OUT, 2304)
    A("v_lshlrev_b32 v204, 1, v0")
    A(f"s_lshl_b32 s70, s{S_FIN}, 7")
    A("v_lshlrev_b32 v202, 16, v202")
    A("v_lshlrev_b32 v203, 16, v203")
    poll_begin(A, "L_h2poll")
    for n in range(16):
        A(f"buffer_load_dwordx4 v[{24+4*n}:{27+4*n}], v1, s[{SRD_WS}:{SRD_WS+3}], s{64+(n>>2)} offen offset:{1024*(n&3)} {HLD}")
    A("s_waitcnt vmcnt(0)")
    check_tags(A, [25 + 4 * n + 2 * k for n in range(16) for k in range(2)], 96)
    poll_end(A, "L_h2poll", P.get("h2sleep", 0))
    for step in (8, 4, 2, 1):
        for n in range(step):
            A(f"v_add_f32 v{24+4*n}, v{24+4*n}, v{24+4*(n+step)}")
            A(f"v_add_f32 v{26+4*n}, v{26+4*n}, v{26+4*(n+step)}")
    A("v_cvt_pk_bf16_f32 v96, v24, v26")
    A("v_and_b32 v97, 0xffff0000, v96")
    A("v_lshlrev_b32 v96, 16, v96")
    A("v_mul_f32 v96, v96, v200")
    A("v_mul_f32 v97, v97, v201")
    A("v_cvt_pk_bf16_f32 v96, v96, v97")
    A("v_and_b32 v97, 0xffff0000, v96")
    A("v_lshlrev_b32 v96, 16, v96")
    A("v_add_f32 v96, v96, v202")
    A("v_add_f32 v97, v97, v203")
    A("v_cvt_pk_bf16_f32 v96, v96, v97")
    if P.get("diag_hold"):
        A.lab("L_hold")
        A("s_memrealtime s[92:93]")
        A("s_waitcnt lgkmcnt(0)")
        A("s_sub_u32 s92, s92, s98")
        A(f"s_cmp_lt_u32 s92, {P['diag_hold']}")
        A("s_cbranch_scc1 L_hold")
    A(f"buffer_store_short v96, v204, s[{SRD_U}:{SRD_U+3}], s70 offen")
    A(f"buffer_store_short_d16_hi v96, v204, s[{SRD_U}:{SRD_U+3}], s70 offen offset:1152")
    stamp(A, P, 10)
    if P.get("dbgdur"):
        A("s_memrealtime s[92:93]")
        A("s_waitcnt lgkmcnt(0)")
        A("s_sub_u32 s92, s92, s98")
        srd(A, SRD_U, S_DBG, 256)
        A("v_mov_b32 v96, s92" if not P.get("diag_entry") else "v_mov_b32 v96, s35")
        A(f"s_lshl_b32 s64, s{S_FIN}, 2")
        A("v_mov_b32 v97, 0")
        A("s_mov_b64 exec, 1")
        A(f"buffer_store_dword v96, v97, s[{SRD_U}:{SRD_U+3}], s64 offen")
        A("s_mov_b64 exec, -1")
    A(f"s_cmp_lg_u32 s{S_FIN}, 0")
    A("s_cbranch_scc1 L_end")
    A(f"v_mov_b32 v80, s{S_EPN}")
    A("v_mov_b32 v81, 0")
    A("s_mov_b64 exec, 1")
    A(f"buffer_store_dword v80, v81, s[{SRD_WS}:{SRD_WS+3}], 0 offen offset:{WS_EPOCH}")
    A("s_mov_b64 exec, -1")
    A("s_branch L_end")

    A.lab("L_att")
    DK = P.get("DK", 2)
    assert DK % 2 == 0 and DK <= 8
    A(f"s_sub_u32 s66, s{S_WAVE}, 2")
    A(f"s_lshl_b32 s64, s{S_B}, 4")
    A(f"s_add_u32 s64, s64, s{S_HKV}")
    A("s_lshr_b32 s65, s64, 9")
    A("s_lshl_b32 s64, s64, 23")
    A(f"s_add_u32 s{SRD_K}, s{S_K}, s64")
    A(f"s_addc_u32 s{SRD_K+1}, s{S_K+1}, s65")
    A(f"s_mov_b32 s{SRD_K+2}, 0x800000")
    A(f"s_mov_b32 s{SRD_K+3}, 0x20000")
    A(f"s_add_u32 s{SRD_V}, s{S_V}, s64")
    A(f"s_addc_u32 s{SRD_V+1}, s{S_V+1}, s65")
    A(f"s_mov_b32 s{SRD_V+2}, 0x800000")
    A(f"s_mov_b32 s{SRD_V+3}, 0x20000")
    S_KO, S_VO, S_RK, S_CLM, S_IT, S_POOL = 70, 71, 75, 76, 77, 78
    S_RV, S_PK, S_PVS, S_PV, S_NXT = 86, 87, 88, 89, 74
    S_PO = [67, 68, 69, 43]
    POOL = P.get("table", {}).get("pool", 128)
    A(f"s_add_u32 s{S_KO}, s{S_KV0}, s66")
    A(f"s_lshl_b32 s{S_KO}, s{S_KO}, 13")
    A(f"s_mov_b32 s{S_VO}, s{S_KO}")
    A(f"s_add_u32 s{S_PK}, s{S_NSB}, 1")
    A(f"s_sub_u32 s{S_PK}, s{S_PK}, s66")
    A(f"s_lshr_b32 s{S_PK}, s{S_PK}, 1")
    A(f"s_mov_b32 s{S_PVS}, s{S_PK}")
    A(f"s_mov_b32 s{S_RV}, s{S_PK}")
    A(f"s_sub_u32 s{S_RK}, s{S_PK}, {DK}")
    A(f"s_mov_b32 s{S_PV}, 0")
    A(f"s_mov_b32 s{S_IT}, 0")
    A("s_mov_b32 s80, 0")
    A("s_lshr_b32 s64, s2, 3")
    A("s_lshl_b32 s64, s64, 8")
    A(f"s_add_u32 s64, s64, {WS_CNT}")
    A(f"s_add_u32 s{S_POOL}, s{S_WS}, s64")
    A(f"s_addc_u32 s{S_POOL+1}, s{S_WS+1}, 0")
    VK0, VK1, VV0, VV1 = 2, 3, 4, 5
    A("v_bfe_u32 v6, v0, 2, 2")
    A("v_lshlrev_b32 v6, 8, v6")
    A("v_lshrrev_b32 v7, 4, v0")
    A("v_lshl_add_u32 v6, v7, 6, v6")
    A("v_and_b32 v7, 3, v0")
    A(f"v_lshl_add_u32 v{VK0}, v7, 4, v6")
    A(f"v_add_u32 v{VK1}, 4096, v{VK0}")
    A(f"v_lshlrev_b32 v{VV0}, 4, v0")
    A(f"v_add_u32 v{VV1}, 4096, v{VV0}")
    UA = lambda s, n: 32 * s + 4 * n
    def issue(kind, s, soff):
        vb, sd, fl = (VK0, SRD_K, FLK) if kind == "K" else (VV0, SRD_V, FLV)
        for n in range(8):
            A(f"buffer_load_dwordx4 {ar(UA(s,n),4)}, v{vb+(n>>2)}, s[{sd}:{sd+3}], s{soff} offen offset:{1024*(n&3)} {fl}")
    lead = P.get("lead", 2)
    early = P.get("early", 1)
    for s in range(DK):
        if s == early:
            A("s_barrier")
            stamp(A, P, 0)
        if s >= lead: A(f"s_waitcnt vmcnt({8*(lead-1)})")
        issue("K", s, S_KO)
        A(f"s_add_u32 s{S_KO}, s{S_KO}, 16384")
    if early >= DK:
        A("s_barrier")
    stamp(A, P, 1)
    VQ = 8
    VSW, VSR = 12, 13
    VMX = 14
    VSC = 16
    VM = 24
    VACC = 28
    VMC, VL_ = 32, 33
    VS = 36
    VP = 44
    VB = 52
    VT = 64
    VD = 68
    VPK = 100
    A("v_and_b32 v6, 3, v0")
    A("v_bfe_u32 v7, v0, 3, 1")
    A("v_lshl_add_u32 v6, v7, 2, v6")
    A("v_and_b32 v7, 1, v6")
    A("v_mov_b32 v64, 0xffff")
    A("v_lshlrev_b32 v7, 4, v7")
    A("v_lshlrev_b32 v64, v7, v64")
    A("v_lshrrev_b32 v6, 1, v6")
    for q in range(4):
        A(f"v_cmp_eq_u32 vcc, {q}, v6")
        A(f"v_cndmask_b32 v{VM+q}, 0, v64, vcc")
    for k in range(4): A(f"v_mov_b32 v{VACC+k}, 0")
    A(f"v_mov_b32 v{VMX}, 0xff800000")
    A(f"v_mov_b32 v{VL_}, 0")
    A("v_bfe_u32 v6, v0, 2, 1")
    A("v_lshrrev_b32 v7, 4, v0")
    A("v_lshl_add_u32 v7, v6, 2, v7")
    A("v_lshlrev_b32 v7, 4, v7")
    A("s_lshl_b32 s64, s66, 13")
    A(f"s_add_u32 s64, s64, {SCORES}")
    A(f"v_add_u32 v{VSW}, s64, v7")
    A(f"v_mov_b32 v{VSR}, v{VSW}")
    A("v_lshlrev_b32 v6, 8, v6")
    A("v_lshrrev_b32 v7, 4, v0")
    A("v_lshl_add_u32 v6, v7, 6, v6")
    A("v_and_b32 v7, 3, v0")
    A("v_lshl_add_u32 v6, v7, 4, v6")
    A(f"s_mov_b32 s72, {hex(f2u(SCALE))}")
    A(f"s_mov_b32 s73, {hex(f2u(LOG2E))}")
    A("v_mov_b32 v34, 0")
    A("s_waitcnt lgkmcnt(0)")
    A(f"s_add_u32 s{S_EPN}, s{S_EPO}, 1")
    A(f"s_mul_i32 s{S_TAG}, s{S_EPN}, 0x9E3779B1")
    A(f"s_xor_b32 s{S_TAG}, s{S_TAG}, 0x5bd1e995")
    wait_lds(A, "L_qwait", QRDY, 1, 1, tv=66)
    A(f"ds_read_b128 v[{VQ}:{VQ+3}], v6 offset:{Q_LDS}")
    A("s_waitcnt lgkmcnt(0)")
    stamp(A, P, 2)
    A(f"s_mov_b32 s{S_CLM}, 1")
    A(f"s_atomic_add s{S_CLM}, s[{S_POOL}:{S_POOL+1}], 0 glc")

    def progress():
        A(f"s_add_u32 s{S_IT}, s{S_IT}, 1")
        A(f"v_mov_b32 v35, s{S_IT}")
        A(f"ds_write_b32 v34, v35 offset:{PROG}")
        if P.get("stamps"):
            for idx, itv in ((5, 16), (6, 48), (7, 80), (10, 104)):
                l = A.uniq("L_st")
                A(f"s_cmp_lg_u32 s{S_IT}, {itv}")
                A(f"s_cbranch_scc1 {l}")
                stamp(A, P, idx)
                A.lab(l)
    def qk_mfma(s):
        for n in range(8):
            A(f"v_mfma_f32_16x16x32_bf16 {vr(VD+4*n,4)}, {ar(UA(s,n),4)}, {vr(VQ,4)}, 0")
    def qk_reduce():
        for c in range(4):
            for n in range(8):
                pat = f"quad_perm:[{c},{c},{c},{c}] row_mask:0xf bank_mask:0xf"
                if c == 0: A(f"v_mov_b32_dpp v{VS+n}, v{VD+4*n} {pat}")
                else: A(f"v_add_f32_dpp v{VS+n}, v{VD+4*n+c}, v{VS+n} {pat}")
        for k in range(0, 8, 2):
            A(f"v_cvt_pk_bf16_f32 v{VT+(k>>1)}, v{VS+k}, v{VS+k+1}")
        for k in range(0, 8, 2):
            A(f"v_lshlrev_b32 v{VS+k}, 16, v{VT+(k>>1)}")
            A(f"v_and_b32 v{VS+k+1}, 0xffff0000, v{VT+(k>>1)}")
        for k in range(8): A(f"v_mul_f32 v{VS+k}, s72, v{VS+k}")
        for k in range(0, 8, 2):
            A(f"v_cvt_pk_bf16_f32 v{VPK+(k>>1)}, v{VS+k}, v{VS+k+1}")
    def unpack(src):
        for k in range(4):
            A(f"v_lshlrev_b32 v{VS+2*k}, 16, v{src+k}")
            A(f"v_and_b32 v{VS+2*k+1}, 0xffff0000, v{src+k}")
    def pv(s):
        for k in range(8): A(f"v_fma_f32 v{VP+k}, v{VS+k}, s73, -v{VMC}")
        for k in range(8): A(f"v_exp_f32 v{VP+k}, v{VP+k}")
        def prep(k):
            bb = VB + 4 * (k % 3)
            A(f"v_cvt_pk_bf16_f32 v{VT+2}, v{VP+k}, v{VP+k}")
            for q in range(4): A(f"v_and_b32 v{bb+q}, v{VT+2}, v{VM+q}")
        prep(0); prep(1)
        A(f"v_add_f32 v{VT}, v{VP}, v{VP+1}")
        A(f"v_add_f32 v{VT+1}, v{VP+2}, v{VP+3}")
        A(f"s_waitcnt vmcnt({8*(DK-1)})")
        for k in range(8):
            bb = VB + 4 * (k % 3)
            A(f"v_mfma_f32_16x16x32_bf16 {vr(VACC,4)}, {ar(UA(s,k),4)}, {vr(bb,4)}, {vr(VACC,4)}")
            if k + 2 < 8: prep(k + 2)
            if k == 1: A(f"v_add_f32 v{VT}, v{VT}, v{VP+4}"); A(f"v_add_f32 v{VT+1}, v{VT+1}, v{VP+5}")
            if k == 2: A(f"v_add_f32 v{VT}, v{VT}, v{VP+6}"); A(f"v_add_f32 v{VT+1}, v{VT+1}, v{VP+7}")
            if k == 3: A(f"v_add_f32 v{VT}, v{VT}, v{VT+1}"); A(f"v_add_f32 v{VL_}, v{VL_}, v{VT}")
    def pool_refill(s):
        po = S_PO[s >> 1]
        if s & 1:
            issue("V", s, po)
            return
        ldead, lgo = A.uniq("L_dead"), A.uniq("L_go")
        A("s_waitcnt lgkmcnt(0)")
        A(f"s_cmp_lt_u32 s{S_CLM}, {POOL}")
        A(f"s_cbranch_scc0 {ldead}")
        A(f"s_add_u32 s{po}, s{S_CLM}, {1024 - POOL}")
        A(f"s_lshl_b32 s{po}, s{po}, 13")
        A(f"s_add_u32 s{S_PV}, s{S_PV}, 1")
        A(f"s_mov_b32 s{S_CLM}, 1")
        A(f"s_atomic_add s{S_CLM}, s[{S_POOL}:{S_POOL+1}], 0 glc")
        A(f"s_branch {lgo}")
        A.lab(ldead)
        A(f"s_mov_b32 s{SRD_K+2}, 0")
        A(f"s_mov_b32 s{SRD_V+2}, 0")
        A(f"s_mov_b32 s{po}, 0")
        if P.get("wo_late", True) == "dead" or P.get("wo_at", "b2") == "dead":
            lonce = A.uniq("L_once")
            A("s_cmp_eq_u32 s80, 0")
            A(f"s_cbranch_scc0 {lonce}")
            A("s_mov_b32 s80, 1")
            A("v_mov_b32 v35, 1")
            A(f"ds_add_u32 v34, v35 offset:{DEADF}")
            A.lab(lonce)
        A.lab(lgo)
        issue("K", s, po)

    A.lab("L_kloop")
    for s in range(DK):
        A.lab(f"L_k{s}")
        A(f"s_waitcnt vmcnt({8*(DK-1)})")
        qk_mfma(s)
        lv, lr = A.uniq("L_kv"), A.uniq("L_kr")
        A(f"s_cmp_eq_u32 s{S_RK}, 0")
        A(f"s_cbranch_scc1 {lv}")
        issue("K", s, S_KO)
        A(f"s_add_u32 s{S_KO}, s{S_KO}, 16384")
        A(f"s_sub_u32 s{S_RK}, s{S_RK}, 1")
        A(f"s_branch {lr}")
        A.lab(lv)
        issue("V", s, S_VO)
        A(f"s_add_u32 s{S_VO}, s{S_VO}, 16384")
        A(f"s_sub_u32 s{S_RV}, s{S_RV}, 1")
        A.lab(lr)
        qk_reduce()
        for k in range(0, 8, 2): A(f"v_max3_f32 v{VMX}, v{VMX}, v{VS+k}, v{VS+k+1}")
        A("s_mov_b32 exec_lo, 0x00110011")
        A("s_mov_b32 exec_hi, 0x00110011")
        A(f"ds_write_b128 v{VSW}, v[{VPK}:{VPK+3}]")
        A("s_mov_b64 exec, -1")
        A(f"v_add_u32 v{VSW}, 128, v{VSW}")
        progress()
        A(f"s_sub_u32 s{S_PK}, s{S_PK}, 1")
        A(f"s_cmp_eq_u32 s{S_PK}, 0")
        if s < DK - 1:
            A(f"s_cselect_b32 s{S_NXT}, {s+1}, s{S_NXT}")
            A("s_cbranch_scc1 L_kdone")
        else:
            A(f"s_cselect_b32 s{S_NXT}, 0, s{S_NXT}")
            A("s_cbranch_scc0 L_kloop")
    A.lab("L_kdone")
    round_bf16(A, VMC, VMX)
    A(f"v_mul_f32 v{VMC}, s73, v{VMC}")
    swap16(A, VMC, VT, "v_max_f32")
    swap32(A, VMC, VT, "v_max_f32")
    A("s_waitcnt lgkmcnt(0)")
    stamp(A, P, 12)
    for s in range(DK):
        l = A.uniq("L_kn")
        A(f"s_cmp_lg_u32 s{S_NXT}, {s}")
        A(f"s_cbranch_scc1 {l}")
        A(f"ds_read_b128 v[{VSC+4*(s&1)}:{VSC+4*(s&1)+3}], v{VSR}")
        A(f"s_branch L_v{s}")
        A.lab(l)
    A.lab("L_vloop")
    for s in range(DK):
        A.lab(f"L_v{s}")
        A("s_waitcnt lgkmcnt(0)")
        nb = (s + 1) & 1
        A(f"ds_read_b128 v[{VSC+4*nb}:{VSC+4*nb+3}], v{VSR} offset:128")
        A(f"v_add_u32 v{VSR}, 128, v{VSR}")
        unpack(VSC + 4 * (s & 1))
        pv(s)
        lp, lr = A.uniq("L_vp"), A.uniq("L_vr")
        A(f"s_cmp_eq_u32 s{S_RV}, 0")
        A(f"s_cbranch_scc1 {lp}")
        issue("V", s, S_VO)
        A(f"s_add_u32 s{S_VO}, s{S_VO}, 16384")
        A(f"s_sub_u32 s{S_RV}, s{S_RV}, 1")
        A(f"s_branch {lr}")
        A.lab(lp)
        pool_refill(s)
        A.lab(lr)
        progress()
        A(f"s_sub_u32 s{S_PVS}, s{S_PVS}, 1")
        if s & 1:
            A(f"s_cmp_eq_u32 s{S_PVS}, 0")
            A(f"s_cbranch_scc1 L_p{((s + 1) % DK) >> 1}")
        if s == DK - 1: A("s_branch L_vloop")
    A.lab("L_ploop")
    for a in range(DK // 2):
        sk, sv = 2 * a, 2 * a + 1
        A.lab(f"L_p{a}")
        A(f"s_cmp_eq_u32 s{S_PV}, 0")
        A("s_cbranch_scc1 L_att_done")
        A(f"s_sub_u32 s{S_PV}, s{S_PV}, 1")
        A(f"s_waitcnt vmcnt({8*(DK-1)})")
        qk_mfma(sk)
        pool_refill(sk)
        qk_reduce()
        unpack(VPK)
        A(f"v_max3_f32 v{VT}, v{VS}, v{VS+1}, v{VS+2}")
        A(f"v_max3_f32 v{VT}, v{VT}, v{VS+3}, v{VS+4}")
        A(f"v_max3_f32 v{VT}, v{VT}, v{VS+5}, v{VS+6}")
        A(f"v_max_f32 v{VT}, v{VT}, v{VS+7}")
        A(f"v_mul_f32 v{VT}, s73, v{VT}")
        A(f"v_cmp_gt_f32 vcc, v{VT}, v{VMC}")
        skip = A.uniq("L_nomax")
        A(f"s_cbranch_vccz {skip}")
        swap16(A, VT, VT + 1, "v_max_f32")
        swap32(A, VT, VT + 1, "v_max_f32")
        A(f"v_max_f32 v{VT}, v{VT}, v{VMC}")
        A(f"v_sub_f32 v{VT+1}, v{VMC}, v{VT}")
        A(f"v_exp_f32 v{VT+1}, v{VT+1}")
        A(f"v_mov_b32 v{VMC}, v{VT}")
        for k in range(4): A(f"v_mul_f32 v{VACC+k}, v{VACC+k}, v{VT+1}")
        A(f"v_mul_f32 v{VL_}, v{VL_}, v{VT+1}")
        A.lab(skip)
        pv(sv)
        pool_refill(sv)
        progress()
        progress()
        if a == DK // 2 - 1: A("s_branch L_ploop")
    A.lab("L_att_done")
    A("v_mov_b32 v35, 0xffff")
    A(f"ds_write_b32 v34, v35 offset:{PROG}")
    stamp(A, P, 3)
    if P.get("stamps"): A(f"v_writelane_b32 v253, s{S_IT}, 11")
    swap16(A, VL_, VT, "v_add_f32")
    swap32(A, VL_, VT, "v_add_f32")
    A(f"v_lshlrev_b32 v1, 4, v0")
    A(f"v_lshlrev_b32 v6, 3, v0")
    A(f"s_cmp_eq_u32 s{S_WAVE}, 2")
    A("s_cbranch_scc1 L_att0")
    A(f"ds_write_b128 v1, v[{VACC}:{VACC+3}] offset:{MERGE}")
    A(f"ds_write_b64 v6, v[{VMC}:{VMC+1}] offset:{MERGE + 1024}")
    A("s_waitcnt lgkmcnt(0)")
    A("s_barrier")
    A("s_branch L_att_join")
    A.lab("L_att0")
    A(f"s_lshl_b32 s64, s{S_REC}, 10")
    A(f"s_add_u32 s64, s64, {WS_H1O}")
    A(f"s_lshl_b32 s65, s{S_REC}, 7")
    A(f"s_add_u32 s65, s65, {WS_H1ML}")
    A("s_barrier")
    A(f"ds_read_b128 v[68:71], v1 offset:{MERGE}")
    A(f"ds_read_b64 v[72:73], v6 offset:{MERGE + 1024}")
    A("s_waitcnt lgkmcnt(0)")
    A(f"v_max_f32 v74, v{VMC}, v72")
    A(f"v_sub_f32 v75, v{VMC}, v74")
    A("v_sub_f32 v76, v72, v74")
    A("v_exp_f32 v75, v75")
    A("v_exp_f32 v76, v76")
    for k in range(4):
        A(f"v_mul_f32 v{VACC+k}, v{VACC+k}, v75")
        A(f"v_fmac_f32 v{VACC+k}, v{68+k}, v76")
    A(f"v_mul_f32 v{VL_}, v{VL_}, v75")
    A(f"v_fmac_f32 v{VL_}, v73, v76")
    A(f"buffer_store_dwordx4 v[{VACC}:{VACC+3}], v1, s[{SRD_WS}:{SRD_WS+3}], s64 offen {HST}")
    A("v_readlane_b32 s66, v74, 0")
    A(f"v_readlane_b32 s67, v{VL_}, 0")
    A("v_readlane_b32 s68, v74, 4")
    A(f"v_readlane_b32 s69, v{VL_}, 4")
    for k in range(4): A(f"v_mov_b32 v{68+k}, s{66+k}")
    A("s_mov_b64 exec, 0xff")
    A(f"buffer_store_dwordx4 v[68:71], v1, s[{SRD_WS}:{SRD_WS+3}], s65 offen {HST}")
    A("s_mov_b64 exec, -1")
    if P.get("wo_afterpub"):
        A("v_mov_b32 v35, 1")
        A(f"ds_write_b32 v34, v35 offset:{PUBD}")
    stamp(A, P, 4)
    A.lab("L_att_join")
    A(f"s_cmp_eq_u32 s{S_WCB}, 255")
    A("s_cbranch_scc1 L_end")
    wo_prep()
    A("s_branch L_wogemv")
    A.lab("L_end")
    stamp_flush(A, P)
    A.lab("L_exit")
    A("s_endpgm")
    body = fix_hazards(A.L[body_start:], verbose=P.get("verbose", False))
    out = A.L[:body_start] + body
    out.append(".p2align 6")
    out.append(".type L_table,@object")
    out.append("L_table:")
    for row in tab: out.append("  .long " + ", ".join(str(v) for v in row))
    out.append(".size L_table, 8192")
    out += ['.section .rodata,"a"', ".p2align 6", f".amdhsa_kernel {NAME}",
            "  .amdhsa_next_free_vgpr 512", "  .amdhsa_next_free_sgpr 102", "  .amdhsa_accum_offset 256",
            "  .amdhsa_group_segment_fixed_size 0", "  .amdhsa_kernarg_size 96", "  .amdhsa_user_sgpr_count 2",
            "  .amdhsa_user_sgpr_kernarg_segment_ptr 1", "  .amdhsa_system_sgpr_workgroup_id_x 1",
            "  .amdhsa_float_denorm_mode_32 3",
            ".end_amdhsa_kernel"]
    return "\n".join(out) + "\n"

if __name__ == "__main__":
    P = eval(sys.argv[2]) if len(sys.argv) > 2 else {}
    P.setdefault("verbose", True)
    s = gen(P)
    open(sys.argv[1] if len(sys.argv) > 1 else "k.s", "w").write(s)
```

```python
import struct, sys, math
from asmlib import Asm, fix_hazards, vr, ar, sr

NAME = "recurrent_scan__gqa_block_cached__geglu_ffn__decode_kernel"

def f2u(x): return struct.unpack("<I", struct.pack("<f", x))[0]

WS_EPOCH = 0
WS_QP   = 0x001000
WS_H1O  = 0x050000
WS_H1ML = 0x090000
WS_GU   = 0x0A0000
WS_YP   = 0x100000
WS_SP   = 0x1B0000
WS_CNT  = 0x1E0000
WS_DBG  = 0x200000
WS_SIZE = 0x400000

X_LN, XROW = 0, 1184
Q_LDS = 2432
X2, X2ROW = 3072, 576
X3, X3ROW = 4352, 192
MERGE = 4864
PROG = 2368
QRDY = 2372
QPUB = 2376
DEADF = 2380
PUBD = 2384
T_WQ = 6400
XH = T_WQ
T_WO = T_WQ + 20480
T_FFN = T_WO + 32768
SCORES = T_FFN + 73728
LDS_BYTES = SCORES + 16384

LOG2E = 1.4426950408889634
SCALE = 128 ** -0.5
POLL_LIMIT = 400000

S_WAVE = 3
S_X, S_K, S_V, S_WQ, S_WO, S_BX, S_WG, S_WU = 4, 6, 8, 10, 12, 14, 16, 18
S_WD, S_OUT, S_DBG, S_WS = 20, 22, 24, 26
S_KV0, S_NSB, S_FT, S_FCB, S_WCB, S_FIN = 28, 29, 30, 31, 32, 33
S_HKV, S_B, S_M, S_REC = 36, 37, 38, 39
S_EPO, S_TAG, S_EPN = 40, 41, 42
SRD_K, SRD_V, SRD_WS, SRD_T, SRD_U = 44, 48, 52, 56, 60
SG1, SG2, SG3 = 80, 82, 84
S_CNT = 91
S_T0 = 92

def make_table(wside=0.8, c_ffn=72.0, c_wo=0.0, c_fin=12.0, pool=128, adj=None):
    info = {w: dict(x=w & 7, g=w >> 3, j=w & 7, ft=0, fcb=0, wcb=255, fin=255) for w in range(256)}
    free = lambda w: ((w & 7) == (w >> 3) % 8) or ((w >> 3) < 8 and (w & 7) == ((w >> 3) + 4) % 8)
    e = 0
    for w in range(256):
        if not free(w):
            info[w]["ft"] = 1 + e % 3; info[w]["fcb"] = e // 3; e += 1
    assert e == 216
    xcnt = [0] * 8
    for c in range(16):
        chosen = []
        quota = {2 * c: 5 if c % 2 == 0 else 4, 2 * c + 1: 4 if c % 2 == 0 else 5}
        mem = list(range(16 * c, 16 * c + 16))
        for w in mem:
            if free(w): chosen.append(w); quota[w >> 3] -= 1; xcnt[w & 7] += 1
        while len(chosen) < 9:
            cand = [w for w in mem if w not in chosen and quota[w >> 3] > 0]
            w = min(cand, key=lambda v: (xcnt[v & 7], v))
            chosen.append(w); quota[w >> 3] -= 1; xcnt[w & 7] += 1
        for cb, w in enumerate(chosen): info[w]["wcb"] = cb
    frees = [w for w in range(64) if free(w)]
    more = [w for w in range(64, 256) if free(w)]
    fins = [frees[0], frees[3], frees[4], frees[7], frees[8], frees[11], frees[12], frees[15], more[5]]
    assert len(fins) == 9
    for f, w in enumerate(fins): info[w]["fin"] = f
    static_total = 1024 - pool
    for g in range(32):
        ws_ = list(range(8 * g, 8 * g + 8))
        side = []
        for w in ws_:
            i = info[w]
            sd = (c_ffn if i["ft"] else 0) + (c_wo if i["wcb"] != 255 else 0) + (c_fin if i["fin"] != 255 else 0)
            if adj: sd += adj(w, i)
            side.append(sd * wside)
        tot = static_total * 16 + sum(side)
        ideal = [(tot / 8 - sd) / 16 for sd in side]
        n = [int(math.floor(v)) for v in ideal]
        rem = static_total - sum(n)
        order = sorted(range(8), key=lambda k: -(ideal[k] - n[k]))
        for k in order[:rem]: n[k] += 1
        assert sum(n) == static_total and min(n) >= 16 and max(n) <= 126
        st = 0
        for k, w in enumerate(ws_):
            info[w]["kv0"] = st; info[w]["nsb"] = n[k]; st += n[k]
        info[ws_[0]]["side_total"] = sum(side)
    tab = [[info[w]["kv0"], info[w]["nsb"], info[w]["ft"], info[w]["fcb"], info[w]["wcb"], info[w]["fin"], 0, 0] for w in range(256)]
    return tab, info

def gemv(A, nsteps, cts, a_read, tr_read, acc, abuf, bbuf, nbuf):
    reads = []
    last = {}
    for n in range(nsteps):
        reads.append((n, a_read(n, abuf(n % nbuf))))
        for ct in cts:
            for u in range(2):
                reads.append((n, tr_read(n, ct, u, bbuf(n % nbuf, ct) + 2 * u)))
            last[(n, ct)] = len(reads) - 1
    issued = 0; done = 0
    for n in range(nsteps):
        for ci, ct in enumerate(cts):
            while issued < len(reads) and (issued - done) < 15 and reads[issued][0] < n + nbuf - (0 if ci == 0 or True else 0):
                if reads[issued][0] - nbuf >= n: break
                A(reads[issued][1]); issued += 1
            need = last[(n, ct)]
            assert issued > need, (issued, need, n, ct)
            if done <= need:
                k = issued - 1 - need
                A(f"s_waitcnt lgkmcnt({k})")
                done = need + 1
            c = "0" if n == 0 else vr(acc(ct), 4)
            A(f"v_mfma_f32_16x16x32_bf16 {vr(acc(ct),4)}, {vr(abuf(n % nbuf),4)}, {vr(bbuf(n % nbuf, ct),4)}, {c}")

def poll_begin(A, name):
    A(f"s_mov_b32 s{S_CNT}, {POLL_LIMIT}")
    A.lab(name)

def poll_end(A, name, sleep):
    ok = name + "_ok"
    A(f"s_cbranch_vccz {ok}")
    A(f"s_sub_u32 s{S_CNT}, s{S_CNT}, 1")
    A(f"s_cmp_eq_u32 s{S_CNT}, 0")
    A(f"s_cbranch_scc1 {ok}")
    if sleep: A(f"s_sleep {sleep}")
    A(f"s_branch {name}")
    A.lab(ok)

def wait_progress(A, name, thr):
    A(f"s_mov_b32 s{S_CNT}, {POLL_LIMIT}")
    A("v_mov_b32 v250, 0")
    A.lab(name)
    A(f"ds_read_b32 v251, v250 offset:{PROG}")
    A("s_waitcnt lgkmcnt(0)")
    A("v_readfirstlane_b32 s90, v251")
    A(f"s_cmp_ge_u32 s90, {thr}")
    A(f"s_cbranch_scc1 {name}_ok")
    A(f"s_sub_u32 s{S_CNT}, s{S_CNT}, 1")
    A(f"s_cmp_eq_u32 s{S_CNT}, 0")
    A(f"s_cbranch_scc1 {name}_ok")
    A("s_sleep 8")
    A(f"s_branch {name}")
    A.lab(name + "_ok")

def wait_lds(A, name, off, thr, sleep, tv=250):
    A(f"s_mov_b32 s{S_CNT}, {POLL_LIMIT * 8}")
    A(f"v_mov_b32 v{tv}, 0")
    A.lab(name)
    A(f"ds_read_b32 v{tv+1}, v{tv} offset:{off}")
    A("s_waitcnt lgkmcnt(0)")
    A(f"v_readfirstlane_b32 s90, v{tv+1}")
    A(f"s_cmp_ge_u32 s90, {thr}")
    A(f"s_cbranch_scc1 {name}_ok")
    A(f"s_sub_u32 s{S_CNT}, s{S_CNT}, 1")
    A(f"s_cmp_eq_u32 s{S_CNT}, 0")
    A(f"s_cbranch_scc1 {name}_ok")
    if sleep: A(f"s_sleep {sleep}")
    A(f"s_branch {name}")
    A.lab(name + "_ok")

def wait_counter(A, name, off, thr, sleep):
    A(f"s_mov_b32 s{S_CNT}, {POLL_LIMIT}")
    A.lab(name)
    A("s_mov_b32 s90, 0")
    A(f"s_atomic_add s90, s[{S_DBG}:{S_DBG+1}], {off} glc")
    A("s_waitcnt lgkmcnt(0)")
    A(f"s_cmp_ge_u32 s90, {thr}")
    A(f"s_cbranch_scc1 {name}_ok")
    A(f"s_sub_u32 s{S_CNT}, s{S_CNT}, 1")
    A(f"s_cmp_eq_u32 s{S_CNT}, 0")
    A(f"s_cbranch_scc1 {name}_ok")
    A(f"s_sleep {sleep}")
    A(f"s_branch {name}")
    A.lab(name + "_ok")

def check_tags(A, tags, t):
    A(f"v_max3_u32 v{t}, v{tags[0]}, v{tags[1]}, v{tags[2]}")
    A(f"v_min3_u32 v{t+1}, v{tags[0]}, v{tags[1]}, v{tags[2]}")
    rest = tags[3:]
    for k in range(0, len(rest), 2):
        a = rest[k]; b_ = rest[min(k + 1, len(rest) - 1)]
        A(f"v_max3_u32 v{t}, v{t}, v{a}, v{b_}")
        A(f"v_min3_u32 v{t+1}, v{t+1}, v{a}, v{b_}")
    A(f"v_xor_b32 v{t}, v{t}, v{t+1}")
    A(f"v_xor_b32 v{t+1}, s{S_TAG}, v{t+1}")
    A(f"v_or_b32 v{t}, v{t}, v{t+1}")
    A(f"v_cmp_ne_u32 vcc, 0, v{t}")

def reduce16(A, v, op="v_add_f32"):
    for k in (8, 4, 2, 1):
        A(f"{op}_dpp {vr(v)}, {vr(v)}, {vr(v)} row_ror:{k} row_mask:0xf bank_mask:0xf")

def swap16(A, v, t, op):
    A(f"v_mov_b32 {vr(t)}, {vr(v)}")
    A(f"v_permlane16_swap_b32 {vr(v)}, {vr(t)}")
    A(f"{op} {vr(v)}, {vr(v)}, {vr(t)}")

def swap32(A, v, t, op):
    A(f"v_mov_b32 {vr(t)}, {vr(v)}")
    A(f"v_permlane32_swap_b32 {vr(v)}, {vr(t)}")
    A(f"{op} {vr(v)}, {vr(v)}, {vr(t)}")

def round_bf16(A, dst, src):
    A(f"v_cvt_pk_bf16_f32 {vr(dst)}, {vr(src)}, {vr(src)}")
    A(f"v_and_b32 {vr(dst)}, 0xffff0000, {vr(dst)}")

def srd(A, base, ptr, nrec, off=None):
    if off is None:
        A(f"s_mov_b32 s{base}, s{ptr}")
        A(f"s_mov_b32 s{base+1}, s{ptr+1}")
    else:
        lo, hi = off
        A(f"s_add_u32 s{base}, s{ptr}, s{lo}")
        A(f"s_addc_u32 s{base+1}, s{ptr+1}, {hi}")
    A(f"s_mov_b32 s{base+2}, {nrec}")
    A(f"s_mov_b32 s{base+3}, 0x20000")

def stamp(A, P, idx):
    if not P.get("stamps"): return
    A("s_memrealtime s[92:93]")
    A("s_waitcnt lgkmcnt(0)")
    A(f"v_writelane_b32 v253, s92, {idx}")

def stamp_flush(A, P):
    if not P.get("stamps"): return
    A(f"s_lshl_b32 s94, s2, 2")
    A(f"s_add_u32 s94, s94, s{S_WAVE}")
    A(f"s_lshl_b32 s94, s94, 6")
    A(f"s_add_u32 s94, s94, {WS_DBG}")
    A("v_lshlrev_b32 v254, 2, v0")
    A("s_mov_b64 exec, 0xffff")
    A(f"buffer_store_dword v253, v254, s[{SRD_WS}:{SRD_WS+3}], s94 offen")

def dma_voff(A, vE, vO, stride, vL, t0, t1):
    A(f"v_lshrrev_b32 {vr(t0)}, 3, {vr(vL)}")
    A(f"s_mov_b32 s64, {stride}")
    A(f"v_mul_lo_u32 {vr(vE)}, {vr(t0)}, s64")
    A(f"v_bfe_u32 {vr(t0)}, {vr(vL)}, 4, 1")
    A(f"v_lshlrev_b32 {vr(t0)}, 1, {vr(t0)}")
    A(f"v_and_b32 {vr(t1)}, 7, {vr(vL)}")
    A(f"v_xor_b32 {vr(t0)}, {vr(t0)}, {vr(t1)}")
    A(f"v_lshl_add_u32 {vr(vE)}, {vr(t0)}, 4, {vr(vE)}")
    A(f"v_xor_b32 {vr(vO)}, 64, {vr(vE)}")

def tr_addr(A, vT, vL, t0, t1):
    A(f"v_lshrrev_b32 {vr(t0)}, 4, {vr(vL)}")
    A(f"v_bfe_u32 {vr(t1)}, {vr(vL)}, 2, 2")
    A(f"v_lshl_add_u32 {vr(vT)}, {vr(t0)}, 3, {vr(t1)}")
    A(f"v_lshlrev_b32 {vr(vT)}, 7, {vr(vT)}")
    A(f"v_and_b32 {vr(t0)}, 1, {vr(t0)}")
    A(f"v_lshlrev_b32 {vr(t0)}, 1, {vr(t0)}")
    A(f"v_lshrrev_b32 {vr(t1)}, 1, {vr(t1)}")
    A(f"v_or_b32 {vr(t0)}, {vr(t0)}, {vr(t1)}")
    A(f"v_lshlrev_b32 {vr(t0)}, 1, {vr(t0)}")
    A(f"v_bfe_u32 {vr(t1)}, {vr(vL)}, 1, 1")
    A(f"v_xor_b32 {vr(t0)}, {vr(t0)}, {vr(t1)}")
    A(f"v_lshl_add_u32 {vr(vT)}, {vr(t0)}, 4, {vr(vT)}")
    A(f"v_and_b32 {vr(t0)}, 1, {vr(vL)}")
    A(f"v_lshl_add_u32 {vr(vT)}, {vr(t0)}, 3, {vr(vT)}")
    for ct in range(1, 4):
        A(f"v_xor_b32 {vr(vT+ct)}, {32*ct}, {vr(vT)}")

def sel_by_group(A, dst, regs):
    A(f"v_cndmask_b32 {vr(dst)}, {vr(regs[0])}, {vr(regs[1])}, s[{SG1}:{SG1+1}]")
    A(f"v_cndmask_b32 {vr(dst)}, {vr(dst)}, {vr(regs[2])}, s[{SG2}:{SG2+1}]")
    A(f"v_cndmask_b32 {vr(dst)}, {vr(dst)}, {vr(regs[3])}, s[{SG3}:{SG3+1}]")

def gen(P=None):
    P = P or {}
    D = P.get("D", 2)
    FL = P.get("kvflags", "nt")
    FLK = P.get("kflags", FL); FLV = P.get("vflags", FL)
    HST = P.get("hst", "sc1"); HLD = P.get("hld", "sc1")
    WFL = P.get("wflags", "nt")
    tab, info = make_table(**P.get("table", {}))
    if P.get("no_ffn"):
        for row in tab: row[2] = 0; row[5] = 255
    if P.get("only_gu"):
        for row in tab:
            if row[2] == 3: row[2] = 0
            row[5] = 255
    if P.get("only_dn"):
        for row in tab:
            if row[2] in (1, 2): row[2] = 0
            row[5] = 255
    if P.get("no_y"):
        for row in tab: row[5] = 255
    if P.get("no_wo"):
        for row in tab: row[4] = 255; row[5] = 255
    A = Asm()
    A.L += open(P.get("header", "recurrent_scan__gqa_block_cached__geglu_ffn__decode.s.ref")).read().split("; Override launch")[0].rstrip("\n").split("\n")
    A.L.append(f"; @launch grid=(256,1,1) block=(256,1,1) lds={LDS_BYTES}")
    A('.amdgcn_target "amdgcn-amd-amdhsa--gfx950"')
    A(".text")
    A(f".globl {NAME}")
    A(".p2align 8")
    A(f".type {NAME},@function")
    body_start = len(A.L)
    A.lab(NAME)
    if P.get("diag_entry"): A("s_memrealtime s[98:99]")
    A("s_cmp_ge_u32 s2, 256")
    A("s_cbranch_scc1 L_exit")
    A("s_load_dwordx16 s[4:19], s[0:1], 0")
    A("s_load_dwordx8 s[20:27], s[0:1], 64")
    A("s_getpc_b64 s[64:65]")
    A.lab("L_pc")
    A("s_add_u32 s64, s64, L_table-L_pc")
    A("s_addc_u32 s65, s65, 0")
    A("s_lshl_b32 s66, s2, 5")
    A("s_add_u32 s64, s64, s66")
    A("s_addc_u32 s65, s65, 0")
    A("s_load_dwordx8 s[28:35], s[64:65], 0")
    A("v_lshrrev_b32 v1, 6, v0")
    A("v_and_b32 v0, 63, v0")
    A(f"v_readfirstlane_b32 s{S_WAVE}, v1")
    if P.get("stamps"):
        A("v_mov_b32 v253, 0")
        stamp(A, P, 15)
    A(f"s_lshr_b32 s{S_HKV}, s2, 4")
    A(f"s_and_b32 s{S_M}, s2, 15")
    A(f"s_lshr_b32 s{S_B}, s{S_M}, 3")
    A(f"s_mov_b32 s{S_REC}, s2")
    A(f"s_mov_b32 s{SG1}, 0xffff0000")
    A(f"s_mov_b32 s{SG1+1}, 0")
    A(f"s_mov_b32 s{SG2}, 0")
    A(f"s_mov_b32 s{SG2+1}, 0xffff")
    A(f"s_mov_b32 s{SG3}, 0")
    A(f"s_mov_b32 s{SG3+1}, 0xffff0000")
    A("s_waitcnt lgkmcnt(0)")
    if (P.get("dbgdur") or P.get("diag_hold")) and not P.get("diag_entry"): A("s_memrealtime s[98:99]")
    if P.get("diag_entry") and P.get("dbgdur"):
        A("s_memrealtime s[100:101]")
        A("s_waitcnt lgkmcnt(0)")
        A("s_sub_u32 s35, s100, s98")
    A(f"s_load_dword s{S_EPO}, s[{S_WS}:{S_WS+1}], {WS_EPOCH}")
    srd(A, SRD_WS, S_WS, WS_SIZE)
    A(f"s_cmp_ge_u32 s{S_WAVE}, 2")
    A("s_cbranch_scc1 L_att")
    A(f"s_cmp_eq_u32 s{S_WAVE}, 1")
    A("s_cbranch_scc1 L_s1")

    vL = 0
    A("v_lshlrev_b32 v1, 4, v0")
    for k in range(4): A(f"v_mov_b32 v{4+k}, -1")
    A(f"s_lshl_b32 s64, s{S_REC}, 10")
    A(f"s_add_u32 s64, s64, {WS_H1O}")
    A(f"buffer_store_dwordx4 v[4:7], v1, s[{SRD_WS}:{SRD_WS+3}], s64 offen sc1")
    A(f"s_lshl_b32 s65, s{S_REC}, 7")
    A(f"s_add_u32 s65, s65, {WS_H1ML}")
    A("s_mov_b64 exec, 0xff")
    A(f"buffer_store_dwordx4 v[4:7], v1, s[{SRD_WS}:{SRD_WS+3}], s65 offen sc1")
    A("s_mov_b64 exec, -1")
    A("s_and_b32 s64, s2, 7")
    A("s_cmp_lg_u32 s64, 0")
    A("s_cbranch_scc1 L_nocnt")
    A("s_lshr_b32 s64, s2, 3")
    A("s_lshl_b32 s64, s64, 8")
    A(f"s_add_u32 s64, s64, {WS_CNT}")
    A("v_mov_b32 v8, 0")
    A("s_mov_b64 exec, 1")
    A(f"buffer_store_dword v8, v1, s[{SRD_WS}:{SRD_WS+3}], s64 offen sc1")
    A("s_mov_b64 exec, -1")
    A.lab("L_nocnt")
    srd(A, SRD_U, S_X, 2304)
    A("v_lshrrev_b32 v2, 5, v0")
    A("v_mul_u32_u24 v2, 1152, v2")
    A("v_and_b32 v3, 31, v0")
    A("v_lshl_add_u32 v2, v3, 2, v2")
    for n in range(9):
        A(f"buffer_load_dword v{8+n}, v2, s[{SRD_U}:{SRD_U+3}], 0 offen offset:{128*n}")
    srd(A, SRD_T, S_WQ, 576 * 8192)
    dma_voff(A, 18, 19, 8192, vL, 20, 21)
    A(f"s_lshr_b32 s66, s{S_M}, 2")
    A(f"s_mul_i32 s67, s66, {144*8192}")
    A(f"s_and_b32 s68, s{S_M}, 3")
    A(f"s_lshl_b32 s68, s68, 7")
    A("s_add_u32 s67, s67, s68")
    A(f"s_lshl_b32 s68, s{S_HKV}, 9")
    A("s_add_u32 s67, s67, s68")
    A(f"s_mov_b32 s68, {T_WQ}")
    A("s_mov_b32 s69, 9")
    A.lab("L_wqdma")
    for par in range(2):
        A("s_mov_b32 m0, s68")
        A("s_add_u32 s68, s68, 1024")
        A(f"buffer_load_dwordx4 v{18+par}, s[{SRD_T}:{SRD_T+3}], s67 offen {WFL} lds")
        A("s_add_u32 s67, s67, 65536")
    A("s_sub_u32 s69, s69, 1")
    A("s_cmp_lg_u32 s69, 0")
    A("s_cbranch_scc1 L_wqdma")
    A("v_mov_b32 v20, 0")
    A("v_mov_b32 v21, 0")
    A("v_mov_b32 v22, 0")
    A(f"ds_write_b32 v20, v20 offset:{PROG}")
    A(f"ds_write_b64 v20, v[20:21] offset:{QRDY + 4 - 4 + 0}") if False else None
    A(f"ds_write_b32 v20, v20 offset:{QRDY}")
    A(f"ds_write_b32 v20, v20 offset:{QPUB}")
    A(f"ds_write_b32 v20, v20 offset:{DEADF}")
    A(f"ds_write_b32 v20, v20 offset:{PUBD}")
    A("s_waitcnt lgkmcnt(0)")
    A("s_barrier")
    stamp(A, P, 0)
    for k in range(4): A(f"v_mov_b32 v{20+k}, 0")
    A(f"ds_write_b128 v1, v[20:23] offset:{T_WQ + 18432}")
    A(f"ds_write_b128 v1, v[20:23] offset:{T_WQ + 19456}")
    A("v_lshrrev_b32 v24, 3, v0")
    A(f"v_mul_u32_u24 v24, {XROW}, v24")
    A("v_and_b32 v25, 7, v0")
    A("v_lshl_add_u32 v24, v25, 2, v24")
    A("s_mov_b64 exec, 0xffff")
    A(f"ds_write_b32 v24, v20 offset:{X_LN + 1152}")
    A("s_mov_b64 exec, -1")
    tr_addr(A, 100, vL, 24, 25)
    A("v_and_b32 v104, 1, v0")
    A(f"v_mul_u32_u24 v104, {XROW}, v104")
    A("v_lshrrev_b32 v24, 4, v0")
    A("v_lshl_add_u32 v104, v24, 4, v104")
    A(f"s_mul_i32 s64, s66, 288")
    A("v_add_u32 v105, s64, v104")
    A("s_waitcnt vmcnt(18)")
    lo = lambda n: 24 + 2 * n
    hi = lambda n: 25 + 2 * n
    for n in range(9):
        A(f"v_lshlrev_b32 v{lo(n)}, 16, v{8+n}")
        A(f"v_and_b32 v{hi(n)}, 0xffff0000, v{8+n}")
    A(f"v_add_f32 v42, v{lo(0)}, v{hi(0)}")
    A(f"v_add_f32 v43, v{lo(1)}, v{hi(1)}")
    for n in range(2, 9):
        A(f"v_add_f32 v42, v42, v{lo(n)}")
        A(f"v_add_f32 v43, v43, v{hi(n)}")
    A("v_add_f32 v42, v42, v43")
    reduce16(A, 42); swap16(A, 42, 43, "v_add_f32")
    A(f"v_mul_f32 v42, {hex(f2u(1/576))}, v42")
    A("v_mov_b32 v44, 0")
    for n in range(9):
        A(f"v_sub_f32 v45, v{lo(n)}, v42")
        A(f"v_sub_f32 v46, v{hi(n)}, v42")
        A("v_fmac_f32 v44, v45, v45")
        A("v_fmac_f32 v44, v46, v46")
    reduce16(A, 44); swap16(A, 44, 43, "v_add_f32")
    A(f"v_mul_f32 v44, {hex(f2u(1/576))}, v44")
    round_bf16(A, 44, 44)
    A(f"v_add_f32 v44, {hex(f2u(1e-5))}, v44")
    round_bf16(A, 44, 44)
    A("v_sqrt_f32 v44, v44")
    round_bf16(A, 44, 44)
    A("v_rcp_f32 v44, v44")
    round_bf16(A, 42, 42)
    A("v_lshrrev_b32 v47, 5, v0")
    A(f"v_mul_u32_u24 v47, {XROW}, v47")
    A("v_and_b32 v48, 31, v0")
    A("v_lshl_add_u32 v47, v48, 2, v47")
    for n in range(9):
        A(f"v_sub_f32 v45, v{lo(n)}, v42")
        A(f"v_sub_f32 v46, v{hi(n)}, v42")
        A("v_cvt_pk_bf16_f32 v45, v45, v46")
        A("v_and_b32 v46, 0xffff0000, v45")
        A("v_lshlrev_b32 v45, 16, v45")
        A("v_mul_f32 v45, v45, v44")
        A("v_mul_f32 v46, v46, v44")
        A(f"v_cvt_pk_bf16_f32 v{50+n}, v45, v46")
        A(f"ds_write_b32 v47, v{50+n} offset:{X_LN + 128*n}")
    stamp(A, P, 1)
    A("s_waitcnt vmcnt(0) lgkmcnt(0)")
    A(f"s_add_u32 s{S_EPN}, s{S_EPO}, 1")
    A(f"s_mul_i32 s{S_TAG}, s{S_EPN}, 0x9E3779B1")
    A(f"s_xor_b32 s{S_TAG}, s{S_TAG}, 0x5bd1e995")
    stamp(A, P, 2)
    ACC = lambda ct: 110 + 4 * ct
    gemv(A, 5, [0, 1, 2, 3],
         lambda n, d: f"ds_read_b128 {vr(d,4)}, v105 offset:{X_LN + 64*n}",
         lambda n, ct, u, d: f"ds_read_b64_tr_b16 {vr(d,2)}, v{100+ct} offset:{T_WQ + 4096*n + 512*u}",
         ACC, lambda k: 128 + 20 * k, lambda k, ct: 132 + 20 * k + 4 * ct, 2)
    def publish_pair(soff):
        sel_by_group(A, 8, [ACC(ct) for ct in range(4)])
        sel_by_group(A, 10, [ACC(ct) + 1 for ct in range(4)])
        return
    publish_pair(None)
    A(f"v_mov_b32 v9, s{S_TAG}")
    A(f"v_mov_b32 v11, s{S_TAG}")
    A(f"s_lshl_b32 s64, s{S_REC}, 10")
    A(f"s_add_u32 s64, s64, {WS_QP}")
    A(f"buffer_store_dwordx4 v[8:11], v1, s[{SRD_WS}:{SRD_WS+3}], s64 offen sc1")
    A("v_mov_b32 v12, 0")
    A("v_mov_b32 v13, 1")
    A(f"ds_write_b32 v12, v13 offset:{QPUB}")
    stamp(A, P, 3)
    A(f"s_lshl_b32 s64, s{S_B}, 3")
    A("v_add_u32 v2, s64, v1")
    A(f"s_lshl_b32 s64, s{S_HKV}, 14")
    A(f"s_add_u32 s64, s64, {WS_QP}")
    for k in range(1, 4): A(f"s_add_u32 s{64+k}, s64, {4096*k}")
    poll_begin(A, "L_qpoll")
    for m in range(16):
        A(f"buffer_load_dwordx2 v[{24+2*m}:{25+2*m}], v2, s[{SRD_WS}:{SRD_WS+3}], s{64+(m>>2)} offen offset:{1024*(m&3)} sc1")
    A("s_waitcnt vmcnt(0)")
    A("v_max3_u32 v60, v25, v27, v29")
    A("v_min3_u32 v61, v25, v27, v29")
    for m in range(3, 16, 2):
        a, b_ = 25 + 2 * m, 25 + 2 * min(m + 1, 15)
        A(f"v_max3_u32 v60, v60, v{a}, v{b_}")
        A(f"v_min3_u32 v61, v61, v{a}, v{b_}")
    A("v_xor_b32 v60, v60, v61")
    A(f"v_xor_b32 v61, s{S_TAG}, v61")
    A("v_or_b32 v60, v60, v61")
    A("v_cmp_ne_u32 vcc, 0, v60")
    if P.get("stamps"):
        A(f"s_cmp_eq_u32 s{S_CNT}, {POLL_LIMIT}")
        A("s_cbranch_scc0 L_qp_nostamp")
        A("s_memrealtime s[92:93]")
        A("s_waitcnt lgkmcnt(0)")
        A("v_writelane_b32 v253, s92, 11")
        A.lab("L_qp_nostamp")
    poll_end(A, "L_qpoll", 1)
    if P.get("stamps"):
        A(f"s_sub_u32 s92, {POLL_LIMIT+1}, s{S_CNT}")
        A("v_writelane_b32 v253, s92, 12")
    A("v_lshlrev_b32 v3, 1, v0")
    for cbp in range(4):
        m = lambda kr: 24 + 2 * (kr * 4 + cbp)
        A(f"v_add_f32 v60, v{m(0)}, v{m(1)}")
        A(f"v_add_f32 v60, v60, v{m(2)}")
        A(f"v_add_f32 v60, v60, v{m(3)}")
        A(f"v_cvt_pk_bf16_f32 v{62+cbp}, v60, v60")
        A(f"ds_write_b16 v3, v{62+cbp} offset:{Q_LDS + 128*cbp}")
    A("s_waitcnt lgkmcnt(0)")
    A("v_mov_b32 v12, 0")
    A("v_mov_b32 v13, 1")
    A(f"ds_write_b32 v12, v13 offset:{QRDY}")
    stamp(A, P, 4)
    A(f"s_cmp_eq_u32 s{S_FIN}, 255")
    A("s_cbranch_scc1 L_s0_noy")
    wait_progress(A, "L_ywait", P.get("t_y", 176 // P.get("NA", 2)))
    A(f"s_lshl_b32 s64, s{S_FIN}, 13")
    A(f"s_add_u32 s64, s64, {WS_YP}")
    A("s_add_u32 s65, s64, 4096")
    poll_begin(A, "L_ypoll")
    for n in range(8):
        A(f"buffer_load_dwordx4 v[{24+4*n}:{27+4*n}], v1, s[{SRD_WS}:{SRD_WS+3}], s{64+(n>>2)} offen offset:{1024*(n&3)} sc1")
    A("s_waitcnt vmcnt(0)")
    check_tags(A, [25 + 4 * n + 2 * k for n in range(8) for k in range(2)], 80)
    poll_end(A, "L_ypoll", 32)
    A("v_add_f32 v200, v24, v28")
    A("v_add_f32 v201, v26, v30")
    for n in range(2, 8):
        A(f"v_add_f32 v200, v200, v{24+4*n}")
        A(f"v_add_f32 v201, v201, v{26+4*n}")
    for k in range(2):
        y = 200 + k
        round_bf16(A, y, y)
        A(f"v_mul_f32 v80, {hex(f2u(-LOG2E))}, v{y}")
        A("v_exp_f32 v80, v80")
        A("v_add_f32 v80, 1.0, v80")
        A("v_rcp_f32 v80, v80")
        A(f"v_mul_f32 v{y}, v{y}, v80")
        round_bf16(A, y, y)
    srd(A, SRD_U, S_X, 2304)
    A(f"s_lshl_b32 s70, s{S_FIN}, 7")
    A("v_lshlrev_b32 v204, 1, v0")
    A(f"buffer_load_ushort v202, v204, s[{SRD_U}:{SRD_U+3}], s70 offen")
    A(f"buffer_load_ushort v203, v204, s[{SRD_U}:{SRD_U+3}], s70 offen offset:1152")
    A("s_waitcnt vmcnt(0)")
    A.lab("L_s0_noy")
    stamp(A, P, 5)

    A("s_branch L_side_tail")

    A.lab("L_s1")
    A("v_lshlrev_b32 v1, 4, v0")
    A("s_barrier")
    A("s_waitcnt lgkmcnt(0)")
    A(f"s_add_u32 s{S_EPN}, s{S_EPO}, 1")
    A(f"s_mul_i32 s{S_TAG}, s{S_EPN}, 0x9E3779B1")
    A(f"s_xor_b32 s{S_TAG}, s{S_TAG}, 0x5bd1e995")
    if P.get("s1_start", "qpub") == "qpub": wait_lds(A, "L_qpubwait", QPUB, 1, 1)
    if P.get("s1_start") == "qrdy": wait_lds(A, "L_qpubwait", QRDY, 1, 1)
    DL = P.get("dma_lead", 16)
    A(f"s_cmp_eq_u32 s{S_FT}, 0")
    A("s_cbranch_scc1 L_s1_wo")
    A(f"s_cmp_eq_u32 s{S_FT}, 3")
    A("s_cbranch_scc1 L_dn_setup")
    A(f"s_cmp_eq_u32 s{S_FT}, 1")
    A(f"s_cselect_b32 s{SRD_T}, s{S_WG}, s{S_WU}")
    A(f"s_cselect_b32 s{SRD_T+1}, s{S_WG+1}, s{S_WU+1}")
    A(f"s_mov_b32 s{SRD_T+2}, {576*9216}")
    A(f"s_mov_b32 s{SRD_T+3}, 0x20000")
    dma_voff(A, 18, 19, 9216, vL, 20, 21)
    A(f"s_lshl_b32 s67, s{S_FCB}, 7")
    A(f"s_mov_b32 s71, {8*9216}")
    A("s_branch L_ffn_dma")
    A.lab("L_dn_setup")
    srd(A, SRD_T, S_WD, 4608 * 1152)
    dma_voff(A, 18, 19, 1152, vL, 20, 21)
    A(f"s_mul_i32 s72, s{S_FCB}, 57")
    A("s_lshr_b32 s72, s72, 9")
    A("s_mul_i32 s73, s72, 9")
    A(f"s_sub_u32 s73, s{S_FCB}, s73")
    A(f"s_mul_i32 s67, s72, {576*1152}")
    A("s_lshl_b32 s64, s73, 7")
    A("s_add_u32 s67, s67, s64")
    A(f"s_mov_b32 s71, {8*1152}")
    A.lab("L_ffn_dma")
    A(f"s_mov_b32 s68, {T_FFN}")
    A("s_mov_b32 s69, 36")
    A.lab("L_gudma")
    for par in range(2):
        A("s_mov_b32 m0, s68")
        A("s_add_u32 s68, s68, 1024")
        A(f"buffer_load_dwordx4 v{18+par}, s[{SRD_T}:{SRD_T+3}], s67 offen {WFL} lds")
        A(f"s_add_u32 s67, s67, s71")
    A(f"s_waitcnt vmcnt({DL})")
    A("s_sub_u32 s69, s69, 1")
    A("s_cmp_lg_u32 s69, 0")
    A("s_cbranch_scc1 L_gudma")
    A.lab("L_s1_wo")
    if P.get("wo_late", True): A("s_branch L_s1_nowo")
    A(f"s_cmp_eq_u32 s{S_WCB}, 255")
    A("s_cbranch_scc1 L_s1_nowo")
    srd(A, SRD_T, S_WO, 4096 * 1152)
    dma_voff(A, 18, 19, 1152, vL, 20, 21)
    A(f"s_mul_i32 s67, s{S_HKV}, {256*1152}")
    A(f"s_lshl_b32 s68, s{S_WCB}, 7")
    A("s_add_u32 s67, s67, s68")
    A(f"s_mov_b32 s68, {T_WO}")
    A("s_mov_b32 s69, 16")
    A.lab("L_wodma")
    for par in range(2):
        A("s_mov_b32 m0, s68")
        A("s_add_u32 s68, s68, 1024")
        A(f"buffer_load_dwordx4 v{18+par}, s[{SRD_T}:{SRD_T+3}], s67 offen {WFL} lds")
        A(f"s_add_u32 s67, s67, 9216")
    A(f"s_waitcnt vmcnt({DL})")
    A("s_sub_u32 s69, s69, 1")
    A("s_cmp_lg_u32 s69, 0")
    A("s_cbranch_scc1 L_wodma")
    A.lab("L_s1_nowo")
    A("s_waitcnt vmcnt(0)")
    stamp(A, P, 4)
    A(f"s_cmp_eq_u32 s{S_FT}, 0")
    A("s_cbranch_scc1 L_s1_ffn_done")
    wait_lds(A, "L_xnwait", QRDY, 1, 4)
    tr_addr(A, 100, vL, 24, 25)
    A("v_and_b32 v104, 1, v0")
    A(f"v_mul_u32_u24 v104, {XROW}, v104")
    A("v_lshrrev_b32 v24, 4, v0")
    A("v_lshl_add_u32 v104, v24, 4, v104")
    A(f"s_cmp_eq_u32 s{S_FT}, 3")
    A("s_cbranch_scc0 L_ffn_gemv")
    if P.get("x_skipdown"): A("s_branch L_s1_ffn_done")
    wait_progress(A, "L_dnwait", P.get("t_dn", 104 // P.get("NA", 2)))
    A(f"s_mul_i32 s64, s72, {9*2048}")
    A(f"s_add_u32 s64, s64, {WS_GU}")
    for k in range(1, 5): A(f"s_add_u32 s{64+k}, s64, {4096*k}")
    poll_begin(A, "L_gupoll")
    for n in range(18):
        A(f"buffer_load_dwordx4 v[{24+4*n}:{27+4*n}], v1, s[{SRD_WS}:{SRD_WS+3}], s{64+(n>>2)} offen offset:{1024*(n&3)} sc1")
    A("s_waitcnt vmcnt(0)")
    check_tags(A, [25 + 4 * n + 2 * k for n in range(18) for k in range(2)], 96)
    poll_end(A, "L_gupoll", 32)
    A("v_lshlrev_b32 v3, 1, v0")
    A(f"v_mov_b32 v98, {hex(f2u(0.044715))}")
    for i9 in range(9):
        for bb in range(2):
            gt, up = 24 + 8 * i9 + 2 * bb, 28 + 8 * i9 + 2 * bb
            A(f"v_mul_f32 v96, v{gt}, v{gt}")
            A(f"v_mul_f32 v96, v96, v{gt}")
            A(f"v_fma_f32 v96, v96, v98, v{gt}")
            A(f"v_mul_f32 v96, {hex(f2u(-2.0 * math.sqrt(2.0 / math.pi) * LOG2E))}, v96")
            A("v_exp_f32 v96, v96")
            A("v_add_f32 v96, 1.0, v96")
            A("v_rcp_f32 v96, v96")
            A(f"v_mul_f32 v96, v{gt}, v96")
            round_bf16(A, 96, 96)
            A(f"v_mul_f32 v96, v96, v{up}")
            A(f"v_cvt_pk_bf16_f32 v97, v96, v96")
            A(f"ds_write_b16 v3, v97 offset:{XH + XROW*bb + 128*i9}")
    A(f"v_add_u32 v104, {XH - X_LN}, v104")
    A("s_waitcnt lgkmcnt(0)")
    A.lab("L_ffn_gemv")
    for ct in range(4):
        A(f"v_add_u32 v{106+ct}, {T_FFN}, v{100+ct}")
        A(f"v_add_u32 v{170+ct}, {T_FFN + 9*4096}, v{100+ct}")
    gemv(A, 18, [0, 1, 2, 3],
         lambda n, d: f"ds_read_b128 {vr(d,4)}, v104 offset:{X_LN + 64*n}",
         lambda n, ct, u, d: f"ds_read_b64_tr_b16 {vr(d,2)}, v{(106 if n < 9 else 170)+ct} offset:{4096*(n % 9) + 512*u}",
         ACC, lambda k: 128 + 20 * k, lambda k, ct: 132 + 20 * k + 4 * ct, 2)
    publish_pair(None)
    A(f"v_mov_b32 v9, s{S_TAG}")
    A(f"v_mov_b32 v11, s{S_TAG}")
    A(f"s_cmp_eq_u32 s{S_FT}, 3")
    A("s_cbranch_scc1 L_dn_pub")
    round_bf16(A, 8, 8); round_bf16(A, 10, 10)
    A(f"s_lshl_b32 s64, s{S_FCB}, 1")
    A(f"s_add_u32 s64, s64, s{S_FT}")
    A("s_sub_u32 s64, s64, 1")
    A("s_lshl_b32 s64, s64, 10")
    A(f"s_add_u32 s64, s64, {WS_GU}")
    A("s_branch L_ffn_pub")
    A.lab("L_dn_pub")
    A("s_lshl_b32 s64, s73, 3")
    A("s_add_u32 s64, s64, s72")
    A("s_lshl_b32 s64, s64, 10")
    A(f"s_add_u32 s64, s64, {WS_YP}")
    A.lab("L_ffn_pub")
    A(f"buffer_store_dwordx4 v[8:11], v1, s[{SRD_WS}:{SRD_WS+3}], s64 offen sc1")
    A.lab("L_s1_ffn_done")
    stamp(A, P, 5)

    def wo_prep():
        tr_addr(A, 100, vL, 24, 25)
        A(f"s_lshl_b32 s64, s{S_WAVE}, 5")
        A("v_xor_b32 v100, s64, v100")
        A("v_and_b32 v104, 1, v0")
        A(f"v_mul_u32_u24 v104, {X2ROW}, v104")
        A("v_lshrrev_b32 v24, 4, v0")
        A("v_lshl_add_u32 v104, v24, 4, v104")
        A("v_lshlrev_b32 v105, 4, v0")
        A(f"v_mov_b32 v9, s{S_TAG}")
        A(f"v_mov_b32 v11, s{S_TAG}")
        A(f"s_lshl_b32 s87, s{S_WCB}, 14")
        A(f"s_lshl_b32 s65, s{S_HKV}, 10")
        A("s_add_u32 s87, s87, s65")
        A(f"s_lshl_b32 s65, s{S_WAVE}, 8")
        A("s_add_u32 s87, s87, s65")
        A(f"s_add_u32 s87, s87, {WS_SP}")
    A.lab("L_side_tail")
    wo_prep()
    A("v_lshlrev_b32 v1, 4, v0")
    A("v_bfe_u32 v2, v0, 2, 1")
    A("v_lshlrev_b32 v2, 3, v2")
    A(f"s_lshl_b32 s64, s{S_HKV}, 4")
    A(f"s_lshl_b32 s65, s{S_WAVE}, 3")
    A("s_add_u32 s64, s64, s65")
    A("s_lshl_b32 s66, s64, 7")
    A(f"s_add_u32 s66, s66, {WS_H1ML}")
    A("s_lshl_b32 s64, s64, 10")
    A(f"s_add_u32 s64, s64, {WS_H1O}")
    A("s_add_u32 s65, s64, 4096")
    A("v_bfe_u32 v90, v0, 2, 1")
    A("v_lshlrev_b32 v90, 8, v90")
    A("v_lshrrev_b32 v83, 4, v0")
    A("v_lshl_add_u32 v90, v83, 6, v90")
    A("v_and_b32 v83, 3, v0")
    A("v_lshl_add_u32 v90, v83, 1, v90")
    A("v_bfe_u32 v83, v0, 3, 1")
    A("v_lshl_add_u32 v90, v83, 3, v90")
    A(f"s_mul_i32 s68, s{S_WAVE}, {X2ROW}")
    A("v_add_u32 v90, s68, v90")
    A("s_mov_b32 s67, 0xff")
    if P.get("wo_late", True):
        srd(A, SRD_T, S_WO, 4096 * 1152)
        dma_voff(A, 18, 19, 1152, vL, 20, 21)
        A(f"s_lshl_b32 s69, s{S_HKV}, 1")
        A(f"s_add_u32 s69, s69, s{S_WAVE}")
        A(f"s_mul_i32 s69, s69, {128*1152}")
        A(f"s_lshl_b32 s71, s{S_WCB}, 7")
        A("s_add_u32 s69, s69, s71")
        A(f"s_lshl_b32 s71, s{S_WAVE}, 14")
        A(f"s_add_u32 s71, s71, {T_WO}")
        A(f"s_lshl_b32 s64, s{S_HKV}, 4")
        A(f"s_lshl_b32 s72, s{S_WAVE}, 3")
        A("s_add_u32 s64, s64, s72")
        A("s_lshl_b32 s64, s64, 10")
        A(f"s_add_u32 s64, s64, {WS_H1O}")
    def wo_dma():
        for n in range(16):
            A("s_mov_b32 m0, s71")
            A("s_add_u32 s71, s71, 1024")
            A(f"buffer_load_dwordx4 v{18+(n&1)}, s[{SRD_T}:{SRD_T+3}], s69 offen {WFL} lds")
            A("s_add_u32 s69, s69, 9216")
    at_dead = P.get("wo_late", True) and P.get("wo_at", "b2") == "dead"
    if at_dead:
        A(f"s_cmp_eq_u32 s{S_WCB}, 255")
        A("s_cbranch_scc1 L_nowodma")
        wait_lds(A, "L_deadwait", DEADF, 128, 2)
        wo_dma()
        A.lab("L_nowodma")
    A("s_barrier")
    stamp(A, P, 6)
    A(f"s_cmp_eq_u32 s{S_WCB}, 255")
    A("s_cbranch_scc1 L_final")
    if P.get("wo_late", True) and not at_dead:
        if P.get("wo_afterpub"): wait_lds(A, "L_pubwait", PUBD, 1, 0)
        wo_dma()
    MC = lambda p: 56 + 2 * p
    LL = lambda p: 57 + 2 * p
    poll_begin(A, "L_h1poll")
    if not P.get("h1inc", False):
        for p in range(8):
            A(f"buffer_load_dwordx4 v[{24+4*p}:{27+4*p}], v1, s[{SRD_WS}:{SRD_WS+3}], s{64+(p>>2)} offen offset:{1024*(p&3)} {HLD}")
            A(f"buffer_load_dwordx2 v[{56+2*p}:{57+2*p}], v2, s[{SRD_WS}:{SRD_WS+3}], s66 offen offset:{128*p} {HLD}")
        A("s_waitcnt vmcnt(0)")
        A("v_max3_u32 v80, v24, v25, v26")
        for k in range(27, 72, 2): A(f"v_max3_u32 v80, v80, v{k}, v{min(k+1, 71)}")
        A("v_cmp_eq_u32 vcc, -1, v80")
        A("s_mov_b32 s67, 0")
        A("s_cbranch_vccz L_h1poll_ok")
        A("s_mov_b32 s67, 1")
    for p in range(8 if P.get("h1inc", False) else 0):
        l = A.uniq("L_h1l")
        A(f"s_bitcmp1_b32 s67, {p}")
        A(f"s_cbranch_scc0 {l}")
        A(f"buffer_load_dwordx4 v[{24+4*p}:{27+4*p}], v1, s[{SRD_WS}:{SRD_WS+3}], s{64+(p>>2)} offen offset:{1024*(p&3)} sc1")
        A(f"buffer_load_dwordx2 v[{56+2*p}:{57+2*p}], v2, s[{SRD_WS}:{SRD_WS+3}], s66 offen offset:{128*p} sc1")
        A.lab(l)
    A("s_waitcnt vmcnt(0)")
    for p in range(8 if P.get("h1inc", False) else 0):
        l = A.uniq("L_h1m")
        o = 24 + 4 * p
        A(f"s_bitcmp1_b32 s67, {p}")
        A(f"s_cbranch_scc0 {l}")
        A(f"v_max3_u32 v82, v{o}, v{o+1}, v{o+2}")
        A(f"v_max3_u32 v82, v82, v{o+3}, v{MC(p)}")
        A(f"v_max_u32 v82, v82, v{LL(p)}")
        A("v_cmp_eq_u32 vcc, -1, v82")
        A(f"s_cbranch_vccnz {l}")
        A(f"s_bitset0_b32 s67, {p}")
        A.lab(l)
    A("s_cmp_eq_u32 s67, 0")
    A("s_cbranch_scc1 L_h1poll_ok")
    A(f"s_sub_u32 s{S_CNT}, s{S_CNT}, 1")
    A(f"s_cmp_eq_u32 s{S_CNT}, 0")
    A("s_cbranch_scc1 L_h1poll_ok")
    if P.get("h1sleep", 0): A(f"s_sleep {P.get('h1sleep', 0)}")
    A("s_branch L_h1poll")
    A.lab("L_h1poll_ok")
    stamp(A, P, 7)
    A(f"v_max3_f32 v80, v{MC(0)}, v{MC(1)}, v{MC(2)}")
    A(f"v_max3_f32 v80, v80, v{MC(3)}, v{MC(4)}")
    A(f"v_max3_f32 v80, v80, v{MC(5)}, v{MC(6)}")
    A(f"v_max_f32 v80, v80, v{MC(7)}")
    for p in range(8): A(f"v_sub_f32 v{MC(p)}, v{MC(p)}, v80")
    for p in range(8): A(f"v_exp_f32 v{MC(p)}, v{MC(p)}")
    A(f"v_mul_f32 v81, v{MC(0)}, v{LL(0)}")
    for rr in range(4): A(f"v_mul_f32 v{84+rr}, v{MC(0)}, v{24+rr}")
    for p in range(1, 8):
        A(f"v_fmac_f32 v81, v{MC(p)}, v{LL(p)}")
        for rr in range(4): A(f"v_fmac_f32 v{84+rr}, v{MC(p)}, v{24+4*p+rr}")
    A("v_rcp_f32 v81, v81")
    for rr in range(4):
        A(f"v_mul_f32 v{84+rr}, v{84+rr}, v81")
    A("v_cvt_pk_bf16_f32 v88, v84, v85")
    A("v_cvt_pk_bf16_f32 v89, v86, v87")
    A(f"ds_write_b16 v90, v88 offset:{X2}")
    A(f"ds_write_b16_d16_hi v90, v88 offset:{X2 + 16}")
    A(f"ds_write_b16 v90, v89 offset:{X2 + 32}")
    A(f"ds_write_b16_d16_hi v90, v89 offset:{X2 + 48}")
    A("s_waitcnt lgkmcnt(0)")
    A.lab("L_wogemv")
    A("s_barrier")
    stamp(A, P, 8)
    gemv(A, 8, [0],
         lambda n, d: f"ds_read_b128 {vr(d,4)}, v104 offset:{X2 + 64*n}",
         lambda n, ct, u, d: f"ds_read_b64_tr_b16 {vr(d,2)}, v100 offset:{T_WO + 4096*n + 512*u}",
         lambda ct: 110, lambda k: 128 + 8 * k, lambda k, ct: 132 + 8 * k, 8)
    A("v_mov_b32 v8, v110")
    A("v_mov_b32 v10, v111")
    A("s_mov_b64 exec, 0xffff")
    A(f"buffer_store_dwordx4 v[8:11], v105, s[{SRD_WS}:{SRD_WS+3}], s87 offen {HST}")
    A("s_mov_b64 exec, -1")
    stamp(A, P, 9)
    A.lab("L_final")
    A(f"s_cmp_lg_u32 s{S_WAVE}, 0")
    A("s_cbranch_scc1 L_end")
    A(f"s_cmp_eq_u32 s{S_FIN}, 255")
    A("s_cbranch_scc1 L_end")
    A("v_lshlrev_b32 v1, 4, v0")
    A(f"s_lshl_b32 s64, s{S_FIN}, 14")
    A(f"s_add_u32 s64, s64, {WS_SP}")
    for k in range(1, 4): A(f"s_add_u32 s{64+k}, s64, {4096*k}")
    srd(A, SRD_U, S_OUT, 2304)
    A("v_lshlrev_b32 v204, 1, v0")
    A(f"s_lshl_b32 s70, s{S_FIN}, 7")
    A("v_lshlrev_b32 v202, 16, v202")
    A("v_lshlrev_b32 v203, 16, v203")
    poll_begin(A, "L_h2poll")
    for n in range(16):
        A(f"buffer_load_dwordx4 v[{24+4*n}:{27+4*n}], v1, s[{SRD_WS}:{SRD_WS+3}], s{64+(n>>2)} offen offset:{1024*(n&3)} {HLD}")
    A("s_waitcnt vmcnt(0)")
    check_tags(A, [25 + 4 * n + 2 * k for n in range(16) for k in range(2)], 96)
    poll_end(A, "L_h2poll", P.get("h2sleep", 0))
    for step in (8, 4, 2, 1):
        for n in range(step):
            A(f"v_add_f32 v{24+4*n}, v{24+4*n}, v{24+4*(n+step)}")
            A(f"v_add_f32 v{26+4*n}, v{26+4*n}, v{26+4*(n+step)}")
    A("v_cvt_pk_bf16_f32 v96, v24, v26")
    A("v_and_b32 v97, 0xffff0000, v96")
    A("v_lshlrev_b32 v96, 16, v96")
    A("v_mul_f32 v96, v96, v200")
    A("v_mul_f32 v97, v97, v201")
    A("v_cvt_pk_bf16_f32 v96, v96, v97")
    A("v_and_b32 v97, 0xffff0000, v96")
    A("v_lshlrev_b32 v96, 16, v96")
    A("v_add_f32 v96, v96, v202")
    A("v_add_f32 v97, v97, v203")
    A("v_cvt_pk_bf16_f32 v96, v96, v97")
    if P.get("diag_hold"):
        A.lab("L_hold")
        A("s_memrealtime s[92:93]")
        A("s_waitcnt lgkmcnt(0)")
        A("s_sub_u32 s92, s92, s98")
        A(f"s_cmp_lt_u32 s92, {P['diag_hold']}")
        A("s_cbranch_scc1 L_hold")
    A(f"buffer_store_short v96, v204, s[{SRD_U}:{SRD_U+3}], s70 offen")
    A(f"buffer_store_short_d16_hi v96, v204, s[{SRD_U}:{SRD_U+3}], s70 offen offset:1152")
    stamp(A, P, 10)
    if P.get("dbgdur"):
        A("s_memrealtime s[92:93]")
        A("s_waitcnt lgkmcnt(0)")
        A("s_sub_u32 s92, s92, s98")
        srd(A, SRD_U, S_DBG, 256)
        A("v_mov_b32 v96, s92" if not P.get("diag_entry") else "v_mov_b32 v96, s35")
        A(f"s_lshl_b32 s64, s{S_FIN}, 2")
        A("v_mov_b32 v97, 0")
        A("s_mov_b64 exec, 1")
        A(f"buffer_store_dword v96, v97, s[{SRD_U}:{SRD_U+3}], s64 offen")
        A("s_mov_b64 exec, -1")
    A(f"s_cmp_lg_u32 s{S_FIN}, 0")
    A("s_cbranch_scc1 L_end")
    A(f"v_mov_b32 v80, s{S_EPN}")
    A("v_mov_b32 v81, 0")
    A("s_mov_b64 exec, 1")
    A(f"buffer_store_dword v80, v81, s[{SRD_WS}:{SRD_WS+3}], 0 offen offset:{WS_EPOCH}")
    A("s_mov_b64 exec, -1")
    A("s_branch L_end")

    A.lab("L_att")
    DK = P.get("DK", 2)
    NA = P.get("NA", 2)
    STEP = 8192 * NA
    assert DK % 2 == 0 and DK <= 8
    if NA == 1:
        A(f"s_cmp_eq_u32 s{S_WAVE}, 2")
        A("s_cbranch_scc1 L_att_go")
        A("s_waitcnt lgkmcnt(0)")
        A(f"s_add_u32 s{S_EPN}, s{S_EPO}, 1")
        A(f"s_mul_i32 s{S_TAG}, s{S_EPN}, 0x9E3779B1")
        A(f"s_xor_b32 s{S_TAG}, s{S_TAG}, 0x5bd1e995")
        A("s_barrier")
        A("s_barrier")
        A("s_branch L_att_join")
        A.lab("L_att_go")
    A(f"s_sub_u32 s66, s{S_WAVE}, 2")
    A(f"s_lshl_b32 s64, s{S_B}, 4")
    A(f"s_add_u32 s64, s64, s{S_HKV}")
    A("s_lshr_b32 s65, s64, 9")
    A("s_lshl_b32 s64, s64, 23")
    A(f"s_add_u32 s{SRD_K}, s{S_K}, s64")
    A(f"s_addc_u32 s{SRD_K+1}, s{S_K+1}, s65")
    A(f"s_mov_b32 s{SRD_K+2}, 0x800000")
    A(f"s_mov_b32 s{SRD_K+3}, 0x20000")
    A(f"s_add_u32 s{SRD_V}, s{S_V}, s64")
    A(f"s_addc_u32 s{SRD_V+1}, s{S_V+1}, s65")
    A(f"s_mov_b32 s{SRD_V+2}, 0x800000")
    A(f"s_mov_b32 s{SRD_V+3}, 0x20000")
    S_KO, S_VO, S_RK, S_CLM, S_IT, S_POOL = 70, 71, 75, 76, 77, 78
    S_RV, S_PK, S_PVS, S_PV, S_NXT = 86, 87, 88, 89, 74
    S_PO = [67, 68, 69, 43]
    POOL = P.get("table", {}).get("pool", 128)
    A(f"s_add_u32 s{S_KO}, s{S_KV0}, s66")
    A(f"s_lshl_b32 s{S_KO}, s{S_KO}, 13")
    A(f"s_mov_b32 s{S_VO}, s{S_KO}")
    if NA == 2:
        A(f"s_add_u32 s{S_PK}, s{S_NSB}, 1")
        A(f"s_sub_u32 s{S_PK}, s{S_PK}, s66")
        A(f"s_lshr_b32 s{S_PK}, s{S_PK}, 1")
    else:
        A(f"s_mov_b32 s{S_PK}, s{S_NSB}")
    A(f"s_mov_b32 s{S_PVS}, s{S_PK}")
    A(f"s_mov_b32 s{S_RV}, s{S_PK}")
    A(f"s_sub_u32 s{S_RK}, s{S_PK}, {DK + P.get('stash', 2)}")
    A(f"s_mov_b32 s{S_PV}, 0")
    A(f"s_mov_b32 s{S_IT}, 0")
    A("s_mov_b32 s80, 0")
    A("s_lshr_b32 s64, s2, 3")
    A("s_lshl_b32 s64, s64, 8")
    A(f"s_add_u32 s64, s64, {WS_CNT}")
    A(f"s_add_u32 s{S_POOL}, s{S_WS}, s64")
    A(f"s_addc_u32 s{S_POOL+1}, s{S_WS+1}, 0")
    VK0, VK1, VV0, VV1 = 2, 3, 4, 5
    A("v_bfe_u32 v6, v0, 2, 2")
    A("v_lshlrev_b32 v6, 8, v6")
    A("v_lshrrev_b32 v7, 4, v0")
    A("v_lshl_add_u32 v6, v7, 6, v6")
    A("v_and_b32 v7, 3, v0")
    A(f"v_lshl_add_u32 v{VK0}, v7, 4, v6")
    A(f"v_add_u32 v{VK1}, 4096, v{VK0}")
    A(f"v_lshlrev_b32 v{VV0}, 4, v0")
    A(f"v_add_u32 v{VV1}, 4096, v{VV0}")
    UA = lambda s, n: 32 * s + 4 * n
    VK1P, VV1P = 104, 105
    def issue(kind, s, soff, pool=False):
        vb, sd, fl = (VK0, SRD_K, FLK) if kind == "K" else (VV0, SRD_V, FLV)
        v1 = (VK1P if kind == "K" else VV1P) if pool else vb + 1
        for n in range(8):
            A(f"buffer_load_dwordx4 {ar(UA(s,n),4)}, v{vb if n < 4 else v1}, s[{sd}:{sd+3}], s{soff} offen offset:{1024*(n&3)} {fl}")
    lead = P.get("lead", 2)
    early = P.get("early", 1)
    ST = P.get("stash", 2)
    assert ST % 2 == 0 and DK + ST <= 8
    for s in range(DK + ST):
        if s == early:
            A("s_barrier")
            stamp(A, P, 0)
        if s >= lead: A(f"s_waitcnt vmcnt({8*(lead-1)})")
        issue("K", s, S_KO)
        A(f"s_add_u32 s{S_KO}, s{S_KO}, {STEP}")
    if early >= DK:
        A("s_barrier")
    stamp(A, P, 1)
    VQ = 8
    VSW, VSR = 12, 13
    VMX = 14
    VSC = 16
    VM = 24
    VACC = 28
    VMC, VL_ = 32, 33
    VS = 36
    VP = 44
    VB = 52
    VT = 64
    VD = 68
    VPK = 100
    A("v_and_b32 v6, 3, v0")
    A("v_bfe_u32 v7, v0, 3, 1")
    A("v_lshl_add_u32 v6, v7, 2, v6")
    A("v_and_b32 v7, 1, v6")
    A("v_mov_b32 v64, 0xffff")
    A("v_lshlrev_b32 v7, 4, v7")
    A("v_lshlrev_b32 v64, v7, v64")
    A("v_lshrrev_b32 v6, 1, v6")
    for q in range(4):
        A(f"v_cmp_eq_u32 vcc, {q}, v6")
        A(f"v_cndmask_b32 v{VM+q}, 0, v64, vcc")
    for k in range(4): A(f"v_mov_b32 v{VACC+k}, 0")
    A(f"v_mov_b32 v{VMX}, 0xff800000")
    A(f"v_mov_b32 v{VL_}, 0")
    A("v_bfe_u32 v6, v0, 2, 1")
    A("v_lshrrev_b32 v7, 4, v0")
    A("v_lshl_add_u32 v7, v6, 2, v7")
    A("v_lshlrev_b32 v7, 4, v7")
    A("s_lshl_b32 s64, s66, 13")
    A(f"s_add_u32 s64, s64, {SCORES}")
    A(f"v_add_u32 v{VSW}, s64, v7")
    A(f"v_mov_b32 v{VSR}, v{VSW}")
    A("v_lshlrev_b32 v6, 8, v6")
    A("v_lshrrev_b32 v7, 4, v0")
    A("v_lshl_add_u32 v6, v7, 6, v6")
    A("v_and_b32 v7, 3, v0")
    A("v_lshl_add_u32 v6, v7, 4, v6")
    A(f"s_mov_b32 s72, {hex(f2u(SCALE))}")
    A(f"s_mov_b32 s73, {hex(f2u(LOG2E))}")
    A("v_mov_b32 v34, 0")
    A("s_waitcnt lgkmcnt(0)")
    A(f"s_add_u32 s{S_EPN}, s{S_EPO}, 1")
    A(f"s_mul_i32 s{S_TAG}, s{S_EPN}, 0x9E3779B1")
    A(f"s_xor_b32 s{S_TAG}, s{S_TAG}, 0x5bd1e995")
    wait_lds(A, "L_qwait", QRDY, 1, 1, tv=66)
    A(f"ds_read_b128 v[{VQ}:{VQ+3}], v6 offset:{Q_LDS}")
    A("s_waitcnt lgkmcnt(0)")
    stamp(A, P, 2)
    A(f"s_mov_b32 s{S_CLM}, 1")
    A(f"s_atomic_add s{S_CLM}, s[{S_POOL}:{S_POOL+1}], 0 glc")

    def progress():
        A(f"s_add_u32 s{S_IT}, s{S_IT}, 1")
        A(f"v_mov_b32 v35, s{S_IT}")
        A(f"ds_write_b32 v34, v35 offset:{PROG}")
        if P.get("stamps"):
            for idx, itv in ((5, 32 // NA), (6, 96 // NA), (7, 160 // NA), (10, 208 // NA)):
                l = A.uniq("L_st")
                A(f"s_cmp_lg_u32 s{S_IT}, {itv}")
                A(f"s_cbranch_scc1 {l}")
                stamp(A, P, idx)
                A.lab(l)
    def qk_mfma(s):
        for n in range(8):
            A(f"v_mfma_f32_16x16x32_bf16 {vr(VD+4*n,4)}, {ar(UA(s,n),4)}, {vr(VQ,4)}, 0")
    def qk_reduce():
        for c in range(4):
            for n in range(8):
                pat = f"quad_perm:[{c},{c},{c},{c}] row_mask:0xf bank_mask:0xf"
                if c == 0: A(f"v_mov_b32_dpp v{VS+n}, v{VD+4*n} {pat}")
                else: A(f"v_add_f32_dpp v{VS+n}, v{VD+4*n+c}, v{VS+n} {pat}")
        for k in range(0, 8, 2):
            A(f"v_cvt_pk_bf16_f32 v{VT+(k>>1)}, v{VS+k}, v{VS+k+1}")
        for k in range(0, 8, 2):
            A(f"v_lshlrev_b32 v{VS+k}, 16, v{VT+(k>>1)}")
            A(f"v_and_b32 v{VS+k+1}, 0xffff0000, v{VT+(k>>1)}")
        for k in range(8): A(f"v_mul_f32 v{VS+k}, s72, v{VS+k}")
        for k in range(0, 8, 2):
            A(f"v_cvt_pk_bf16_f32 v{VPK+(k>>1)}, v{VS+k}, v{VS+k+1}")
    def unpack(src):
        for k in range(4):
            A(f"v_lshlrev_b32 v{VS+2*k}, 16, v{src+k}")
            A(f"v_and_b32 v{VS+2*k+1}, 0xffff0000, v{src+k}")
    def pv(s):
        for k in range(8): A(f"v_fma_f32 v{VP+k}, v{VS+k}, s73, -v{VMC}")
        for k in range(8): A(f"v_exp_f32 v{VP+k}, v{VP+k}")
        def prep(k):
            bb = VB + 4 * (k % 3)
            A(f"v_cvt_pk_bf16_f32 v{VT+2}, v{VP+k}, v{VP+k}")
            for q in range(4): A(f"v_and_b32 v{bb+q}, v{VT+2}, v{VM+q}")
        prep(0); prep(1)
        A(f"v_add_f32 v{VT}, v{VP}, v{VP+1}")
        A(f"v_add_f32 v{VT+1}, v{VP+2}, v{VP+3}")
        A(f"s_waitcnt vmcnt({8*(DK-1)})")
        for k in range(8):
            bb = VB + 4 * (k % 3)
            A(f"v_mfma_f32_16x16x32_bf16 {vr(VACC,4)}, {ar(UA(s,k),4)}, {vr(bb,4)}, {vr(VACC,4)}")
            if k + 2 < 8: prep(k + 2)
            if k == 1: A(f"v_add_f32 v{VT}, v{VT}, v{VP+4}"); A(f"v_add_f32 v{VT+1}, v{VT+1}, v{VP+5}")
            if k == 2: A(f"v_add_f32 v{VT}, v{VT}, v{VP+6}"); A(f"v_add_f32 v{VT+1}, v{VT+1}, v{VP+7}")
            if k == 3: A(f"v_add_f32 v{VT}, v{VT}, v{VT+1}"); A(f"v_add_f32 v{VL_}, v{VL_}, v{VT}")
    PH = P.get("ph", 0)
    PF = POOL - PH
    S_HF = [81, 82, 83, 84]
    def pool_refill(s):
        po, hf = S_PO[s >> 1], S_HF[s >> 1]
        if s & 1:
            A(f"v_add_u32 v{VV1P}, s{hf}, v{VV0}")
            issue("V", s, po, True)
            return
        ldead, lgo, lhalf, lclaim = A.uniq("L_dead"), A.uniq("L_go"), A.uniq("L_half"), A.uniq("L_claim")
        A("s_waitcnt lgkmcnt(0)")
        A(f"s_cmp_lt_u32 s{S_CLM}, {PF + 2 * PH}")
        A(f"s_cbranch_scc0 {ldead}")
        A(f"s_cmp_lt_u32 s{S_CLM}, {PF}")
        A(f"s_cbranch_scc0 {lhalf}")
        A(f"s_add_u32 s{po}, s{S_CLM}, {1024 - POOL}")
        A(f"s_lshl_b32 s{po}, s{po}, 13")
        A(f"s_mov_b32 s{hf}, 4096")
        A(f"s_branch {lclaim}")
        A.lab(lhalf)
        A(f"s_add_u32 s{po}, s{S_CLM}, {2 * (1024 - PH) - PF}")
        A(f"s_lshl_b32 s{po}, s{po}, 12")
        A(f"s_mov_b32 s{hf}, 0x40000000")
        A.lab(lclaim)
        A(f"s_add_u32 s{S_PV}, s{S_PV}, 1")
        A(f"s_mov_b32 s{S_CLM}, 1")
        A(f"s_atomic_add s{S_CLM}, s[{S_POOL}:{S_POOL+1}], 0 glc")
        A(f"s_branch {lgo}")
        A.lab(ldead)
        A(f"s_mov_b32 s{SRD_K+2}, 0")
        A(f"s_mov_b32 s{SRD_V+2}, 0")
        A(f"s_mov_b32 s{po}, 0")
        A(f"s_mov_b32 s{hf}, 4096")
        if P.get("wo_late", True) and P.get("wo_at", "b2") == "dead":
            lonce = A.uniq("L_once")
            A("s_cmp_eq_u32 s80, 0")
            A(f"s_cbranch_scc0 {lonce}")
            A("s_mov_b32 s80, 1")
            A("v_mov_b32 v35, 1")
            A(f"ds_add_u32 v34, v35 offset:{DEADF}")
            A.lab(lonce)
        A.lab(lgo)
        A(f"v_add_u32 v{VK1P}, s{hf}, v{VK0}")
        issue("K", s, po, True)

    def k_tail():
        qk_reduce()
        for k in range(0, 8, 2): A(f"v_max3_f32 v{VMX}, v{VMX}, v{VS+k}, v{VS+k+1}")
        A("s_mov_b32 exec_lo, 0x00110011")
        A("s_mov_b32 exec_hi, 0x00110011")
        A(f"ds_write_b128 v{VSW}, v[{VPK}:{VPK+3}]")
        A("s_mov_b64 exec, -1")
        A(f"v_add_u32 v{VSW}, 128, v{VSW}")
        progress()
        A(f"s_sub_u32 s{S_PK}, s{S_PK}, 1")
    if ST:
        for s in range(DK):
            A(f"s_waitcnt vmcnt({8*(ST+DK-1)})")
            qk_mfma(s)
            issue("K", s, S_KO)
            A(f"s_add_u32 s{S_KO}, s{S_KO}, {STEP}")
            A(f"s_sub_u32 s{S_RK}, s{S_RK}, 1")
            k_tail()
        for k in range(DK, ST + DK):
            A(f"s_waitcnt vmcnt({8*(ST+DK-1-k+DK)})")
            qk_mfma(k)
            k_tail()
    A.lab("L_kloop")
    for s in range(DK):
        A.lab(f"L_k{s}")
        A(f"s_waitcnt vmcnt({8*(DK-1)})")
        qk_mfma(s)
        lv, lr = A.uniq("L_kv"), A.uniq("L_kr")
        A(f"s_cmp_eq_u32 s{S_RK}, 0")
        A(f"s_cbranch_scc1 {lv}")
        issue("K", s, S_KO)
        A(f"s_add_u32 s{S_KO}, s{S_KO}, {STEP}")
        A(f"s_sub_u32 s{S_RK}, s{S_RK}, 1")
        A(f"s_branch {lr}")
        A.lab(lv)
        issue("V", s, S_VO)
        A(f"s_add_u32 s{S_VO}, s{S_VO}, {STEP}")
        A(f"s_sub_u32 s{S_RV}, s{S_RV}, 1")
        A.lab(lr)
        k_tail()
        A(f"s_cmp_eq_u32 s{S_PK}, 0")
        if s < DK - 1:
            A(f"s_cselect_b32 s{S_NXT}, {s+1}, s{S_NXT}")
            A("s_cbranch_scc1 L_kdone")
        else:
            A(f"s_cselect_b32 s{S_NXT}, 0, s{S_NXT}")
            A("s_cbranch_scc0 L_kloop")
    A.lab("L_kdone")
    round_bf16(A, VMC, VMX)
    A(f"v_mul_f32 v{VMC}, s73, v{VMC}")
    swap16(A, VMC, VT, "v_max_f32")
    swap32(A, VMC, VT, "v_max_f32")
    A("s_waitcnt lgkmcnt(0)")
    stamp(A, P, 12)
    for s in range(DK):
        l = A.uniq("L_kn")
        A(f"s_cmp_lg_u32 s{S_NXT}, {s}")
        A(f"s_cbranch_scc1 {l}")
        A(f"ds_read_b128 v[{VSC+4*(s&1)}:{VSC+4*(s&1)+3}], v{VSR}")
        A(f"s_branch L_v{s}")
        A.lab(l)
    A.lab("L_vloop")
    for s in range(DK):
        A.lab(f"L_v{s}")
        A("s_waitcnt lgkmcnt(0)")
        nb = (s + 1) & 1
        A(f"ds_read_b128 v[{VSC+4*nb}:{VSC+4*nb+3}], v{VSR} offset:128")
        A(f"v_add_u32 v{VSR}, 128, v{VSR}")
        unpack(VSC + 4 * (s & 1))
        pv(s)
        lp, lr = A.uniq("L_vp"), A.uniq("L_vr")
        A(f"s_cmp_eq_u32 s{S_RV}, 0")
        A(f"s_cbranch_scc1 {lp}")
        issue("V", s, S_VO)
        A(f"s_add_u32 s{S_VO}, s{S_VO}, {STEP}")
        A(f"s_sub_u32 s{S_RV}, s{S_RV}, 1")
        A(f"s_branch {lr}")
        A.lab(lp)
        pool_refill(s)
        A.lab(lr)
        progress()
        A(f"s_sub_u32 s{S_PVS}, s{S_PVS}, 1")
        if s & 1:
            A(f"s_cmp_eq_u32 s{S_PVS}, 0")
            A(f"s_cbranch_scc1 L_p{((s + 1) % DK) >> 1}")
        if s == DK - 1: A("s_branch L_vloop")
    A.lab("L_ploop")
    for a in range(DK // 2):
        sk, sv = 2 * a, 2 * a + 1
        A.lab(f"L_p{a}")
        A(f"s_cmp_eq_u32 s{S_PV}, 0")
        A("s_cbranch_scc1 L_att_done")
        A(f"s_sub_u32 s{S_PV}, s{S_PV}, 1")
        A(f"s_waitcnt vmcnt({8*(DK-1)})")
        qk_mfma(sk)
        A(f"s_mov_b32 s85, s{S_HF[a]}")
        pool_refill(sk)
        qk_reduce()
        unpack(VPK)
        lfull = A.uniq("L_full")
        A("s_cmp_eq_u32 s85, 4096")
        A(f"s_cbranch_scc1 {lfull}")
        for k in range(4, 8): A(f"v_mov_b32 v{VS+k}, 0xff800000")
        A.lab(lfull)
        A(f"v_max3_f32 v{VT}, v{VS}, v{VS+1}, v{VS+2}")
        A(f"v_max3_f32 v{VT}, v{VT}, v{VS+3}, v{VS+4}")
        A(f"v_max3_f32 v{VT}, v{VT}, v{VS+5}, v{VS+6}")
        A(f"v_max_f32 v{VT}, v{VT}, v{VS+7}")
        A(f"v_mul_f32 v{VT}, s73, v{VT}")
        A(f"v_cmp_gt_f32 vcc, v{VT}, v{VMC}")
        skip = A.uniq("L_nomax")
        A(f"s_cbranch_vccz {skip}")
        swap16(A, VT, VT + 1, "v_max_f32")
        swap32(A, VT, VT + 1, "v_max_f32")
        A(f"v_max_f32 v{VT}, v{VT}, v{VMC}")
        A(f"v_sub_f32 v{VT+1}, v{VMC}, v{VT}")
        A(f"v_exp_f32 v{VT+1}, v{VT+1}")
        A(f"v_mov_b32 v{VMC}, v{VT}")
        for k in range(4): A(f"v_mul_f32 v{VACC+k}, v{VACC+k}, v{VT+1}")
        A(f"v_mul_f32 v{VL_}, v{VL_}, v{VT+1}")
        A.lab(skip)
        pv(sv)
        pool_refill(sv)
        progress()
        progress()
        if a == DK // 2 - 1: A("s_branch L_ploop")
    A.lab("L_att_done")
    A("v_mov_b32 v35, 0xffff")
    A(f"ds_write_b32 v34, v35 offset:{PROG}")
    stamp(A, P, 3)
    if P.get("stamps"): A(f"v_writelane_b32 v253, s{S_IT}, 11")
    swap16(A, VL_, VT, "v_add_f32")
    swap32(A, VL_, VT, "v_add_f32")
    A(f"v_lshlrev_b32 v1, 4, v0")
    A(f"v_lshlrev_b32 v6, 3, v0")
    if NA == 2:
        A(f"s_cmp_eq_u32 s{S_WAVE}, 2")
        A("s_cbranch_scc1 L_att0")
        A(f"ds_write_b128 v1, v[{VACC}:{VACC+3}] offset:{MERGE}")
        A(f"ds_write_b64 v6, v[{VMC}:{VMC+1}] offset:{MERGE + 1024}")
        A("s_waitcnt lgkmcnt(0)")
        A("s_barrier")
        A("s_branch L_att_join")
        A.lab("L_att0")
        A(f"s_lshl_b32 s64, s{S_REC}, 10")
        A(f"s_add_u32 s64, s64, {WS_H1O}")
        A(f"s_lshl_b32 s65, s{S_REC}, 7")
        A(f"s_add_u32 s65, s65, {WS_H1ML}")
        A("s_barrier")
        A(f"ds_read_b128 v[68:71], v1 offset:{MERGE}")
        A(f"ds_read_b64 v[72:73], v6 offset:{MERGE + 1024}")
        A("s_waitcnt lgkmcnt(0)")
        A(f"v_max_f32 v74, v{VMC}, v72")
        A(f"v_sub_f32 v75, v{VMC}, v74")
        A("v_sub_f32 v76, v72, v74")
        A("v_exp_f32 v75, v75")
        A("v_exp_f32 v76, v76")
        for k in range(4):
            A(f"v_mul_f32 v{VACC+k}, v{VACC+k}, v75")
            A(f"v_fmac_f32 v{VACC+k}, v{68+k}, v76")
        A(f"v_mul_f32 v{VL_}, v{VL_}, v75")
        A(f"v_fmac_f32 v{VL_}, v73, v76")
    else:
        A(f"s_lshl_b32 s64, s{S_REC}, 10")
        A(f"s_add_u32 s64, s64, {WS_H1O}")
        A(f"s_lshl_b32 s65, s{S_REC}, 7")
        A(f"s_add_u32 s65, s65, {WS_H1ML}")
        A(f"v_mov_b32 v74, v{VMC}")
    A(f"buffer_store_dwordx4 v[{VACC}:{VACC+3}], v1, s[{SRD_WS}:{SRD_WS+3}], s64 offen {HST}")
    A("v_readlane_b32 s66, v74, 0")
    A(f"v_readlane_b32 s67, v{VL_}, 0")
    A("v_readlane_b32 s68, v74, 4")
    A(f"v_readlane_b32 s69, v{VL_}, 4")
    for k in range(4): A(f"v_mov_b32 v{68+k}, s{66+k}")
    A("s_mov_b64 exec, 0xff")
    A(f"buffer_store_dwordx4 v[68:71], v1, s[{SRD_WS}:{SRD_WS+3}], s65 offen {HST}")
    A("s_mov_b64 exec, -1")
    if P.get("wo_afterpub"):
        A("v_mov_b32 v35, 1")
        A(f"ds_write_b32 v34, v35 offset:{PUBD}")
    stamp(A, P, 4)
    if NA == 1: A("s_barrier")
    A.lab("L_att_join")
    A(f"s_cmp_eq_u32 s{S_WCB}, 255")
    A("s_cbranch_scc1 L_end")
    wo_prep()
    A("s_branch L_wogemv")
    A.lab("L_end")
    stamp_flush(A, P)
    A.lab("L_exit")
    A("s_endpgm")
    body = fix_hazards(A.L[body_start:], verbose=P.get("verbose", False))
    out = A.L[:body_start] + body
    out.append(".p2align 6")
    out.append(".type L_table,@object")
    out.append("L_table:")
    for row in tab: out.append("  .long " + ", ".join(str(v) for v in row))
    out.append(".size L_table, 8192")
    out += ['.section .rodata,"a"', ".p2align 6", f".amdhsa_kernel {NAME}",
            "  .amdhsa_next_free_vgpr 512", "  .amdhsa_next_free_sgpr 102", "  .amdhsa_accum_offset 256",
            "  .amdhsa_group_segment_fixed_size 0", "  .amdhsa_kernarg_size 96", "  .amdhsa_user_sgpr_count 2",
            "  .amdhsa_user_sgpr_kernarg_segment_ptr 1", "  .amdhsa_system_sgpr_workgroup_id_x 1",
            "  .amdhsa_float_denorm_mode_32 3",
            ".end_amdhsa_kernel"]
    return "\n".join(out) + "\n"

if __name__ == "__main__":
    P = eval(sys.argv[2]) if len(sys.argv) > 2 else {}
    P.setdefault("verbose", True)
    s = gen(P)
    open(sys.argv[1] if len(sys.argv) > 1 else "k.s", "w").write(s)
```

```python
import struct, sys, math
from asmlib import Asm, fix_hazards, vr, ar, sr

NAME = "recurrent_scan__gqa_block_cached__geglu_ffn__decode_kernel"

def f2u(x): return struct.unpack("<I", struct.pack("<f", x))[0]

WS_EPOCH = 0
WS_QP   = 0x001000
WS_H1O  = 0x050000
WS_H1ML = 0x090000
WS_GU   = 0x0A0000
WS_YP   = 0x100000
WS_SP   = 0x1B0000
WS_CNT  = 0x1E0000
WS_DBG  = 0x200000
WS_SIZE = 0x400000

X_LN, XROW = 0, 1184
Q_LDS = 2432
X2, X2ROW = 3072, 576
X3, X3ROW = 4352, 192
MERGE = 4864
PROG = 2368
QRDY = 2372
QPUB = 2376
DEADF = 2380
PUBD = 2384
T_WQ = 6400
XH = T_WQ
T_WO = T_WQ + 20480
T_FFN = T_WO + 32768
SCORES = T_FFN + 73728
LDS_BYTES = SCORES + 16384

LOG2E = 1.4426950408889634
SCALE = 128 ** -0.5
POLL_LIMIT = 400000

S_WAVE = 3
S_X, S_K, S_V, S_WQ, S_WO, S_BX, S_WG, S_WU = 4, 6, 8, 10, 12, 14, 16, 18
S_WD, S_OUT, S_DBG, S_WS = 20, 22, 24, 26
S_KV0, S_NSB, S_FT, S_FCB, S_WCB, S_FIN = 28, 29, 30, 31, 32, 33
S_HKV, S_B, S_M, S_REC = 36, 37, 38, 39
S_EPO, S_TAG, S_EPN = 40, 41, 42
SRD_K, SRD_V, SRD_WS, SRD_T, SRD_U = 44, 48, 52, 56, 60
SG1, SG2, SG3 = 80, 82, 84
S_CNT = 91
S_T0 = 92

def make_table(wside=0.8, c_ffn=72.0, c_wo=0.0, c_fin=12.0, pool=128, adj=None):
    info = {w: dict(x=w & 7, g=w >> 3, j=w & 7, ft=0, fcb=0, wcb=255, fin=255) for w in range(256)}
    free = lambda w: ((w & 7) == (w >> 3) % 8) or ((w >> 3) < 8 and (w & 7) == ((w >> 3) + 4) % 8)
    e = 0
    for w in range(256):
        if not free(w):
            info[w]["ft"] = 1 + e % 3; info[w]["fcb"] = e // 3; e += 1
    assert e == 216
    xcnt = [0] * 8
    for c in range(16):
        chosen = []
        quota = {2 * c: 5 if c % 2 == 0 else 4, 2 * c + 1: 4 if c % 2 == 0 else 5}
        mem = list(range(16 * c, 16 * c + 16))
        for w in mem:
            if free(w): chosen.append(w); quota[w >> 3] -= 1; xcnt[w & 7] += 1
        while len(chosen) < 9:
            cand = [w for w in mem if w not in chosen and quota[w >> 3] > 0]
            w = min(cand, key=lambda v: (xcnt[v & 7], v))
            chosen.append(w); quota[w >> 3] -= 1; xcnt[w & 7] += 1
        for cb, w in enumerate(chosen): info[w]["wcb"] = cb
    frees = [w for w in range(64) if free(w)]
    more = [w for w in range(64, 256) if free(w)]
    fins = [frees[0], frees[3], frees[4], frees[7], frees[8], frees[11], frees[12], frees[15], more[5]]
    assert len(fins) == 9
    for f, w in enumerate(fins): info[w]["fin"] = f
    static_total = 1024 - pool
    for g in range(32):
        ws_ = list(range(8 * g, 8 * g + 8))
        side = []
        for w in ws_:
            i = info[w]
            sd = (c_ffn if i["ft"] else 0) + (c_wo if i["wcb"] != 255 else 0) + (c_fin if i["fin"] != 255 else 0)
            if adj: sd += adj(w, i)
            side.append(sd * wside)
        tot = static_total * 16 + sum(side)
        ideal = [(tot / 8 - sd) / 16 for sd in side]
        n = [int(math.floor(v)) for v in ideal]
        rem = static_total - sum(n)
        order = sorted(range(8), key=lambda k: -(ideal[k] - n[k]))
        for k in order[:rem]: n[k] += 1
        assert sum(n) == static_total and min(n) >= 16 and max(n) <= 126
        st = 0
        for k, w in enumerate(ws_):
            info[w]["kv0"] = st; info[w]["nsb"] = n[k]; st += n[k]
        info[ws_[0]]["side_total"] = sum(side)
    tab = [[info[w]["kv0"], info[w]["nsb"], info[w]["ft"], info[w]["fcb"], info[w]["wcb"], info[w]["fin"], 0, 0] for w in range(256)]
    return tab, info

def gemv(A, nsteps, cts, a_read, tr_read, acc, abuf, bbuf, nbuf):
    reads = []
    last = {}
    for n in range(nsteps):
        reads.append((n, a_read(n, abuf(n % nbuf))))
        for ct in cts:
            for u in range(2):
                reads.append((n, tr_read(n, ct, u, bbuf(n % nbuf, ct) + 2 * u)))
            last[(n, ct)] = len(reads) - 1
    issued = 0; done = 0
    for n in range(nsteps):
        for ci, ct in enumerate(cts):
            while issued < len(reads) and (issued - done) < 15 and reads[issued][0] < n + nbuf - (0 if ci == 0 or True else 0):
                if reads[issued][0] - nbuf >= n: break
                A(reads[issued][1]); issued += 1
            need = last[(n, ct)]
            assert issued > need, (issued, need, n, ct)
            if done <= need:
                k = issued - 1 - need
                A(f"s_waitcnt lgkmcnt({k})")
                done = need + 1
            c = "0" if n == 0 else vr(acc(ct), 4)
            A(f"v_mfma_f32_16x16x32_bf16 {vr(acc(ct),4)}, {vr(abuf(n % nbuf),4)}, {vr(bbuf(n % nbuf, ct),4)}, {c}")

def poll_begin(A, name):
    A(f"s_mov_b32 s{S_CNT}, {POLL_LIMIT}")
    A.lab(name)

def poll_end(A, name, sleep):
    ok = name + "_ok"
    A(f"s_cbranch_vccz {ok}")
    A(f"s_sub_u32 s{S_CNT}, s{S_CNT}, 1")
    A(f"s_cmp_eq_u32 s{S_CNT}, 0")
    A(f"s_cbranch_scc1 {ok}")
    if sleep: A(f"s_sleep {sleep}")
    A(f"s_branch {name}")
    A.lab(ok)

def wait_progress(A, name, thr):
    A(f"s_mov_b32 s{S_CNT}, {POLL_LIMIT}")
    A("v_mov_b32 v250, 0")
    A.lab(name)
    A(f"ds_read_b32 v251, v250 offset:{PROG}")
    A("s_waitcnt lgkmcnt(0)")
    A("v_readfirstlane_b32 s90, v251")
    A(f"s_cmp_ge_u32 s90, {thr}")
    A(f"s_cbranch_scc1 {name}_ok")
    A(f"s_sub_u32 s{S_CNT}, s{S_CNT}, 1")
    A(f"s_cmp_eq_u32 s{S_CNT}, 0")
    A(f"s_cbranch_scc1 {name}_ok")
    A("s_sleep 8")
    A(f"s_branch {name}")
    A.lab(name + "_ok")

def wait_lds(A, name, off, thr, sleep, tv=250):
    A(f"s_mov_b32 s{S_CNT}, {POLL_LIMIT * 8}")
    A(f"v_mov_b32 v{tv}, 0")
    A.lab(name)
    A(f"ds_read_b32 v{tv+1}, v{tv} offset:{off}")
    A("s_waitcnt lgkmcnt(0)")
    A(f"v_readfirstlane_b32 s90, v{tv+1}")
    A(f"s_cmp_ge_u32 s90, {thr}")
    A(f"s_cbranch_scc1 {name}_ok")
    A(f"s_sub_u32 s{S_CNT}, s{S_CNT}, 1")
    A(f"s_cmp_eq_u32 s{S_CNT}, 0")
    A(f"s_cbranch_scc1 {name}_ok")
    if sleep: A(f"s_sleep {sleep}")
    A(f"s_branch {name}")
    A.lab(name + "_ok")

def wait_counter(A, name, off, thr, sleep):
    A(f"s_mov_b32 s{S_CNT}, {POLL_LIMIT}")
    A.lab(name)
    A("s_mov_b32 s90, 0")
    A(f"s_atomic_add s90, s[{S_DBG}:{S_DBG+1}], {off} glc")
    A("s_waitcnt lgkmcnt(0)")
    A(f"s_cmp_ge_u32 s90, {thr}")
    A(f"s_cbranch_scc1 {name}_ok")
    A(f"s_sub_u32 s{S_CNT}, s{S_CNT}, 1")
    A(f"s_cmp_eq_u32 s{S_CNT}, 0")
    A(f"s_cbranch_scc1 {name}_ok")
    A(f"s_sleep {sleep}")
    A(f"s_branch {name}")
    A.lab(name + "_ok")

def check_tags(A, tags, t):
    A(f"v_max3_u32 v{t}, v{tags[0]}, v{tags[1]}, v{tags[2]}")
    A(f"v_min3_u32 v{t+1}, v{tags[0]}, v{tags[1]}, v{tags[2]}")
    rest = tags[3:]
    for k in range(0, len(rest), 2):
        a = rest[k]; b_ = rest[min(k + 1, len(rest) - 1)]
        A(f"v_max3_u32 v{t}, v{t}, v{a}, v{b_}")
        A(f"v_min3_u32 v{t+1}, v{t+1}, v{a}, v{b_}")
    A(f"v_xor_b32 v{t}, v{t}, v{t+1}")
    A(f"v_xor_b32 v{t+1}, s{S_TAG}, v{t+1}")
    A(f"v_or_b32 v{t}, v{t}, v{t+1}")
    A(f"v_cmp_ne_u32 vcc, 0, v{t}")

def reduce16(A, v, op="v_add_f32"):
    for k in (8, 4, 2, 1):
        A(f"{op}_dpp {vr(v)}, {vr(v)}, {vr(v)} row_ror:{k} row_mask:0xf bank_mask:0xf")

def swap16(A, v, t, op):
    A(f"v_mov_b32 {vr(t)}, {vr(v)}")
    A(f"v_permlane16_swap_b32 {vr(v)}, {vr(t)}")
    A(f"{op} {vr(v)}, {vr(v)}, {vr(t)}")

def swap32(A, v, t, op):
    A(f"v_mov_b32 {vr(t)}, {vr(v)}")
    A(f"v_permlane32_swap_b32 {vr(v)}, {vr(t)}")
    A(f"{op} {vr(v)}, {vr(v)}, {vr(t)}")

def round_bf16(A, dst, src):
    A(f"v_cvt_pk_bf16_f32 {vr(dst)}, {vr(src)}, {vr(src)}")
    A(f"v_and_b32 {vr(dst)}, 0xffff0000, {vr(dst)}")

def srd(A, base, ptr, nrec, off=None):
    if off is None:
        A(f"s_mov_b32 s{base}, s{ptr}")
        A(f"s_mov_b32 s{base+1}, s{ptr+1}")
    else:
        lo, hi = off
        A(f"s_add_u32 s{base}, s{ptr}, s{lo}")
        A(f"s_addc_u32 s{base+1}, s{ptr+1}, {hi}")
    A(f"s_mov_b32 s{base+2}, {nrec}")
    A(f"s_mov_b32 s{base+3}, 0x20000")

def stamp(A, P, idx):
    if not P.get("stamps"): return
    A("s_memrealtime s[92:93]")
    A("s_waitcnt lgkmcnt(0)")
    A(f"v_writelane_b32 v253, s92, {idx}")

def stamp_flush(A, P):
    if not P.get("stamps"): return
    if P.get("stamps_dbg"):
        wv, w0, w1 = P["stamps_dbg"]
        A(f"s_cmp_lg_u32 s{S_WAVE}, {wv}")
        A("s_cbranch_scc1 L_exit")
        A(f"s_cmp_eq_u32 s2, {w0}")
        A("s_cselect_b32 s94, 0, 255")
        A(f"s_cmp_eq_u32 s2, {w1}")
        A("s_cselect_b32 s94, 32, s94")
        A("s_cmp_eq_u32 s94, 255")
        A("s_cbranch_scc1 L_exit")
        A("v_readlane_b32 s95, v253, 15")
        A("s_nop 3")
        A("v_subrev_u32 v253, s95, v253")
        srd(A, SRD_U, S_DBG, 256)
        A("v_lshlrev_b32 v254, 2, v0")
        A("s_mov_b64 exec, 0xff")
        A(f"buffer_store_dword v253, v254, s[{SRD_U}:{SRD_U+3}], s94 offen")
        return
    A(f"s_lshl_b32 s94, s2, 2")
    A(f"s_add_u32 s94, s94, s{S_WAVE}")
    A(f"s_lshl_b32 s94, s94, 6")
    A(f"s_add_u32 s94, s94, {WS_DBG}")
    A("v_lshlrev_b32 v254, 2, v0")
    A("s_mov_b64 exec, 0xffff")
    A(f"buffer_store_dword v253, v254, s[{SRD_WS}:{SRD_WS+3}], s94 offen")

def dma_voff(A, vE, vO, stride, vL, t0, t1):
    A(f"v_lshrrev_b32 {vr(t0)}, 3, {vr(vL)}")
    A(f"s_mov_b32 s64, {stride}")
    A(f"v_mul_lo_u32 {vr(vE)}, {vr(t0)}, s64")
    A(f"v_bfe_u32 {vr(t0)}, {vr(vL)}, 4, 1")
    A(f"v_lshlrev_b32 {vr(t0)}, 1, {vr(t0)}")
    A(f"v_and_b32 {vr(t1)}, 7, {vr(vL)}")
    A(f"v_xor_b32 {vr(t0)}, {vr(t0)}, {vr(t1)}")
    A(f"v_lshl_add_u32 {vr(vE)}, {vr(t0)}, 4, {vr(vE)}")
    A(f"v_xor_b32 {vr(vO)}, 64, {vr(vE)}")

def tr_addr(A, vT, vL, t0, t1):
    A(f"v_lshrrev_b32 {vr(t0)}, 4, {vr(vL)}")
    A(f"v_bfe_u32 {vr(t1)}, {vr(vL)}, 2, 2")
    A(f"v_lshl_add_u32 {vr(vT)}, {vr(t0)}, 3, {vr(t1)}")
    A(f"v_lshlrev_b32 {vr(vT)}, 7, {vr(vT)}")
    A(f"v_and_b32 {vr(t0)}, 1, {vr(t0)}")
    A(f"v_lshlrev_b32 {vr(t0)}, 1, {vr(t0)}")
    A(f"v_lshrrev_b32 {vr(t1)}, 1, {vr(t1)}")
    A(f"v_or_b32 {vr(t0)}, {vr(t0)}, {vr(t1)}")
    A(f"v_lshlrev_b32 {vr(t0)}, 1, {vr(t0)}")
    A(f"v_bfe_u32 {vr(t1)}, {vr(vL)}, 1, 1")
    A(f"v_xor_b32 {vr(t0)}, {vr(t0)}, {vr(t1)}")
    A(f"v_lshl_add_u32 {vr(vT)}, {vr(t0)}, 4, {vr(vT)}")
    A(f"v_and_b32 {vr(t0)}, 1, {vr(vL)}")
    A(f"v_lshl_add_u32 {vr(vT)}, {vr(t0)}, 3, {vr(vT)}")
    for ct in range(1, 4):
        A(f"v_xor_b32 {vr(vT+ct)}, {32*ct}, {vr(vT)}")

def sel_by_group(A, dst, regs):
    A(f"v_cndmask_b32 {vr(dst)}, {vr(regs[0])}, {vr(regs[1])}, s[{SG1}:{SG1+1}]")
    A(f"v_cndmask_b32 {vr(dst)}, {vr(dst)}, {vr(regs[2])}, s[{SG2}:{SG2+1}]")
    A(f"v_cndmask_b32 {vr(dst)}, {vr(dst)}, {vr(regs[3])}, s[{SG3}:{SG3+1}]")

def gen(P=None):
    P = P or {}
    D = P.get("D", 2)
    FL = P.get("kvflags", "nt")
    FLK = P.get("kflags", FL); FLV = P.get("vflags", FL)
    HST = P.get("hst", "sc1"); HLD = P.get("hld", "sc1")
    WFL = P.get("wflags", "nt")
    tab, info = make_table(**P.get("table", {}))
    if P.get("no_ffn"):
        for row in tab: row[2] = 0; row[5] = 255
    if P.get("only_gu"):
        for row in tab:
            if row[2] == 3: row[2] = 0
            row[5] = 255
    if P.get("only_dn"):
        for row in tab:
            if row[2] in (1, 2): row[2] = 0
            row[5] = 255
    if P.get("no_y"):
        for row in tab: row[5] = 255
    if P.get("no_wo"):
        for row in tab: row[4] = 255; row[5] = 255
    A = Asm()
    A.L += open(P.get("header", "recurrent_scan__gqa_block_cached__geglu_ffn__decode.s.ref")).read().split("; Override launch")[0].rstrip("\n").split("\n")
    A.L.append(f"; @launch grid=(256,1,1) block=(256,1,1) lds={LDS_BYTES}")
    A('.amdgcn_target "amdgcn-amd-amdhsa--gfx950"')
    A(".text")
    A(f".globl {NAME}")
    A(".p2align 8")
    A(f".type {NAME},@function")
    body_start = len(A.L)
    A.lab(NAME)
    if P.get("diag_entry"): A("s_memrealtime s[98:99]")
    A("s_cmp_ge_u32 s2, 256")
    A("s_cbranch_scc1 L_exit")
    A("s_load_dwordx16 s[4:19], s[0:1], 0")
    A("s_load_dwordx8 s[20:27], s[0:1], 64")
    A("s_getpc_b64 s[64:65]")
    A.lab("L_pc")
    A("s_add_u32 s64, s64, L_table-L_pc")
    A("s_addc_u32 s65, s65, 0")
    A("s_lshl_b32 s66, s2, 5")
    A("s_add_u32 s64, s64, s66")
    A("s_addc_u32 s65, s65, 0")
    A("s_load_dwordx8 s[28:35], s[64:65], 0")
    A("v_lshrrev_b32 v1, 6, v0")
    A("v_and_b32 v0, 63, v0")
    A(f"v_readfirstlane_b32 s{S_WAVE}, v1")
    if P.get("stamps"):
        A("v_mov_b32 v253, 0")
        stamp(A, P, 15)
    A(f"s_lshr_b32 s{S_HKV}, s2, 4")
    A(f"s_and_b32 s{S_M}, s2, 15")
    A(f"s_lshr_b32 s{S_B}, s{S_M}, 3")
    A(f"s_mov_b32 s{S_REC}, s2")
    A(f"s_mov_b32 s{SG1}, 0xffff0000")
    A(f"s_mov_b32 s{SG1+1}, 0")
    A(f"s_mov_b32 s{SG2}, 0")
    A(f"s_mov_b32 s{SG2+1}, 0xffff")
    A(f"s_mov_b32 s{SG3}, 0")
    A(f"s_mov_b32 s{SG3+1}, 0xffff0000")
    A("s_waitcnt lgkmcnt(0)")
    if (P.get("dbgdur") or P.get("diag_hold")) and not P.get("diag_entry"): A("s_memrealtime s[98:99]")
    if P.get("diag_entry") and P.get("dbgdur"):
        A("s_memrealtime s[100:101]")
        A("s_waitcnt lgkmcnt(0)")
        A("s_sub_u32 s35, s100, s98")
    A(f"s_load_dword s{S_EPO}, s[{S_WS}:{S_WS+1}], {WS_EPOCH}")
    srd(A, SRD_WS, S_WS, WS_SIZE)
    A(f"s_cmp_ge_u32 s{S_WAVE}, 2")
    A("s_cbranch_scc1 L_att")
    A(f"s_cmp_eq_u32 s{S_WAVE}, 1")
    A("s_cbranch_scc1 L_s1")

    vL = 0
    A("v_lshlrev_b32 v1, 4, v0")
    for k in range(4): A(f"v_mov_b32 v{4+k}, -1")
    A(f"s_lshl_b32 s64, s{S_REC}, 10")
    A(f"s_add_u32 s64, s64, {WS_H1O}")
    A(f"buffer_store_dwordx4 v[4:7], v1, s[{SRD_WS}:{SRD_WS+3}], s64 offen sc1")
    A(f"s_lshl_b32 s65, s{S_REC}, 7")
    A(f"s_add_u32 s65, s65, {WS_H1ML}")
    A("s_mov_b64 exec, 0xff")
    A(f"buffer_store_dwordx4 v[4:7], v1, s[{SRD_WS}:{SRD_WS+3}], s65 offen sc1")
    A("s_mov_b64 exec, -1")
    A("s_and_b32 s64, s2, 7")
    A("s_cmp_lg_u32 s64, 0")
    A("s_cbranch_scc1 L_nocnt")
    A("s_lshr_b32 s64, s2, 3")
    A("s_lshl_b32 s64, s64, 8")
    A(f"s_add_u32 s64, s64, {WS_CNT}")
    A("v_mov_b32 v8, 0")
    A("s_mov_b64 exec, 1")
    A(f"buffer_store_dword v8, v1, s[{SRD_WS}:{SRD_WS+3}], s64 offen sc1")
    A("s_mov_b64 exec, -1")
    A.lab("L_nocnt")
    srd(A, SRD_U, S_X, 2304)
    A("v_lshrrev_b32 v2, 5, v0")
    A("v_mul_u32_u24 v2, 1152, v2")
    A("v_and_b32 v3, 31, v0")
    A("v_lshl_add_u32 v2, v3, 2, v2")
    for n in range(9):
        A(f"buffer_load_dword v{8+n}, v2, s[{SRD_U}:{SRD_U+3}], 0 offen offset:{128*n}")
    srd(A, SRD_T, S_WQ, 576 * 8192)
    dma_voff(A, 18, 19, 8192, vL, 20, 21)
    A(f"s_lshr_b32 s66, s{S_M}, 2")
    A(f"s_mul_i32 s67, s66, {144*8192}")
    A(f"s_and_b32 s68, s{S_M}, 3")
    A(f"s_lshl_b32 s68, s68, 7")
    A("s_add_u32 s67, s67, s68")
    A(f"s_lshl_b32 s68, s{S_HKV}, 9")
    A("s_add_u32 s67, s67, s68")
    A(f"s_mov_b32 s68, {T_WQ}")
    A("s_mov_b32 s69, 9")
    A.lab("L_wqdma")
    for par in range(2):
        A("s_mov_b32 m0, s68")
        A("s_add_u32 s68, s68, 1024")
        A(f"buffer_load_dwordx4 v{18+par}, s[{SRD_T}:{SRD_T+3}], s67 offen {WFL} lds")
        A("s_add_u32 s67, s67, 65536")
    A("s_sub_u32 s69, s69, 1")
    A("s_cmp_lg_u32 s69, 0")
    A("s_cbranch_scc1 L_wqdma")
    A("v_mov_b32 v20, 0")
    A("v_mov_b32 v21, 0")
    A("v_mov_b32 v22, 0")
    A(f"ds_write_b32 v20, v20 offset:{PROG}")
    A(f"ds_write_b64 v20, v[20:21] offset:{QRDY + 4 - 4 + 0}") if False else None
    A(f"ds_write_b32 v20, v20 offset:{QRDY}")
    A(f"ds_write_b32 v20, v20 offset:{QPUB}")
    A(f"ds_write_b32 v20, v20 offset:{DEADF}")
    A(f"ds_write_b32 v20, v20 offset:{PUBD}")
    A("s_waitcnt lgkmcnt(0)")
    A("s_barrier")
    stamp(A, P, 0)
    for k in range(4): A(f"v_mov_b32 v{20+k}, 0")
    A(f"ds_write_b128 v1, v[20:23] offset:{T_WQ + 18432}")
    A(f"ds_write_b128 v1, v[20:23] offset:{T_WQ + 19456}")
    A("v_lshrrev_b32 v24, 3, v0")
    A(f"v_mul_u32_u24 v24, {XROW}, v24")
    A("v_and_b32 v25, 7, v0")
    A("v_lshl_add_u32 v24, v25, 2, v24")
    A("s_mov_b64 exec, 0xffff")
    A(f"ds_write_b32 v24, v20 offset:{X_LN + 1152}")
    A("s_mov_b64 exec, -1")
    tr_addr(A, 100, vL, 24, 25)
    A("v_and_b32 v104, 1, v0")
    A(f"v_mul_u32_u24 v104, {XROW}, v104")
    A("v_lshrrev_b32 v24, 4, v0")
    A("v_lshl_add_u32 v104, v24, 4, v104")
    A(f"s_mul_i32 s64, s66, 288")
    A("v_add_u32 v105, s64, v104")
    A("s_waitcnt vmcnt(18)")
    lo = lambda n: 24 + 2 * n
    hi = lambda n: 25 + 2 * n
    for n in range(9):
        A(f"v_lshlrev_b32 v{lo(n)}, 16, v{8+n}")
        A(f"v_and_b32 v{hi(n)}, 0xffff0000, v{8+n}")
    A(f"v_add_f32 v42, v{lo(0)}, v{hi(0)}")
    A(f"v_add_f32 v43, v{lo(1)}, v{hi(1)}")
    for n in range(2, 9):
        A(f"v_add_f32 v42, v42, v{lo(n)}")
        A(f"v_add_f32 v43, v43, v{hi(n)}")
    A("v_add_f32 v42, v42, v43")
    reduce16(A, 42); swap16(A, 42, 43, "v_add_f32")
    A(f"v_mul_f32 v42, {hex(f2u(1/576))}, v42")
    A("v_mov_b32 v44, 0")
    for n in range(9):
        A(f"v_sub_f32 v45, v{lo(n)}, v42")
        A(f"v_sub_f32 v46, v{hi(n)}, v42")
        A("v_fmac_f32 v44, v45, v45")
        A("v_fmac_f32 v44, v46, v46")
    reduce16(A, 44); swap16(A, 44, 43, "v_add_f32")
    A(f"v_mul_f32 v44, {hex(f2u(1/576))}, v44")
    round_bf16(A, 44, 44)
    A(f"v_add_f32 v44, {hex(f2u(1e-5))}, v44")
    round_bf16(A, 44, 44)
    A("v_sqrt_f32 v44, v44")
    round_bf16(A, 44, 44)
    A("v_rcp_f32 v44, v44")
    round_bf16(A, 42, 42)
    A("v_lshrrev_b32 v47, 5, v0")
    A(f"v_mul_u32_u24 v47, {XROW}, v47")
    A("v_and_b32 v48, 31, v0")
    A("v_lshl_add_u32 v47, v48, 2, v47")
    for n in range(9):
        A(f"v_sub_f32 v45, v{lo(n)}, v42")
        A(f"v_sub_f32 v46, v{hi(n)}, v42")
        A("v_cvt_pk_bf16_f32 v45, v45, v46")
        A("v_and_b32 v46, 0xffff0000, v45")
        A("v_lshlrev_b32 v45, 16, v45")
        A("v_mul_f32 v45, v45, v44")
        A("v_mul_f32 v46, v46, v44")
        A(f"v_cvt_pk_bf16_f32 v{50+n}, v45, v46")
        A(f"ds_write_b32 v47, v{50+n} offset:{X_LN + 128*n}")
    stamp(A, P, 1)
    A("s_waitcnt vmcnt(0) lgkmcnt(0)")
    A(f"s_add_u32 s{S_EPN}, s{S_EPO}, 1")
    A(f"s_mul_i32 s{S_TAG}, s{S_EPN}, 0x9E3779B1")
    A(f"s_xor_b32 s{S_TAG}, s{S_TAG}, 0x5bd1e995")
    stamp(A, P, 2)
    ACC = lambda ct: 110 + 4 * ct
    gemv(A, 5, [0, 1, 2, 3],
         lambda n, d: f"ds_read_b128 {vr(d,4)}, v105 offset:{X_LN + 64*n}",
         lambda n, ct, u, d: f"ds_read_b64_tr_b16 {vr(d,2)}, v{100+ct} offset:{T_WQ + 4096*n + 512*u}",
         ACC, lambda k: 128 + 20 * k, lambda k, ct: 132 + 20 * k + 4 * ct, 2)
    def publish_pair(soff):
        sel_by_group(A, 8, [ACC(ct) for ct in range(4)])
        sel_by_group(A, 10, [ACC(ct) + 1 for ct in range(4)])
        return
    publish_pair(None)
    A(f"v_mov_b32 v9, s{S_TAG}")
    A(f"v_mov_b32 v11, s{S_TAG}")
    A(f"s_lshl_b32 s64, s{S_REC}, 10")
    A(f"s_add_u32 s64, s64, {WS_QP}")
    A(f"buffer_store_dwordx4 v[8:11], v1, s[{SRD_WS}:{SRD_WS+3}], s64 offen sc1")
    A("v_mov_b32 v12, 0")
    A("v_mov_b32 v13, 1")
    A(f"ds_write_b32 v12, v13 offset:{QPUB}")
    stamp(A, P, 3)
    A(f"s_lshl_b32 s64, s{S_B}, 3")
    A("v_add_u32 v2, s64, v1")
    A(f"s_lshl_b32 s64, s{S_HKV}, 14")
    A(f"s_add_u32 s64, s64, {WS_QP}")
    for k in range(1, 4): A(f"s_add_u32 s{64+k}, s64, {4096*k}")
    poll_begin(A, "L_qpoll")
    for m in range(16):
        A(f"buffer_load_dwordx2 v[{24+2*m}:{25+2*m}], v2, s[{SRD_WS}:{SRD_WS+3}], s{64+(m>>2)} offen offset:{1024*(m&3)} sc1")
    A("s_waitcnt vmcnt(0)")
    A("v_max3_u32 v60, v25, v27, v29")
    A("v_min3_u32 v61, v25, v27, v29")
    for m in range(3, 16, 2):
        a, b_ = 25 + 2 * m, 25 + 2 * min(m + 1, 15)
        A(f"v_max3_u32 v60, v60, v{a}, v{b_}")
        A(f"v_min3_u32 v61, v61, v{a}, v{b_}")
    A("v_xor_b32 v60, v60, v61")
    A(f"v_xor_b32 v61, s{S_TAG}, v61")
    A("v_or_b32 v60, v60, v61")
    A("v_cmp_ne_u32 vcc, 0, v60")
    if P.get("stamps"):
        A(f"s_cmp_eq_u32 s{S_CNT}, {POLL_LIMIT}")
        A("s_cbranch_scc0 L_qp_nostamp")
        A("s_memrealtime s[92:93]")
        A("s_waitcnt lgkmcnt(0)")
        A("v_writelane_b32 v253, s92, 11")
        A.lab("L_qp_nostamp")
    poll_end(A, "L_qpoll", 1)
    if P.get("stamps"):
        A(f"s_sub_u32 s92, {POLL_LIMIT+1}, s{S_CNT}")
        A("v_writelane_b32 v253, s92, 12")
    A("v_lshlrev_b32 v3, 1, v0")
    for cbp in range(4):
        m = lambda kr: 24 + 2 * (kr * 4 + cbp)
        A(f"v_add_f32 v60, v{m(0)}, v{m(1)}")
        A(f"v_add_f32 v60, v60, v{m(2)}")
        A(f"v_add_f32 v60, v60, v{m(3)}")
        A(f"v_cvt_pk_bf16_f32 v{62+cbp}, v60, v60")
        A(f"ds_write_b16 v3, v{62+cbp} offset:{Q_LDS + 128*cbp}")
    A("s_waitcnt lgkmcnt(0)")
    A("v_mov_b32 v12, 0")
    A("v_mov_b32 v13, 1")
    A(f"ds_write_b32 v12, v13 offset:{QRDY}")
    stamp(A, P, 4)
    A(f"s_cmp_eq_u32 s{S_FIN}, 255")
    A("s_cbranch_scc1 L_s0_noy")
    wait_progress(A, "L_ywait", P.get("t_y", 176 // P.get("NA", 2)))
    A(f"s_lshl_b32 s64, s{S_FIN}, 13")
    A(f"s_add_u32 s64, s64, {WS_YP}")
    A("s_add_u32 s65, s64, 4096")
    poll_begin(A, "L_ypoll")
    for n in range(8):
        A(f"buffer_load_dwordx4 v[{24+4*n}:{27+4*n}], v1, s[{SRD_WS}:{SRD_WS+3}], s{64+(n>>2)} offen offset:{1024*(n&3)} sc1")
    A("s_waitcnt vmcnt(0)")
    check_tags(A, [25 + 4 * n + 2 * k for n in range(8) for k in range(2)], 80)
    poll_end(A, "L_ypoll", 32)
    A("v_add_f32 v200, v24, v28")
    A("v_add_f32 v201, v26, v30")
    for n in range(2, 8):
        A(f"v_add_f32 v200, v200, v{24+4*n}")
        A(f"v_add_f32 v201, v201, v{26+4*n}")
    for k in range(2):
        y = 200 + k
        round_bf16(A, y, y)
        A(f"v_mul_f32 v80, {hex(f2u(-LOG2E))}, v{y}")
        A("v_exp_f32 v80, v80")
        A("v_add_f32 v80, 1.0, v80")
        A("v_rcp_f32 v80, v80")
        A(f"v_mul_f32 v{y}, v{y}, v80")
        round_bf16(A, y, y)
    srd(A, SRD_U, S_X, 2304)
    A(f"s_lshl_b32 s70, s{S_FIN}, 7")
    A("v_lshlrev_b32 v204, 1, v0")
    A(f"buffer_load_ushort v202, v204, s[{SRD_U}:{SRD_U+3}], s70 offen")
    A(f"buffer_load_ushort v203, v204, s[{SRD_U}:{SRD_U+3}], s70 offen offset:1152")
    A("s_waitcnt vmcnt(0)")
    A.lab("L_s0_noy")
    stamp(A, P, 5)

    A("s_branch L_side_tail")

    A.lab("L_s1")
    A("v_lshlrev_b32 v1, 4, v0")
    A("s_barrier")
    A("s_waitcnt lgkmcnt(0)")
    A(f"s_add_u32 s{S_EPN}, s{S_EPO}, 1")
    A(f"s_mul_i32 s{S_TAG}, s{S_EPN}, 0x9E3779B1")
    A(f"s_xor_b32 s{S_TAG}, s{S_TAG}, 0x5bd1e995")
    if P.get("s1_start", "qpub") == "qpub": wait_lds(A, "L_qpubwait", QPUB, 1, 1)
    if P.get("s1_start") == "qrdy": wait_lds(A, "L_qpubwait", QRDY, 1, 1)
    DL = P.get("dma_lead", 16)
    A(f"s_cmp_eq_u32 s{S_FT}, 0")
    A("s_cbranch_scc1 L_s1_wo")
    A(f"s_cmp_eq_u32 s{S_FT}, 3")
    A("s_cbranch_scc1 L_dn_setup")
    A(f"s_cmp_eq_u32 s{S_FT}, 1")
    A(f"s_cselect_b32 s{SRD_T}, s{S_WG}, s{S_WU}")
    A(f"s_cselect_b32 s{SRD_T+1}, s{S_WG+1}, s{S_WU+1}")
    A(f"s_mov_b32 s{SRD_T+2}, {576*9216}")
    A(f"s_mov_b32 s{SRD_T+3}, 0x20000")
    dma_voff(A, 18, 19, 9216, vL, 20, 21)
    A(f"s_lshl_b32 s67, s{S_FCB}, 7")
    A(f"s_mov_b32 s71, {8*9216}")
    A("s_branch L_ffn_dma")
    A.lab("L_dn_setup")
    srd(A, SRD_T, S_WD, 4608 * 1152)
    dma_voff(A, 18, 19, 1152, vL, 20, 21)
    A(f"s_mul_i32 s72, s{S_FCB}, 57")
    A("s_lshr_b32 s72, s72, 9")
    A("s_mul_i32 s73, s72, 9")
    A(f"s_sub_u32 s73, s{S_FCB}, s73")
    A(f"s_mul_i32 s67, s72, {576*1152}")
    A("s_lshl_b32 s64, s73, 7")
    A("s_add_u32 s67, s67, s64")
    A(f"s_mov_b32 s71, {8*1152}")
    A.lab("L_ffn_dma")
    A(f"s_mov_b32 s68, {T_FFN}")
    A("s_mov_b32 s69, 36")
    A.lab("L_gudma")
    for par in range(2):
        A("s_mov_b32 m0, s68")
        A("s_add_u32 s68, s68, 1024")
        A(f"buffer_load_dwordx4 v{18+par}, s[{SRD_T}:{SRD_T+3}], s67 offen {WFL} lds")
        A(f"s_add_u32 s67, s67, s71")
    A(f"s_waitcnt vmcnt({DL})")
    A("s_sub_u32 s69, s69, 1")
    A("s_cmp_lg_u32 s69, 0")
    A("s_cbranch_scc1 L_gudma")
    A.lab("L_s1_wo")
    if P.get("wo_late", True): A("s_branch L_s1_nowo")
    A(f"s_cmp_eq_u32 s{S_WCB}, 255")
    A("s_cbranch_scc1 L_s1_nowo")
    srd(A, SRD_T, S_WO, 4096 * 1152)
    dma_voff(A, 18, 19, 1152, vL, 20, 21)
    A(f"s_mul_i32 s67, s{S_HKV}, {256*1152}")
    A(f"s_lshl_b32 s68, s{S_WCB}, 7")
    A("s_add_u32 s67, s67, s68")
    A(f"s_mov_b32 s68, {T_WO}")
    A("s_mov_b32 s69, 16")
    A.lab("L_wodma")
    for par in range(2):
        A("s_mov_b32 m0, s68")
        A("s_add_u32 s68, s68, 1024")
        A(f"buffer_load_dwordx4 v{18+par}, s[{SRD_T}:{SRD_T+3}], s67 offen {WFL} lds")
        A(f"s_add_u32 s67, s67, 9216")
    A(f"s_waitcnt vmcnt({DL})")
    A("s_sub_u32 s69, s69, 1")
    A("s_cmp_lg_u32 s69, 0")
    A("s_cbranch_scc1 L_wodma")
    A.lab("L_s1_nowo")
    A("s_waitcnt vmcnt(0)")
    stamp(A, P, 4)
    A(f"s_cmp_eq_u32 s{S_FT}, 0")
    A("s_cbranch_scc1 L_s1_ffn_done")
    wait_lds(A, "L_xnwait", QRDY, 1, 4)
    tr_addr(A, 100, vL, 24, 25)
    A("v_and_b32 v104, 1, v0")
    A(f"v_mul_u32_u24 v104, {XROW}, v104")
    A("v_lshrrev_b32 v24, 4, v0")
    A("v_lshl_add_u32 v104, v24, 4, v104")
    A(f"s_cmp_eq_u32 s{S_FT}, 3")
    A("s_cbranch_scc0 L_ffn_gemv")
    if P.get("x_skipdown"): A("s_branch L_s1_ffn_done")
    wait_progress(A, "L_dnwait", P.get("t_dn", 104 // P.get("NA", 2)))
    A(f"s_mul_i32 s64, s72, {9*2048}")
    A(f"s_add_u32 s64, s64, {WS_GU}")
    for k in range(1, 5): A(f"s_add_u32 s{64+k}, s64, {4096*k}")
    poll_begin(A, "L_gupoll")
    for n in range(18):
        A(f"buffer_load_dwordx4 v[{24+4*n}:{27+4*n}], v1, s[{SRD_WS}:{SRD_WS+3}], s{64+(n>>2)} offen offset:{1024*(n&3)} sc1")
    A("s_waitcnt vmcnt(0)")
    check_tags(A, [25 + 4 * n + 2 * k for n in range(18) for k in range(2)], 96)
    poll_end(A, "L_gupoll", 32)
    A("v_lshlrev_b32 v3, 1, v0")
    A(f"v_mov_b32 v98, {hex(f2u(0.044715))}")
    for i9 in range(9):
        for bb in range(2):
            gt, up = 24 + 8 * i9 + 2 * bb, 28 + 8 * i9 + 2 * bb
            A(f"v_mul_f32 v96, v{gt}, v{gt}")
            A(f"v_mul_f32 v96, v96, v{gt}")
            A(f"v_fma_f32 v96, v96, v98, v{gt}")
            A(f"v_mul_f32 v96, {hex(f2u(-2.0 * math.sqrt(2.0 / math.pi) * LOG2E))}, v96")
            A("v_exp_f32 v96, v96")
            A("v_add_f32 v96, 1.0, v96")
            A("v_rcp_f32 v96, v96")
            A(f"v_mul_f32 v96, v{gt}, v96")
            round_bf16(A, 96, 96)
            A(f"v_mul_f32 v96, v96, v{up}")
            A(f"v_cvt_pk_bf16_f32 v97, v96, v96")
            A(f"ds_write_b16 v3, v97 offset:{XH + XROW*bb + 128*i9}")
    A(f"v_add_u32 v104, {XH - X_LN}, v104")
    A("s_waitcnt lgkmcnt(0)")
    A.lab("L_ffn_gemv")
    for ct in range(4):
        A(f"v_add_u32 v{106+ct}, {T_FFN}, v{100+ct}")
        A(f"v_add_u32 v{170+ct}, {T_FFN + 9*4096}, v{100+ct}")
    gemv(A, 18, [0, 1, 2, 3],
         lambda n, d: f"ds_read_b128 {vr(d,4)}, v104 offset:{X_LN + 64*n}",
         lambda n, ct, u, d: f"ds_read_b64_tr_b16 {vr(d,2)}, v{(106 if n < 9 else 170)+ct} offset:{4096*(n % 9) + 512*u}",
         ACC, lambda k: 128 + 20 * k, lambda k, ct: 132 + 20 * k + 4 * ct, 2)
    publish_pair(None)
    A(f"v_mov_b32 v9, s{S_TAG}")
    A(f"v_mov_b32 v11, s{S_TAG}")
    A(f"s_cmp_eq_u32 s{S_FT}, 3")
    A("s_cbranch_scc1 L_dn_pub")
    round_bf16(A, 8, 8); round_bf16(A, 10, 10)
    A(f"s_lshl_b32 s64, s{S_FCB}, 1")
    A(f"s_add_u32 s64, s64, s{S_FT}")
    A("s_sub_u32 s64, s64, 1")
    A("s_lshl_b32 s64, s64, 10")
    A(f"s_add_u32 s64, s64, {WS_GU}")
    A("s_branch L_ffn_pub")
    A.lab("L_dn_pub")
    A("s_lshl_b32 s64, s73, 3")
    A("s_add_u32 s64, s64, s72")
    A("s_lshl_b32 s64, s64, 10")
    A(f"s_add_u32 s64, s64, {WS_YP}")
    A.lab("L_ffn_pub")
    A(f"buffer_store_dwordx4 v[8:11], v1, s[{SRD_WS}:{SRD_WS+3}], s64 offen sc1")
    A.lab("L_s1_ffn_done")
    stamp(A, P, 5)

    def wo_prep():
        tr_addr(A, 100, vL, 24, 25)
        A(f"s_lshl_b32 s64, s{S_WAVE}, 5")
        A("v_xor_b32 v100, s64, v100")
        A("v_and_b32 v104, 1, v0")
        A(f"v_mul_u32_u24 v104, {X2ROW}, v104")
        A("v_lshrrev_b32 v24, 4, v0")
        A("v_lshl_add_u32 v104, v24, 4, v104")
        A("v_lshlrev_b32 v105, 4, v0")
        A(f"v_mov_b32 v9, s{S_TAG}")
        A(f"v_mov_b32 v11, s{S_TAG}")
        A(f"s_lshl_b32 s87, s{S_WCB}, 14")
        A(f"s_lshl_b32 s65, s{S_HKV}, 10")
        A("s_add_u32 s87, s87, s65")
        A(f"s_lshl_b32 s65, s{S_WAVE}, 8")
        A("s_add_u32 s87, s87, s65")
        A(f"s_add_u32 s87, s87, {WS_SP}")
    A.lab("L_side_tail")
    wo_prep()
    A("v_lshlrev_b32 v1, 4, v0")
    A("v_bfe_u32 v2, v0, 2, 1")
    A("v_lshlrev_b32 v2, 3, v2")
    A(f"s_lshl_b32 s64, s{S_HKV}, 4")
    A(f"s_lshl_b32 s65, s{S_WAVE}, 3")
    A("s_add_u32 s64, s64, s65")
    A("s_lshl_b32 s66, s64, 7")
    A(f"s_add_u32 s66, s66, {WS_H1ML}")
    A("s_lshl_b32 s64, s64, 10")
    A(f"s_add_u32 s64, s64, {WS_H1O}")
    A("s_add_u32 s65, s64, 4096")
    A("v_bfe_u32 v90, v0, 2, 1")
    A("v_lshlrev_b32 v90, 8, v90")
    A("v_lshrrev_b32 v83, 4, v0")
    A("v_lshl_add_u32 v90, v83, 6, v90")
    A("v_and_b32 v83, 3, v0")
    A("v_lshl_add_u32 v90, v83, 1, v90")
    A("v_bfe_u32 v83, v0, 3, 1")
    A("v_lshl_add_u32 v90, v83, 3, v90")
    A(f"s_mul_i32 s68, s{S_WAVE}, {X2ROW}")
    A("v_add_u32 v90, s68, v90")
    A("s_mov_b32 s67, 0xff")
    if P.get("wo_late", True):
        srd(A, SRD_T, S_WO, 4096 * 1152)
        dma_voff(A, 18, 19, 1152, vL, 20, 21)
        A(f"s_lshl_b32 s69, s{S_HKV}, 1")
        A(f"s_add_u32 s69, s69, s{S_WAVE}")
        A(f"s_mul_i32 s69, s69, {128*1152}")
        A(f"s_lshl_b32 s71, s{S_WCB}, 7")
        A("s_add_u32 s69, s69, s71")
        A(f"s_lshl_b32 s71, s{S_WAVE}, 14")
        A(f"s_add_u32 s71, s71, {T_WO}")
        A(f"s_lshl_b32 s64, s{S_HKV}, 4")
        A(f"s_lshl_b32 s72, s{S_WAVE}, 3")
        A("s_add_u32 s64, s64, s72")
        A("s_lshl_b32 s64, s64, 10")
        A(f"s_add_u32 s64, s64, {WS_H1O}")
    def wo_dma():
        for n in range(16):
            A("s_mov_b32 m0, s71")
            A("s_add_u32 s71, s71, 1024")
            A(f"buffer_load_dwordx4 v{18+(n&1)}, s[{SRD_T}:{SRD_T+3}], s69 offen {WFL} lds")
            A("s_add_u32 s69, s69, 9216")
    at_dead = P.get("wo_late", True) and P.get("wo_at", "b2") == "dead"
    if at_dead:
        A(f"s_cmp_eq_u32 s{S_WCB}, 255")
        A("s_cbranch_scc1 L_nowodma")
        wait_lds(A, "L_deadwait", DEADF, 128, 2)
        wo_dma()
        A.lab("L_nowodma")
    A("s_barrier")
    stamp(A, P, 6)
    A(f"s_cmp_eq_u32 s{S_WCB}, 255")
    A("s_cbranch_scc1 L_final")
    if P.get("wo_late", True) and not at_dead:
        if P.get("wo_afterpub"): wait_lds(A, "L_pubwait", PUBD, 1, 0)
        wo_dma()
    MC = lambda p: 56 + 2 * p
    LL = lambda p: 57 + 2 * p
    poll_begin(A, "L_h1poll")
    if not P.get("h1inc", False):
        for p in range(8):
            A(f"buffer_load_dwordx4 v[{24+4*p}:{27+4*p}], v1, s[{SRD_WS}:{SRD_WS+3}], s{64+(p>>2)} offen offset:{1024*(p&3)} {HLD}")
            A(f"buffer_load_dwordx2 v[{56+2*p}:{57+2*p}], v2, s[{SRD_WS}:{SRD_WS+3}], s66 offen offset:{128*p} {HLD}")
        A("s_waitcnt vmcnt(0)")
        A("v_max3_u32 v80, v24, v25, v26")
        for k in range(27, 72, 2): A(f"v_max3_u32 v80, v80, v{k}, v{min(k+1, 71)}")
        A("v_cmp_eq_u32 vcc, -1, v80")
        A("s_mov_b32 s67, 0")
        A("s_cbranch_vccz L_h1poll_ok")
        A("s_mov_b32 s67, 1")
    for p in range(8 if P.get("h1inc", False) else 0):
        l = A.uniq("L_h1l")
        A(f"s_bitcmp1_b32 s67, {p}")
        A(f"s_cbranch_scc0 {l}")
        A(f"buffer_load_dwordx4 v[{24+4*p}:{27+4*p}], v1, s[{SRD_WS}:{SRD_WS+3}], s{64+(p>>2)} offen offset:{1024*(p&3)} sc1")
        A(f"buffer_load_dwordx2 v[{56+2*p}:{57+2*p}], v2, s[{SRD_WS}:{SRD_WS+3}], s66 offen offset:{128*p} sc1")
        A.lab(l)
    A("s_waitcnt vmcnt(0)")
    for p in range(8 if P.get("h1inc", False) else 0):
        l = A.uniq("L_h1m")
        o = 24 + 4 * p
        A(f"s_bitcmp1_b32 s67, {p}")
        A(f"s_cbranch_scc0 {l}")
        A(f"v_max3_u32 v82, v{o}, v{o+1}, v{o+2}")
        A(f"v_max3_u32 v82, v82, v{o+3}, v{MC(p)}")
        A(f"v_max_u32 v82, v82, v{LL(p)}")
        A("v_cmp_eq_u32 vcc, -1, v82")
        A(f"s_cbranch_vccnz {l}")
        A(f"s_bitset0_b32 s67, {p}")
        A.lab(l)
    A("s_cmp_eq_u32 s67, 0")
    A("s_cbranch_scc1 L_h1poll_ok")
    A(f"s_sub_u32 s{S_CNT}, s{S_CNT}, 1")
    A(f"s_cmp_eq_u32 s{S_CNT}, 0")
    A("s_cbranch_scc1 L_h1poll_ok")
    if P.get("h1sleep", 0): A(f"s_sleep {P.get('h1sleep', 0)}")
    A("s_branch L_h1poll")
    A.lab("L_h1poll_ok")
    stamp(A, P, 7)
    A(f"v_max3_f32 v80, v{MC(0)}, v{MC(1)}, v{MC(2)}")
    A(f"v_max3_f32 v80, v80, v{MC(3)}, v{MC(4)}")
    A(f"v_max3_f32 v80, v80, v{MC(5)}, v{MC(6)}")
    A(f"v_max_f32 v80, v80, v{MC(7)}")
    for p in range(8): A(f"v_sub_f32 v{MC(p)}, v{MC(p)}, v80")
    for p in range(8): A(f"v_exp_f32 v{MC(p)}, v{MC(p)}")
    A(f"v_mul_f32 v81, v{MC(0)}, v{LL(0)}")
    for rr in range(4): A(f"v_mul_f32 v{84+rr}, v{MC(0)}, v{24+rr}")
    for p in range(1, 8):
        A(f"v_fmac_f32 v81, v{MC(p)}, v{LL(p)}")
        for rr in range(4): A(f"v_fmac_f32 v{84+rr}, v{MC(p)}, v{24+4*p+rr}")
    A("v_rcp_f32 v81, v81")
    for rr in range(4):
        A(f"v_mul_f32 v{84+rr}, v{84+rr}, v81")
    A("v_cvt_pk_bf16_f32 v88, v84, v85")
    A("v_cvt_pk_bf16_f32 v89, v86, v87")
    A(f"ds_write_b16 v90, v88 offset:{X2}")
    A(f"ds_write_b16_d16_hi v90, v88 offset:{X2 + 16}")
    A(f"ds_write_b16 v90, v89 offset:{X2 + 32}")
    A(f"ds_write_b16_d16_hi v90, v89 offset:{X2 + 48}")
    A("s_waitcnt lgkmcnt(0)")
    A.lab("L_wogemv")
    A("s_barrier")
    stamp(A, P, 8)
    gemv(A, 8, [0],
         lambda n, d: f"ds_read_b128 {vr(d,4)}, v104 offset:{X2 + 64*n}",
         lambda n, ct, u, d: f"ds_read_b64_tr_b16 {vr(d,2)}, v100 offset:{T_WO + 4096*n + 512*u}",
         lambda ct: 110, lambda k: 128 + 8 * k, lambda k, ct: 132 + 8 * k, 8)
    A("v_mov_b32 v8, v110")
    A("v_mov_b32 v10, v111")
    A("s_mov_b64 exec, 0xffff")
    A(f"buffer_store_dwordx4 v[8:11], v105, s[{SRD_WS}:{SRD_WS+3}], s87 offen {HST}")
    A("s_mov_b64 exec, -1")
    stamp(A, P, 9)
    A.lab("L_final")
    A(f"s_cmp_lg_u32 s{S_WAVE}, 0")
    A("s_cbranch_scc1 L_end")
    A(f"s_cmp_eq_u32 s{S_FIN}, 255")
    A("s_cbranch_scc1 L_end")
    A("v_lshlrev_b32 v1, 4, v0")
    A(f"s_lshl_b32 s64, s{S_FIN}, 14")
    A(f"s_add_u32 s64, s64, {WS_SP}")
    for k in range(1, 4): A(f"s_add_u32 s{64+k}, s64, {4096*k}")
    srd(A, SRD_U, S_OUT, 2304)
    A("v_lshlrev_b32 v204, 1, v0")
    A(f"s_lshl_b32 s70, s{S_FIN}, 7")
    A("v_lshlrev_b32 v202, 16, v202")
    A("v_lshlrev_b32 v203, 16, v203")
    poll_begin(A, "L_h2poll")
    for n in range(16):
        A(f"buffer_load_dwordx4 v[{24+4*n}:{27+4*n}], v1, s[{SRD_WS}:{SRD_WS+3}], s{64+(n>>2)} offen offset:{1024*(n&3)} {HLD}")
    A("s_waitcnt vmcnt(0)")
    check_tags(A, [25 + 4 * n + 2 * k for n in range(16) for k in range(2)], 96)
    poll_end(A, "L_h2poll", P.get("h2sleep", 0))
    for step in (8, 4, 2, 1):
        for n in range(step):
            A(f"v_add_f32 v{24+4*n}, v{24+4*n}, v{24+4*(n+step)}")
            A(f"v_add_f32 v{26+4*n}, v{26+4*n}, v{26+4*(n+step)}")
    A("v_cvt_pk_bf16_f32 v96, v24, v26")
    A("v_and_b32 v97, 0xffff0000, v96")
    A("v_lshlrev_b32 v96, 16, v96")
    A("v_mul_f32 v96, v96, v200")
    A("v_mul_f32 v97, v97, v201")
    A("v_cvt_pk_bf16_f32 v96, v96, v97")
    A("v_and_b32 v97, 0xffff0000, v96")
    A("v_lshlrev_b32 v96, 16, v96")
    A("v_add_f32 v96, v96, v202")
    A("v_add_f32 v97, v97, v203")
    A("v_cvt_pk_bf16_f32 v96, v96, v97")
    if P.get("diag_hold"):
        A.lab("L_hold")
        A("s_memrealtime s[92:93]")
        A("s_waitcnt lgkmcnt(0)")
        A("s_sub_u32 s92, s92, s98")
        A(f"s_cmp_lt_u32 s92, {P['diag_hold']}")
        A("s_cbranch_scc1 L_hold")
    A(f"buffer_store_short v96, v204, s[{SRD_U}:{SRD_U+3}], s70 offen")
    A(f"buffer_store_short_d16_hi v96, v204, s[{SRD_U}:{SRD_U+3}], s70 offen offset:1152")
    stamp(A, P, 10)
    if P.get("dbgdur"):
        A("s_memrealtime s[92:93]")
        A("s_waitcnt lgkmcnt(0)")
        A("s_sub_u32 s92, s92, s98")
        srd(A, SRD_U, S_DBG, 256)
        A("v_mov_b32 v96, s92" if not P.get("diag_entry") else "v_mov_b32 v96, s35")
        A(f"s_lshl_b32 s64, s{S_FIN}, 2")
        A("v_mov_b32 v97, 0")
        A("s_mov_b64 exec, 1")
        A(f"buffer_store_dword v96, v97, s[{SRD_U}:{SRD_U+3}], s64 offen")
        A("s_mov_b64 exec, -1")
    A(f"s_cmp_lg_u32 s{S_FIN}, 0")
    A("s_cbranch_scc1 L_end")
    A(f"v_mov_b32 v80, s{S_EPN}")
    A("v_mov_b32 v81, 0")
    A("s_mov_b64 exec, 1")
    A(f"buffer_store_dword v80, v81, s[{SRD_WS}:{SRD_WS+3}], 0 offen offset:{WS_EPOCH}")
    A("s_mov_b64 exec, -1")
    A("s_branch L_end")

    A.lab("L_att")
    DK = P.get("DK", 2)
    NA = P.get("NA", 2)
    STEP = 8192 * NA
    assert DK % 2 == 0 and DK <= 8
    if NA == 1:
        A(f"s_cmp_eq_u32 s{S_WAVE}, 2")
        A("s_cbranch_scc1 L_att_go")
        A("s_waitcnt lgkmcnt(0)")
        A(f"s_add_u32 s{S_EPN}, s{S_EPO}, 1")
        A(f"s_mul_i32 s{S_TAG}, s{S_EPN}, 0x9E3779B1")
        A(f"s_xor_b32 s{S_TAG}, s{S_TAG}, 0x5bd1e995")
        A("s_barrier")
        A("s_barrier")
        A("s_branch L_att_join")
        A.lab("L_att_go")
    A(f"s_sub_u32 s66, s{S_WAVE}, 2")
    A(f"s_lshl_b32 s64, s{S_B}, 4")
    A(f"s_add_u32 s64, s64, s{S_HKV}")
    A("s_lshr_b32 s65, s64, 9")
    A("s_lshl_b32 s64, s64, 23")
    A(f"s_add_u32 s{SRD_K}, s{S_K}, s64")
    A(f"s_addc_u32 s{SRD_K+1}, s{S_K+1}, s65")
    A(f"s_mov_b32 s{SRD_K+2}, 0x800000")
    A(f"s_mov_b32 s{SRD_K+3}, 0x20000")
    A(f"s_add_u32 s{SRD_V}, s{S_V}, s64")
    A(f"s_addc_u32 s{SRD_V+1}, s{S_V+1}, s65")
    A(f"s_mov_b32 s{SRD_V+2}, 0x800000")
    A(f"s_mov_b32 s{SRD_V+3}, 0x20000")
    S_KO, S_VO, S_RK, S_CLM, S_IT, S_POOL = 70, 71, 75, 76, 77, 78
    S_RV, S_PK, S_PVS, S_PV, S_NXT = 86, 87, 88, 89, 74
    S_PO = [67, 68, 69, 43]
    POOL = P.get("table", {}).get("pool", 128)
    A(f"s_add_u32 s{S_KO}, s{S_KV0}, s66")
    A(f"s_lshl_b32 s{S_KO}, s{S_KO}, 13")
    A(f"s_mov_b32 s{S_VO}, s{S_KO}")
    if NA == 2:
        A(f"s_add_u32 s{S_PK}, s{S_NSB}, 1")
        A(f"s_sub_u32 s{S_PK}, s{S_PK}, s66")
        A(f"s_lshr_b32 s{S_PK}, s{S_PK}, 1")
    else:
        A(f"s_mov_b32 s{S_PK}, s{S_NSB}")
    A(f"s_mov_b32 s{S_PVS}, s{S_PK}")
    A(f"s_mov_b32 s{S_RV}, s{S_PK}")
    A(f"s_sub_u32 s{S_RK}, s{S_PK}, {DK + P.get('stash', 2)}")
    A(f"s_mov_b32 s{S_PV}, 0")
    A(f"s_mov_b32 s{S_IT}, 0")
    A("s_mov_b32 s80, 0")
    A("s_lshr_b32 s64, s2, 3")
    A("s_lshl_b32 s64, s64, 8")
    A(f"s_add_u32 s64, s64, {WS_CNT}")
    A(f"s_add_u32 s{S_POOL}, s{S_WS}, s64")
    A(f"s_addc_u32 s{S_POOL+1}, s{S_WS+1}, 0")
    VK0, VK1, VV0, VV1 = 2, 3, 4, 5
    A("v_bfe_u32 v6, v0, 2, 2")
    A("v_lshlrev_b32 v6, 8, v6")
    A("v_lshrrev_b32 v7, 4, v0")
    A("v_lshl_add_u32 v6, v7, 6, v6")
    A("v_and_b32 v7, 3, v0")
    A(f"v_lshl_add_u32 v{VK0}, v7, 4, v6")
    A(f"v_add_u32 v{VK1}, 4096, v{VK0}")
    A(f"v_lshlrev_b32 v{VV0}, 4, v0")
    A(f"v_add_u32 v{VV1}, 4096, v{VV0}")
    UA = lambda s, n: 32 * s + 4 * n
    VK1P, VV1P = 104, 105
    def issue(kind, s, soff, pool=False):
        vb, sd, fl = (VK0, SRD_K, FLK) if kind == "K" else (VV0, SRD_V, FLV)
        v1 = (VK1P if kind == "K" else VV1P) if pool else vb + 1
        for n in range(8):
            A(f"buffer_load_dwordx4 {ar(UA(s,n),4)}, v{vb if n < 4 else v1}, s[{sd}:{sd+3}], s{soff} offen offset:{1024*(n&3)} {fl}")
    lead = P.get("lead", 2)
    early = P.get("early", 1)
    ST = P.get("stash", 2)
    assert ST % 2 == 0 and DK + ST <= 8
    for s in range(DK + ST):
        if s == early:
            A("s_barrier")
            stamp(A, P, 0)
        if s >= lead: A(f"s_waitcnt vmcnt({8*(lead-1)})")
        issue("K", s, S_KO)
        A(f"s_add_u32 s{S_KO}, s{S_KO}, {STEP}")
    if early >= DK + ST:
        A("s_barrier")
    stamp(A, P, 1)
    VQ = 8
    VSW, VSR = 12, 13
    VMX = 14
    VSC = 16
    VM = 24
    VACC = 28
    VMC, VL_ = 32, 33
    VS = 36
    VP = 44
    VB = 52
    VT = 64
    VD = 68
    VPK = 100
    A("v_and_b32 v6, 3, v0")
    A("v_bfe_u32 v7, v0, 3, 1")
    A("v_lshl_add_u32 v6, v7, 2, v6")
    A("v_and_b32 v7, 1, v6")
    A("v_mov_b32 v64, 0xffff")
    A("v_lshlrev_b32 v7, 4, v7")
    A("v_lshlrev_b32 v64, v7, v64")
    A("v_lshrrev_b32 v6, 1, v6")
    for q in range(4):
        A(f"v_cmp_eq_u32 vcc, {q}, v6")
        A(f"v_cndmask_b32 v{VM+q}, 0, v64, vcc")
    for k in range(4): A(f"v_mov_b32 v{VACC+k}, 0")
    A(f"v_mov_b32 v{VMX}, 0xff800000")
    A(f"v_mov_b32 v{VL_}, 0")
    A("v_bfe_u32 v6, v0, 2, 1")
    A("v_lshrrev_b32 v7, 4, v0")
    A("v_lshl_add_u32 v7, v6, 2, v7")
    A("v_lshlrev_b32 v7, 4, v7")
    A("s_lshl_b32 s64, s66, 13")
    A(f"s_add_u32 s64, s64, {SCORES}")
    A(f"v_add_u32 v{VSW}, s64, v7")
    A(f"v_mov_b32 v{VSR}, v{VSW}")
    A("v_lshlrev_b32 v6, 8, v6")
    A("v_lshrrev_b32 v7, 4, v0")
    A("v_lshl_add_u32 v6, v7, 6, v6")
    A("v_and_b32 v7, 3, v0")
    A("v_lshl_add_u32 v6, v7, 4, v6")
    A(f"s_mov_b32 s72, {hex(f2u(SCALE))}")
    A(f"s_mov_b32 s73, {hex(f2u(LOG2E))}")
    A("v_mov_b32 v34, 0")
    A("s_waitcnt lgkmcnt(0)")
    A(f"s_add_u32 s{S_EPN}, s{S_EPO}, 1")
    A(f"s_mul_i32 s{S_TAG}, s{S_EPN}, 0x9E3779B1")
    A(f"s_xor_b32 s{S_TAG}, s{S_TAG}, 0x5bd1e995")
    wait_lds(A, "L_qwait", QRDY, 1, 1, tv=66)
    A(f"ds_read_b128 v[{VQ}:{VQ+3}], v6 offset:{Q_LDS}")
    A("s_waitcnt lgkmcnt(0)")
    stamp(A, P, 2)
    A(f"s_mov_b32 s{S_CLM}, 1")
    A(f"s_atomic_add s{S_CLM}, s[{S_POOL}:{S_POOL+1}], 0 glc")

    def progress():
        A(f"s_add_u32 s{S_IT}, s{S_IT}, 1")
        A(f"v_mov_b32 v35, s{S_IT}")
        A(f"ds_write_b32 v34, v35 offset:{PROG}")
        if P.get("stamps"):
            for idx, itv in ((5, 32 // NA), (6, 96 // NA), (7, 160 // NA), (10, 208 // NA)):
                l = A.uniq("L_st")
                A(f"s_cmp_lg_u32 s{S_IT}, {itv}")
                A(f"s_cbranch_scc1 {l}")
                stamp(A, P, idx)
                A.lab(l)
    def qk_mfma(s):
        for n in range(8):
            A(f"v_mfma_f32_16x16x32_bf16 {vr(VD+4*n,4)}, {ar(UA(s,n),4)}, {vr(VQ,4)}, 0")
    def qk_reduce():
        for c in range(4):
            for n in range(8):
                pat = f"quad_perm:[{c},{c},{c},{c}] row_mask:0xf bank_mask:0xf"
                if c == 0: A(f"v_mov_b32_dpp v{VS+n}, v{VD+4*n} {pat}")
                else: A(f"v_add_f32_dpp v{VS+n}, v{VD+4*n+c}, v{VS+n} {pat}")
        for k in range(0, 8, 2):
            A(f"v_cvt_pk_bf16_f32 v{VT+(k>>1)}, v{VS+k}, v{VS+k+1}")
        for k in range(0, 8, 2):
            A(f"v_lshlrev_b32 v{VS+k}, 16, v{VT+(k>>1)}")
            A(f"v_and_b32 v{VS+k+1}, 0xffff0000, v{VT+(k>>1)}")
        for k in range(8): A(f"v_mul_f32 v{VS+k}, s72, v{VS+k}")
        for k in range(0, 8, 2):
            A(f"v_cvt_pk_bf16_f32 v{VPK+(k>>1)}, v{VS+k}, v{VS+k+1}")
    def unpack(src):
        for k in range(4):
            A(f"v_lshlrev_b32 v{VS+2*k}, 16, v{src+k}")
            A(f"v_and_b32 v{VS+2*k+1}, 0xffff0000, v{src+k}")
    def pv(s):
        for k in range(8): A(f"v_fma_f32 v{VP+k}, v{VS+k}, s73, -v{VMC}")
        for k in range(8): A(f"v_exp_f32 v{VP+k}, v{VP+k}")
        def prep(k):
            bb = VB + 4 * (k % 3)
            A(f"v_cvt_pk_bf16_f32 v{VT+2}, v{VP+k}, v{VP+k}")
            for q in range(4): A(f"v_and_b32 v{bb+q}, v{VT+2}, v{VM+q}")
        prep(0); prep(1)
        A(f"v_add_f32 v{VT}, v{VP}, v{VP+1}")
        A(f"v_add_f32 v{VT+1}, v{VP+2}, v{VP+3}")
        A(f"s_waitcnt vmcnt({8*(DK-1)})")
        for k in range(8):
            bb = VB + 4 * (k % 3)
            A(f"v_mfma_f32_16x16x32_bf16 {vr(VACC,4)}, {ar(UA(s,k),4)}, {vr(bb,4)}, {vr(VACC,4)}")
            if k + 2 < 8: prep(k + 2)
            if k == 1: A(f"v_add_f32 v{VT}, v{VT}, v{VP+4}"); A(f"v_add_f32 v{VT+1}, v{VT+1}, v{VP+5}")
            if k == 2: A(f"v_add_f32 v{VT}, v{VT}, v{VP+6}"); A(f"v_add_f32 v{VT+1}, v{VT+1}, v{VP+7}")
            if k == 3: A(f"v_add_f32 v{VT}, v{VT}, v{VT+1}"); A(f"v_add_f32 v{VL_}, v{VL_}, v{VT}")
    PH = P.get("ph", 0)
    PF = POOL - PH
    S_HF = [81, 82, 83, 84]
    def pool_refill(s):
        po, hf = S_PO[s >> 1], S_HF[s >> 1]
        if s & 1:
            A(f"v_add_u32 v{VV1P}, s{hf}, v{VV0}")
            issue("V", s, po, True)
            return
        ldead, lgo, lhalf, lclaim = A.uniq("L_dead"), A.uniq("L_go"), A.uniq("L_half"), A.uniq("L_claim")
        A("s_waitcnt lgkmcnt(0)")
        A(f"s_cmp_lt_u32 s{S_CLM}, {PF + 2 * PH}")
        A(f"s_cbranch_scc0 {ldead}")
        A(f"s_cmp_lt_u32 s{S_CLM}, {PF}")
        A(f"s_cbranch_scc0 {lhalf}")
        A(f"s_add_u32 s{po}, s{S_CLM}, {1024 - POOL}")
        A(f"s_lshl_b32 s{po}, s{po}, 13")
        A(f"s_mov_b32 s{hf}, 4096")
        A(f"s_branch {lclaim}")
        A.lab(lhalf)
        A(f"s_add_u32 s{po}, s{S_CLM}, {2 * (1024 - PH) - PF}")
        A(f"s_lshl_b32 s{po}, s{po}, 12")
        A(f"s_mov_b32 s{hf}, 0x40000000")
        A.lab(lclaim)
        A(f"s_add_u32 s{S_PV}, s{S_PV}, 1")
        A(f"s_mov_b32 s{S_CLM}, 1")
        A(f"s_atomic_add s{S_CLM}, s[{S_POOL}:{S_POOL+1}], 0 glc")
        A(f"s_branch {lgo}")
        A.lab(ldead)
        A(f"s_mov_b32 s{SRD_K+2}, 0")
        A(f"s_mov_b32 s{SRD_V+2}, 0")
        A(f"s_mov_b32 s{po}, 0")
        A(f"s_mov_b32 s{hf}, 4096")
        if P.get("wo_late", True) and P.get("wo_at", "b2") == "dead":
            lonce = A.uniq("L_once")
            A("s_cmp_eq_u32 s80, 0")
            A(f"s_cbranch_scc0 {lonce}")
            A("s_mov_b32 s80, 1")
            A("v_mov_b32 v35, 1")
            A(f"ds_add_u32 v34, v35 offset:{DEADF}")
            A.lab(lonce)
        A.lab(lgo)
        A(f"v_add_u32 v{VK1P}, s{hf}, v{VK0}")
        issue("K", s, po, True)

    def k_tail():
        qk_reduce()
        for k in range(0, 8, 2): A(f"v_max3_f32 v{VMX}, v{VMX}, v{VS+k}, v{VS+k+1}")
        A("s_mov_b32 exec_lo, 0x00110011")
        A("s_mov_b32 exec_hi, 0x00110011")
        A(f"ds_write_b128 v{VSW}, v[{VPK}:{VPK+3}]")
        A("s_mov_b64 exec, -1")
        A(f"v_add_u32 v{VSW}, 128, v{VSW}")
        progress()
        A(f"s_sub_u32 s{S_PK}, s{S_PK}, 1")
    if ST:
        for s in range(DK):
            A(f"s_waitcnt vmcnt({8*(ST+DK-1)})")
            qk_mfma(s)
            issue("K", s, S_KO)
            A(f"s_add_u32 s{S_KO}, s{S_KO}, {STEP}")
            A(f"s_sub_u32 s{S_RK}, s{S_RK}, 1")
            k_tail()
        for k in range(DK, ST + DK):
            A(f"s_waitcnt vmcnt({8*(ST+DK-1-k+DK)})")
            qk_mfma(k)
            k_tail()
    A.lab("L_kloop")
    for s in range(DK):
        A.lab(f"L_k{s}")
        A(f"s_waitcnt vmcnt({8*(DK-1)})")
        qk_mfma(s)
        lv, lr = A.uniq("L_kv"), A.uniq("L_kr")
        A(f"s_cmp_eq_u32 s{S_RK}, 0")
        A(f"s_cbranch_scc1 {lv}")
        issue("K", s, S_KO)
        A(f"s_add_u32 s{S_KO}, s{S_KO}, {STEP}")
        A(f"s_sub_u32 s{S_RK}, s{S_RK}, 1")
        A(f"s_branch {lr}")
        A.lab(lv)
        issue("V", s, S_VO)
        A(f"s_add_u32 s{S_VO}, s{S_VO}, {STEP}")
        A(f"s_sub_u32 s{S_RV}, s{S_RV}, 1")
        A.lab(lr)
        k_tail()
        A(f"s_cmp_eq_u32 s{S_PK}, 0")
        if s < DK - 1:
            A(f"s_cselect_b32 s{S_NXT}, {s+1}, s{S_NXT}")
            A("s_cbranch_scc1 L_kdone")
        else:
            A(f"s_cselect_b32 s{S_NXT}, 0, s{S_NXT}")
            A("s_cbranch_scc0 L_kloop")
    A.lab("L_kdone")
    round_bf16(A, VMC, VMX)
    A(f"v_mul_f32 v{VMC}, s73, v{VMC}")
    swap16(A, VMC, VT, "v_max_f32")
    swap32(A, VMC, VT, "v_max_f32")
    A("s_waitcnt lgkmcnt(0)")
    stamp(A, P, 12)
    for s in range(DK):
        l = A.uniq("L_kn")
        A(f"s_cmp_lg_u32 s{S_NXT}, {s}")
        A(f"s_cbranch_scc1 {l}")
        A(f"ds_read_b128 v[{VSC+4*(s&1)}:{VSC+4*(s&1)+3}], v{VSR}")
        A(f"s_branch L_v{s}")
        A.lab(l)
    A.lab("L_vloop")
    for s in range(DK):
        A.lab(f"L_v{s}")
        A("s_waitcnt lgkmcnt(0)")
        nb = (s + 1) & 1
        A(f"ds_read_b128 v[{VSC+4*nb}:{VSC+4*nb+3}], v{VSR} offset:128")
        A(f"v_add_u32 v{VSR}, 128, v{VSR}")
        unpack(VSC + 4 * (s & 1))
        pv(s)
        lp, lr = A.uniq("L_vp"), A.uniq("L_vr")
        A(f"s_cmp_eq_u32 s{S_RV}, 0")
        A(f"s_cbranch_scc1 {lp}")
        issue("V", s, S_VO)
        A(f"s_add_u32 s{S_VO}, s{S_VO}, {STEP}")
        A(f"s_sub_u32 s{S_RV}, s{S_RV}, 1")
        A(f"s_branch {lr}")
        A.lab(lp)
        pool_refill(s)
        A.lab(lr)
        progress()
        A(f"s_sub_u32 s{S_PVS}, s{S_PVS}, 1")
        if s & 1:
            A(f"s_cmp_eq_u32 s{S_PVS}, 0")
            A(f"s_cbranch_scc1 L_p{((s + 1) % DK) >> 1}")
        if s == DK - 1: A("s_branch L_vloop")
    A.lab("L_ploop")
    for a in range(DK // 2):
        sk, sv = 2 * a, 2 * a + 1
        A.lab(f"L_p{a}")
        A(f"s_cmp_eq_u32 s{S_PV}, 0")
        A("s_cbranch_scc1 L_att_done")
        A(f"s_sub_u32 s{S_PV}, s{S_PV}, 1")
        A(f"s_waitcnt vmcnt({8*(DK-1)})")
        qk_mfma(sk)
        A(f"s_mov_b32 s85, s{S_HF[a]}")
        pool_refill(sk)
        qk_reduce()
        unpack(VPK)
        lfull = A.uniq("L_full")
        A("s_cmp_eq_u32 s85, 4096")
        A(f"s_cbranch_scc1 {lfull}")
        for k in range(4, 8): A(f"v_mov_b32 v{VS+k}, 0xff800000")
        A.lab(lfull)
        A(f"v_max3_f32 v{VT}, v{VS}, v{VS+1}, v{VS+2}")
        A(f"v_max3_f32 v{VT}, v{VT}, v{VS+3}, v{VS+4}")
        A(f"v_max3_f32 v{VT}, v{VT}, v{VS+5}, v{VS+6}")
        A(f"v_max_f32 v{VT}, v{VT}, v{VS+7}")
        A(f"v_mul_f32 v{VT}, s73, v{VT}")
        A(f"v_cmp_gt_f32 vcc, v{VT}, v{VMC}")
        skip = A.uniq("L_nomax")
        A(f"s_cbranch_vccz {skip}")
        swap16(A, VT, VT + 1, "v_max_f32")
        swap32(A, VT, VT + 1, "v_max_f32")
        A(f"v_max_f32 v{VT}, v{VT}, v{VMC}")
        A(f"v_sub_f32 v{VT+1}, v{VMC}, v{VT}")
        A(f"v_exp_f32 v{VT+1}, v{VT+1}")
        A(f"v_mov_b32 v{VMC}, v{VT}")
        for k in range(4): A(f"v_mul_f32 v{VACC+k}, v{VACC+k}, v{VT+1}")
        A(f"v_mul_f32 v{VL_}, v{VL_}, v{VT+1}")
        A.lab(skip)
        pv(sv)
        pool_refill(sv)
        progress()
        progress()
        if a == DK // 2 - 1: A("s_branch L_ploop")
    A.lab("L_att_done")
    A("v_mov_b32 v35, 0xffff")
    A(f"ds_write_b32 v34, v35 offset:{PROG}")
    stamp(A, P, 3)
    if P.get("stamps"): A(f"v_writelane_b32 v253, s{S_IT}, 11")
    swap16(A, VL_, VT, "v_add_f32")
    swap32(A, VL_, VT, "v_add_f32")
    A(f"v_lshlrev_b32 v1, 4, v0")
    A(f"v_lshlrev_b32 v6, 3, v0")
    if NA == 2:
        A(f"s_cmp_eq_u32 s{S_WAVE}, 2")
        A("s_cbranch_scc1 L_att0")
        A(f"ds_write_b128 v1, v[{VACC}:{VACC+3}] offset:{MERGE}")
        A(f"ds_write_b64 v6, v[{VMC}:{VMC+1}] offset:{MERGE + 1024}")
        A("s_waitcnt lgkmcnt(0)")
        A("s_barrier")
        A("s_branch L_att_join")
        A.lab("L_att0")
        A(f"s_lshl_b32 s64, s{S_REC}, 10")
        A(f"s_add_u32 s64, s64, {WS_H1O}")
        A(f"s_lshl_b32 s65, s{S_REC}, 7")
        A(f"s_add_u32 s65, s65, {WS_H1ML}")
        A("s_barrier")
        A(f"ds_read_b128 v[68:71], v1 offset:{MERGE}")
        A(f"ds_read_b64 v[72:73], v6 offset:{MERGE + 1024}")
        A("s_waitcnt lgkmcnt(0)")
        A(f"v_max_f32 v74, v{VMC}, v72")
        A(f"v_sub_f32 v75, v{VMC}, v74")
        A("v_sub_f32 v76, v72, v74")
        A("v_exp_f32 v75, v75")
        A("v_exp_f32 v76, v76")
        for k in range(4):
            A(f"v_mul_f32 v{VACC+k}, v{VACC+k}, v75")
            A(f"v_fmac_f32 v{VACC+k}, v{68+k}, v76")
        A(f"v_mul_f32 v{VL_}, v{VL_}, v75")
        A(f"v_fmac_f32 v{VL_}, v73, v76")
    else:
        A(f"s_lshl_b32 s64, s{S_REC}, 10")
        A(f"s_add_u32 s64, s64, {WS_H1O}")
        A(f"s_lshl_b32 s65, s{S_REC}, 7")
        A(f"s_add_u32 s65, s65, {WS_H1ML}")
        A(f"v_mov_b32 v74, v{VMC}")
    A(f"buffer_store_dwordx4 v[{VACC}:{VACC+3}], v1, s[{SRD_WS}:{SRD_WS+3}], s64 offen {HST}")
    A("v_readlane_b32 s66, v74, 0")
    A(f"v_readlane_b32 s67, v{VL_}, 0")
    A("v_readlane_b32 s68, v74, 4")
    A(f"v_readlane_b32 s69, v{VL_}, 4")
    for k in range(4): A(f"v_mov_b32 v{68+k}, s{66+k}")
    A("s_mov_b64 exec, 0xff")
    A(f"buffer_store_dwordx4 v[68:71], v1, s[{SRD_WS}:{SRD_WS+3}], s65 offen {HST}")
    A("s_mov_b64 exec, -1")
    if P.get("wo_afterpub"):
        A("v_mov_b32 v35, 1")
        A(f"ds_write_b32 v34, v35 offset:{PUBD}")
    stamp(A, P, 4)
    if NA == 1: A("s_barrier")
    A.lab("L_att_join")
    A(f"s_cmp_eq_u32 s{S_WCB}, 255")
    A("s_cbranch_scc1 L_end")
    wo_prep()
    A("s_branch L_wogemv")
    A.lab("L_end")
    stamp_flush(A, P)
    A.lab("L_exit")
    A("s_endpgm")
    body = fix_hazards(A.L[body_start:], verbose=P.get("verbose", False))
    out = A.L[:body_start] + body
    out.append(".p2align 6")
    out.append(".type L_table,@object")
    out.append("L_table:")
    for row in tab: out.append("  .long " + ", ".join(str(v) for v in row))
    out.append(".size L_table, 8192")
    out += ['.section .rodata,"a"', ".p2align 6", f".amdhsa_kernel {NAME}",
            "  .amdhsa_next_free_vgpr 512", "  .amdhsa_next_free_sgpr 102", "  .amdhsa_accum_offset 256",
            "  .amdhsa_group_segment_fixed_size 0", "  .amdhsa_kernarg_size 96", "  .amdhsa_user_sgpr_count 2",
            "  .amdhsa_user_sgpr_kernarg_segment_ptr 1", "  .amdhsa_system_sgpr_workgroup_id_x 1",
            "  .amdhsa_float_denorm_mode_32 3",
            ".end_amdhsa_kernel"]
    return "\n".join(out) + "\n"

if __name__ == "__main__":
    P = eval(sys.argv[2]) if len(sys.argv) > 2 else {}
    P.setdefault("verbose", True)
    s = gen(P)
    open(sys.argv[1] if len(sys.argv) > 1 else "k.s", "w").write(s)
```

```python
import struct, sys, math
from asmlib import Asm, fix_hazards, vr, ar, sr

NAME = "recurrent_scan__gqa_block_cached__geglu_ffn__decode_kernel"

def f2u(x): return struct.unpack("<I", struct.pack("<f", x))[0]

WS_EPOCH = 0
WS_QP   = 0x001000
WS_H1O  = 0x050000
WS_H1ML = 0x090000
WS_GU   = 0x0A0000
WS_YP   = 0x100000
WS_SP   = 0x1B0000
WS_CNT  = 0x1E0000
WS_DBG  = 0x200000
WS_SIZE = 0x400000

X_LN, XROW = 0, 1184
Q_LDS = 2432
X2, X2ROW = 3072, 576
X3, X3ROW = 4352, 192
MERGE = 4864
PROG = 2368
QRDY = 2372
QPUB = 2376
DEADF = 2380
PUBD = 2384
T_WQ = 6400
XH = T_WQ
T_WO = T_WQ + 20480
T_FFN = T_WO + 32768
SCORES = T_FFN + 73728
LDS_BYTES = SCORES + 16384

LOG2E = 1.4426950408889634
SCALE = 128 ** -0.5
POLL_LIMIT = 400000

S_WAVE = 3
S_X, S_K, S_V, S_WQ, S_WO, S_BX, S_WG, S_WU = 4, 6, 8, 10, 12, 14, 16, 18
S_WD, S_OUT, S_DBG, S_WS = 20, 22, 24, 26
S_KV0, S_NSB, S_FT, S_FCB, S_WCB, S_FIN = 28, 29, 30, 31, 32, 33
S_HKV, S_B, S_M, S_REC = 36, 37, 38, 39
S_EPO, S_TAG, S_EPN = 40, 41, 42
SRD_K, SRD_V, SRD_WS, SRD_T, SRD_U = 44, 48, 52, 56, 60
SG1, SG2, SG3 = 80, 82, 84
S_CNT = 91
S_T0 = 92

def make_table(wside=0.8, c_ffn=72.0, c_wo=0.0, c_fin=12.0, pool=128, adj=None):
    info = {w: dict(x=w & 7, g=w >> 3, j=w & 7, ft=0, fcb=0, wcb=255, fin=255) for w in range(256)}
    free = lambda w: ((w & 7) == (w >> 3) % 8) or ((w >> 3) < 8 and (w & 7) == ((w >> 3) + 4) % 8)
    e = 0
    for w in range(256):
        if not free(w):
            info[w]["ft"] = 1 + e % 3; info[w]["fcb"] = e // 3; e += 1
    assert e == 216
    xcnt = [0] * 8
    for c in range(16):
        chosen = []
        quota = {2 * c: 5 if c % 2 == 0 else 4, 2 * c + 1: 4 if c % 2 == 0 else 5}
        mem = list(range(16 * c, 16 * c + 16))
        for w in mem:
            if free(w): chosen.append(w); quota[w >> 3] -= 1; xcnt[w & 7] += 1
        while len(chosen) < 9:
            cand = [w for w in mem if w not in chosen and quota[w >> 3] > 0]
            w = min(cand, key=lambda v: (xcnt[v & 7], v))
            chosen.append(w); quota[w >> 3] -= 1; xcnt[w & 7] += 1
        for cb, w in enumerate(chosen): info[w]["wcb"] = cb
    frees = [w for w in range(64) if free(w)]
    more = [w for w in range(64, 256) if free(w)]
    fins = [frees[0], frees[3], frees[4], frees[7], frees[8], frees[11], frees[12], frees[15], more[5]]
    assert len(fins) == 9
    for f, w in enumerate(fins): info[w]["fin"] = f
    static_total = 1024 - pool
    for g in range(32):
        ws_ = list(range(8 * g, 8 * g + 8))
        side = []
        for w in ws_:
            i = info[w]
            sd = (c_ffn if i["ft"] else 0) + (c_wo if i["wcb"] != 255 else 0) + (c_fin if i["fin"] != 255 else 0)
            if adj: sd += adj(w, i)
            side.append(sd * wside)
        tot = static_total * 16 + sum(side)
        ideal = [(tot / 8 - sd) / 16 for sd in side]
        n = [int(math.floor(v)) for v in ideal]
        rem = static_total - sum(n)
        order = sorted(range(8), key=lambda k: -(ideal[k] - n[k]))
        for k in order[:rem]: n[k] += 1
        assert sum(n) == static_total and min(n) >= 16 and max(n) <= 126
        st = 0
        for k, w in enumerate(ws_):
            info[w]["kv0"] = st; info[w]["nsb"] = n[k]; st += n[k]
        info[ws_[0]]["side_total"] = sum(side)
    tab = [[info[w]["kv0"], info[w]["nsb"], info[w]["ft"], info[w]["fcb"], info[w]["wcb"], info[w]["fin"], 0, 0] for w in range(256)]
    return tab, info

def gemv(A, nsteps, cts, a_read, tr_read, acc, abuf, bbuf, nbuf):
    reads = []
    last = {}
    for n in range(nsteps):
        reads.append((n, a_read(n, abuf(n % nbuf))))
        for ct in cts:
            for u in range(2):
                reads.append((n, tr_read(n, ct, u, bbuf(n % nbuf, ct) + 2 * u)))
            last[(n, ct)] = len(reads) - 1
    issued = 0; done = 0
    for n in range(nsteps):
        for ci, ct in enumerate(cts):
            while issued < len(reads) and (issued - done) < 15 and reads[issued][0] < n + nbuf - (0 if ci == 0 or True else 0):
                if reads[issued][0] - nbuf >= n: break
                A(reads[issued][1]); issued += 1
            need = last[(n, ct)]
            assert issued > need, (issued, need, n, ct)
            if done <= need:
                k = issued - 1 - need
                A(f"s_waitcnt lgkmcnt({k})")
                done = need + 1
            c = "0" if n == 0 else vr(acc(ct), 4)
            A(f"v_mfma_f32_16x16x32_bf16 {vr(acc(ct),4)}, {vr(abuf(n % nbuf),4)}, {vr(bbuf(n % nbuf, ct),4)}, {c}")

def poll_begin(A, name):
    A(f"s_mov_b32 s{S_CNT}, {POLL_LIMIT}")
    A.lab(name)

def poll_end(A, name, sleep):
    ok = name + "_ok"
    A(f"s_cbranch_vccz {ok}")
    A(f"s_sub_u32 s{S_CNT}, s{S_CNT}, 1")
    A(f"s_cmp_eq_u32 s{S_CNT}, 0")
    A(f"s_cbranch_scc1 {ok}")
    if sleep: A(f"s_sleep {sleep}")
    A(f"s_branch {name}")
    A.lab(ok)

def wait_progress(A, name, thr):
    A(f"s_mov_b32 s{S_CNT}, {POLL_LIMIT}")
    A("v_mov_b32 v250, 0")
    A.lab(name)
    A(f"ds_read_b32 v251, v250 offset:{PROG}")
    A("s_waitcnt lgkmcnt(0)")
    A("v_readfirstlane_b32 s90, v251")
    A(f"s_cmp_ge_u32 s90, {thr}")
    A(f"s_cbranch_scc1 {name}_ok")
    A(f"s_sub_u32 s{S_CNT}, s{S_CNT}, 1")
    A(f"s_cmp_eq_u32 s{S_CNT}, 0")
    A(f"s_cbranch_scc1 {name}_ok")
    A("s_sleep 8")
    A(f"s_branch {name}")
    A.lab(name + "_ok")

def wait_lds(A, name, off, thr, sleep, tv=250):
    A(f"s_mov_b32 s{S_CNT}, {POLL_LIMIT * 8}")
    A(f"v_mov_b32 v{tv}, 0")
    A.lab(name)
    A(f"ds_read_b32 v{tv+1}, v{tv} offset:{off}")
    A("s_waitcnt lgkmcnt(0)")
    A(f"v_readfirstlane_b32 s90, v{tv+1}")
    A(f"s_cmp_ge_u32 s90, {thr}")
    A(f"s_cbranch_scc1 {name}_ok")
    A(f"s_sub_u32 s{S_CNT}, s{S_CNT}, 1")
    A(f"s_cmp_eq_u32 s{S_CNT}, 0")
    A(f"s_cbranch_scc1 {name}_ok")
    if sleep: A(f"s_sleep {sleep}")
    A(f"s_branch {name}")
    A.lab(name + "_ok")

def wait_counter(A, name, off, thr, sleep):
    A(f"s_mov_b32 s{S_CNT}, {POLL_LIMIT}")
    A.lab(name)
    A("s_mov_b32 s90, 0")
    A(f"s_atomic_add s90, s[{S_DBG}:{S_DBG+1}], {off} glc")
    A("s_waitcnt lgkmcnt(0)")
    A(f"s_cmp_ge_u32 s90, {thr}")
    A(f"s_cbranch_scc1 {name}_ok")
    A(f"s_sub_u32 s{S_CNT}, s{S_CNT}, 1")
    A(f"s_cmp_eq_u32 s{S_CNT}, 0")
    A(f"s_cbranch_scc1 {name}_ok")
    A(f"s_sleep {sleep}")
    A(f"s_branch {name}")
    A.lab(name + "_ok")

def check_tags(A, tags, t):
    A(f"v_max3_u32 v{t}, v{tags[0]}, v{tags[1]}, v{tags[2]}")
    A(f"v_min3_u32 v{t+1}, v{tags[0]}, v{tags[1]}, v{tags[2]}")
    rest = tags[3:]
    for k in range(0, len(rest), 2):
        a = rest[k]; b_ = rest[min(k + 1, len(rest) - 1)]
        A(f"v_max3_u32 v{t}, v{t}, v{a}, v{b_}")
        A(f"v_min3_u32 v{t+1}, v{t+1}, v{a}, v{b_}")
    A(f"v_xor_b32 v{t}, v{t}, v{t+1}")
    A(f"v_xor_b32 v{t+1}, s{S_TAG}, v{t+1}")
    A(f"v_or_b32 v{t}, v{t}, v{t+1}")
    A(f"v_cmp_ne_u32 vcc, 0, v{t}")

def reduce16(A, v, op="v_add_f32"):
    for k in (8, 4, 2, 1):
        A(f"{op}_dpp {vr(v)}, {vr(v)}, {vr(v)} row_ror:{k} row_mask:0xf bank_mask:0xf")

def swap16(A, v, t, op):
    A(f"v_mov_b32 {vr(t)}, {vr(v)}")
    A(f"v_permlane16_swap_b32 {vr(v)}, {vr(t)}")
    A(f"{op} {vr(v)}, {vr(v)}, {vr(t)}")

def swap32(A, v, t, op):
    A(f"v_mov_b32 {vr(t)}, {vr(v)}")
    A(f"v_permlane32_swap_b32 {vr(v)}, {vr(t)}")
    A(f"{op} {vr(v)}, {vr(v)}, {vr(t)}")

def round_bf16(A, dst, src):
    A(f"v_cvt_pk_bf16_f32 {vr(dst)}, {vr(src)}, {vr(src)}")
    A(f"v_and_b32 {vr(dst)}, 0xffff0000, {vr(dst)}")

def srd(A, base, ptr, nrec, off=None):
    if off is None:
        A(f"s_mov_b32 s{base}, s{ptr}")
        A(f"s_mov_b32 s{base+1}, s{ptr+1}")
    else:
        lo, hi = off
        A(f"s_add_u32 s{base}, s{ptr}, s{lo}")
        A(f"s_addc_u32 s{base+1}, s{ptr+1}, {hi}")
    A(f"s_mov_b32 s{base+2}, {nrec}")
    A(f"s_mov_b32 s{base+3}, 0x20000")

def stamp(A, P, idx):
    if not P.get("stamps"): return
    A("s_memrealtime s[92:93]")
    A("s_waitcnt lgkmcnt(0)")
    A(f"v_writelane_b32 v253, s92, {idx}")

def stamp_flush(A, P):
    if not P.get("stamps"): return
    if P.get("stamps_dbg"):
        wv, w0, w1 = P["stamps_dbg"]
        A(f"s_cmp_lg_u32 s{S_WAVE}, {wv}")
        A("s_cbranch_scc1 L_exit")
        A(f"s_cmp_eq_u32 s2, {w0}")
        A("s_cselect_b32 s94, 0, 255")
        A(f"s_cmp_eq_u32 s2, {w1}")
        A("s_cselect_b32 s94, 32, s94")
        A("s_cmp_eq_u32 s94, 255")
        A("s_cbranch_scc1 L_exit")
        A("v_readlane_b32 s95, v253, 15")
        A("s_nop 3")
        A("v_subrev_u32 v253, s95, v253")
        srd(A, SRD_U, S_DBG, 256)
        A("v_lshlrev_b32 v254, 2, v0")
        A("s_mov_b64 exec, 0xff")
        A(f"buffer_store_dword v253, v254, s[{SRD_U}:{SRD_U+3}], s94 offen")
        return
    A(f"s_lshl_b32 s94, s2, 2")
    A(f"s_add_u32 s94, s94, s{S_WAVE}")
    A(f"s_lshl_b32 s94, s94, 6")
    A(f"s_add_u32 s94, s94, {WS_DBG}")
    A("v_lshlrev_b32 v254, 2, v0")
    A("s_mov_b64 exec, 0xffff")
    A(f"buffer_store_dword v253, v254, s[{SRD_WS}:{SRD_WS+3}], s94 offen")

def dma_voff(A, vE, vO, stride, vL, t0, t1):
    A(f"v_lshrrev_b32 {vr(t0)}, 3, {vr(vL)}")
    A(f"s_mov_b32 s64, {stride}")
    A(f"v_mul_lo_u32 {vr(vE)}, {vr(t0)}, s64")
    A(f"v_bfe_u32 {vr(t0)}, {vr(vL)}, 4, 1")
    A(f"v_lshlrev_b32 {vr(t0)}, 1, {vr(t0)}")
    A(f"v_and_b32 {vr(t1)}, 7, {vr(vL)}")
    A(f"v_xor_b32 {vr(t0)}, {vr(t0)}, {vr(t1)}")
    A(f"v_lshl_add_u32 {vr(vE)}, {vr(t0)}, 4, {vr(vE)}")
    A(f"v_xor_b32 {vr(vO)}, 64, {vr(vE)}")

def tr_addr(A, vT, vL, t0, t1):
    A(f"v_lshrrev_b32 {vr(t0)}, 4, {vr(vL)}")
    A(f"v_bfe_u32 {vr(t1)}, {vr(vL)}, 2, 2")
    A(f"v_lshl_add_u32 {vr(vT)}, {vr(t0)}, 3, {vr(t1)}")
    A(f"v_lshlrev_b32 {vr(vT)}, 7, {vr(vT)}")
    A(f"v_and_b32 {vr(t0)}, 1, {vr(t0)}")
    A(f"v_lshlrev_b32 {vr(t0)}, 1, {vr(t0)}")
    A(f"v_lshrrev_b32 {vr(t1)}, 1, {vr(t1)}")
    A(f"v_or_b32 {vr(t0)}, {vr(t0)}, {vr(t1)}")
    A(f"v_lshlrev_b32 {vr(t0)}, 1, {vr(t0)}")
    A(f"v_bfe_u32 {vr(t1)}, {vr(vL)}, 1, 1")
    A(f"v_xor_b32 {vr(t0)}, {vr(t0)}, {vr(t1)}")
    A(f"v_lshl_add_u32 {vr(vT)}, {vr(t0)}, 4, {vr(vT)}")
    A(f"v_and_b32 {vr(t0)}, 1, {vr(vL)}")
    A(f"v_lshl_add_u32 {vr(vT)}, {vr(t0)}, 3, {vr(vT)}")
    for ct in range(1, 4):
        A(f"v_xor_b32 {vr(vT+ct)}, {32*ct}, {vr(vT)}")

def sel_by_group(A, dst, regs):
    A(f"v_cndmask_b32 {vr(dst)}, {vr(regs[0])}, {vr(regs[1])}, s[{SG1}:{SG1+1}]")
    A(f"v_cndmask_b32 {vr(dst)}, {vr(dst)}, {vr(regs[2])}, s[{SG2}:{SG2+1}]")
    A(f"v_cndmask_b32 {vr(dst)}, {vr(dst)}, {vr(regs[3])}, s[{SG3}:{SG3+1}]")

def gen(P=None):
    P = P or {}
    D = P.get("D", 2)
    FL = P.get("kvflags", "nt")
    FLK = P.get("kflags", FL); FLV = P.get("vflags", FL)
    HST = P.get("hst", "sc1"); HLD = P.get("hld", "sc1")
    WFL = P.get("wflags", "nt")
    tab, info = make_table(**P.get("table", {}))
    if P.get("no_ffn"):
        for row in tab: row[2] = 0; row[5] = 255
    if P.get("only_gu"):
        for row in tab:
            if row[2] == 3: row[2] = 0
            row[5] = 255
    if P.get("only_dn"):
        for row in tab:
            if row[2] in (1, 2): row[2] = 0
            row[5] = 255
    if P.get("no_y"):
        for row in tab: row[5] = 255
    if P.get("no_wo"):
        for row in tab: row[4] = 255; row[5] = 255
    A = Asm()
    A.L += open(P.get("header", "recurrent_scan__gqa_block_cached__geglu_ffn__decode.s.ref")).read().split("; Override launch")[0].rstrip("\n").split("\n")
    A.L.append(f"; @launch grid=(256,1,1) block=(256,1,1) lds={LDS_BYTES}")
    A('.amdgcn_target "amdgcn-amd-amdhsa--gfx950"')
    A(".text")
    A(f".globl {NAME}")
    A(".p2align 8")
    A(f".type {NAME},@function")
    body_start = len(A.L)
    A.lab(NAME)
    if P.get("diag_entry"): A("s_memrealtime s[98:99]")
    A("s_cmp_ge_u32 s2, 256")
    A("s_cbranch_scc1 L_exit")
    A("s_load_dwordx16 s[4:19], s[0:1], 0")
    A("s_load_dwordx8 s[20:27], s[0:1], 64")
    A("s_getpc_b64 s[64:65]")
    A.lab("L_pc")
    A("s_add_u32 s64, s64, L_table-L_pc")
    A("s_addc_u32 s65, s65, 0")
    A("s_lshl_b32 s66, s2, 5")
    A("s_add_u32 s64, s64, s66")
    A("s_addc_u32 s65, s65, 0")
    A("s_load_dwordx8 s[28:35], s[64:65], 0")
    A("v_lshrrev_b32 v1, 6, v0")
    A("v_and_b32 v0, 63, v0")
    A(f"v_readfirstlane_b32 s{S_WAVE}, v1")
    if P.get("stamps"):
        A("v_mov_b32 v253, 0")
        stamp(A, P, 15)
    A(f"s_lshr_b32 s{S_HKV}, s2, 4")
    A(f"s_and_b32 s{S_M}, s2, 15")
    A(f"s_lshr_b32 s{S_B}, s{S_M}, 3")
    A(f"s_mov_b32 s{S_REC}, s2")
    if P.get("early_init", False):
        A("v_mov_b32 v20, 0")
        for off in (PROG, QRDY, QPUB, DEADF, PUBD): A(f"ds_write_b32 v20, v20 offset:{off}")
    A(f"s_mov_b32 s{SG1}, 0xffff0000")
    A(f"s_mov_b32 s{SG1+1}, 0")
    A(f"s_mov_b32 s{SG2}, 0")
    A(f"s_mov_b32 s{SG2+1}, 0xffff")
    A(f"s_mov_b32 s{SG3}, 0")
    A(f"s_mov_b32 s{SG3+1}, 0xffff0000")
    A("s_waitcnt lgkmcnt(0)")
    if (P.get("dbgdur") or P.get("diag_hold")) and not P.get("diag_entry"): A("s_memrealtime s[98:99]")
    if P.get("diag_entry") and P.get("dbgdur"):
        A("s_memrealtime s[100:101]")
        A("s_waitcnt lgkmcnt(0)")
        A("s_sub_u32 s35, s100, s98")
    A(f"s_load_dword s{S_EPO}, s[{S_WS}:{S_WS+1}], {WS_EPOCH}")
    srd(A, SRD_WS, S_WS, WS_SIZE)
    A(f"s_cmp_ge_u32 s{S_WAVE}, 2")
    A("s_cbranch_scc1 L_att")
    A(f"s_cmp_eq_u32 s{S_WAVE}, 1")
    A("s_cbranch_scc1 L_s1")

    vL = 0
    if P.get("prio_s0"): A(f"s_setprio {P['prio_s0']}")
    A("v_lshlrev_b32 v1, 4, v0")
    for k in range(4): A(f"v_mov_b32 v{4+k}, -1")
    A(f"s_lshl_b32 s64, s{S_REC}, 10")
    A(f"s_add_u32 s64, s64, {WS_H1O}")
    A(f"buffer_store_dwordx4 v[4:7], v1, s[{SRD_WS}:{SRD_WS+3}], s64 offen sc1")
    A(f"s_lshl_b32 s65, s{S_REC}, 7")
    A(f"s_add_u32 s65, s65, {WS_H1ML}")
    A("s_mov_b64 exec, 0xff")
    A(f"buffer_store_dwordx4 v[4:7], v1, s[{SRD_WS}:{SRD_WS+3}], s65 offen sc1")
    A("s_mov_b64 exec, -1")
    A("s_and_b32 s64, s2, 7")
    A("s_cmp_lg_u32 s64, 0")
    A("s_cbranch_scc1 L_nocnt")
    A("s_lshr_b32 s64, s2, 3")
    A("s_lshl_b32 s64, s64, 8")
    A(f"s_add_u32 s64, s64, {WS_CNT}")
    A("v_mov_b32 v8, 0")
    A("s_mov_b64 exec, 1")
    A(f"buffer_store_dword v8, v1, s[{SRD_WS}:{SRD_WS+3}], s64 offen sc1")
    A("s_mov_b64 exec, -1")
    A.lab("L_nocnt")
    srd(A, SRD_U, S_X, 2304)
    A("v_lshrrev_b32 v2, 5, v0")
    A("v_mul_u32_u24 v2, 1152, v2")
    A("v_and_b32 v3, 31, v0")
    A("v_lshl_add_u32 v2, v3, 2, v2")
    for n in range(9):
        A(f"buffer_load_dword v{8+n}, v2, s[{SRD_U}:{SRD_U+3}], 0 offen offset:{128*n}")
    srd(A, SRD_T, S_WQ, 576 * 8192)
    dma_voff(A, 18, 19, 8192, vL, 20, 21)
    A(f"s_lshr_b32 s66, s{S_M}, 2")
    A(f"s_mul_i32 s67, s66, {144*8192}")
    A(f"s_and_b32 s68, s{S_M}, 3")
    A(f"s_lshl_b32 s68, s68, 7")
    A("s_add_u32 s67, s67, s68")
    A(f"s_lshl_b32 s68, s{S_HKV}, 9")
    A("s_add_u32 s67, s67, s68")
    A(f"s_mov_b32 s68, {T_WQ}")
    A("s_mov_b32 s69, 9")
    A.lab("L_wqdma")
    for par in range(2):
        A("s_mov_b32 m0, s68")
        A("s_add_u32 s68, s68, 1024")
        A(f"buffer_load_dwordx4 v{18+par}, s[{SRD_T}:{SRD_T+3}], s67 offen {WFL} lds")
        A("s_add_u32 s67, s67, 65536")
    A("s_sub_u32 s69, s69, 1")
    A("s_cmp_lg_u32 s69, 0")
    A("s_cbranch_scc1 L_wqdma")
    if not P.get("early_init", False):
        A("v_mov_b32 v20, 0")
        for off in (PROG, QRDY, QPUB, DEADF, PUBD): A(f"ds_write_b32 v20, v20 offset:{off}")
        A("s_waitcnt lgkmcnt(0)")
    A("s_barrier")
    stamp(A, P, 0)
    for k in range(4): A(f"v_mov_b32 v{20+k}, 0")
    A(f"ds_write_b128 v1, v[20:23] offset:{T_WQ + 18432}")
    A(f"ds_write_b128 v1, v[20:23] offset:{T_WQ + 19456}")
    A("v_lshrrev_b32 v24, 3, v0")
    A(f"v_mul_u32_u24 v24, {XROW}, v24")
    A("v_and_b32 v25, 7, v0")
    A("v_lshl_add_u32 v24, v25, 2, v24")
    A("s_mov_b64 exec, 0xffff")
    A(f"ds_write_b32 v24, v20 offset:{X_LN + 1152}")
    A("s_mov_b64 exec, -1")
    tr_addr(A, 100, vL, 24, 25)
    A("v_and_b32 v104, 1, v0")
    A(f"v_mul_u32_u24 v104, {XROW}, v104")
    A("v_lshrrev_b32 v24, 4, v0")
    A("v_lshl_add_u32 v104, v24, 4, v104")
    A(f"s_mul_i32 s64, s66, 288")
    A("v_add_u32 v105, s64, v104")
    A("s_waitcnt vmcnt(18)")
    lo = lambda n: 24 + 2 * n
    hi = lambda n: 25 + 2 * n
    for n in range(9):
        A(f"v_lshlrev_b32 v{lo(n)}, 16, v{8+n}")
        A(f"v_and_b32 v{hi(n)}, 0xffff0000, v{8+n}")
    A(f"v_add_f32 v42, v{lo(0)}, v{hi(0)}")
    A(f"v_add_f32 v43, v{lo(1)}, v{hi(1)}")
    for n in range(2, 9):
        A(f"v_add_f32 v42, v42, v{lo(n)}")
        A(f"v_add_f32 v43, v43, v{hi(n)}")
    A("v_add_f32 v42, v42, v43")
    reduce16(A, 42); swap16(A, 42, 43, "v_add_f32")
    A(f"v_mul_f32 v42, {hex(f2u(1/576))}, v42")
    A("v_mov_b32 v44, 0")
    for n in range(9):
        A(f"v_sub_f32 v45, v{lo(n)}, v42")
        A(f"v_sub_f32 v46, v{hi(n)}, v42")
        A("v_fmac_f32 v44, v45, v45")
        A("v_fmac_f32 v44, v46, v46")
    reduce16(A, 44); swap16(A, 44, 43, "v_add_f32")
    A(f"v_mul_f32 v44, {hex(f2u(1/576))}, v44")
    round_bf16(A, 44, 44)
    A(f"v_add_f32 v44, {hex(f2u(1e-5))}, v44")
    round_bf16(A, 44, 44)
    A("v_sqrt_f32 v44, v44")
    round_bf16(A, 44, 44)
    A("v_rcp_f32 v44, v44")
    round_bf16(A, 42, 42)
    A("v_lshrrev_b32 v47, 5, v0")
    A(f"v_mul_u32_u24 v47, {XROW}, v47")
    A("v_and_b32 v48, 31, v0")
    A("v_lshl_add_u32 v47, v48, 2, v47")
    for n in range(9):
        A(f"v_sub_f32 v45, v{lo(n)}, v42")
        A(f"v_sub_f32 v46, v{hi(n)}, v42")
        A("v_cvt_pk_bf16_f32 v45, v45, v46")
        A("v_and_b32 v46, 0xffff0000, v45")
        A("v_lshlrev_b32 v45, 16, v45")
        A("v_mul_f32 v45, v45, v44")
        A("v_mul_f32 v46, v46, v44")
        A(f"v_cvt_pk_bf16_f32 v{50+n}, v45, v46")
        A(f"ds_write_b32 v47, v{50+n} offset:{X_LN + 128*n}")
    stamp(A, P, 1)
    A("s_waitcnt vmcnt(0) lgkmcnt(0)")
    A(f"s_add_u32 s{S_EPN}, s{S_EPO}, 1")
    A(f"s_mul_i32 s{S_TAG}, s{S_EPN}, 0x9E3779B1")
    A(f"s_xor_b32 s{S_TAG}, s{S_TAG}, 0x5bd1e995")
    stamp(A, P, 2)
    ACC = lambda ct: 110 + 4 * ct
    gemv(A, 5, [0, 1, 2, 3],
         lambda n, d: f"ds_read_b128 {vr(d,4)}, v105 offset:{X_LN + 64*n}",
         lambda n, ct, u, d: f"ds_read_b64_tr_b16 {vr(d,2)}, v{100+ct} offset:{T_WQ + 4096*n + 512*u}",
         ACC, lambda k: 128 + 20 * k, lambda k, ct: 132 + 20 * k + 4 * ct, 2)
    def publish_pair(soff):
        sel_by_group(A, 8, [ACC(ct) for ct in range(4)])
        sel_by_group(A, 10, [ACC(ct) + 1 for ct in range(4)])
        return
    publish_pair(None)
    A(f"v_mov_b32 v9, s{S_TAG}")
    A(f"v_mov_b32 v11, s{S_TAG}")
    A(f"s_lshl_b32 s64, s{S_REC}, 10")
    A(f"s_add_u32 s64, s64, {WS_QP}")
    A(f"buffer_store_dwordx4 v[8:11], v1, s[{SRD_WS}:{SRD_WS+3}], s64 offen sc1")
    A("v_mov_b32 v12, 0")
    A("v_mov_b32 v13, 1")
    A(f"ds_write_b32 v12, v13 offset:{QPUB}")
    stamp(A, P, 3)
    A(f"s_lshl_b32 s64, s{S_B}, 3")
    A("v_add_u32 v2, s64, v1")
    A(f"s_lshl_b32 s64, s{S_HKV}, 14")
    A(f"s_add_u32 s64, s64, {WS_QP}")
    for k in range(1, 4): A(f"s_add_u32 s{64+k}, s64, {4096*k}")
    poll_begin(A, "L_qpoll")
    for m in range(16):
        A(f"buffer_load_dwordx2 v[{24+2*m}:{25+2*m}], v2, s[{SRD_WS}:{SRD_WS+3}], s{64+(m>>2)} offen offset:{1024*(m&3)} sc1")
    A("s_waitcnt vmcnt(0)")
    A("v_max3_u32 v60, v25, v27, v29")
    A("v_min3_u32 v61, v25, v27, v29")
    for m in range(3, 16, 2):
        a, b_ = 25 + 2 * m, 25 + 2 * min(m + 1, 15)
        A(f"v_max3_u32 v60, v60, v{a}, v{b_}")
        A(f"v_min3_u32 v61, v61, v{a}, v{b_}")
    A("v_xor_b32 v60, v60, v61")
    A(f"v_xor_b32 v61, s{S_TAG}, v61")
    A("v_or_b32 v60, v60, v61")
    A("v_cmp_ne_u32 vcc, 0, v60")
    if P.get("stamps"):
        A(f"s_cmp_eq_u32 s{S_CNT}, {POLL_LIMIT}")
        A("s_cbranch_scc0 L_qp_nostamp")
        A("s_memrealtime s[92:93]")
        A("s_waitcnt lgkmcnt(0)")
        A("v_writelane_b32 v253, s92, 11")
        A.lab("L_qp_nostamp")
    poll_end(A, "L_qpoll", 1)
    if P.get("stamps"):
        A(f"s_sub_u32 s92, {POLL_LIMIT+1}, s{S_CNT}")
        A("v_writelane_b32 v253, s92, 12")
    A("v_lshlrev_b32 v3, 1, v0")
    for cbp in range(4):
        m = lambda kr: 24 + 2 * (kr * 4 + cbp)
        A(f"v_add_f32 v60, v{m(0)}, v{m(1)}")
        A(f"v_add_f32 v60, v60, v{m(2)}")
        A(f"v_add_f32 v60, v60, v{m(3)}")
        A(f"v_cvt_pk_bf16_f32 v{62+cbp}, v60, v60")
        A(f"ds_write_b16 v3, v{62+cbp} offset:{Q_LDS + 128*cbp}")
    A("s_waitcnt lgkmcnt(0)")
    A("v_mov_b32 v12, 0")
    A("v_mov_b32 v13, 1")
    A(f"ds_write_b32 v12, v13 offset:{QRDY}")
    if P.get("prio_s0"): A("s_setprio 0")
    stamp(A, P, 4)
    A(f"s_cmp_eq_u32 s{S_FIN}, 255")
    A("s_cbranch_scc1 L_s0_noy")
    wait_progress(A, "L_ywait", P.get("t_y", 176 // P.get("NA", 2)))
    A(f"s_lshl_b32 s64, s{S_FIN}, 13")
    A(f"s_add_u32 s64, s64, {WS_YP}")
    A("s_add_u32 s65, s64, 4096")
    poll_begin(A, "L_ypoll")
    for n in range(8):
        A(f"buffer_load_dwordx4 v[{24+4*n}:{27+4*n}], v1, s[{SRD_WS}:{SRD_WS+3}], s{64+(n>>2)} offen offset:{1024*(n&3)} sc1")
    A("s_waitcnt vmcnt(0)")
    check_tags(A, [25 + 4 * n + 2 * k for n in range(8) for k in range(2)], 80)
    poll_end(A, "L_ypoll", 32)
    A("v_add_f32 v200, v24, v28")
    A("v_add_f32 v201, v26, v30")
    for n in range(2, 8):
        A(f"v_add_f32 v200, v200, v{24+4*n}")
        A(f"v_add_f32 v201, v201, v{26+4*n}")
    for k in range(2):
        y = 200 + k
        round_bf16(A, y, y)
        A(f"v_mul_f32 v80, {hex(f2u(-LOG2E))}, v{y}")
        A("v_exp_f32 v80, v80")
        A("v_add_f32 v80, 1.0, v80")
        A("v_rcp_f32 v80, v80")
        A(f"v_mul_f32 v{y}, v{y}, v80")
        round_bf16(A, y, y)
    if P.get("pretouch", False):
        A(f"s_lshl_b32 s64, s{S_FIN}, 14")
        A(f"s_add_u32 s64, s64, {WS_SP}")
        for k in range(1, 4): A(f"s_add_u32 s{64+k}, s64, {4096*k}")
        for n in range(16):
            A(f"buffer_load_dwordx4 v[{24+4*n}:{27+4*n}], v1, s[{SRD_WS}:{SRD_WS+3}], s{64+(n>>2)} offen offset:{1024*(n&3)} sc1")
    srd(A, SRD_U, S_X, 2304)
    A(f"s_lshl_b32 s70, s{S_FIN}, 7")
    A("v_lshlrev_b32 v204, 1, v0")
    A(f"buffer_load_ushort v202, v204, s[{SRD_U}:{SRD_U+3}], s70 offen")
    A(f"buffer_load_ushort v203, v204, s[{SRD_U}:{SRD_U+3}], s70 offen offset:1152")
    A("s_waitcnt vmcnt(0)")
    A.lab("L_s0_noy")
    stamp(A, P, 5)

    A("s_branch L_side_tail")

    A.lab("L_s1")
    A("v_lshlrev_b32 v1, 4, v0")
    A("s_barrier")
    A("s_waitcnt lgkmcnt(0)")
    A(f"s_add_u32 s{S_EPN}, s{S_EPO}, 1")
    A(f"s_mul_i32 s{S_TAG}, s{S_EPN}, 0x9E3779B1")
    A(f"s_xor_b32 s{S_TAG}, s{S_TAG}, 0x5bd1e995")
    if P.get("s1_start", "qpub") == "qpub": wait_lds(A, "L_qpubwait", QPUB, 1, 1)
    if P.get("s1_start") == "qrdy": wait_lds(A, "L_qpubwait", QRDY, 1, 1)
    DL = P.get("dma_lead", 16)
    A(f"s_cmp_eq_u32 s{S_FT}, 0")
    A("s_cbranch_scc1 L_s1_wo")
    A(f"s_cmp_eq_u32 s{S_FT}, 3")
    A("s_cbranch_scc1 L_dn_setup")
    A(f"s_cmp_eq_u32 s{S_FT}, 1")
    A(f"s_cselect_b32 s{SRD_T}, s{S_WG}, s{S_WU}")
    A(f"s_cselect_b32 s{SRD_T+1}, s{S_WG+1}, s{S_WU+1}")
    A(f"s_mov_b32 s{SRD_T+2}, {576*9216}")
    A(f"s_mov_b32 s{SRD_T+3}, 0x20000")
    dma_voff(A, 18, 19, 9216, vL, 20, 21)
    A(f"s_lshl_b32 s67, s{S_FCB}, 7")
    A(f"s_mov_b32 s71, {8*9216}")
    A("s_branch L_ffn_dma")
    A.lab("L_dn_setup")
    srd(A, SRD_T, S_WD, 4608 * 1152)
    dma_voff(A, 18, 19, 1152, vL, 20, 21)
    A(f"s_mul_i32 s72, s{S_FCB}, 57")
    A("s_lshr_b32 s72, s72, 9")
    A("s_mul_i32 s73, s72, 9")
    A(f"s_sub_u32 s73, s{S_FCB}, s73")
    A(f"s_mul_i32 s67, s72, {576*1152}")
    A("s_lshl_b32 s64, s73, 7")
    A("s_add_u32 s67, s67, s64")
    A(f"s_mov_b32 s71, {8*1152}")
    A.lab("L_ffn_dma")
    A(f"s_mov_b32 s68, {T_FFN}")
    A("s_mov_b32 s69, 36")
    A.lab("L_gudma")
    for par in range(2):
        A("s_mov_b32 m0, s68")
        A("s_add_u32 s68, s68, 1024")
        A(f"buffer_load_dwordx4 v{18+par}, s[{SRD_T}:{SRD_T+3}], s67 offen {WFL} lds")
        A(f"s_add_u32 s67, s67, s71")
    A(f"s_waitcnt vmcnt({DL})")
    A("s_sub_u32 s69, s69, 1")
    A("s_cmp_lg_u32 s69, 0")
    A("s_cbranch_scc1 L_gudma")
    A.lab("L_s1_wo")
    if P.get("wo_late", True): A("s_branch L_s1_nowo")
    A(f"s_cmp_eq_u32 s{S_WCB}, 255")
    A("s_cbranch_scc1 L_s1_nowo")
    srd(A, SRD_T, S_WO, 4096 * 1152)
    dma_voff(A, 18, 19, 1152, vL, 20, 21)
    A(f"s_mul_i32 s67, s{S_HKV}, {256*1152}")
    A(f"s_lshl_b32 s68, s{S_WCB}, 7")
    A("s_add_u32 s67, s67, s68")
    A(f"s_mov_b32 s68, {T_WO}")
    A("s_mov_b32 s69, 16")
    A.lab("L_wodma")
    for par in range(2):
        A("s_mov_b32 m0, s68")
        A("s_add_u32 s68, s68, 1024")
        A(f"buffer_load_dwordx4 v{18+par}, s[{SRD_T}:{SRD_T+3}], s67 offen {WFL} lds")
        A(f"s_add_u32 s67, s67, 9216")
    A(f"s_waitcnt vmcnt({DL})")
    A("s_sub_u32 s69, s69, 1")
    A("s_cmp_lg_u32 s69, 0")
    A("s_cbranch_scc1 L_wodma")
    A.lab("L_s1_nowo")
    A("s_waitcnt vmcnt(0)")
    stamp(A, P, 4)
    A(f"s_cmp_eq_u32 s{S_FT}, 0")
    A("s_cbranch_scc1 L_s1_ffn_done")
    wait_lds(A, "L_xnwait", QRDY, 1, 4)
    tr_addr(A, 100, vL, 24, 25)
    A("v_and_b32 v104, 1, v0")
    A(f"v_mul_u32_u24 v104, {XROW}, v104")
    A("v_lshrrev_b32 v24, 4, v0")
    A("v_lshl_add_u32 v104, v24, 4, v104")
    A(f"s_cmp_eq_u32 s{S_FT}, 3")
    A("s_cbranch_scc0 L_ffn_gemv")
    if P.get("x_skipdown"): A("s_branch L_s1_ffn_done")
    wait_progress(A, "L_dnwait", P.get("t_dn", 104 // P.get("NA", 2)))
    A(f"s_mul_i32 s64, s72, {9*2048}")
    A(f"s_add_u32 s64, s64, {WS_GU}")
    for k in range(1, 5): A(f"s_add_u32 s{64+k}, s64, {4096*k}")
    poll_begin(A, "L_gupoll")
    for n in range(18):
        A(f"buffer_load_dwordx4 v[{24+4*n}:{27+4*n}], v1, s[{SRD_WS}:{SRD_WS+3}], s{64+(n>>2)} offen offset:{1024*(n&3)} sc1")
    A("s_waitcnt vmcnt(0)")
    check_tags(A, [25 + 4 * n + 2 * k for n in range(18) for k in range(2)], 96)
    poll_end(A, "L_gupoll", 32)
    A("v_lshlrev_b32 v3, 1, v0")
    A(f"v_mov_b32 v98, {hex(f2u(0.044715))}")
    for i9 in range(9):
        for bb in range(2):
            gt, up = 24 + 8 * i9 + 2 * bb, 28 + 8 * i9 + 2 * bb
            A(f"v_mul_f32 v96, v{gt}, v{gt}")
            A(f"v_mul_f32 v96, v96, v{gt}")
            A(f"v_fma_f32 v96, v96, v98, v{gt}")
            A(f"v_mul_f32 v96, {hex(f2u(-2.0 * math.sqrt(2.0 / math.pi) * LOG2E))}, v96")
            A("v_exp_f32 v96, v96")
            A("v_add_f32 v96, 1.0, v96")
            A("v_rcp_f32 v96, v96")
            A(f"v_mul_f32 v96, v{gt}, v96")
            round_bf16(A, 96, 96)
            A(f"v_mul_f32 v96, v96, v{up}")
            A(f"v_cvt_pk_bf16_f32 v97, v96, v96")
            A(f"ds_write_b16 v3, v97 offset:{XH + XROW*bb + 128*i9}")
    A(f"v_add_u32 v104, {XH - X_LN}, v104")
    A("s_waitcnt lgkmcnt(0)")
    A.lab("L_ffn_gemv")
    for ct in range(4):
        A(f"v_add_u32 v{106+ct}, {T_FFN}, v{100+ct}")
        A(f"v_add_u32 v{170+ct}, {T_FFN + 9*4096}, v{100+ct}")
    gemv(A, 18, [0, 1, 2, 3],
         lambda n, d: f"ds_read_b128 {vr(d,4)}, v104 offset:{X_LN + 64*n}",
         lambda n, ct, u, d: f"ds_read_b64_tr_b16 {vr(d,2)}, v{(106 if n < 9 else 170)+ct} offset:{4096*(n % 9) + 512*u}",
         ACC, lambda k: 128 + 20 * k, lambda k, ct: 132 + 20 * k + 4 * ct, 2)
    publish_pair(None)
    A(f"v_mov_b32 v9, s{S_TAG}")
    A(f"v_mov_b32 v11, s{S_TAG}")
    A(f"s_cmp_eq_u32 s{S_FT}, 3")
    A("s_cbranch_scc1 L_dn_pub")
    round_bf16(A, 8, 8); round_bf16(A, 10, 10)
    A(f"s_lshl_b32 s64, s{S_FCB}, 1")
    A(f"s_add_u32 s64, s64, s{S_FT}")
    A("s_sub_u32 s64, s64, 1")
    A("s_lshl_b32 s64, s64, 10")
    A(f"s_add_u32 s64, s64, {WS_GU}")
    A("s_branch L_ffn_pub")
    A.lab("L_dn_pub")
    A("s_lshl_b32 s64, s73, 3")
    A("s_add_u32 s64, s64, s72")
    A("s_lshl_b32 s64, s64, 10")
    A(f"s_add_u32 s64, s64, {WS_YP}")
    A.lab("L_ffn_pub")
    A(f"buffer_store_dwordx4 v[8:11], v1, s[{SRD_WS}:{SRD_WS+3}], s64 offen sc1")
    A.lab("L_s1_ffn_done")
    stamp(A, P, 5)

    def wo_prep():
        tr_addr(A, 100, vL, 24, 25)
        A(f"s_lshl_b32 s64, s{S_WAVE}, 5")
        A("v_xor_b32 v100, s64, v100")
        A("v_and_b32 v104, 1, v0")
        A(f"v_mul_u32_u24 v104, {X2ROW}, v104")
        A("v_lshrrev_b32 v24, 4, v0")
        A("v_lshl_add_u32 v104, v24, 4, v104")
        A("v_lshlrev_b32 v105, 4, v0")
        A(f"v_mov_b32 v9, s{S_TAG}")
        A(f"v_mov_b32 v11, s{S_TAG}")
        A(f"s_lshl_b32 s87, s{S_WCB}, 14")
        A(f"s_lshl_b32 s65, s{S_HKV}, 10")
        A("s_add_u32 s87, s87, s65")
        A(f"s_lshl_b32 s65, s{S_WAVE}, 8")
        A("s_add_u32 s87, s87, s65")
        A(f"s_add_u32 s87, s87, {WS_SP}")
    A.lab("L_side_tail")
    wo_prep()
    A("v_lshlrev_b32 v1, 4, v0")
    A("v_bfe_u32 v2, v0, 2, 1")
    A("v_lshlrev_b32 v2, 3, v2")
    A(f"s_lshl_b32 s64, s{S_HKV}, 4")
    A(f"s_lshl_b32 s65, s{S_WAVE}, 3")
    A("s_add_u32 s64, s64, s65")
    A("s_lshl_b32 s66, s64, 7")
    A(f"s_add_u32 s66, s66, {WS_H1ML}")
    A("s_lshl_b32 s64, s64, 10")
    A(f"s_add_u32 s64, s64, {WS_H1O}")
    A("s_add_u32 s65, s64, 4096")
    A("v_bfe_u32 v90, v0, 2, 1")
    A("v_lshlrev_b32 v90, 8, v90")
    A("v_lshrrev_b32 v83, 4, v0")
    A("v_lshl_add_u32 v90, v83, 6, v90")
    A("v_and_b32 v83, 3, v0")
    A("v_lshl_add_u32 v90, v83, 1, v90")
    A("v_bfe_u32 v83, v0, 3, 1")
    A("v_lshl_add_u32 v90, v83, 3, v90")
    A(f"s_mul_i32 s68, s{S_WAVE}, {X2ROW}")
    A("v_add_u32 v90, s68, v90")
    A("s_mov_b32 s67, 0xff")
    if P.get("wo_late", True):
        srd(A, SRD_T, S_WO, 4096 * 1152)
        dma_voff(A, 18, 19, 1152, vL, 20, 21)
        A(f"s_lshl_b32 s69, s{S_HKV}, 1")
        A(f"s_add_u32 s69, s69, s{S_WAVE}")
        A(f"s_mul_i32 s69, s69, {128*1152}")
        A(f"s_lshl_b32 s71, s{S_WCB}, 7")
        A("s_add_u32 s69, s69, s71")
        A(f"s_lshl_b32 s71, s{S_WAVE}, 14")
        A(f"s_add_u32 s71, s71, {T_WO}")
        A(f"s_lshl_b32 s64, s{S_HKV}, 4")
        A(f"s_lshl_b32 s72, s{S_WAVE}, 3")
        A("s_add_u32 s64, s64, s72")
        A("s_lshl_b32 s64, s64, 10")
        A(f"s_add_u32 s64, s64, {WS_H1O}")
    def wo_dma():
        for n in range(16):
            A("s_mov_b32 m0, s71")
            A("s_add_u32 s71, s71, 1024")
            A(f"buffer_load_dwordx4 v{18+(n&1)}, s[{SRD_T}:{SRD_T+3}], s69 offen {WFL} lds")
            A("s_add_u32 s69, s69, 9216")
    at_dead = P.get("wo_late", True) and P.get("wo_at", "b2") == "dead"
    if at_dead:
        A(f"s_cmp_eq_u32 s{S_WCB}, 255")
        A("s_cbranch_scc1 L_nowodma")
        wait_lds(A, "L_deadwait", DEADF, 128, 2)
        wo_dma()
        A.lab("L_nowodma")
    A("s_barrier")
    stamp(A, P, 6)
    A(f"s_cmp_eq_u32 s{S_WCB}, 255")
    A("s_cbranch_scc1 L_final")
    if P.get("wo_late", True) and not at_dead:
        if P.get("wo_afterpub"): wait_lds(A, "L_pubwait", PUBD, 1, 0)
        wo_dma()
    MC = lambda p: 56 + 2 * p
    LL = lambda p: 57 + 2 * p
    poll_begin(A, "L_h1poll")
    if not P.get("h1inc", False):
        for p in range(8):
            A(f"buffer_load_dwordx4 v[{24+4*p}:{27+4*p}], v1, s[{SRD_WS}:{SRD_WS+3}], s{64+(p>>2)} offen offset:{1024*(p&3)} {HLD}")
            A(f"buffer_load_dwordx2 v[{56+2*p}:{57+2*p}], v2, s[{SRD_WS}:{SRD_WS+3}], s66 offen offset:{128*p} {HLD}")
        A("s_waitcnt vmcnt(0)")
        A("v_max3_u32 v80, v24, v25, v26")
        for k in range(27, 72, 2): A(f"v_max3_u32 v80, v80, v{k}, v{min(k+1, 71)}")
        A("v_cmp_eq_u32 vcc, -1, v80")
        A("s_mov_b32 s67, 0")
        A("s_cbranch_vccz L_h1poll_ok")
        A("s_mov_b32 s67, 1")
    for p in range(8 if P.get("h1inc", False) else 0):
        l = A.uniq("L_h1l")
        A(f"s_bitcmp1_b32 s67, {p}")
        A(f"s_cbranch_scc0 {l}")
        A(f"buffer_load_dwordx4 v[{24+4*p}:{27+4*p}], v1, s[{SRD_WS}:{SRD_WS+3}], s{64+(p>>2)} offen offset:{1024*(p&3)} sc1")
        A(f"buffer_load_dwordx2 v[{56+2*p}:{57+2*p}], v2, s[{SRD_WS}:{SRD_WS+3}], s66 offen offset:{128*p} sc1")
        A.lab(l)
    A("s_waitcnt vmcnt(0)")
    for p in range(8 if P.get("h1inc", False) else 0):
        l = A.uniq("L_h1m")
        o = 24 + 4 * p
        A(f"s_bitcmp1_b32 s67, {p}")
        A(f"s_cbranch_scc0 {l}")
        A(f"v_max3_u32 v82, v{o}, v{o+1}, v{o+2}")
        A(f"v_max3_u32 v82, v82, v{o+3}, v{MC(p)}")
        A(f"v_max_u32 v82, v82, v{LL(p)}")
        A("v_cmp_eq_u32 vcc, -1, v82")
        A(f"s_cbranch_vccnz {l}")
        A(f"s_bitset0_b32 s67, {p}")
        A.lab(l)
    A("s_cmp_eq_u32 s67, 0")
    A("s_cbranch_scc1 L_h1poll_ok")
    A(f"s_sub_u32 s{S_CNT}, s{S_CNT}, 1")
    A(f"s_cmp_eq_u32 s{S_CNT}, 0")
    A("s_cbranch_scc1 L_h1poll_ok")
    if P.get("h1sleep", 0): A(f"s_sleep {P.get('h1sleep', 0)}")
    A("s_branch L_h1poll")
    A.lab("L_h1poll_ok")
    stamp(A, P, 7)
    A(f"v_max3_f32 v80, v{MC(0)}, v{MC(1)}, v{MC(2)}")
    A(f"v_max3_f32 v80, v80, v{MC(3)}, v{MC(4)}")
    A(f"v_max3_f32 v80, v80, v{MC(5)}, v{MC(6)}")
    A(f"v_max_f32 v80, v80, v{MC(7)}")
    for p in range(8): A(f"v_sub_f32 v{MC(p)}, v{MC(p)}, v80")
    for p in range(8): A(f"v_exp_f32 v{MC(p)}, v{MC(p)}")
    A(f"v_mul_f32 v81, v{MC(0)}, v{LL(0)}")
    for rr in range(4): A(f"v_mul_f32 v{84+rr}, v{MC(0)}, v{24+rr}")
    for p in range(1, 8):
        A(f"v_fmac_f32 v81, v{MC(p)}, v{LL(p)}")
        for rr in range(4): A(f"v_fmac_f32 v{84+rr}, v{MC(p)}, v{24+4*p+rr}")
    A("v_rcp_f32 v81, v81")
    for rr in range(4):
        A(f"v_mul_f32 v{84+rr}, v{84+rr}, v81")
    A("v_cvt_pk_bf16_f32 v88, v84, v85")
    A("v_cvt_pk_bf16_f32 v89, v86, v87")
    A(f"ds_write_b16 v90, v88 offset:{X2}")
    A(f"ds_write_b16_d16_hi v90, v88 offset:{X2 + 16}")
    A(f"ds_write_b16 v90, v89 offset:{X2 + 32}")
    A(f"ds_write_b16_d16_hi v90, v89 offset:{X2 + 48}")
    A("s_waitcnt lgkmcnt(0)")
    A.lab("L_wogemv")
    A("s_barrier")
    stamp(A, P, 8)
    gemv(A, 8, [0],
         lambda n, d: f"ds_read_b128 {vr(d,4)}, v104 offset:{X2 + 64*n}",
         lambda n, ct, u, d: f"ds_read_b64_tr_b16 {vr(d,2)}, v100 offset:{T_WO + 4096*n + 512*u}",
         lambda ct: 110, lambda k: 128 + 8 * k, lambda k, ct: 132 + 8 * k, 8)
    A("v_mov_b32 v8, v110")
    A("v_mov_b32 v10, v111")
    A("s_mov_b64 exec, 0xffff")
    A(f"buffer_store_dwordx4 v[8:11], v105, s[{SRD_WS}:{SRD_WS+3}], s87 offen {HST}")
    A("s_mov_b64 exec, -1")
    stamp(A, P, 9)
    A.lab("L_final")
    A(f"s_cmp_lg_u32 s{S_WAVE}, 0")
    A("s_cbranch_scc1 L_end")
    A(f"s_cmp_eq_u32 s{S_FIN}, 255")
    A("s_cbranch_scc1 L_end")
    A("v_lshlrev_b32 v1, 4, v0")
    A(f"s_lshl_b32 s64, s{S_FIN}, 14")
    A(f"s_add_u32 s64, s64, {WS_SP}")
    for k in range(1, 4): A(f"s_add_u32 s{64+k}, s64, {4096*k}")
    srd(A, SRD_U, S_OUT, 2304)
    A("v_lshlrev_b32 v204, 1, v0")
    A(f"s_lshl_b32 s70, s{S_FIN}, 7")
    A("v_lshlrev_b32 v202, 16, v202")
    A("v_lshlrev_b32 v203, 16, v203")
    poll_begin(A, "L_h2poll")
    for n in range(16):
        A(f"buffer_load_dwordx4 v[{24+4*n}:{27+4*n}], v1, s[{SRD_WS}:{SRD_WS+3}], s{64+(n>>2)} offen offset:{1024*(n&3)} {HLD}")
    A("s_waitcnt vmcnt(0)")
    check_tags(A, [25 + 4 * n + 2 * k for n in range(16) for k in range(2)], 96)
    poll_end(A, "L_h2poll", P.get("h2sleep", 0))
    for step in (8, 4, 2, 1):
        for n in range(step):
            A(f"v_add_f32 v{24+4*n}, v{24+4*n}, v{24+4*(n+step)}")
            A(f"v_add_f32 v{26+4*n}, v{26+4*n}, v{26+4*(n+step)}")
    A("v_cvt_pk_bf16_f32 v96, v24, v26")
    A("v_and_b32 v97, 0xffff0000, v96")
    A("v_lshlrev_b32 v96, 16, v96")
    A("v_mul_f32 v96, v96, v200")
    A("v_mul_f32 v97, v97, v201")
    A("v_cvt_pk_bf16_f32 v96, v96, v97")
    A("v_and_b32 v97, 0xffff0000, v96")
    A("v_lshlrev_b32 v96, 16, v96")
    A("v_add_f32 v96, v96, v202")
    A("v_add_f32 v97, v97, v203")
    A("v_cvt_pk_bf16_f32 v96, v96, v97")
    if P.get("diag_hold"):
        A.lab("L_hold")
        A("s_memrealtime s[92:93]")
        A("s_waitcnt lgkmcnt(0)")
        A("s_sub_u32 s92, s92, s98")
        A(f"s_cmp_lt_u32 s92, {P['diag_hold']}")
        A("s_cbranch_scc1 L_hold")
    A(f"buffer_store_short v96, v204, s[{SRD_U}:{SRD_U+3}], s70 offen")
    A(f"buffer_store_short_d16_hi v96, v204, s[{SRD_U}:{SRD_U+3}], s70 offen offset:1152")
    stamp(A, P, 10)
    if P.get("dbgdur"):
        A("s_memrealtime s[92:93]")
        A("s_waitcnt lgkmcnt(0)")
        A("s_sub_u32 s92, s92, s98")
        srd(A, SRD_U, S_DBG, 256)
        A("v_mov_b32 v96, s92" if not P.get("diag_entry") else "v_mov_b32 v96, s35")
        A(f"s_lshl_b32 s64, s{S_FIN}, 2")
        A("v_mov_b32 v97, 0")
        A("s_mov_b64 exec, 1")
        A(f"buffer_store_dword v96, v97, s[{SRD_U}:{SRD_U+3}], s64 offen")
        A("s_mov_b64 exec, -1")
    A(f"s_cmp_lg_u32 s{S_FIN}, 0")
    A("s_cbranch_scc1 L_end")
    A(f"v_mov_b32 v80, s{S_EPN}")
    A("v_mov_b32 v81, 0")
    A("s_mov_b64 exec, 1")
    A(f"buffer_store_dword v80, v81, s[{SRD_WS}:{SRD_WS+3}], 0 offen offset:{WS_EPOCH}")
    A("s_mov_b64 exec, -1")
    A("s_branch L_end")

    A.lab("L_att")
    DK = P.get("DK", 2)
    NA = P.get("NA", 2)
    STEP = 8192 * NA
    assert DK % 2 == 0 and DK <= 8
    if NA == 1:
        A(f"s_cmp_eq_u32 s{S_WAVE}, 2")
        A("s_cbranch_scc1 L_att_go")
        A("s_waitcnt lgkmcnt(0)")
        A(f"s_add_u32 s{S_EPN}, s{S_EPO}, 1")
        A(f"s_mul_i32 s{S_TAG}, s{S_EPN}, 0x9E3779B1")
        A(f"s_xor_b32 s{S_TAG}, s{S_TAG}, 0x5bd1e995")
        A("s_barrier")
        A("s_barrier")
        A("s_branch L_att_join")
        A.lab("L_att_go")
    A(f"s_sub_u32 s66, s{S_WAVE}, 2")
    A(f"s_lshl_b32 s64, s{S_B}, 4")
    A(f"s_add_u32 s64, s64, s{S_HKV}")
    A("s_lshr_b32 s65, s64, 9")
    A("s_lshl_b32 s64, s64, 23")
    A(f"s_add_u32 s{SRD_K}, s{S_K}, s64")
    A(f"s_addc_u32 s{SRD_K+1}, s{S_K+1}, s65")
    A(f"s_mov_b32 s{SRD_K+2}, 0x800000")
    A(f"s_mov_b32 s{SRD_K+3}, 0x20000")
    A(f"s_add_u32 s{SRD_V}, s{S_V}, s64")
    A(f"s_addc_u32 s{SRD_V+1}, s{S_V+1}, s65")
    A(f"s_mov_b32 s{SRD_V+2}, 0x800000")
    A(f"s_mov_b32 s{SRD_V+3}, 0x20000")
    S_KO, S_VO, S_RK, S_CLM, S_IT, S_POOL = 70, 71, 75, 76, 77, 78
    S_RV, S_PK, S_PVS, S_PV, S_NXT = 86, 87, 88, 89, 74
    S_PO = [67, 68, 69, 43]
    POOL = P.get("table", {}).get("pool", 128)
    A(f"s_add_u32 s{S_KO}, s{S_KV0}, s66")
    A(f"s_lshl_b32 s{S_KO}, s{S_KO}, 13")
    A(f"s_mov_b32 s{S_VO}, s{S_KO}")
    if NA == 2:
        A(f"s_add_u32 s{S_PK}, s{S_NSB}, 1")
        A(f"s_sub_u32 s{S_PK}, s{S_PK}, s66")
        A(f"s_lshr_b32 s{S_PK}, s{S_PK}, 1")
    else:
        A(f"s_mov_b32 s{S_PK}, s{S_NSB}")
    A(f"s_mov_b32 s{S_PVS}, s{S_PK}")
    A(f"s_mov_b32 s{S_RV}, s{S_PK}")
    A(f"s_sub_u32 s{S_RK}, s{S_PK}, {DK + P.get('stash', 2)}")
    A(f"s_mov_b32 s{S_PV}, 0")
    A(f"s_mov_b32 s{S_IT}, 0")
    A("s_mov_b32 s80, 0")
    A("s_lshr_b32 s64, s2, 3")
    A("s_lshl_b32 s64, s64, 8")
    A(f"s_add_u32 s64, s64, {WS_CNT}")
    A(f"s_add_u32 s{S_POOL}, s{S_WS}, s64")
    A(f"s_addc_u32 s{S_POOL+1}, s{S_WS+1}, 0")
    VK0, VK1, VV0, VV1 = 2, 3, 4, 5
    A("v_bfe_u32 v6, v0, 2, 2")
    A("v_lshlrev_b32 v6, 8, v6")
    A("v_lshrrev_b32 v7, 4, v0")
    A("v_lshl_add_u32 v6, v7, 6, v6")
    A("v_and_b32 v7, 3, v0")
    A(f"v_lshl_add_u32 v{VK0}, v7, 4, v6")
    A(f"v_add_u32 v{VK1}, 4096, v{VK0}")
    A(f"v_lshlrev_b32 v{VV0}, 4, v0")
    A(f"v_add_u32 v{VV1}, 4096, v{VV0}")
    UA = lambda s, n: 32 * s + 4 * n
    VK1P, VV1P = 104, 105
    def issue(kind, s, soff, pool=False):
        vb, sd, fl = (VK0, SRD_K, FLK) if kind == "K" else (VV0, SRD_V, FLV)
        v1 = (VK1P if kind == "K" else VV1P) if pool else vb + 1
        for n in range(8):
            A(f"buffer_load_dwordx4 {ar(UA(s,n),4)}, v{vb if n < 4 else v1}, s[{sd}:{sd+3}], s{soff} offen offset:{1024*(n&3)} {fl}")
    lead = P.get("lead", 2)
    early = P.get("early", 1)
    ST = P.get("stash", 2)
    assert ST % 2 == 0 and DK + ST <= 8
    for s in range(DK + ST):
        if s == early:
            A("s_barrier")
            stamp(A, P, 0)
        if s >= lead: A(f"s_waitcnt vmcnt({8*(lead-1)})")
        issue("K", s, S_KO)
        A(f"s_add_u32 s{S_KO}, s{S_KO}, {STEP}")
    if early >= DK + ST:
        A("s_barrier")
    stamp(A, P, 1)
    VQ = 8
    VSW, VSR = 12, 13
    VMX = 14
    VSC = 16
    VM = 24
    VACC = 28
    VMC, VL_ = 32, 33
    VS = 36
    VP = 44
    VB = 52
    VT = 64
    VD = 68
    VPK = 100
    A("v_and_b32 v6, 3, v0")
    A("v_bfe_u32 v7, v0, 3, 1")
    A("v_lshl_add_u32 v6, v7, 2, v6")
    A("v_and_b32 v7, 1, v6")
    A("v_mov_b32 v64, 0xffff")
    A("v_lshlrev_b32 v7, 4, v7")
    A("v_lshlrev_b32 v64, v7, v64")
    A("v_lshrrev_b32 v6, 1, v6")
    for q in range(4):
        A(f"v_cmp_eq_u32 vcc, {q}, v6")
        A(f"v_cndmask_b32 v{VM+q}, 0, v64, vcc")
    for k in range(4): A(f"v_mov_b32 v{VACC+k}, 0")
    A(f"v_mov_b32 v{VMX}, 0xff800000")
    A(f"v_mov_b32 v{VL_}, 0")
    A("v_bfe_u32 v6, v0, 2, 1")
    A("v_lshrrev_b32 v7, 4, v0")
    A("v_lshl_add_u32 v7, v6, 2, v7")
    A("v_lshlrev_b32 v7, 4, v7")
    A("s_lshl_b32 s64, s66, 13")
    A(f"s_add_u32 s64, s64, {SCORES}")
    A(f"v_add_u32 v{VSW}, s64, v7")
    A(f"v_mov_b32 v{VSR}, v{VSW}")
    A("v_lshlrev_b32 v6, 8, v6")
    A("v_lshrrev_b32 v7, 4, v0")
    A("v_lshl_add_u32 v6, v7, 6, v6")
    A("v_and_b32 v7, 3, v0")
    A("v_lshl_add_u32 v6, v7, 4, v6")
    A(f"s_mov_b32 s72, {hex(f2u(SCALE))}")
    A(f"s_mov_b32 s73, {hex(f2u(LOG2E))}")
    A("v_mov_b32 v34, 0")
    A("s_waitcnt lgkmcnt(0)")
    A(f"s_add_u32 s{S_EPN}, s{S_EPO}, 1")
    A(f"s_mul_i32 s{S_TAG}, s{S_EPN}, 0x9E3779B1")
    A(f"s_xor_b32 s{S_TAG}, s{S_TAG}, 0x5bd1e995")
    wait_lds(A, "L_qwait", QRDY, 1, 1, tv=66)
    A(f"ds_read_b128 v[{VQ}:{VQ+3}], v6 offset:{Q_LDS}")
    A("s_waitcnt lgkmcnt(0)")
    stamp(A, P, 2)
    A(f"s_mov_b32 s{S_CLM}, 1")
    A(f"s_atomic_add s{S_CLM}, s[{S_POOL}:{S_POOL+1}], 0 glc")

    def progress():
        A(f"s_add_u32 s{S_IT}, s{S_IT}, 1")
        A(f"v_mov_b32 v35, s{S_IT}")
        A(f"ds_write_b32 v34, v35 offset:{PROG}")
        if P.get("stamps"):
            for idx, itv in ((5, 32 // NA), (6, 96 // NA), (7, 160 // NA), (10, 208 // NA)):
                l = A.uniq("L_st")
                A(f"s_cmp_lg_u32 s{S_IT}, {itv}")
                A(f"s_cbranch_scc1 {l}")
                stamp(A, P, idx)
                A.lab(l)
    def qk_mfma(s):
        for n in range(8):
            A(f"v_mfma_f32_16x16x32_bf16 {vr(VD+4*n,4)}, {ar(UA(s,n),4)}, {vr(VQ,4)}, 0")
    def qk_reduce():
        for c in range(4):
            for n in range(8):
                pat = f"quad_perm:[{c},{c},{c},{c}] row_mask:0xf bank_mask:0xf"
                if c == 0: A(f"v_mov_b32_dpp v{VS+n}, v{VD+4*n} {pat}")
                else: A(f"v_add_f32_dpp v{VS+n}, v{VD+4*n+c}, v{VS+n} {pat}")
        for k in range(0, 8, 2):
            A(f"v_cvt_pk_bf16_f32 v{VT+(k>>1)}, v{VS+k}, v{VS+k+1}")
        for k in range(0, 8, 2):
            A(f"v_lshlrev_b32 v{VS+k}, 16, v{VT+(k>>1)}")
            A(f"v_and_b32 v{VS+k+1}, 0xffff0000, v{VT+(k>>1)}")
        for k in range(8): A(f"v_mul_f32 v{VS+k}, s72, v{VS+k}")
        for k in range(0, 8, 2):
            A(f"v_cvt_pk_bf16_f32 v{VPK+(k>>1)}, v{VS+k}, v{VS+k+1}")
    def unpack(src):
        for k in range(4):
            A(f"v_lshlrev_b32 v{VS+2*k}, 16, v{src+k}")
            A(f"v_and_b32 v{VS+2*k+1}, 0xffff0000, v{src+k}")
    def pv(s):
        for k in range(8): A(f"v_fma_f32 v{VP+k}, v{VS+k}, s73, -v{VMC}")
        for k in range(8): A(f"v_exp_f32 v{VP+k}, v{VP+k}")
        def prep(k):
            bb = VB + 4 * (k % 3)
            A(f"v_cvt_pk_bf16_f32 v{VT+2}, v{VP+k}, v{VP+k}")
            for q in range(4): A(f"v_and_b32 v{bb+q}, v{VT+2}, v{VM+q}")
        prep(0); prep(1)
        A(f"v_add_f32 v{VT}, v{VP}, v{VP+1}")
        A(f"v_add_f32 v{VT+1}, v{VP+2}, v{VP+3}")
        A(f"s_waitcnt vmcnt({8*(DK-1)})")
        for k in range(8):
            bb = VB + 4 * (k % 3)
            A(f"v_mfma_f32_16x16x32_bf16 {vr(VACC,4)}, {ar(UA(s,k),4)}, {vr(bb,4)}, {vr(VACC,4)}")
            if k + 2 < 8: prep(k + 2)
            if k == 1: A(f"v_add_f32 v{VT}, v{VT}, v{VP+4}"); A(f"v_add_f32 v{VT+1}, v{VT+1}, v{VP+5}")
            if k == 2: A(f"v_add_f32 v{VT}, v{VT}, v{VP+6}"); A(f"v_add_f32 v{VT+1}, v{VT+1}, v{VP+7}")
            if k == 3: A(f"v_add_f32 v{VT}, v{VT}, v{VT+1}"); A(f"v_add_f32 v{VL_}, v{VL_}, v{VT}")
    PH = P.get("ph", 0)
    PF = POOL - PH
    S_HF = [81, 82, 83, 84]
    def pool_refill(s):
        po, hf = S_PO[s >> 1], S_HF[s >> 1]
        if s & 1:
            A(f"v_add_u32 v{VV1P}, s{hf}, v{VV0}")
            issue("V", s, po, True)
            return
        ldead, lgo, lhalf, lclaim = A.uniq("L_dead"), A.uniq("L_go"), A.uniq("L_half"), A.uniq("L_claim")
        A("s_waitcnt lgkmcnt(0)")
        A(f"s_cmp_lt_u32 s{S_CLM}, {PF + 2 * PH}")
        A(f"s_cbranch_scc0 {ldead}")
        A(f"s_cmp_lt_u32 s{S_CLM}, {PF}")
        A(f"s_cbranch_scc0 {lhalf}")
        A(f"s_add_u32 s{po}, s{S_CLM}, {1024 - POOL}")
        A(f"s_lshl_b32 s{po}, s{po}, 13")
        A(f"s_mov_b32 s{hf}, 4096")
        A(f"s_branch {lclaim}")
        A.lab(lhalf)
        A(f"s_add_u32 s{po}, s{S_CLM}, {2 * (1024 - PH) - PF}")
        A(f"s_lshl_b32 s{po}, s{po}, 12")
        A(f"s_mov_b32 s{hf}, 0x40000000")
        A.lab(lclaim)
        A(f"s_add_u32 s{S_PV}, s{S_PV}, 1")
        A(f"s_mov_b32 s{S_CLM}, 1")
        A(f"s_atomic_add s{S_CLM}, s[{S_POOL}:{S_POOL+1}], 0 glc")
        A(f"s_branch {lgo}")
        A.lab(ldead)
        A(f"s_mov_b32 s{SRD_K+2}, 0")
        A(f"s_mov_b32 s{SRD_V+2}, 0")
        A(f"s_mov_b32 s{po}, 0")
        A(f"s_mov_b32 s{hf}, 4096")
        if P.get("wo_late", True) and P.get("wo_at", "b2") == "dead":
            lonce = A.uniq("L_once")
            A("s_cmp_eq_u32 s80, 0")
            A(f"s_cbranch_scc0 {lonce}")
            A("s_mov_b32 s80, 1")
            A("v_mov_b32 v35, 1")
            A(f"ds_add_u32 v34, v35 offset:{DEADF}")
            A.lab(lonce)
        A.lab(lgo)
        A(f"v_add_u32 v{VK1P}, s{hf}, v{VK0}")
        issue("K", s, po, True)

    def k_tail():
        qk_reduce()
        for k in range(0, 8, 2): A(f"v_max3_f32 v{VMX}, v{VMX}, v{VS+k}, v{VS+k+1}")
        A("s_mov_b32 exec_lo, 0x00110011")
        A("s_mov_b32 exec_hi, 0x00110011")
        A(f"ds_write_b128 v{VSW}, v[{VPK}:{VPK+3}]")
        A("s_mov_b64 exec, -1")
        A(f"v_add_u32 v{VSW}, 128, v{VSW}")
        progress()
        A(f"s_sub_u32 s{S_PK}, s{S_PK}, 1")
    if ST:
        for s in range(DK):
            A(f"s_waitcnt vmcnt({8*(ST+DK-1)})")
            qk_mfma(s)
            issue("K", s, S_KO)
            A(f"s_add_u32 s{S_KO}, s{S_KO}, {STEP}")
            A(f"s_sub_u32 s{S_RK}, s{S_RK}, 1")
            k_tail()
        for k in range(DK, ST + DK):
            A(f"s_waitcnt vmcnt({8*(ST+DK-1-k+DK)})")
            qk_mfma(k)
            k_tail()
    A.lab("L_kloop")
    for s in range(DK):
        A.lab(f"L_k{s}")
        A(f"s_waitcnt vmcnt({8*(DK-1)})")
        qk_mfma(s)
        lv, lr = A.uniq("L_kv"), A.uniq("L_kr")
        A(f"s_cmp_eq_u32 s{S_RK}, 0")
        A(f"s_cbranch_scc1 {lv}")
        issue("K", s, S_KO)
        A(f"s_add_u32 s{S_KO}, s{S_KO}, {STEP}")
        A(f"s_sub_u32 s{S_RK}, s{S_RK}, 1")
        A(f"s_branch {lr}")
        A.lab(lv)
        issue("V", s, S_VO)
        A(f"s_add_u32 s{S_VO}, s{S_VO}, {STEP}")
        A(f"s_sub_u32 s{S_RV}, s{S_RV}, 1")
        A.lab(lr)
        k_tail()
        A(f"s_cmp_eq_u32 s{S_PK}, 0")
        if s < DK - 1:
            A(f"s_cselect_b32 s{S_NXT}, {s+1}, s{S_NXT}")
            A("s_cbranch_scc1 L_kdone")
        else:
            A(f"s_cselect_b32 s{S_NXT}, 0, s{S_NXT}")
            A("s_cbranch_scc0 L_kloop")
    A.lab("L_kdone")
    round_bf16(A, VMC, VMX)
    A(f"v_mul_f32 v{VMC}, s73, v{VMC}")
    swap16(A, VMC, VT, "v_max_f32")
    swap32(A, VMC, VT, "v_max_f32")
    A("s_waitcnt lgkmcnt(0)")
    stamp(A, P, 12)
    for s in range(DK):
        l = A.uniq("L_kn")
        A(f"s_cmp_lg_u32 s{S_NXT}, {s}")
        A(f"s_cbranch_scc1 {l}")
        A(f"ds_read_b128 v[{VSC+4*(s&1)}:{VSC+4*(s&1)+3}], v{VSR}")
        A(f"s_branch L_v{s}")
        A.lab(l)
    A.lab("L_vloop")
    for s in range(DK):
        A.lab(f"L_v{s}")
        A("s_waitcnt lgkmcnt(0)")
        nb = (s + 1) & 1
        A(f"ds_read_b128 v[{VSC+4*nb}:{VSC+4*nb+3}], v{VSR} offset:128")
        A(f"v_add_u32 v{VSR}, 128, v{VSR}")
        unpack(VSC + 4 * (s & 1))
        pv(s)
        lp, lr = A.uniq("L_vp"), A.uniq("L_vr")
        A(f"s_cmp_eq_u32 s{S_RV}, 0")
        A(f"s_cbranch_scc1 {lp}")
        issue("V", s, S_VO)
        A(f"s_add_u32 s{S_VO}, s{S_VO}, {STEP}")
        A(f"s_sub_u32 s{S_RV}, s{S_RV}, 1")
        A(f"s_branch {lr}")
        A.lab(lp)
        pool_refill(s)
        A.lab(lr)
        progress()
        A(f"s_sub_u32 s{S_PVS}, s{S_PVS}, 1")
        if s & 1:
            A(f"s_cmp_eq_u32 s{S_PVS}, 0")
            A(f"s_cbranch_scc1 L_p{((s + 1) % DK) >> 1}")
        if s == DK - 1: A("s_branch L_vloop")
    A.lab("L_ploop")
    for a in range(DK // 2):
        sk, sv = 2 * a, 2 * a + 1
        A.lab(f"L_p{a}")
        A(f"s_cmp_eq_u32 s{S_PV}, 0")
        A("s_cbranch_scc1 L_att_done")
        A(f"s_sub_u32 s{S_PV}, s{S_PV}, 1")
        A(f"s_waitcnt vmcnt({8*(DK-1)})")
        qk_mfma(sk)
        A(f"s_mov_b32 s85, s{S_HF[a]}")
        pool_refill(sk)
        qk_reduce()
        unpack(VPK)
        lfull = A.uniq("L_full")
        A("s_cmp_eq_u32 s85, 4096")
        A(f"s_cbranch_scc1 {lfull}")
        for k in range(4, 8): A(f"v_mov_b32 v{VS+k}, 0xff800000")
        A.lab(lfull)
        A(f"v_max3_f32 v{VT}, v{VS}, v{VS+1}, v{VS+2}")
        A(f"v_max3_f32 v{VT}, v{VT}, v{VS+3}, v{VS+4}")
        A(f"v_max3_f32 v{VT}, v{VT}, v{VS+5}, v{VS+6}")
        A(f"v_max_f32 v{VT}, v{VT}, v{VS+7}")
        A(f"v_mul_f32 v{VT}, s73, v{VT}")
        A(f"v_cmp_gt_f32 vcc, v{VT}, v{VMC}")
        skip = A.uniq("L_nomax")
        A(f"s_cbranch_vccz {skip}")
        swap16(A, VT, VT + 1, "v_max_f32")
        swap32(A, VT, VT + 1, "v_max_f32")
        A(f"v_max_f32 v{VT}, v{VT}, v{VMC}")
        A(f"v_sub_f32 v{VT+1}, v{VMC}, v{VT}")
        A(f"v_exp_f32 v{VT+1}, v{VT+1}")
        A(f"v_mov_b32 v{VMC}, v{VT}")
        for k in range(4): A(f"v_mul_f32 v{VACC+k}, v{VACC+k}, v{VT+1}")
        A(f"v_mul_f32 v{VL_}, v{VL_}, v{VT+1}")
        A.lab(skip)
        pv(sv)
        pool_refill(sv)
        progress()
        progress()
        if a == DK // 2 - 1: A("s_branch L_ploop")
    A.lab("L_att_done")
    if P.get("prio_tail"): A(f"s_setprio {P['prio_tail']}")
    A("v_mov_b32 v35, 0xffff")
    A(f"ds_write_b32 v34, v35 offset:{PROG}")
    stamp(A, P, 3)
    if P.get("stamps"): A(f"v_writelane_b32 v253, s{S_IT}, 11")
    swap16(A, VL_, VT, "v_add_f32")
    swap32(A, VL_, VT, "v_add_f32")
    A(f"v_lshlrev_b32 v1, 4, v0")
    A(f"v_lshlrev_b32 v6, 3, v0")
    if NA == 2:
        A(f"s_cmp_eq_u32 s{S_WAVE}, 2")
        A("s_cbranch_scc1 L_att0")
        A(f"ds_write_b128 v1, v[{VACC}:{VACC+3}] offset:{MERGE}")
        A(f"ds_write_b64 v6, v[{VMC}:{VMC+1}] offset:{MERGE + 1024}")
        A("s_waitcnt lgkmcnt(0)")
        A("s_barrier")
        A("s_branch L_att_join")
        A.lab("L_att0")
        A(f"s_lshl_b32 s64, s{S_REC}, 10")
        A(f"s_add_u32 s64, s64, {WS_H1O}")
        A(f"s_lshl_b32 s65, s{S_REC}, 7")
        A(f"s_add_u32 s65, s65, {WS_H1ML}")
        A("s_barrier")
        A(f"ds_read_b128 v[68:71], v1 offset:{MERGE}")
        A(f"ds_read_b64 v[72:73], v6 offset:{MERGE + 1024}")
        A("s_waitcnt lgkmcnt(0)")
        A(f"v_max_f32 v74, v{VMC}, v72")
        A(f"v_sub_f32 v75, v{VMC}, v74")
        A("v_sub_f32 v76, v72, v74")
        A("v_exp_f32 v75, v75")
        A("v_exp_f32 v76, v76")
        for k in range(4):
            A(f"v_mul_f32 v{VACC+k}, v{VACC+k}, v75")
            A(f"v_fmac_f32 v{VACC+k}, v{68+k}, v76")
        A(f"v_mul_f32 v{VL_}, v{VL_}, v75")
        A(f"v_fmac_f32 v{VL_}, v73, v76")
    else:
        A(f"s_lshl_b32 s64, s{S_REC}, 10")
        A(f"s_add_u32 s64, s64, {WS_H1O}")
        A(f"s_lshl_b32 s65, s{S_REC}, 7")
        A(f"s_add_u32 s65, s65, {WS_H1ML}")
        A(f"v_mov_b32 v74, v{VMC}")
    A(f"buffer_store_dwordx4 v[{VACC}:{VACC+3}], v1, s[{SRD_WS}:{SRD_WS+3}], s64 offen {HST}")
    A("v_readlane_b32 s66, v74, 0")
    A(f"v_readlane_b32 s67, v{VL_}, 0")
    A("v_readlane_b32 s68, v74, 4")
    A(f"v_readlane_b32 s69, v{VL_}, 4")
    for k in range(4): A(f"v_mov_b32 v{68+k}, s{66+k}")
    A("s_mov_b64 exec, 0xff")
    A(f"buffer_store_dwordx4 v[68:71], v1, s[{SRD_WS}:{SRD_WS+3}], s65 offen {HST}")
    A("s_mov_b64 exec, -1")
    if P.get("wo_afterpub"):
        A("v_mov_b32 v35, 1")
        A(f"ds_write_b32 v34, v35 offset:{PUBD}")
    stamp(A, P, 4)
    if NA == 1: A("s_barrier")
    A.lab("L_att_join")
    A(f"s_cmp_eq_u32 s{S_WCB}, 255")
    A("s_cbranch_scc1 L_end")
    wo_prep()
    A("s_branch L_wogemv")
    A.lab("L_end")
    stamp_flush(A, P)
    A.lab("L_exit")
    A("s_endpgm")
    body = fix_hazards(A.L[body_start:], verbose=P.get("verbose", False))
    out = A.L[:body_start] + body
    out.append(".p2align 6")
    out.append(".type L_table,@object")
    out.append("L_table:")
    for row in tab: out.append("  .long " + ", ".join(str(v) for v in row))
    out.append(".size L_table, 8192")
    out += ['.section .rodata,"a"', ".p2align 6", f".amdhsa_kernel {NAME}",
            "  .amdhsa_next_free_vgpr 512", "  .amdhsa_next_free_sgpr 102", "  .amdhsa_accum_offset 256",
            "  .amdhsa_group_segment_fixed_size 0", "  .amdhsa_kernarg_size 96", "  .amdhsa_user_sgpr_count 2",
            "  .amdhsa_user_sgpr_kernarg_segment_ptr 1", "  .amdhsa_system_sgpr_workgroup_id_x 1",
            "  .amdhsa_float_denorm_mode_32 3",
            ".end_amdhsa_kernel"]
    return "\n".join(out) + "\n"

if __name__ == "__main__":
    P = eval(sys.argv[2]) if len(sys.argv) > 2 else {}
    P.setdefault("verbose", True)
    s = gen(P)
    open(sys.argv[1] if len(sys.argv) > 1 else "k.s", "w").write(s)
```
